```python
import torch

def _softmax(x, axis=-1):
    return torch.softmax(x, dim=axis)
def _gelu(x):
    return torch.nn.functional.gelu(x, approximate="tanh")
def _silu(x):
    return torch.nn.functional.silu(x)
def _sigmoid(x):
    return torch.sigmoid(x)
def _layernorm(x, axis=-1, eps=1e-5):
    m = x.mean(dim=axis, keepdim=True)
    v = x.var(dim=axis, keepdim=True, unbiased=False)
    return (x - m) / torch.sqrt(v + eps)
def _scatter_add(tgt, idx, src, axis=0):
    return tgt.clone().index_add_(axis, idx, src)
def _segment_sum(src, seg, n):
    out = torch.zeros((n,) + src.shape[1:], dtype=src.dtype)
    return out.index_add_(0, seg, src)
def _pad(x, pw):
    flat = tuple(v for pair in reversed(pw) for v in pair)
    return torch.nn.functional.pad(x, flat)

kernel_name = 'recurrent_scan__ssm_conv_s4d__dense_activation_mish__prompt'

def setup_inputs():

    _w = (lambda a: (lambda t: t.to(torch.bfloat16) if t.is_floating_point() else t)(torch.as_tensor(a)))
    def _A_setup():
        Bsz, L, D, N = 1, 2048, 512, 128
        return {
            "u": _w((lambda *s: torch.randn(*s, dtype=torch.bfloat16) * 0.05)(Bsz, L, D)),
            "log_A_real": _w((lambda *s: torch.randn(*s, dtype=torch.bfloat16) * 3.2)(D, N) * 0.5),
            "A_imag": _w((lambda *s: torch.randn(*s, dtype=torch.bfloat16) * 0.2)(D, N) * 3.14),
            "C_real": _w((lambda *s: torch.randn(*s, dtype=torch.bfloat16) * 0.8)(D, N) / N ** 0.5),
            "C_imag": _w((lambda *s: torch.randn(*s, dtype=torch.bfloat16) * 0.8)(D, N) / N ** 0.5),
            "log_dt": _w((lambda *s: torch.randn(*s, dtype=torch.bfloat16) * 0.2)(D) * 0.5 - 4.0),
            "D_skip": _w((lambda *s: torch.randn(*s, dtype=torch.bfloat16) * 0.2)(D)),
        }
    _A_in = _A_setup()

    def _B_setup():
        B, S, D, F = 1, 2048, 512, 1376
        return {
            "x": _w((lambda *s: torch.randn(*s, dtype=torch.bfloat16) * 0.05)(B, S, D)),
            "w1": _w((lambda *s: torch.randn(*s, dtype=torch.bfloat16) * 0.8)(D, F) * (D ** -0.5)),
            "b1": _w((lambda *s: torch.randn(*s, dtype=torch.bfloat16) * 0.4)(F)),
            "w2": _w((lambda *s: torch.randn(*s, dtype=torch.bfloat16) * 0.1)(F, D) * (F ** -0.5)),
        }
    _B_in = _B_setup()

    return {
        "A_u": _A_in["u"],
        "A_log_A_real": _A_in["log_A_real"],
        "A_A_imag": _A_in["A_imag"],
        "A_C_real": _A_in["C_real"],
        "A_C_imag": _A_in["C_imag"],
        "A_log_dt": _A_in["log_dt"],
        "A_D_skip": _A_in["D_skip"],
        "B_x": _B_in["x"],
        "B_w1": _B_in["w1"],
        "B_b1": _B_in["b1"],
        "B_w2": _B_in["w2"],
    }

def reference(A_u, A_log_A_real, A_A_imag, A_C_real, A_C_imag, A_log_dt, A_D_skip, B_x, B_w1, B_b1, B_w2):
    def _A_ref(u, log_A_real, A_imag, C_real, C_imag, log_dt, D_skip):
        L = u.shape[1]
        dt = torch.exp(log_dt)
        A = -torch.exp(log_A_real) + 1j * A_imag
        C = (C_real + 1j * C_imag) * dt[:, None]
        pos = (lambda x, dt: x.to(dt))(torch.arange(L), log_dt.dtype)
        P = torch.exp((A * dt[:, None])[:, :, None] * pos[None, None, :])
        K = 2.0 * torch.einsum("dn,dnl->dl", C, P).real
        L2 = 2 * L
        u_t = (lambda x, *d: x.permute(*d))(u, 0, 2, 1)
        Kf = (lambda x, *a, **k: torch.fft.rfft(x.float(), *a, **k))(K, L2)
        Uf = (lambda x, *a, **k: torch.fft.rfft(x.float(), *a, **k))(u_t, L2)
        y = (lambda x, *a, **k: torch.fft.irfft(x, *a, **k).to(torch.bfloat16))(Uf * Kf[None, :, :], L2)[:, :, :L]
        y = (lambda x, *d: x.permute(*d))(y, 0, 2, 1)
        return y + u * D_skip[None, None, :]

    def _B_ref(x, w1, b1, w2):
        h = torch.einsum("bsd,df->bsf", x, w1) + b1
        sp = torch.log1p(torch.exp(-torch.abs(h))) + torch.where(h > 0, h, torch.zeros_like(h))
        act = h * torch.tanh(sp)
        return torch.einsum("bsf,fd->bsd", act, w2)

    x = A_u
    xn = _layernorm(x, axis=-1)
    s = _A_ref(xn, A_log_A_real, A_A_imag, A_C_real, A_C_imag, A_log_dt, A_D_skip)
    g = _silu(_B_ref(xn, B_w1, B_b1, B_w2))
    return x + s * g
```

```python
import re
from contextlib import contextmanager

REG_RE = re.compile(r'(?<![\w.])([vas])(?:\[(\d+):(\d+)\]|(\d+))(?![\w\[])')
SPECIAL = ('vcc', 'exec', 'm0', 'vcc_lo', 'vcc_hi', 'exec_lo', 'exec_hi', 'scc')

def regs_of(op):
    out = set()
    for m in REG_RE.finditer(op):
        t = m.group(1)
        if m.group(4) is not None:
            out.add((t, int(m.group(4))))
        else:
            for i in range(int(m.group(2)), int(m.group(3)) + 1):
                out.add((t, i))
    for w in re.findall(r'[a-z_0-9]+', op):
        if w in ('vcc', 'vcc_lo', 'vcc_hi'): out.add(('x', 'vcc'))
        elif w in ('exec', 'exec_lo', 'exec_hi'): out.add(('x', 'exec'))
        elif w == 'm0': out.add(('x', 'm0'))
    return out

def split_ops(s):
    ops, depth, cur = [], 0, ''
    for ch in s:
        if ch == '[': depth += 1
        if ch == ']': depth -= 1
        if ch == ',' and depth == 0:
            ops.append(cur.strip()); cur = ''
        else:
            cur += ch
    if cur.strip(): ops.append(cur.strip())
    return ops

TRANS = ('v_exp_', 'v_log_', 'v_rcp_', 'v_rsq_', 'v_sqrt_', 'v_sin_', 'v_cos_')
NODEF_SALU = ('s_cmp', 's_waitcnt', 's_barrier', 's_branch', 's_cbranch', 's_nop', 's_setprio', 's_sleep', 's_endpgm', 's_bitcmp', 's_setreg', 's_sethalt', 's_trap')

class Ins:
    __slots__ = ('text', 'op', 'kind', 'defs', 'uses', 'cond', 'tag', 'pre_wait', 'pre_nop', 'mfC', 'passes', 'wide_store', 'dpp', 'partial', 'manual')
    def __init__(self, text, cond=None, tag=None):
        self.text = text.strip(); self.cond = cond; self.tag = tag
        self.pre_wait = None; self.pre_nop = 0
        self.defs = set(); self.uses = set(); self.mfC = set(); self.passes = 0
        self.wide_store = False; self.dpp = False; self.partial = False; self.manual = False
        self.parse()
    def parse(self):
        t = self.text
        if t.endswith(':') or t.startswith('.') or t.startswith(';') or t == '':
            self.op = t; self.kind = 'label' if t.endswith(':') else 'dir'; return
        body = t.split(';')[0].strip()
        m = re.match(r'(\S+)\s*(.*)', body)
        op, rest = m.group(1), m.group(2)
        self.op = op
        ops = split_ops(rest)
        R = [regs_of(o) for o in ops]
        allregs = set().union(*R) if R else set()
        if op.startswith('v_mfma'):
            self.kind = 'mfma'
            self.defs = R[0]; self.uses = R[1] | R[2] | R[3]; self.mfC = R[3]
            self.passes = 8 if '32x32' in op else 4
            self.mfAB = None
        elif op.startswith('v_'):
            self.kind = 'trans' if op.startswith(TRANS) else 'valu'
            self.dpp = ('_dpp' in op) or (' row_' in body) or ('quad_perm' in body) or ('wave_' in body)
            if op.startswith('v_cmp'):
                self.defs = R[0]; self.uses = set().union(*R[1:])
                if op.startswith('v_cmpx'): self.defs |= {('x', 'exec')}
            elif op.startswith(('v_readlane', 'v_readfirstlane')):
                self.defs = R[0]; self.uses = set().union(*R[1:])
            elif op.startswith('v_permlane') and 'swap' in op:
                self.defs = R[0] | R[1]; self.uses = R[0] | R[1]
            elif op.startswith(('v_add_co', 'v_sub_co', 'v_subrev_co', 'v_addc_co', 'v_subb_co', 'v_mad_u64', 'v_div_scale')):
                self.defs = R[0] | R[1]; self.uses = set().union(*R[2:])
            else:
                self.defs = R[0]; self.uses = set().union(*R[1:]) if len(R) > 1 else set()
                if op.startswith(('v_fmac', 'v_mac', 'v_pk_fmac', 'v_dot2c', 'v_dot4c', 'v_writelane', 'v_fmamk', 'v_fmaak')) and op.startswith(('v_fmac', 'v_mac', 'v_pk_fmac', 'v_dot2c', 'v_dot4c', 'v_writelane')):
                    self.uses |= R[0]
                if self.dpp: self.uses |= R[0]
                if 'UNUSED_PRESERVE' in body: self.uses |= R[0]
                if op.startswith('v_cndmask') and len(ops) == 3: self.uses |= {('x', 'vcc')}
                if '_sdwa' in op and 'dst_sel:DWORD' not in body: self.partial = True
                if 'op_sel:' in body and op.startswith(('v_cvt', 'v_fma_mixlo', 'v_fma_mixhi', 'v_mad_mix')) and not op.startswith('v_fma_mix_f32'): self.partial = True
                if op.startswith(('v_fma_mixlo', 'v_fma_mixhi')): self.uses |= R[0]; self.partial = True
        elif op.startswith('ds_'):
            if op.startswith(('ds_read', 'ds_bpermute', 'ds_permute', 'ds_swizzle')):
                self.kind = 'ds_read'; self.defs = R[0]; self.uses = set().union(*R[1:])
                if 'd16' in op: self.uses |= R[0]
            else:
                self.kind = 'ds_write'; self.uses = allregs
        elif op.startswith('buffer_') or op.startswith('global_'):
            lds = bool(re.search(r'\blds\b', rest))
            if op in ('buffer_wbl2', 'buffer_inv'):
                self.kind = 'vm_other'
            elif '_load' in op and lds:
                self.kind = 'dma'; self.uses = allregs | {('x', 'm0')}
            elif '_load' in op:
                self.kind = 'vm_load'; self.defs = R[0]; self.uses = set().union(*R[1:])
                if 'd16' in op: self.uses |= R[0]
            elif '_atomic' in op:
                self.kind = 'vm_store'; self.uses = allregs
                if re.search(r'\bsc0\b', rest): self.kind = 'vm_load'; self.defs = R[0]
            else:
                self.kind = 'vm_store'; self.uses = allregs
                self.wide_store = ('x4' in op) or ('x3' in op)
                if op.startswith('buffer_'): self.stdata = R[0]
                else: self.stdata = R[1]
        elif op.startswith('s_load') or op.startswith('s_buffer_load') or op in ('s_memtime', 's_memrealtime'):
            self.kind = 'smem'; self.defs = R[0]; self.uses = set().union(*R[1:]) if len(R) > 1 else set()
        elif op.startswith('s_'):
            if op == 's_waitcnt': self.kind = 'wait'
            elif op == 's_nop': self.kind = 'nop'
            elif op == 's_barrier': self.kind = 'barrier'
            elif op.startswith(('s_branch', 's_cbranch', 's_endpgm', 's_setpc')): self.kind = 'branch'; self.uses = allregs
            elif op.startswith(NODEF_SALU): self.kind = 'salu'; self.uses = allregs
            else:
                self.kind = 'salu'; self.defs = R[0] if R else set(); self.uses = set().union(*R[1:]) if len(R) > 1 else set()
                if 'saveexec' in op: self.defs |= {('x', 'exec')}; self.uses |= {('x', 'exec')}
                if op.startswith(('s_addk', 's_mulk', 's_cmov', 's_bitset')): self.uses |= R[0]
        else:
            raise ValueError('unknown instr ' + t)
    def stdata_regs(self):
        return getattr_safe(self, 'stdata')

def getattr_safe(o, n):
    try: return object.__getattribute__(o, n)
    except AttributeError: return set()

Ins.__slots__ = Ins.__slots__

class InsX(Ins):
    __slots__ = ('stdata', 'mfAB')

VM_MAX, LGKM_MAX = 63, 15

class Prog:
    def __init__(self, configs):
        self.ins = []
        self.configs = configs
        self._cond = None
    def e(self, text, tag=None):
        for line in text.split('\n'):
            line = line.strip()
            if not line: continue
            i = InsX(line, self._cond, tag)
            self.ins.append(i)
        return self.ins[-1]
    __call__ = e
    @contextmanager
    def cond(self, fn):
        old = self._cond
        self._cond = fn if old is None else (lambda c, a=old, b=fn: a(c) and b(c))
        yield
        self._cond = old
    @contextmanager
    def capture(self):
        saved = self.ins; self.ins = []; buf = []
        try:
            yield buf
        finally:
            buf.extend(self.ins); self.ins = saved
    def merge(self, main, groups, start=0, end=None):
        n = len(main); end = n if end is None else end
        g = len(groups); k = 0
        for idx, i in enumerate(main):
            while k < g and idx >= start + (end - start) * k / max(g, 1):
                self.ins.extend(groups[k]); k += 1
            self.ins.append(i)
        while k < g:
            self.ins.extend(groups[k]); k += 1
    def wait_tag(self, tag, extra=''):
        i = InsX('s_nop 0', self._cond); i.kind = 'waittag'; i.tag = tag; i.text = '; wait_tag ' + str(tag)
        self.ins.append(i)
    def wait_lgkm_tag(self, tag):
        i = InsX('s_nop 0', self._cond); i.kind = 'waitlgkmtag'; i.tag = tag; i.text = '; wait_lgkm_tag ' + str(tag)
        self.ins.append(i)
    def reset_tracking(self):
        i = InsX('s_nop 0', self._cond); i.kind = 'reset'; i.text = '; reset'
        self.ins.append(i)
    def _active(self, i, c): return i.cond is None or i.cond(c)
    def insert_waits(self):
        need = {}
        def req(idx, vm=None, lg=None):
            w = need.setdefault(idx, [None, None])
            if vm is not None: w[0] = vm if w[0] is None else min(w[0], vm)
            if lg is not None: w[1] = lg if w[1] is None else min(w[1], lg)
        for c in self.configs:
            vmq = []
            lgq = []
            for idx, i in enumerate(self.ins):
                if not self._active(i, c): continue
                k = i.kind
                if k in ('label', 'dir'): continue
                if k == 'reset': vmq = []; lgq = []; continue
                if k == 'wait':
                    m = re.search(r'vmcnt\((\d+)\)', i.text)
                    if m:
                        n = int(m.group(1)); vmq = vmq[len(vmq) - n:] if n < len(vmq) else vmq
                        if n == 0: vmq = []
                    m = re.search(r'lgkmcnt\((\d+)\)', i.text)
                    if m:
                        n = int(m.group(1))
                        if n == 0: lgq = []
                        elif not any(x[2] for x in lgq): lgq = lgq[len(lgq) - n:] if n < len(lgq) else lgq
                    continue
                if k == 'waittag':
                    pos = [p for p, x in enumerate(vmq) if x[1] == i.tag]
                    if pos:
                        n = len(vmq) - 1 - pos[-1]
                        n = min(n, VM_MAX - 1)
                        req(idx, vm=n); vmq = vmq[len(vmq) - n:] if n else []
                    continue
                if k == 'waitlgkmtag':
                    pos = [p for p, x in enumerate(lgq) if x[1] == i.tag]
                    if pos:
                        n = len(lgq) - 1 - pos[-1]
                        if any(x[2] for x in lgq): n = 0
                        n = min(n, LGKM_MAX - 1)
                        req(idx, lg=n); lgq = lgq[len(lgq) - n:] if n else []
                    continue
                touch = i.uses | i.defs
                pos = [p for p, x in enumerate(vmq) if x[0] & touch]
                if pos:
                    n = min(len(vmq) - 1 - pos[-1], VM_MAX - 1)
                    req(idx, vm=n); vmq = vmq[len(vmq) - n:] if n else []
                pos = [p for p, x in enumerate(lgq) if x[0] & touch]
                if pos:
                    n = len(lgq) - 1 - pos[-1]
                    if any(x[2] for x in lgq): n = 0
                    n = min(n, LGKM_MAX - 1)
                    req(idx, lg=n); lgq = lgq[len(lgq) - n:] if n else []
                if k in ('vm_load',): vmq.append([set(i.defs), i.tag])
                elif k in ('vm_store', 'dma', 'vm_other'): vmq.append([set(), i.tag])
                elif k == 'ds_read': lgq.append([set(i.defs), i.tag, False])
                elif k == 'ds_write': lgq.append([set(), i.tag, False])
                elif k == 'smem': lgq.append([set(i.defs), i.tag, True])
        for idx, (vm, lg) in need.items():
            self.ins[idx].pre_wait = (vm, lg)
    def insert_nops(self):
        pad = {}
        for c in self.configs:
            hist = []
            seq = [(idx, i) for idx, i in enumerate(self.ins) if self._active(i, c)]
            window = []
            for idx, i in seq:
                k = i.kind
                if k in ('label', 'dir', 'reset'): continue
                extra_before = 0
                if i.pre_wait is not None: extra_before += 1
                if k in ('waittag', 'waitlgkmtag'):
                    if extra_before:
                        for w in window: w[1] += 1
                    continue
                needn = 0
                for p, dist in window:
                    r = hazard(p, i)
                    if r > dist + extra_before: needn = max(needn, r - dist - extra_before)
                needn = max(needn, pad.get(idx, 0))
                pad[idx] = needn
                adv = extra_before + needn + 1
                if k == 'nop':
                    adv = extra_before + needn + int(re.search(r's_nop\s+(\d+)', i.text).group(1)) + 1
                for w in window: w[1] += adv
                window.append([i, 0])
                window = [w for w in window if w[1] < 24]
        for idx, n in pad.items():
            self.ins[idx].pre_nop = n
    def render(self):
        self.insert_waits()
        self.insert_nops()
        out = []
        for i in self.ins:
            if i.pre_nop:
                n = i.pre_nop
                while n > 0:
                    m = min(n, 16); out.append(f'    s_nop {m-1}'); n -= m
            if i.pre_wait is not None:
                vm, lg = i.pre_wait
                s = []
                if vm is not None: s.append(f'vmcnt({vm})')
                if lg is not None: s.append(f'lgkmcnt({lg})')
                out.append('    s_waitcnt ' + ' '.join(s))
            if i.kind in ('waittag', 'waitlgkmtag', 'reset'):
                out.append('    ' + i.text); continue
            out.append(i.text if i.kind == 'label' or i.text.startswith('.') else '    ' + i.text)
        return '\n'.join(out) + '\n'

def isv(rs): return {r for r in rs if r[0] in 'va'}
def iss(rs): return {r for r in rs if r[0] == 's' or r == ('x', 'vcc')}
VALU = ('valu', 'trans')
def hazard(p, i):
    r = 0
    pk, ik = p.kind, i.kind
    if pk in VALU:
        pv = isv(p.defs)
        if ik == 'mfma' and pv & i.uses: r = max(r, 2)
        if ik in VALU:
            if i.dpp and pv & i.uses: r = max(r, 2)
            if i.op.startswith('v_permlane') and pv & i.uses: r = max(r, 2)
            if i.op.startswith(('v_readlane', 'v_readfirstlane')) and pv & i.uses: r = max(r, 1)
            if pk == 'trans' and pv & i.uses: r = max(r, 1)
            if p.partial and pv & (i.uses | i.defs): r = max(r, 1)
        ps = iss(p.defs)
        if ps:
            if ik in VALU and ps & i.uses:
                r = max(r, 4 if i.op.startswith(('v_readlane', 'v_writelane')) else 2)
            if ik in ('vm_load', 'vm_store', 'dma') and ps & i.uses: r = max(r, 5)
            if ik in ('salu', 'branch', 'smem') and ps & i.uses: r = max(r, 1)
        if ('x', 'exec') in p.defs:
            if ik == 'mfma': r = max(r, 4)
            if ik in VALU and i.dpp: r = max(r, 5)
            if ik in VALU and i.op.startswith(('v_readlane', 'v_readfirstlane', 'v_writelane', 'v_permlane')): r = max(r, 4)
    if pk == 'mfma':
        n8 = p.passes == 8
        if ik in VALU:
            if p.defs & (i.uses | i.defs): r = max(r, 12 if n8 else 8)
            if p.mfC & i.defs: r = max(r, 7 if n8 else 3)
        elif ik in ('vm_load', 'vm_store', 'dma', 'ds_read', 'ds_write'):
            if p.defs & (i.uses | i.defs): r = max(r, 12 if n8 else 8)
        elif ik == 'mfma':
            ab = (i.uses - i.mfC) if not (i.mfC & (i.uses - i.mfC)) else i.uses
            iab = operand_ab(i)
            if p.defs & iab: r = max(r, 12 if n8 else 8)
            if p.defs & i.mfC and not (p.defs == i.mfC and p.passes == i.passes): r = max(r, 10 if n8 else 6)
    if pk == 'salu' and ('x', 'm0') in p.defs and ik == 'dma': r = max(r, 1)
    if pk == 'vm_store' and p.wide_store:
        sd = getattr_safe(p, 'stdata')
        if sd & i.defs: r = max(r, 2 if ik in VALU else 1)
    return r

def operand_ab(i):
    body = i.text.split(';')[0]
    ops = split_ops(re.match(r'\s*(\S+)\s*(.*)', body).group(2))
    return regs_of(ops[1]) | regs_of(ops[2])
```

```python
class Regs:
    def __init__(self, kind, n, reserved=0):
        self.kind = kind; self.n = n
        self.owner = [None] * n
        for i in range(reserved): self.owner[i] = '_res'
        self.map = {}
        self.hi = reserved
    def alloc(self, name, cnt=1, align=None, at=None):
        assert name not in self.map, name
        if align is None: align = 1 if cnt == 1 else 2
        if at is not None:
            assert all(self.owner[j] is None for j in range(at, at + cnt)), (name, at, [self.owner[j] for j in range(at, at + cnt)])
            i = at
        else:
            i = 0
            while True:
                i = (i + align - 1) // align * align
                assert i + cnt <= self.n, f'out of {self.kind} regs for {name} x{cnt}'
                if all(self.owner[j] is None for j in range(i, i + cnt)): break
                i += 1
        for j in range(i, i + cnt): self.owner[j] = name
        self.map[name] = (i, cnt)
        self.hi = max(self.hi, i + cnt)
        return i
    def free(self, *names):
        for name in names:
            i, cnt = self.map.pop(name)
            for j in range(i, i + cnt): self.owner[j] = None
    def __getitem__(self, name): return self.map[name][0]
    def r(self, name, off=0, cnt=1):
        b = self.map[name][0] + off
        assert off + cnt <= self.map[name][1], (name, off, cnt)
        return f'{self.kind}{b}' if cnt == 1 else f'{self.kind}[{b}:{b+cnt-1}]'
def vr(b, cnt=1, k='v'):
    return f'{k}{b}' if cnt == 1 else f'{k}[{b}:{b+cnt-1}]'
```

```python
import sys, math
from asmgen import Prog
from regs import Regs, vr

NAME = 'recurrent_scan__ssm_conv_s4d__dense_activation_mish__prompt_kernel'

WS_XNF  = 0x000000
WS_UBLK = 0x200000
WS_ACT  = 0x400000
WS_ST   = 0xA00000
WS_FLG  = 0xC00000
FL_A    = WS_FLG + 0x1000
FL_B    = WS_FLG + 0x2000
FL_C    = WS_FLG + 0x4000
WS_DBG  = 0x1000000
WS_BYTES = 0x10000000

L_W   = 0
L_F   = 98304
F_WAVE = 14416
L_T   = L_F + 4 * F_WAVE
T_CH  = 3104
T_ZERO = 3072
L_MISC = L_T + 2 * T_CH
LDS_BYTES = 163840
TBF_STR, TH_STR = 1056, 1088
L_TBF = L_F
L_TH  = L_F + 8 * TBF_STR
KC_STR = 4416
L_KC  = L_F
L_U   = L_F + 2 * 4 * KC_STR
U_CH  = 7680
X0 = 2080

LOG2E = 1.4426950408889634
def f32(x):
    import struct
    return '0x%08x' % struct.unpack('<I', struct.pack('<f', x))[0]

sBETA, sWAVE, sTT, sFB0, sNBLK = 's3', 's4', 's5', 's6', 's7'
SX, SW1, SW2, SWS, SOUT, SB1 = 's[8:11]', 's[12:15]', 's[16:19]', 's[20:23]', 's[24:27]', 's[28:31]'
pLOGA, pAIM, pCRE, pCIM, pLOGDT, pDSK = 's[32:33]', 's[34:35]', 's[36:37]', 's[38:39]', 's[40:41]', 's[42:43]'
sNONCE, sTG, sCG, sLDT, sDSK = 's46', 's47', 's48', 's49', 's50'
sSIG, sDV = 's44', 's45'
pDBG = 's[92:93]'

class Gen:
    def __init__(self, stop=None, stamps=False, dump=None):
        self.stop = stop; self.stamps = stamps; self.dump = dump or set()
        cfgs = [dict(w=w, nblk=n) for w in range(4) for n in (2, 3)]
        self.p = Prog(cfgs)
        self.V = Regs('v', 255 if stamps else 256, reserved=2)
        self.A = Regs('a', 256)
        self.nstamp = 0
        self.uid = 0
    def lab(self, s):
        self.uid += 1
        return f'L_{s}_{self.uid}'
    def stamp(self, name):
        if not self.stamps: return
        p = self.p
        i = self.nstamp; self.nstamp += 1
        self.stamp_names = getattr(self, 'stamp_names', []) + [name]
        p('s_memtime s[94:95]')
        p('s_waitcnt lgkmcnt(0)')
        self.stamp_lines = getattr(self, 'stamp_lines', []) + [f'; stamp {name}']
        p(f'v_writelane_b32 v255, s94, {i}')
    def prologue(self):
        p = self.p
        p(f'''
        s_load_dwordx16 s[64:79], s[0:1], 0
        s_load_dwordx8 s[80:87], s[0:1], 64
        s_load_dwordx4 s[88:91], s[0:1], 96
        s_cmp_ge_u32 s2, 256
        s_cbranch_scc1 L_end
        v_and_b32 v1, 63, v0
        v_lshrrev_b32 v2, 6, v0
        s_and_b32 s52, s2, 7
        s_lshr_b32 s53, s2, 3
        v_readfirstlane_b32 {sWAVE}, v2
        s_lshl_b32 {sBETA}, s52, 5
        s_add_u32 {sBETA}, {sBETA}, s53
        s_lshr_b32 {sTT}, {sBETA}, 4
        s_and_b32 s54, {sBETA}, 15
        s_mul_i32 {sFB0}, s54, 3
        s_lshl_b32 s55, s54, 1
        s_add_u32 s55, s55, 11
        s_cmp_lt_u32 s54, 11
        s_cselect_b32 {sFB0}, {sFB0}, s55
        s_cselect_b32 {sNBLK}, 3, 2
        s_lshr_b32 {sTG}, {sBETA}, 3
        s_and_b32 {sCG}, {sBETA}, 7
        s_waitcnt lgkmcnt(0)
        s_mov_b32 s8, s64
        s_mov_b32 s9, s65
        s_mov_b32 s10, 0x200000
        s_mov_b32 s11, 0x20000
        s_mov_b32 s12, s80
        s_mov_b32 s13, s81
        s_mov_b32 s14, {512*1376*2}
        s_mov_b32 s15, 0x20000
        s_mov_b32 s16, s84
        s_mov_b32 s17, s85
        s_mov_b32 s18, {512*1376*2}
        s_mov_b32 s19, 0x20000
        s_mov_b32 s20, s90
        s_mov_b32 s21, s91
        s_mov_b32 s22, {WS_BYTES}
        s_mov_b32 s23, 0x20000
        s_mov_b32 s24, s86
        s_mov_b32 s25, s87
        s_mov_b32 s26, 0x200000
        s_mov_b32 s27, 0x20000
        s_mov_b32 s28, s82
        s_mov_b32 s29, s83
        s_mov_b32 s30, {1376*2}
        s_mov_b32 s31, 0x20000
        s_mov_b64 {pLOGA}, s[66:67]
        s_mov_b64 {pAIM}, s[68:69]
        s_mov_b64 {pCRE}, s[70:71]
        s_mov_b64 {pCIM}, s[72:73]
        s_mov_b64 {pLOGDT}, s[74:75]
        s_mov_b64 {pDSK}, s[76:77]
        s_mov_b64 {pDBG}, s[88:89]
        ''')
        self.stamp('start')
    def initial_loads(self):
        p, V = self.p, self.V
        x0 = V.alloc('x0', 4); x1 = V.alloc('x1', 4)
        t = V.alloc('t0'); t2 = V.alloc('t1')
        p(f'''
        s_lshl_b32 s52, {sBETA}, 3
        s_lshl_b32 s53, {sWAVE}, 1
        s_add_u32 s52, s52, s53
        s_lshl_b32 s52, s52, 10
        v_lshlrev_b32 v{t}, 4, v1
        buffer_load_dwordx4 {vr(x0,4)}, v{t}, {SX}, s52 offen
        buffer_load_dwordx4 {vr(x1,4)}, v{t}, {SX}, s52 offen offset:1024
        ''')
        pr = V.alloc('par', 6)
        p(f'''
        s_lshr_b32 s53, {sWAVE}, 1
        s_lshl_b32 s54, {sBETA}, 1
        s_add_u32 s54, s54, s53
        s_lshl_b32 s54, s54, 8
        s_and_b32 s55, {sWAVE}, 1
        s_lshl_b32 s55, s55, 7
        s_add_u32 s56, s54, s55
        s_xor_b32 s55, s55, 128
        s_add_u32 s57, s54, s55
        v_lshlrev_b32 v{t2}, 1, v1
        v_add_u32 v{t}, s57, v{t2}
        v_add_u32 v{t2}, s56, v{t2}
        global_load_ushort v{pr}, v{t2}, {pLOGA}
        global_load_ushort v{pr+1}, v{t2}, {pAIM}
        global_load_ushort v{pr+2}, v{t2}, {pCRE}
        global_load_ushort v{pr+3}, v{t2}, {pCIM}
        global_load_ushort v{pr+4}, v{t}, {pCRE}
        global_load_ushort v{pr+5}, v{t}, {pCIM}
        s_lshl_b32 s52, {sBETA}, 2
        s_load_dword {sLDT}, {pLOGDT}, s52
        s_load_dword {sDSK}, {pDSK}, s52
        ''')
        nv = V.alloc('nonce')
        p(f'''
        v_mov_b32 v{t}, {WS_FLG}
        buffer_load_dword v{nv}, v{t}, {SWS}, 0 offen sc1
        ''')
        b = V.alloc('bias', 24)
        p(f'''
        v_lshrrev_b32 v{t}, 5, v1
        v_lshlrev_b32 v{t}, 3, v{t}
        s_lshl_b32 s52, {sFB0}, 6
        ''')
        for blk in range(3):
            for q in range(4):
                p(f'buffer_load_dwordx2 {vr(b+8*blk+2*q,2)}, v{t}, {SB1}, s52 offen offset:{64*blk+16*q}')
        V.free('t0', 't1')
    def w1_dma_groups(self):
        p, V = self.p, self.V
        vo = V.alloc('w1off', 3); t = V.alloc('w1t', 2)
        for k in range(3):
            p(f'''
            v_add_u32 v{t}, {64*k}, v1
            v_mul_u32_u24 v{t+1}, 171, v{t}
            v_lshrrev_b32 v{t+1}, 11, v{t+1}
            v_mul_u32_u24 v{vo+k}, 12, v{t+1}
            v_sub_u32 v{vo+k}, v{t}, v{vo+k}
            v_lshlrev_b32 v{vo+k}, 4, v{vo+k}
            v_mul_u32_u24 v{t+1}, 2752, v{t+1}
            v_add_u32 v{vo+k}, v{vo+k}, v{t+1}
            ''')
        V.free('w1t')
        p(f'''
        s_mul_i32 s60, {sWAVE}, {128*2752}
        s_lshl_b32 s61, {sFB0}, 6
        s_add_u32 s60, s60, s61
        s_mul_i32 s61, {sWAVE}, {24*1024}
        s_add_u32 s61, s61, {L_W}
        ''')
        groups = []
        for g in range(8):
            for k in range(3):
                with p.capture() as b:
                    p(f's_mov_b32 m0, s61')
                    p(f's_add_u32 s61, s61, 1024')
                    p(f'buffer_load_dwordx4 v{vo+k}, {SW1}, s60 offen lds', tag='w1dma')
                    if k == 2: p(f's_add_u32 s60, s60, {16*2752}')
                groups.append(b)
        return groups
    def idle_setup(self):
        p, V = self.p, self.V
        ea = V.alloc('expad', 11); t = V.alloc('ist', 6, align=2)
        p(f'v_lshlrev_b32 v{t}, 3, v0')
        p(f'v_sub_u32 v{t}, 2033, v{t}')
        for d in range(0, 11):
            J = t + 1; fJ = t + 2; c = ea + d
            p(f'''
            v_add_u32 v{J}, {d}, v{t}
            v_cvt_f32_i32 v{fJ}, v{J}
            v_cvt_pk_bf16_f32 v{fJ}, v{fJ}, v{fJ}
            v_and_b32 v{fJ}, 0xffff, v{fJ}
            v_subrev_u32 v{c}, 17024, v{fJ}
            v_cmp_gt_i32 vcc, 128, v{J}
            v_cndmask_b32 v{c}, v{c}, v{J}, vcc
            v_cmp_gt_i32 vcc, 0, v{J}
            v_mov_b32 v{fJ}, {T_ZERO//4}
            v_cndmask_b32 v{c}, v{c}, v{fJ}, vcc
            v_lshlrev_b32 v{c}, 2, v{c}
            v_add_u32 v{c}, {L_T}, v{c}
            ''')
        z = t + 2
        for k in range(4): p(f'v_mov_b32 v{z+k}, 0')
        p(f'v_lshlrev_b32 v{t}, 4, v0')
        p(f'v_add_u32 v{t}, {L_T}, v{t}')
        p(f'ds_write_b128 v{t}, {vr(z,4)}')
        p(f'''
        v_cmp_gt_u32 vcc, {(2*T_CH-4096)//16}, v0
        s_and_saveexec_b64 s[62:63], vcc
        ds_write_b128 v{t}, {vr(z,4)} offset:4096
        s_mov_b64 exec, s[62:63]
        ''')
        V.free('ist')
    def cmul(self, d, a, b):
        p = self.p
        p(f'v_pk_mul_f32 {vr(d,2)}, {vr(a,2)}, {vr(b,2)} op_sel:[0,0] op_sel_hi:[0,1]')
        p(f'v_pk_fma_f32 {vr(d,2)}, {vr(a,2)}, {vr(b,2)}, {vr(d,2)} op_sel:[1,1,0] op_sel_hi:[1,0,1] neg_lo:[1,0,0]')
    def cmul_multi(self, items):
        p = self.p
        for d, a, b in items:
            p(f'v_pk_mul_f32 {vr(d,2)}, {vr(a,2)}, {vr(b,2)} op_sel:[0,0] op_sel_hi:[0,1]')
        for d, a, b in items:
            p(f'v_pk_fma_f32 {vr(d,2)}, {vr(a,2)}, {vr(b,2)}, {vr(d,2)} op_sel:[1,1,0] op_sel_hi:[1,0,1] neg_lo:[1,0,0]')
    def kgen_setup(self):
        p, V = self.p, self.V
        pr = V['par']
        t = V.alloc('kt', 8, align=2)
        z = V.alloc('z', 2); Z = V.alloc('Z256', 2); C = V.alloc('Cn', 2)
        p(f'''
        s_lshr_b32 s52, {sWAVE}, 1
        s_lshl_b32 s53, {sLDT}, 16
        s_and_b32 s54, {sLDT}, 0xffff0000
        s_lshl_b32 s56, {sDSK}, 16
        s_and_b32 s55, {sDSK}, 0xffff0000
        s_cmp_eq_u32 s52, 0
        s_cselect_b32 s53, s53, s54
        s_cselect_b32 {sDV}, s56, s55
        v_mov_b32 v{t}, s53
        v_mul_f32 v{t}, {f32(LOG2E)}, v{t}
        v_lshlrev_b32 v{t+1}, 16, v{pr}
        v_mul_f32 v{t+1}, {f32(LOG2E)}, v{t+1}
        v_exp_f32 v{t}, v{t}
        v_exp_f32 v{t+1}, v{t+1}
        v_and_b32 v{t+2}, 0x7fff, v{pr+2}
        v_and_b32 v{t+3}, 0x7fff, v{pr+3}
        v_and_b32 v{t+4}, 0x7fff, v{pr+4}
        v_and_b32 v{t+5}, 0x7fff, v{pr+5}
        v_cvt_pk_bf16_f32 v{t}, v{t}, v{t+1}
        v_max3_u32 v{t+2}, v{t+2}, v{t+3}, v{t+4}
        v_max_u32 v{t+2}, v{t+2}, v{t+5}
        v_and_b32 v{t+1}, 0xffff0000, v{t}
        v_lshlrev_b32 v{t}, 16, v{t}
        ''')
        ctl = ['row_shr:1 row_mask:0xf bank_mask:0xf bound_ctrl:1', 'row_shr:2 row_mask:0xf bank_mask:0xf bound_ctrl:1',
               'row_shr:4 row_mask:0xf bank_mask:0xf bound_ctrl:1', 'row_shr:8 row_mask:0xf bank_mask:0xf bound_ctrl:1',
               'row_bcast:15 row_mask:0xa bank_mask:0xf', 'row_bcast:31 row_mask:0xc bank_mask:0xf']
        fill = [f'v_mul_f32 v{t+3}, v{t+1}, v{t}',
                f'v_lshlrev_b32 v{t+4}, 16, v{pr+1}',
                f'v_mul_f32 v{t+4}, v{t+4}, v{t}',
                f'v_mul_f32 v{t+3}, {f32(-LOG2E)}, v{t+3}',
                f'v_mul_f32 v{t+4}, {f32(1/(2*math.pi))}, v{t+4}',
                f'v_mul_f32 v{t+5}, {f32(256.0)}, v{t+3}']
        for c, f in zip(ctl, fill):
            p(f'v_max_u32_dpp v{t+2}, v{t+2}, v{t+2} {c}')
            p(f)
        p(f'''
        v_mul_f32 v{t+6}, {f32(256.0)}, v{t+4}
        v_readlane_b32 s52, v{t+2}, 63
        v_fract_f32 v{t+7}, v{t+4}
        v_fract_f32 v{t+6}, v{t+6}
        v_exp_f32 v{t+3}, v{t+3}
        v_exp_f32 v{t+5}, v{t+5}
        s_and_b32 s52, s52, 0x7f80
        s_lshl_b32 s52, s52, 16
        s_sub_u32 s53, 0x7f000000, s52
        v_cos_f32 v{z}, v{t+7}
        v_sin_f32 v{z+1}, v{t+7}
        v_cos_f32 v{Z}, v{t+6}
        v_sin_f32 v{Z+1}, v{t+6}
        v_mul_f32 v{t}, s52, v{t}
        v_lshlrev_b32 v{C}, 16, v{pr+2}
        v_lshlrev_b32 v{C+1}, 16, v{pr+3}
        v_add_f32 v{t}, v{t}, v{t}
        v_mul_f32 v{C}, s53, v{C}
        v_mul_f32 v{C+1}, s53, v{C+1}
        v_readfirstlane_b32 {sSIG}, v{t}
        v_mul_f32 v{z}, v{z}, v{t+3}
        v_mul_f32 v{z+1}, v{z+1}, v{t+3}
        v_mul_f32 v{Z}, v{Z}, v{t+5}
        v_mul_f32 v{Z+1}, v{Z+1}, v{t+5}
        ''')
        V.free('kt', 'par')
    def kgen_values(self):
        p, V = self.p, self.V
        z, Z, C = V['z'], V['Z256'], V['Cn']
        fa = V.alloc('fa')
        p(f's_mul_i32 s52, {sWAVE}, {F_WAVE}\ns_add_u32 s52, s52, {L_F}')
        p(f'v_lshlrev_b32 v{fa}, 2, v1\nv_add_u32 v{fa}, s52, v{fa}')
        cv = V.alloc('cv', 4); self._cvi = 0
        def put(row, r, neg=False):
            c = cv + (self._cvi & 3); self._cvi += 1
            p(f'v_cvt_pk_f16_f32 v{c}, v{r}, {"-" if neg else ""}v{r+1}')
            p(f'ds_write_b32 v{fa}, v{c} offset:{row*272}')
        z2 = V.alloc('z2', 2); z4 = V.alloc('z4', 2); w = V.alloc('w', 2); w2 = V.alloc('w2', 2); w4 = V.alloc('w4', 2)
        ch = V.alloc('chains', 16, align=2)
        put(0, C)
        self.cmul(z2, z, z)
        La, Lb, Ma, Mb = ch, ch + 2, ch + 4, ch + 6
        self.cmul_multi([(La, C, z), (Ma, C, Z), (z4, z2, z2)])
        put(1, La); put(8, Ma)
        self.cmul_multi([(Lb, La, z), (Mb, Ma, Z), (w, z4, z4), (ch + 8, Ma, z2)])
        put(2, Lb); put(12, Mb); put(9, ch + 8)
        self.cmul_multi([(La, Lb, z), (Ma, Mb, Z), (w2, w, w), (ch + 10, ch + 8, z2), (ch + 12, Mb, z4)])
        put(3, La); put(14, Ma); put(10, ch + 10); put(13, ch + 12)
        self.cmul_multi([(Lb, La, z), (Mb, Ma, Z), (w4, w2, w2), (ch + 8, ch + 10, z2), (ch + 12, Ma, z4), (ch + 14, w2, w)])
        put(4, Lb); put(16, Mb); put(11, ch + 8); put(15, ch + 12)
        c = cv + (self._cvi & 3); self._cvi += 1
        p(f'v_mov_b32 v{c}, 0x3c00')
        p(f'ds_write_b32 v{fa}, v{c} offset:{21*272}')
        put(22, w, True); put(23, w2, True); put(24, ch + 14, True)
        self.cmul_multi([(La, Lb, z), (Ma, Mb, Z)])
        put(5, La); put(17, Ma)
        self.cmul_multi([(Lb, La, z), (Mb, Ma, Z)])
        put(6, Lb); put(18, Mb)
        self.cmul_multi([(La, Lb, z), (Ma, Mb, Z)])
        put(7, La); put(19, Ma)
        self.cmul_multi([(Mb, Ma, Z)])
        put(20, Mb)
        A_ = [ch, ch + 2, ch + 4, ch + 6]; B_ = [ch + 8, ch + 10, ch + 12, z]
        Z2 = Z
        r3 = ch + 14
        self.cmul_multi([(A_[1], w, w4), (A_[2], w2, w4), (A_[3], r3, w4)])
        put(21 + 4, w4, True); put(21 + 5, A_[1], True); put(21 + 6, A_[2], True); put(21 + 7, A_[3], True)
        cur = [w4, A_[1], A_[2], A_[3]]
        nxt_sets = [[B_[0], B_[1], B_[2], B_[3]], [A_[0], A_[1], A_[2], A_[3]]]
        for step in range(2, 8):
            nx = nxt_sets[step & 1]
            self.cmul_multi([(nx[k], cur[k], w4) for k in range(4)])
            for k in range(4): put(21 + 4 * step + k, nx[k], True)
            cur = nx
        V.free('z', 'Z256', 'Cn', 'z2', 'z4', 'w', 'w2', 'w4', 'chains', 'cv', 'fa')
    def kgen_mfma(self):
        p, V = self.p, self.V
        acc = V.alloc('kacc', 8, align=2); fr = V.alloc('kfr', 36, align=2); ra = V.alloc('kra', 2); ta = V.alloc('kta', 4)
        p(f'''
        v_and_b32 v{ra}, 15, v1
        v_lshrrev_b32 v{ra+1}, 4, v1
        v_lshlrev_b32 v{ta}, 4, v{ra+1}
        v_mul_u32_u24 v{ta+1}, 272, v{ra}
        v_add_u32 v{ta}, v{ta}, v{ta+1}
        s_and_b32 s52, {sWAVE}, 2
        s_mul_i32 s52, s52, {F_WAVE}
        s_add_u32 s52, s52, {L_F}
        v_add_u32 v{ta}, s52, v{ta}
        s_and_b32 s53, {sWAVE}, 1
        s_mul_i32 s53, s53, {16*272}
        s_add_u32 s53, s53, {21*272}
        v_add_u32 v{ta+1}, s53, v{ta}
        ''')
        def rd(s):
            b = fr + 12 * (s % 3); o = F_WAVE * (s >> 2) + 64 * (s & 3)
            p(f'ds_read_b128 {vr(b,4)}, v{ta} offset:{o}')
            p(f'ds_read_b128 {vr(b+4,4)}, v{ta} offset:{o+16*272}')
            p(f'ds_read_b128 {vr(b+8,4)}, v{ta+1} offset:{o}')
        for s_ in range(2): rd(s_)
        for s_ in range(8):
            if s_ + 2 < 8: rd(s_ + 2)
            b = fr + 12 * (s_ % 3)
            p(f'v_mfma_f32_16x16x32_f16 {vr(acc,4)}, {vr(b,4)}, {vr(b+8,4)}, {"0" if s_ == 0 else vr(acc,4)}')
            p(f'v_mfma_f32_16x16x32_f16 {vr(acc+4,4)}, {vr(b+4,4)}, {vr(b+8,4)}, {"0" if s_ == 0 else vr(acc+4,4)}')
        j8 = ra; g = ra + 1
        p(f'''
        s_and_b32 s53, {sWAVE}, 1
        s_lshl_b32 s53, s53, 4
        v_add_u32 v{j8}, s53, v{j8}
        s_lshr_b32 s52, {sWAVE}, 1
        s_mul_i32 s52, s52, {T_CH}
        s_add_u32 s52, s52, {L_T}
        v_lshlrev_b32 v{ta}, 5, v{j8}
        v_lshlrev_b32 v{ta+1}, 4, v{g}
        v_add_u32 v{ta}, v{ta}, v{ta+1}
        v_lshlrev_b32 v{ta+1}, 4, v{j8}
        v_add_u32 v{ta+1}, 1024, v{ta+1}
        v_cmp_eq_u32 vcc, 2, v{g}
        v_cndmask_b32 v{ta}, v{ta}, v{ta+1}, vcc
        v_lshlrev_b32 v{ta+1}, 3, v{j8}
        v_add_u32 v{ta+1}, 1536, v{ta+1}
        v_cmp_eq_u32 vcc, 3, v{g}
        v_cndmask_b32 v{ta}, v{ta}, v{ta+1}, vcc
        v_mov_b32 v{ta+1}, 8
        v_mov_b32 v{ta+2}, 256
        v_cndmask_b32 v{ta+1}, v{ta+1}, v{ta+2}, vcc
        v_add_u32 v{ta}, s52, v{ta}
        v_add_u32 v{ta+1}, v{ta+1}, v{ta}
        v_min_u32 v{ta+2}, 1, v{g}
        v_lshlrev_b32 v{ta+2}, 9, v{ta+2}
        v_lshlrev_b32 v{ta+3}, 2, v{j8}
        v_add_u32 v{ta+2}, v{ta+2}, v{ta+3}
        v_add_u32 v{ta+2}, s52, v{ta+2}
        v_add_u32 v{ta+2}, 2048, v{ta+2}
        ''')
        for r in range(2): p(f'ds_write_b32 v{ta}, v{acc+r} offset:{4*r}')
        for r in range(2): p(f'ds_write_b32 v{ta+1}, v{acc+2+r} offset:{4*r}')
        p(f'v_cmp_gt_u32 vcc, 2, v{g}\ns_and_saveexec_b64 s[62:63], vcc')
        for r in range(4): p(f'ds_write_b32 v{ta+2}, v{acc+4+r} offset:{128*r}')
        p('s_mov_b64 exec, s[62:63]')
        V.free('kacc', 'kfr', 'kra', 'kta')
    def expand(self):
        p, V = self.p, self.V
        ea = V['expad']
        val = V.alloc('ev', 22); o = V.alloc('eo', 16, align=2); ad = V.alloc('ead', 2)
        for c in range(2):
            for d in range(11):
                p(f'ds_read_b32 v{val+11*c+d}, v{ea+d} offset:{c*T_CH}')
        p(f'v_lshlrev_b32 v{ad}, 4, v0\nv_add_u32 v{ad}, {L_KC+80}, v{ad}')
        for c in range(2):
            for rho in range(4):
                b = o + 4 * rho
                for k in range(4):
                    p(f'v_cvt_pk_f16_f32 v{b+k}, v{val+11*c+7+rho-2*k}, v{val+11*c+6+rho-2*k}')
                p(f'ds_write_b128 v{ad}, {vr(b,4)} offset:{c*4*KC_STR+rho*KC_STR}')
        V.free('ev', 'eo', 'expad')
        t = V.alloc('ext', 8, align=2)
        l1 = self.lab('x1'); l2 = self.lab('x2'); l3 = self.lab('x3')
        p(f's_cmp_eq_u32 {sWAVE}, 0\ns_cbranch_scc0 {l1}')
        with p.cond(lambda c: c['w'] == 0):
            p(f'''
            v_bfe_u32 v{t}, v1, 3, 2
            v_and_b32 v{t+1}, 7, v1
            v_sub_u32 v{t+2}, v{t+1}, v{t}
            v_cmp_lt_i32 vcc, 4, v{t+2}
            v_mov_b32 v{t+3}, {L_T+640*4}
            v_mov_b32 v{t+4}, {L_T+639*4}
            v_cndmask_b32 v{t+3}, v{t+3}, v{t+4}, vcc
            v_lshrrev_b32 v{t+4}, 5, v1
            v_mul_u32_u24 v{t+5}, {T_CH}, v{t+4}
            v_add_u32 v{t+3}, v{t+3}, v{t+5}
            ds_read_b32 v{t+3}, v{t+3}
            v_mul_u32_u24 v{t+4}, {4*KC_STR}, v{t+4}
            v_mul_u32_u24 v{t}, {KC_STR}, v{t}
            v_add_u32 v{t}, v{t}, v{t+4}
            v_lshlrev_b32 v{t+1}, 1, v{t+1}
            v_add_u32 v{t}, v{t}, v{t+1}
            v_add_u32 v{t}, {L_KC+64}, v{t}
            v_cvt_f16_f32 v{t+3}, v{t+3}
            ds_write_b16 v{t}, v{t+3}
            ''')
        p(f's_branch {l3}\n{l1}:')
        p(f's_cmp_eq_u32 {sWAVE}, 1\ns_cbranch_scc0 {l2}')
        with p.cond(lambda c: c['w'] == 1):
            p(f'''
            v_lshrrev_b32 v{t}, 3, v1
            v_mul_u32_u24 v{t}, {KC_STR}, v{t}
            v_and_b32 v{t+1}, 7, v1
            v_lshlrev_b32 v{t+2}, 4, v{t+1}
            v_lshrrev_b32 v{t+1}, 2, v{t+1}
            v_mul_u32_u24 v{t+1}, {4176-64}, v{t+1}
            v_add_u32 v{t}, v{t}, v{t+2}
            v_add_u32 v{t}, v{t}, v{t+1}
            v_add_u32 v{t}, {L_KC}, v{t}
            v_mov_b32 v{t+4}, 0
            v_mov_b32 v{t+5}, 0
            v_mov_b32 v{t+6}, 0
            v_mov_b32 v{t+7}, 0
            ds_write_b128 v{t}, {vr(t+4,4)}
            ''')
        p(f's_branch {l3}\n{l2}:')
        with p.cond(lambda c: c['w'] >= 2):
            p(f'''
            s_sub_u32 s52, {sWAVE}, 2
            s_mul_i32 s52, s52, {U_CH}
            s_add_u32 s52, s52, {L_U}
            v_lshlrev_b32 v{t}, 4, v1
            v_add_u32 v{t}, s52, v{t}
            v_mov_b32 v{t+4}, 0
            v_mov_b32 v{t+5}, 0
            v_mov_b32 v{t+6}, 0
            v_mov_b32 v{t+7}, 0
            ds_write_b128 v{t}, {vr(t+4,4)}
            ds_write_b128 v{t}, {vr(t+4,4)} offset:1024
            v_cmp_gt_u32 vcc, 32, v1
            s_and_saveexec_b64 s[62:63], vcc
            ds_write_b128 v{t}, {vr(t+4,4)} offset:2048
            s_mov_b64 exec, s[62:63]
            ''')
        p(f'{l3}:')
        V.free('ext')
    def poll(self, vaddr, nlanes, width=1, name='poll'):
        p, V = self.p, self.V
        t = V.alloc('pl', 4, align=2)
        lp = self.lab(name); dn = self.lab(name + 'd')
        p(f's_mov_b32 s52, 0')
        p(f's_mov_b64 s[62:63], exec')
        if nlanes < 64: p(f's_mov_b64 exec, {hex((1 << nlanes) - 1)}')
        p(f'{lp}:')
        if width == 1:
            p(f'buffer_load_dword v{t}, v{vaddr}, {SWS}, 0 offen sc1')
            p('s_waitcnt vmcnt(0)')
            p(f'v_cmp_ne_u32 vcc, {sNONCE}, v{t}')
        else:
            p(f'buffer_load_dwordx4 {vr(t,4)}, v{vaddr}, {SWS}, 0 offen sc1')
            p('s_waitcnt vmcnt(0)')
            p(f'v_cmp_ne_u32 vcc, {sNONCE}, v{t}')
            p(f'v_cmp_ne_u32 s[54:55], {sNONCE}, v{t+2}')
            p(f's_or_b64 vcc, vcc, s[54:55]')
        p(f'''
        s_add_u32 s52, s52, 1
        s_cmp_eq_u64 vcc, 0
        s_cbranch_scc1 {dn}
        s_cmp_lt_u32 s52, 0x40000
        s_cbranch_scc1 {lp}
        ''')
        p(f'''
        v_mov_b32 v{t}, 0
        v_mov_b32 v{t+1}, 0xdead
        global_store_dword v{t}, v{t+1}, {pDBG}
        {dn}:
        s_mov_b64 exec, s[62:63]
        ''')
        V.free('pl')
    def gemm1(self):
        p, V, A = self.p, self.V, self.A
        xf = A.alloc('xnf', 128, align=4)
        t = V.alloc('g1t', 4)
        p(f'''
        s_lshl_b32 s56, {sTT}, 2
        s_add_u32 s56, s56, {sWAVE}
        s_lshl_b32 s57, s56, 6
        s_add_u32 s57, s57, {FL_A}
        v_lshlrev_b32 v{t}, 3, v1
        v_add_u32 v{t}, s57, v{t}
        ''')
        self.poll(t, 8, 1, 'pollA1')
        self.stamp('pollA1')
        p(f'''
        s_lshl_b32 s57, s56, 15
        s_add_u32 s57, s57, {WS_XNF}
        v_lshlrev_b32 v{t}, 4, v1
        ''')
        for ks in range(32):
            if ks % 4 == 0 and ks: p(f's_add_u32 s57, s57, 4096')
            p(f'buffer_load_dwordx4 {vr(xf+4*ks,4,"a")}, v{t}, {SWS}, s57 offen offset:{1024*(ks%4)} sc1')
        wa = V.alloc('w1a', 2)
        p(f'''
        v_lshrrev_b32 v{t}, 5, v1
        v_lshlrev_b32 v{t}, 3, v{t}
        v_bfe_u32 v{t+1}, v1, 2, 2
        v_add_u32 v{t}, v{t}, v{t+1}
        v_mul_u32_u24 v{t}, 192, v{t}
        v_bfe_u32 v{t+1}, v1, 4, 1
        v_lshlrev_b32 v{t+1}, 5, v{t+1}
        v_add_u32 v{t}, v{t}, v{t+1}
        v_and_b32 v{t+1}, 3, v1
        v_lshlrev_b32 v{t+1}, 3, v{t+1}
        v_add_u32 v{wa}, v{t}, v{t+1}
        v_add_u32 v{wa}, {L_W}, v{wa}
        v_add_u32 v{wa+1}, {16*3072}, v{wa}
        ''')
        sa = V.alloc('acta')
        p(f'''
        v_lshlrev_b32 v{sa}, 4, v1
        s_mul_i32 s58, s56, {86*1024}
        s_lshl_b32 s59, {sFB0}, 11
        s_add_u32 s58, s58, s59
        s_add_u32 s58, s58, {WS_ACT}
        ''')
        acc = V.alloc('g1acc', 16, align=2); fr = V.alloc('g1fr', 16, align=2); tm = V.alloc('g1tm', 16, align=2); pk = V.alloc('g1pk', 8, align=2)
        bias = V['bias']
        skip = self.lab('g1skip')
        for blk in range(3):
            ctx = p.cond(lambda c: c['nblk'] == 3) if blk == 2 else None
            if blk == 2:
                p(f's_cmp_eq_u32 {sNBLK}, 2\ns_cbranch_scc1 {skip}')
                ctx.__enter__()
            for q in range(4):
                for e in range(2):
                    b = bias + 8 * blk + 2 * q + e
                    p(f'v_lshlrev_b32 v{acc+4*q+2*e}, 16, v{b}')
                    p(f'v_and_b32 v{acc+4*q+2*e+1}, 0xffff0000, v{b}')
            def rd(ks):
                b = fr + 4 * (ks & 3); base = wa + (ks >> 4); o = (ks & 15) * 3072 + 64 * blk
                p(f'ds_read_b64_tr_b16 {vr(b,2)}, v{base} offset:{o}')
                p(f'ds_read_b64_tr_b16 {vr(b+2,2)}, v{base} offset:{o+768}')
            for ks in range(3): rd(ks)
            for ks in range(32):
                if ks + 3 < 32: rd(ks + 3)
                p(f'v_mfma_f32_32x32x16_bf16 {vr(acc,16)}, {vr(fr+4*(ks&3),4)}, {vr(xf+4*ks,4,"a")}, {vr(acc,16)}')
            self.mish(acc, tm, pk)
            p(f's_add_u32 s59, s58, {2048*blk}')
            p(f'buffer_store_dwordx4 {vr(pk,4)}, v{sa}, {SWS}, s59 offen sc1', tag='actst')
            p(f'buffer_store_dwordx4 {vr(pk+4,4)}, v{sa}, {SWS}, s59 offen offset:1024 sc1', tag='actst')
            if blk == 2:
                ctx.__exit__(None, None, None)
                p(f'{skip}:')
        V.free('g1t', 'w1a', 'acta', 'g1acc', 'g1fr', 'g1tm', 'g1pk', 'bias')
        A.free('xnf')
    def mish(self, acc, tm, pk):
        p = self.p
        for r in range(16): p(f'v_mul_f32 v{tm+r}, {f32(LOG2E)}, v{acc+r}')
        for r in range(16): p(f'v_exp_f32 v{tm+r}, v{tm+r}')
        for r in range(0, 16, 2):
            p(f'v_pk_add_f32 {vr(pk+(r&2),2)}, {vr(tm+r,2)}, 2.0 op_sel_hi:[1,0]')
            p(f'v_pk_fma_f32 {vr(tm+r,2)}, {vr(tm+r,2)}, {vr(pk+(r&2),2)}, 2.0 op_sel_hi:[1,1,0]')
        for r in range(16): p(f'v_rcp_f32 v{tm+r}, v{tm+r}')
        for r in range(0, 16, 2):
            p(f'v_pk_fma_f32 {vr(tm+r,2)}, {vr(tm+r,2)}, -2.0, 1.0 op_sel_hi:[1,0,0]')
        for r in range(0, 16, 2):
            p(f'v_pk_mul_f32 {vr(tm+r,2)}, {vr(tm+r,2)}, {vr(acc+r,2)}')
        for r in range(0, 16, 2):
            p(f'v_cvt_pk_bf16_f32 v{pk+r//2}, v{tm+r}, v{tm+r+1}')
    def act_flag(self):
        p = self.p
        p.wait_tag('actst')
        p(f'''
        s_lshl_b32 s53, {sTT}, 2
        s_add_u32 s53, s53, {sWAVE}
        s_lshl_b32 s53, s53, 4
        s_and_b32 s54, {sBETA}, 15
        s_add_u32 s53, s53, s54
        s_lshl_b32 s53, s53, 3
        ''')
        self.flag_store('s53', FL_B)
    def conv_load_u(self):
        p, V = self.p, self.V
        t = V.alloc('cut', 4); d = V.alloc('cud', 8, align=2)
        p(f'''
        s_lshl_b32 s56, {sWAVE}, 10
        s_add_u32 s56, s56, {FL_A}
        v_lshlrev_b32 v{t}, 4, v1
        v_add_u32 v{t}, s56, v{t}
        ''')
        self.poll(t, 64, 4, 'pollA2')
        self.stamp('pollA2')
        p(f'''
        s_lshl_b32 s56, {sWAVE}, 19
        s_lshl_b32 s57, {sBETA}, 5
        s_add_u32 s56, s56, s57
        s_add_u32 s56, s56, {WS_UBLK}
        v_lshlrev_b32 v{t}, 13, v1
        buffer_load_dwordx4 {vr(d,4)}, v{t}, {SWS}, s56 offen sc1
        buffer_load_dwordx4 {vr(d+4,4)}, v{t}, {SWS}, s56 offen offset:16 sc1
        s_lshl_b32 s57, {sWAVE}, 6
        s_add_u32 s57, s57, 128
        v_add_u32 v{t}, s57, v1
        v_lshrrev_b32 v{t+1}, 2, v{t}
        v_mul_u32_u24 v{t+1}, 80, v{t+1}
        v_and_b32 v{t}, 3, v{t}
        v_lshlrev_b32 v{t}, 4, v{t}
        v_add_u32 v{t}, v{t}, v{t+1}
        v_add_u32 v{t}, {L_U}, v{t}
        ds_write_b128 v{t}, {vr(d,4)}
        ds_write_b128 v{t}, {vr(d+4,4)} offset:{U_CH}
        s_waitcnt lgkmcnt(0)
        s_barrier
        ''')
        V.free('cut', 'cud')
        lab = self.lab('nw')
        p(f's_or_b32 s52, {sBETA}, {sWAVE}\ns_cmp_lg_u32 s52, 0\ns_cbranch_scc1 {lab}')
        with p.cond(lambda c: c['w'] == 0):
            p('s_mov_b32 s53, 0')
            self.flag_store('s53', WS_FLG)
        p(f'{lab}:')
    def conv(self):
        p, V = self.p, self.V
        t = V.alloc('cvt', 4)
        aA = V.alloc('cA', 3); aB = V.alloc('cB', 2)
        p(f'''
        v_and_b32 v{t}, 3, v1
        v_mul_u32_u24 v{t}, {KC_STR}, v{t}
        v_bfe_u32 v{t+1}, v1, 2, 3
        v_lshlrev_b32 v{t+1}, 3, v{t+1}
        v_sub_u32 v{t}, v{t}, v{t+1}
        v_lshrrev_b32 v{t+2}, 5, v1
        v_lshlrev_b32 v{t+3}, 4, v{t+2}
        v_add_u32 v{t}, v{t}, v{t+3}
        s_lshr_b32 s56, {sWAVE}, 1
        s_and_b32 s57, {sWAVE}, 1
        s_mul_i32 s58, s56, {4*KC_STR}
        s_add_u32 s58, s58, {L_KC + 2*X0}
        ''')
        p(f'''
        s_lshl_b32 s59, s57, 10
        s_sub_u32 s59, s58, s59
        s_sub_u32 s59, s59, 1024
        v_add_u32 v{aA}, s59, v{t}
        v_subrev_u32 v{aA+1}, 2048, v{aA}
        s_lshl_b32 s59, s57, 5
        s_sub_u32 s59, s58, s59
        s_add_u32 s59, s59, 32
        v_add_u32 v{aA+2}, s59, v{t}
        ''')
        p(f'''
        v_and_b32 v{t}, 31, v1
        v_mul_u32_u24 v{t}, 80, v{t}
        v_add_u32 v{t}, v{t}, v{t+3}
        s_mul_i32 s58, s56, {U_CH}
        s_add_u32 s58, s58, {L_U}
        s_mul_i32 s59, s57, {80*16}
        s_sub_u32 s59, s58, s59
        s_add_u32 s59, s59, {80*16}
        v_add_u32 v{aB}, s59, v{t}
        s_lshl_b32 s59, s57, 5
        s_sub_u32 s59, s58, s59
        s_add_u32 s59, s59, {80*32+32}
        v_add_u32 v{aB+1}, s59, v{t}
        ''')
        acc = V.alloc('cacc', 32, align=2); fr = V.alloc('cfr', 32, align=2)
        a0, a1 = acc, acc + 16
        def rd(i):
            b = fr + 16 * (i & 1)
            oa = 32 * (31 - i)
            ob = 80 * (15 - i // 2) + (32 if i % 2 == 0 else 0)
            p(f'ds_read_b64 {vr(b,2)}, v{aA} offset:{oa}')
            p(f'ds_read_b64 {vr(b+2,2)}, v{aA} offset:{oa+8}')
            p(f'ds_read_b128 {vr(b+8,4)}, v{aB} offset:{ob}')
            p(f'ds_read_b128 {vr(b+12,4)}, v{aB} offset:{ob+2560}')
            p(f'ds_read_b64 {vr(b+4,2)}, v{aA+1} offset:{oa}')
            p(f'ds_read_b64 {vr(b+6,2)}, v{aA+1} offset:{oa+8}')
        b = fr + 16
        p(f'ds_read_b64 {vr(b,2)}, v{aA+2}')
        p(f'ds_read_b64 {vr(b+2,2)}, v{aA+2} offset:8')
        p(f'ds_read_b128 {vr(b+8,4)}, v{aB+1}')
        p(f'ds_read_b128 {vr(b+12,4)}, v{aB+1} offset:2560')
        rd(0)
        p(f'v_mfma_f32_32x32x16_f16 {vr(a0,16)}, {vr(b,4)}, {vr(b+8,4)}, 0')
        p(f'v_mfma_f32_32x32x16_f16 {vr(a1,16)}, {vr(b,4)}, {vr(b+12,4)}, 0')
        for i in range(32):
            if i + 1 < 32: rd(i + 1)
            b = fr + 16 * (i & 1)
            p(f'v_mfma_f32_32x32x16_f16 {vr(a0,16)}, {vr(b,4)}, {vr(b+8,4)}, {vr(a0,16)}')
            p(f'v_mfma_f32_32x32x16_f16 {vr(a1,16)}, {vr(b,4)}, {vr(b+12,4)}, {vr(a1,16)}')
            p(f'v_mfma_f32_32x32x16_f16 {vr(a1,16)}, {vr(b+4,4)}, {vr(b+8,4)}, {vr(a1,16)}')
        V.free('cfr', 'cA', 'cB')
        self.stamp('convmm')
        p('s_barrier')
        ex = V.alloc('cex', 16, align=2)
        p(f'''
        s_lshl_b32 s58, {sWAVE}, 12
        s_add_u32 s58, s58, {L_KC}
        v_lshlrev_b32 v{t}, 4, v1
        v_add_u32 v{t+1}, s58, v{t}
        s_xor_b32 s58, {sWAVE}, 1
        s_lshl_b32 s58, s58, 12
        s_add_u32 s58, s58, {L_KC}
        v_add_u32 v{t+2}, s58, v{t}
        ''')
        l0 = self.lab('cr0'); l1 = self.lab('cr1')
        p(f's_cmp_eq_u32 s57, 0\ns_cbranch_scc0 {l0}')
        with p.cond(lambda c: c['w'] % 2 == 0):
            for q in range(4): p(f'ds_write_b128 v{t+1}, {vr(a1+4*q,4)} offset:{1024*q}')
        p(f's_branch {l1}\n{l0}:')
        with p.cond(lambda c: c['w'] % 2 == 1):
            for q in range(4): p(f'ds_write_b128 v{t+1}, {vr(a0+4*q,4)} offset:{1024*q}')
            for r in range(16): p(f'v_mov_b32 v{a0+r}, v{a1+r}')
        p(f'{l1}:')
        p('s_waitcnt lgkmcnt(0)\ns_barrier')
        for q in range(4): p(f'ds_read_b128 {vr(ex+4*q,4)}, v{t+2} offset:{1024*q}')
        uu = V.alloc('cuu', 8, align=2)
        p(f'''
        v_and_b32 v{t}, 31, v1
        v_mul_u32_u24 v{t}, 80, v{t}
        v_lshrrev_b32 v{t+3}, 5, v1
        v_lshlrev_b32 v{t+3}, 3, v{t+3}
        v_add_u32 v{t}, v{t}, v{t+3}
        s_mul_i32 s58, s56, {U_CH}
        s_mul_i32 s59, s57, 2560
        s_add_u32 s58, s58, s59
        s_add_u32 s58, s58, {L_U + 2560}
        v_add_u32 v{t}, s58, v{t}
        ''')
        for q in range(4): p(f'ds_read_b64 {vr(uu+2*q,2)}, v{t} offset:{16*q}')
        for r in range(16): p(f'v_add_f32 v{a0+r}, v{a0+r}, v{ex+r}')
        for r in range(16): p(f'v_mul_f32 v{a0+r}, {sSIG}, v{a0+r}')
        for r in range(16):
            p(f'v_fma_mix_f32 v{a0+r}, v{uu+r//2}, {sDV}, v{a0+r} op_sel:[{r&1},0,0] op_sel_hi:[1,0,0]')
        for r in range(8): p(f'v_cvt_pk_bf16_f32 v{ex+r}, v{a0+2*r}, v{a0+2*r+1}')
        p(f'''
        v_and_b32 v{t}, 31, v1
        v_bfe_u32 v{t+1}, v1, 1, 2
        v_lshlrev_b32 v{t+2}, 6, v{t}
        v_add_u32 v{t+2}, v{t+2}, v{t+3}
        s_lshl_b32 s58, {sWAVE}, 11
        s_add_u32 s58, s58, {L_KC + 16384}
        v_add_u32 v{t+2}, s58, v{t+2}
        ''')
        for q in range(4):
            p(f'v_xor_b32 v{t+3}, {q}, v{t+1}')
            p(f'v_lshlrev_b32 v{t+3}, 4, v{t+3}')
            p(f'v_add_u32 v{t+3}, v{t+3}, v{t+2}')
            p(f'ds_write_b64 v{t+3}, {vr(ex+2*q,2)}')
        p(f'''
        v_lshrrev_b32 v{t}, 2, v1
        v_bfe_u32 v{t+1}, v1, 3, 2
        v_and_b32 v{t+3}, 3, v1
        v_xor_b32 v{t+1}, v{t+1}, v{t+3}
        v_lshlrev_b32 v{t+1}, 4, v{t+1}
        v_lshlrev_b32 v{t}, 6, v{t}
        v_add_u32 v{t}, v{t}, v{t+1}
        v_add_u32 v{t}, s58, v{t}
        ds_read_b128 {vr(ex+8,4)}, v{t}
        ds_read_b128 {vr(ex+12,4)}, v{t} offset:1024
        s_lshl_b32 s58, {sBETA}, 1
        s_add_u32 s58, s58, s56
        s_lshl_b32 s58, s58, 12
        s_lshl_b32 s59, s57, 11
        s_add_u32 s58, s58, s59
        s_add_u32 s58, s58, {WS_ST}
        v_lshlrev_b32 v{t}, 4, v1
        ''')
        p(f'buffer_store_dwordx4 {vr(ex+8,4)}, v{t}, {SWS}, s58 offen sc1', tag='stst')
        p(f'buffer_store_dwordx4 {vr(ex+12,4)}, v{t}, {SWS}, s58 offen offset:1024 sc1', tag='stst')
        V.free('cvt', 'cacc', 'cex', 'cuu')
    def st_flag(self):
        p = self.p
        p.wait_tag('stst')
        p(f'''
        s_and_b32 s53, {sWAVE}, 1
        s_lshl_b32 s53, s53, 9
        s_lshl_b32 s54, {sBETA}, 1
        s_add_u32 s53, s53, s54
        s_lshr_b32 s54, {sWAVE}, 1
        s_add_u32 s53, s53, s54
        s_lshl_b32 s53, s53, 3
        ''')
        self.flag_store('s53', FL_C)
    def w2_stage(self, rnd):
        p, V = self.p, self.V
        ns = 22 if rnd == 0 else 21
        t = V.alloc('w2t', 3)
        p(f'''
        v_lshrrev_b32 v{t}, 3, v1
        v_bfe_u32 v{t+1}, v1, 4, 1
        v_lshlrev_b32 v{t+1}, 2, v{t+1}
        v_and_b32 v{t+2}, 7, v1
        v_xor_b32 v{t+1}, v{t+1}, v{t+2}
        v_lshlrev_b32 v{t+1}, 4, v{t+1}
        v_lshlrev_b32 v{t}, 10, v{t}
        v_add_u32 v{t}, v{t}, v{t+1}
        ''')
        p(f'''
        s_lshr_b32 s56, {sWAVE}, 1
        s_and_b32 s57, {sWAVE}, 1
        s_mul_i32 s58, s56, {43*16*1024}
        s_lshl_b32 s59, s57, 13
        s_add_u32 s58, s58, s59
        s_lshl_b32 s59, {sCG}, 7
        s_add_u32 s58, s58, s59
        s_add_u32 s58, s58, {22*rnd*16*1024}
        s_mul_i32 s59, s56, {22*2048}
        s_lshl_b32 s60, s57, 10
        s_add_u32 s59, s59, s60
        s_add_u32 s59, s59, {L_W}
        ''')
        for s_ in range(ns):
            p(f's_mov_b32 m0, s59')
            p(f's_add_u32 s59, s59, 2048')
            p(f'buffer_load_dwordx4 v{t}, {SW2}, s58 offen lds', tag=f'w2dma{rnd}')
            p(f's_add_u32 s58, s58, {16*1024}')
        V.free('w2t')
    def w2_read(self, rnd):
        p, V, A = self.p, self.V, self.A
        if rnd == 0: A.alloc('w2f', 172, align=4)
        wf = A['w2f']
        ns = 22 if rnd == 0 else 21
        t = V.alloc('w2r', 3)
        p(f'''
        v_lshrrev_b32 v{t}, 5, v1
        v_lshlrev_b32 v{t}, 2, v{t}
        v_bfe_u32 v{t+1}, v1, 2, 2
        v_add_u32 v{t}, v{t}, v{t+1}
        v_lshlrev_b32 v{t}, 7, v{t}
        v_bfe_u32 v{t+1}, v1, 3, 1
        s_and_b32 s57, {sWAVE}, 1
        v_xor_b32 v{t+1}, s57, v{t+1}
        v_lshlrev_b32 v{t+1}, 6, v{t+1}
        v_add_u32 v{t}, v{t}, v{t+1}
        v_bfe_u32 v{t+1}, v1, 4, 1
        v_lshlrev_b32 v{t+1}, 5, v{t+1}
        v_add_u32 v{t}, v{t}, v{t+1}
        v_and_b32 v{t+1}, 3, v1
        v_lshlrev_b32 v{t+1}, 3, v{t+1}
        v_add_u32 v{t}, v{t}, v{t+1}
        s_lshr_b32 s56, {sWAVE}, 1
        s_mul_i32 s56, s56, {22*2048}
        s_add_u32 s56, s56, {L_W}
        v_add_u32 v{t}, s56, v{t}
        ''')
        for s_ in range(ns):
            b = wf + 4 * (22 * rnd + s_)
            p(f'ds_read_b64_tr_b16 {vr(b,2,"a")}, v{t} offset:{2048*s_}')
            p(f'ds_read_b64_tr_b16 {vr(b+2,2,"a")}, v{t} offset:{2048*s_+1024}')
        V.free('w2r')
    def gemm2(self):
        p, V, A = self.p, self.V, self.A
        wf = A['w2f']
        t = V.alloc('g2t', 4)
        p(f'''
        s_lshr_b32 s56, {sTG}, 1
        s_lshl_b32 s56, s56, 2
        s_and_b32 s57, {sTG}, 1
        s_lshl_b32 s57, s57, 1
        s_add_u32 s56, s56, s57
        s_lshl_b32 s56, s56, 7
        s_add_u32 s56, s56, {FL_B}
        v_lshlrev_b32 v{t}, 3, v1
        v_add_u32 v{t}, s56, v{t}
        ''')
        self.poll(t, 32, 1, 'pollB')
        self.stamp('pollB')
        R1 = 36
        p(f'''
        s_lshr_b32 s56, {sWAVE}, 1
        s_and_b32 s57, {sWAVE}, 1
        s_lshl_b32 s58, {sTG}, 1
        s_add_u32 s58, s58, s57
        s_mul_i32 s58, s58, {86*1024}
        s_mul_i32 s59, s56, {43*1024}
        s_add_u32 s58, s58, s59
        s_add_u32 s58, s58, {WS_ACT}
        s_mul_i32 s59, s56, {R1*2048}
        s_lshl_b32 s60, s57, 10
        s_add_u32 s59, s59, s60
        v_lshlrev_b32 v{t}, 4, v1
        s_mul_i32 s61, s56, {R1*2048}
        v_add_u32 v{t+1}, s61, v{t}
        v_add_u32 v{t+2}, 0x10000, v{t+1}
        ''')
        def dma(sl, slot):
            p(f's_add_u32 m0, s59, {slot*2048}')
            p(f's_add_u32 s60, s58, {sl*1024}')
            p(f'buffer_load_dwordx4 v{t}, {SWS}, s60 offen sc1 lds', tag=f'act{sl}')
        p('s_barrier')
        for sl in range(R1): dma(sl, sl)
        acc = V.alloc('g2acc', 32, align=2); fr = V.alloc('g2fr', 24, align=2)
        def rd(sl):
            slot = sl if sl < R1 else sl - R1
            o = slot * 2048; base = t + 1
            if o >= 0x10000 - 2048: o -= 0x10000; base = t + 2
            b = fr + 8 * (sl % 3)
            if o < 0:
                o += 0x10000; base = t + 1
            p(f'ds_read_b128 {vr(b,4)}, v{base} offset:{o}')
            p(f'ds_read_b128 {vr(b+4,4)}, v{base} offset:{o+1024}')
        stages = [0, 6, 12, 18, 24, 30, 36, 43]
        for si in range(len(stages) - 1):
            lo, hi = stages[si], stages[si + 1]
            p.wait_tag(f'act{hi-1}')
            p('s_barrier')
            if si == 1:
                for sl in range(R1, 42): dma(sl, sl - R1)
            if si == 2: dma(42, 6)
            for sl in range(lo, min(lo + 2, hi)): rd(sl)
            for sl in range(lo, hi):
                if sl + 2 < hi: rd(sl + 2)
                b = fr + 8 * (sl % 3)
                c0 = '0' if sl == 0 else vr(acc, 16); c1 = '0' if sl == 0 else vr(acc + 16, 16)
                p(f'v_mfma_f32_32x32x16_bf16 {vr(acc,16)}, {vr(wf+4*sl,4,"a")}, {vr(b,4)}, {c0}')
                p(f'v_mfma_f32_32x32x16_bf16 {vr(acc+16,16)}, {vr(wf+4*sl,4,"a")}, {vr(b+4,4)}, {c1}')
        V.free('g2fr'); A.free('w2f')
        self.stamp('g2mm')
        p('s_barrier')
        ex = V.alloc('g2ex', 16, align=2)
        p(f'''
        s_lshl_b32 s58, {sWAVE}, 12
        v_lshlrev_b32 v{t}, 4, v1
        v_add_u32 v{t+1}, s58, v{t}
        s_xor_b32 s58, {sWAVE}, 2
        s_lshl_b32 s58, s58, 12
        v_add_u32 v{t+2}, s58, v{t}
        ''')
        l0 = self.lab('g20'); l1 = self.lab('g21')
        p(f's_cmp_lt_u32 {sWAVE}, 2\ns_cbranch_scc0 {l0}')
        with p.cond(lambda c: c['w'] < 2):
            for q in range(4): p(f'ds_write_b128 v{t+1}, {vr(acc+16+4*q,4)} offset:{1024*q}')
        p(f's_branch {l1}\n{l0}:')
        with p.cond(lambda c: c['w'] >= 2):
            for q in range(4): p(f'ds_write_b128 v{t+1}, {vr(acc+4*q,4)} offset:{1024*q}')
            for r in range(16): p(f'v_mov_b32 v{acc+r}, v{acc+16+r}')
        p(f'{l1}:')
        ST_L = 32768; ST_STR = 144
        p(f'''
        s_lshr_b32 s56, {sTG}, 4
        s_lshl_b32 s56, s56, 9
        s_lshl_b32 s57, {sCG}, 6
        s_add_u32 s56, s56, s57
        s_lshl_b32 s56, s56, 3
        s_add_u32 s56, s56, {FL_C}
        v_lshlrev_b32 v{t+3}, 3, v1
        v_add_u32 v{t+3}, s56, v{t+3}
        ''')
        self.poll(t + 3, 64, 1, 'pollC')
        self.stamp('pollC')
        sd = V.alloc('g2sd', 8, align=2); xd = V.alloc('g2xd', 8, align=2); ad = V.alloc('g2ad', 4)
        p(f'''
        v_lshrrev_b32 v{ad}, 3, v0
        v_and_b32 v{ad+1}, 7, v0
        v_lshlrev_b32 v{ad+1}, 4, v{ad+1}
        v_lshlrev_b32 v{ad+2}, 12, v{ad}
        v_add_u32 v{ad+2}, v{ad+2}, v{ad+1}
        s_lshl_b32 s56, {sCG}, 18
        s_lshl_b32 s57, {sTG}, 7
        s_add_u32 s56, s56, s57
        s_add_u32 s56, s56, {WS_ST}
        s_add_u32 s57, s56, {32*4096}
        buffer_load_dwordx4 {vr(sd,4)}, v{ad+2}, {SWS}, s56 offen sc1
        buffer_load_dwordx4 {vr(sd+4,4)}, v{ad+2}, {SWS}, s57 offen sc1
        v_lshlrev_b32 v{ad+2}, 10, v{ad}
        v_add_u32 v{ad+2}, v{ad+2}, v{ad+1}
        s_lshl_b32 s56, {sTG}, 16
        s_lshl_b32 s57, {sCG}, 7
        s_add_u32 s56, s56, s57
        s_add_u32 s57, s56, {32*1024}
        buffer_load_dwordx4 {vr(xd,4)}, v{ad+2}, {SX}, s56 offen
        buffer_load_dwordx4 {vr(xd+4,4)}, v{ad+2}, {SX}, s57 offen
        v_mul_u32_u24 v{ad+3}, {ST_STR}, v{ad}
        v_add_u32 v{ad+3}, v{ad+3}, v{ad+1}
        v_add_u32 v{ad+3}, {ST_L}, v{ad+3}
        ds_write_b128 v{ad+3}, {vr(sd,4)}
        ds_write_b128 v{ad+3}, {vr(sd+4,4)} offset:{32*ST_STR}
        s_waitcnt lgkmcnt(0)
        s_barrier
        ''')
        for q in range(4): p(f'ds_read_b128 {vr(ex+4*q,4)}, v{t+2} offset:{1024*q}')
        sv = sd
        p(f'''
        v_lshrrev_b32 v{t}, 5, v1
        v_lshlrev_b32 v{t}, 2, v{t}
        v_bfe_u32 v{t+1}, v1, 2, 2
        v_add_u32 v{t}, v{t}, v{t+1}
        s_and_b32 s57, {sWAVE}, 1
        s_lshl_b32 s57, s57, 5
        v_add_u32 v{t}, s57, v{t}
        v_mul_u32_u24 v{t}, {ST_STR}, v{t}
        v_bfe_u32 v{t+1}, v1, 4, 1
        v_lshlrev_b32 v{t+1}, 5, v{t+1}
        v_add_u32 v{t}, v{t}, v{t+1}
        v_and_b32 v{t+1}, 3, v1
        v_lshlrev_b32 v{t+1}, 3, v{t+1}
        v_add_u32 v{t}, v{t}, v{t+1}
        s_lshr_b32 s56, {sWAVE}, 1
        s_lshl_b32 s56, s56, 6
        s_add_u32 s56, s56, {ST_L}
        v_add_u32 v{t}, s56, v{t}
        ''')
        for q in range(4): p(f'ds_read_b64_tr_b16 {vr(sv+2*q,2)}, v{t} offset:{8*q*ST_STR}')
        for r in range(16): p(f'v_add_f32 v{acc+r}, v{acc+r}, v{ex+r}')
        for r in range(16): p(f'v_mul_f32 v{ex+r}, {f32(-LOG2E)}, v{acc+r}')
        for r in range(16): p(f'v_exp_f32 v{ex+r}, v{ex+r}')
        for r in range(0, 16, 2): p(f'v_pk_add_f32 {vr(ex+r,2)}, {vr(ex+r,2)}, 1.0 op_sel_hi:[1,0]')
        for r in range(16): p(f'v_rcp_f32 v{ex+r}, v{ex+r}')
        for r in range(0, 16, 2): p(f'v_pk_mul_f32 {vr(acc+r,2)}, {vr(acc+r,2)}, {vr(ex+r,2)}')
        for r in range(16):
            if r % 2 == 0: p(f'v_lshlrev_b32 v{ex+r}, 16, v{sv+r//2}')
            else: p(f'v_and_b32 v{ex+r}, 0xffff0000, v{sv+r//2}')
        for r in range(0, 16, 2): p(f'v_pk_mul_f32 {vr(acc+r,2)}, {vr(acc+r,2)}, {vr(ex+r,2)}')
        for r in range(8): p(f'v_cvt_pk_bf16_f32 v{ex+r}, v{acc+2*r}, v{acc+2*r+1}')
        SG_L = 49152
        p(f'''
        v_and_b32 v{t}, 31, v1
        s_lshr_b32 s56, {sWAVE}, 1
        s_lshl_b32 s56, s56, 5
        v_add_u32 v{t}, s56, v{t}
        v_mul_u32_u24 v{t}, {ST_STR}, v{t}
        v_lshrrev_b32 v{t+1}, 5, v1
        v_lshlrev_b32 v{t+1}, 3, v{t+1}
        v_add_u32 v{t}, v{t}, v{t+1}
        s_and_b32 s57, {sWAVE}, 1
        s_lshl_b32 s57, s57, 6
        s_add_u32 s57, s57, {SG_L}
        v_add_u32 v{t}, s57, v{t}
        ''')
        for q in range(4): p(f'ds_write_b64 v{t}, {vr(ex+2*q,2)} offset:{16*q}')
        p('s_waitcnt lgkmcnt(0)\ns_barrier')
        p(f'v_add_u32 v{ad+3}, {SG_L-ST_L}, v{ad+3}')
        p(f'ds_read_b128 {vr(sd,4)}, v{ad+3}')
        p(f'ds_read_b128 {vr(sd+4,4)}, v{ad+3} offset:{32*ST_STR}')
        for k in range(2):
            for j in range(4):
                a_, b_ = sd + 4 * k + j, xd + 4 * k + j
                p(f'v_lshlrev_b32 v{ex}, 16, v{a_}')
                p(f'v_and_b32 v{ex+1}, 0xffff0000, v{a_}')
                p(f'v_lshlrev_b32 v{ex+2}, 16, v{b_}')
                p(f'v_and_b32 v{ex+3}, 0xffff0000, v{b_}')
                p(f'v_pk_add_f32 {vr(ex,2)}, {vr(ex,2)}, {vr(ex+2,2)}')
                p(f'v_cvt_pk_bf16_f32 v{b_}, v{ex}, v{ex+1}')
        p(f'''
        s_lshl_b32 s56, {sTG}, 16
        s_lshl_b32 s57, {sCG}, 7
        s_add_u32 s56, s56, s57
        s_add_u32 s57, s56, {32*1024}
        buffer_store_dwordx4 {vr(xd,4)}, v{ad+2}, {SOUT}, s56 offen
        buffer_store_dwordx4 {vr(xd+4,4)}, v{ad+2}, {SOUT}, s57 offen
        ''')
        V.free('g2t', 'g2acc', 'g2ex', 'g2sd', 'g2xd', 'g2ad')
    def dump_lds(self, lds_off, nbytes, ws_off):
        p, V = self.p, self.V
        t = V.alloc('dmp', 6, align=2)
        p('s_waitcnt lgkmcnt(0)\ns_barrier')
        stride = (nbytes + 4095) // 4096 * 4096
        p(f's_mul_i32 s52, {sBETA}, {stride}\ns_add_u32 s52, s52, {ws_off}')
        p(f'v_lshlrev_b32 v{t}, 4, v0')
        for k in range(stride // 4096):
            p(f'v_add_u32 v{t+1}, {lds_off + 4096*k}, v{t}')
            p(f'ds_read_b128 {vr(t+2,4)}, v{t+1}')
            p(f'buffer_store_dwordx4 {vr(t+2,4)}, v{t}, {SWS}, s52 offen')
            p(f's_add_u32 s52, s52, 4096')
            p('s_waitcnt vmcnt(0)')
        p('s_barrier')
        V.free('dmp')
    def ln(self):
        p, V = self.p, self.V
        x = [V['x0'], V['x1']]
        d = [V.alloc('d0', 8), V.alloc('d1', 8)]
        s1 = V.alloc('s1', 2); s2 = V.alloc('s2', 2)
        tp = V.alloc('lnt', 8)
        for k in range(2):
            for j in range(4):
                p(f'v_lshlrev_b32 v{d[k]+2*j}, 16, v{x[k]+j}')
                p(f'v_and_b32 v{d[k]+2*j+1}, 0xffff0000, v{x[k]+j}')
        p(f'v_readlane_b32 s52, v{d[0]}, 0')
        p(f'v_readlane_b32 s54, v{d[1]}, 0')
        p(f's_mov_b32 s53, s52\ns_mov_b32 s55, s54')
        for k in range(2):
            sp = 's[52:53]' if k == 0 else 's[54:55]'
            for j in range(4):
                p(f'v_pk_add_f32 {vr(d[k]+2*j,2)}, {vr(d[k]+2*j,2)}, {sp} neg_lo:[0,1] neg_hi:[0,1]')
        for k in range(2):
            a = tp + 4 * k
            p(f'v_pk_add_f32 {vr(a,2)}, {vr(d[k],2)}, {vr(d[k]+2,2)}')
            p(f'v_pk_add_f32 {vr(a+2,2)}, {vr(d[k]+4,2)}, {vr(d[k]+6,2)}')
        for k in range(2):
            a = tp + 4 * k
            p(f'v_pk_add_f32 {vr(a,2)}, {vr(a,2)}, {vr(a+2,2)}')
        for k in range(2):
            a = tp + 4 * k
            p(f'v_add_f32 v{s1+k}, v{a}, v{a+1}')
        for k in range(2):
            a = tp + 4 * k
            p(f'v_pk_mul_f32 {vr(a,2)}, {vr(d[k],2)}, {vr(d[k],2)}')
        for j in range(1, 4):
            for k in range(2):
                a = tp + 4 * k
                p(f'v_pk_fma_f32 {vr(a,2)}, {vr(d[k]+2*j,2)}, {vr(d[k]+2*j,2)}, {vr(a,2)}')
        for k in range(2):
            a = tp + 4 * k
            p(f'v_add_f32 v{s2+k}, v{a}, v{a+1}')
        regs = [s1, s1 + 1, s2, s2 + 1]
        for ctl in ('row_shr:1 row_mask:0xf bank_mask:0xf bound_ctrl:1', 'row_shr:2 row_mask:0xf bank_mask:0xf bound_ctrl:1',
                    'row_shr:4 row_mask:0xf bank_mask:0xf bound_ctrl:1', 'row_shr:8 row_mask:0xf bank_mask:0xf bound_ctrl:1',
                    'row_bcast:15 row_mask:0xa bank_mask:0xf', 'row_bcast:31 row_mask:0xc bank_mask:0xf'):
            for r in regs:
                p(f'v_add_f32_dpp v{r}, v{r}, v{r} {ctl}')
        for n, r in enumerate(regs):
            p(f'v_readlane_b32 s{56+n}, v{r}, 63')
        m = [tp, tp + 1]; va = [tp + 2, tp + 3]; t4 = tp + 4; t5 = tp + 5
        inv = f32(1.0 / 512)
        for k in range(2):
            p(f'v_mov_b32 v{m[k]}, s{56+k}')
            p(f'v_mov_b32 v{va[k]}, s{58+k}')
        for k in range(2):
            p(f'v_mul_f32 v{m[k]}, {inv}, v{m[k]}')
            p(f'v_mul_f32 v{va[k]}, {inv}, v{va[k]}')
        for k in range(2):
            p(f'v_fma_f32 v{va[k]}, -v{m[k]}, v{m[k]}, v{va[k]}')
        for k in range(2):
            p(f'v_max_f32 v{va[k]}, 0, v{va[k]}')
        p(f'v_add_f32 v{t4}, s52, v{m[0]}')
        p(f'v_add_f32 v{t5}, s54, v{m[1]}')
        p(f'v_cvt_pk_bf16_f32 v{t4}, v{t4}, v{t5}')
        p(f'v_cvt_pk_bf16_f32 v{t5}, v{va[0]}, v{va[1]}')
        p(f'v_lshlrev_b32 v{m[0]}, 16, v{t4}')
        p(f'v_and_b32 v{m[1]}, 0xffff0000, v{t4}')
        p(f'v_lshlrev_b32 v{va[0]}, 16, v{t5}')
        p(f'v_and_b32 v{va[1]}, 0xffff0000, v{t5}')
        eps = f32(1e-5)
        for k in range(2): p(f'v_add_f32 v{va[k]}, {eps}, v{va[k]}')
        p(f'v_cvt_pk_bf16_f32 v{t5}, v{va[0]}, v{va[1]}')
        p(f'v_lshlrev_b32 v{va[0]}, 16, v{t5}')
        p(f'v_and_b32 v{va[1]}, 0xffff0000, v{t5}')
        for k in range(2): p(f'v_sqrt_f32 v{va[k]}, v{va[k]}')
        p(f'v_cvt_pk_bf16_f32 v{t5}, v{va[0]}, v{va[1]}')
        p(f'v_lshlrev_b32 v{va[0]}, 16, v{t5}')
        p(f'v_and_b32 v{va[1]}, 0xffff0000, v{t5}')
        for k in range(2): p(f'v_rcp_f32 v{va[k]}, v{va[k]}')
        p(f'v_sub_f32 v{m[0]}, s52, v{m[0]}')
        p(f'v_sub_f32 v{m[1]}, s54, v{m[1]}')
        for k in range(2): p(f'v_mul_f32 v{m[k]}, v{m[k]}, v{va[k]}')
        for k in range(2):
            for j in range(4):
                p(f'v_pk_fma_f32 {vr(d[k]+2*j,2)}, {vr(d[k]+2*j,2)}, {vr(va[k]-(va[k]&1),2)}, {vr(m[k]-(m[k]&1),2)} '
                  f'op_sel:[0,{va[k]&1},{m[k]&1}] op_sel_hi:[1,{va[k]&1},{m[k]&1}]')
        ad = V.alloc('lnad', 2)
        p(f'''
        s_lshl_b32 s52, {sWAVE}, 1
        s_mul_i32 s53, s52, {TBF_STR}
        s_add_u32 s53, s53, {L_TBF}
        s_mul_i32 s54, s52, {TH_STR}
        s_add_u32 s54, s54, {L_TH}
        v_lshlrev_b32 v{ad+1}, 4, v1
        v_add_u32 v{ad}, s53, v{ad+1}
        v_add_u32 v{ad+1}, s54, v{ad+1}
        ''')
        for k in range(2):
            for j in range(4):
                p(f'v_cvt_pk_bf16_f32 v{x[k]+j}, v{d[k]+2*j}, v{d[k]+2*j+1}')
            p(f'ds_write_b128 v{ad}, {vr(x[k],4)} offset:{k*TBF_STR}')
        for k in range(2):
            for j in range(4):
                p(f'v_cvt_pk_f16_f32 v{d[k]+j}, v{d[k]+2*j}, v{d[k]+2*j+1}')
            p(f'ds_write_b128 v{ad+1}, {vr(d[k],4)} offset:{k*TH_STR}')
        lab = self.lab('nn')
        p(f's_cmp_lg_u32 {sWAVE}, 0\ns_cbranch_scc1 {lab}')
        with p.cond(lambda c: c['w'] == 0):
            p(f'v_add_u32 v{V["nonce"]}, 1, v{V["nonce"]}')
            p(f'v_mov_b32 v{ad}, {L_MISC}')
            p(f'ds_write_b32 v{ad}, v{V["nonce"]}')
        p(f'{lab}:')
        p('s_waitcnt lgkmcnt(0)\ns_barrier')
        V.free('d0', 'd1', 's1', 's2', 'lnt', 'lnad', 'x0', 'x1')
        nv = V['nonce']
        p(f'v_mov_b32 v{nv}, {L_MISC}')
        p(f'ds_read_b32 v{nv}, v{nv}')
        p(f'v_readfirstlane_b32 {sNONCE}, v{nv}')
        V.free('nonce')
        self.stamp('ln_compute')
        lab = self.lab('lnst')
        p(f's_cmp_ge_u32 {sWAVE}, 2\ns_cbranch_scc1 {lab}')
        with p.cond(lambda c: c['w'] < 2):
            a = V.alloc('lsa', 4); dt = V.alloc('lsd', 16, align=2); u = V.alloc('lsu', 16, align=2)
            p(f'''
            v_and_b32 v{a}, 7, v0
            v_lshrrev_b32 v{a+1}, 3, v0
            v_mul_u32_u24 v{a+2}, {TBF_STR}, v{a}
            v_lshlrev_b32 v{a+3}, 4, v{a+1}
            v_add_u32 v{a+2}, v{a+2}, v{a+3}
            v_add_u32 v{a+2}, {L_TBF}, v{a+2}
            ''')
            for k in range(4):
                p(f'ds_read_b128 {vr(dt+4*k,4)}, v{a+2} offset:{256*k}')
            p(f'''
            v_bfe_u32 v{a+3}, v1, 2, 2
            v_mul_u32_u24 v{a+3}, {TH_STR}, v{a+3}
            v_lshrrev_b32 v{u}, 4, v1
            v_lshlrev_b32 v{u}, 5, v{u}
            v_add_u32 v{a+3}, v{a+3}, v{u}
            v_and_b32 v{u}, 3, v1
            v_lshlrev_b32 v{u}, 3, v{u}
            v_add_u32 v{a+3}, v{a+3}, v{u}
            s_lshl_b32 s52, {sWAVE}, 9
            s_add_u32 s52, s52, {L_TH}
            v_add_u32 v{a+3}, s52, v{a+3}
            ''')
            for it in range(4):
                p(f'ds_read_b64_tr_b16 {vr(u+4*it,2)}, v{a+3} offset:{128*it}')
                p(f'ds_read_b64_tr_b16 {vr(u+4*it+2,2)}, v{a+3} offset:{128*it+4*TH_STR}')
            p(f'''
            v_lshrrev_b32 v{a+2}, 1, v{a+1}
            v_lshlrev_b32 v{a+2}, 10, v{a+2}
            v_and_b32 v{a+1}, 1, v{a+1}
            v_lshlrev_b32 v{a+1}, 9, v{a+1}
            v_add_u32 v{a+2}, v{a+2}, v{a+1}
            v_lshlrev_b32 v{a}, 4, v{a}
            v_add_u32 v{a+2}, v{a+2}, v{a}
            s_lshr_b32 s52, {sBETA}, 2
            s_lshl_b32 s52, s52, 15
            s_and_b32 s53, {sBETA}, 3
            s_lshl_b32 s53, s53, 7
            s_add_u32 s52, s52, s53
            s_add_u32 s52, s52, {WS_XNF}
            ''')
            for k in range(4):
                p(f's_add_u32 s53, s52, {8192*k}')
                p(f'buffer_store_dwordx4 {vr(dt+4*k,4)}, v{a+2}, {SWS}, s53 offen sc1', tag='lnst')
            p(f'''
            v_lshlrev_b32 v{a}, 4, v1
            s_lshl_b32 s52, {sBETA}, 13
            s_lshl_b32 s53, {sWAVE}, 12
            s_add_u32 s52, s52, s53
            s_add_u32 s52, s52, {WS_UBLK}
            ''')
            for it in range(4):
                p(f'buffer_store_dwordx4 {vr(u+4*it,4)}, v{a}, {SWS}, s52 offen offset:{1024*it} sc1', tag='lnst')
            V.free('lsa', 'lsd', 'lsu')
        p(f'{lab}:')
    def flag_store(self, off_expr_sgpr, base):
        p, V = self.p, self.V
        t = V.alloc('fl', 2)
        p(f'''
        s_add_u32 s52, {off_expr_sgpr}, {base}
        v_mov_b32 v{t}, s52
        v_mov_b32 v{t+1}, {sNONCE}
        s_mov_b64 s[62:63], exec
        s_mov_b64 exec, 1
        buffer_store_dword v{t+1}, v{t}, {SWS}, 0 offen sc1
        s_mov_b64 exec, s[62:63]
        ''')
        V.free('fl')
    def ln_flag(self):
        p = self.p
        lab = self.lab('lnfl')
        p(f's_cmp_ge_u32 {sWAVE}, 2\ns_cbranch_scc1 {lab}')
        with p.cond(lambda c: c['w'] < 2):
            p.wait_tag('lnst')
            p(f's_lshl_b32 s53, {sBETA}, 4\ns_lshl_b32 s54, {sWAVE}, 3\ns_add_u32 s53, s53, s54')
            self.flag_store('s53', FL_A)
        p(f'{lab}:')
    def finish(self):
        p = self.p
        if self.stamps:
            V = self.V
            t = V.alloc('stt')
            p(f'''
            s_waitcnt vmcnt(0) lgkmcnt(0)
            s_lshl_b32 s52, s2, 2
            s_add_u32 s52, s52, {sWAVE}
            s_lshl_b32 s52, s52, 8
            s_add_u32 s52, s52, {WS_DBG}
            v_lshlrev_b32 v{t}, 2, v1
            buffer_store_dword v255, v{t}, {SWS}, s52 offen
            ''')
        p('L_end:\ns_endpgm')
    def build(self):
        self.prologue()
        self.initial_loads()
        self.idle_setup()
        self.ln()
        p = self.p
        self.stamp('lnst')
        groups = self.w1_dma_groups()
        self.kgen_setup()
        self.stamp('ksetup')
        p('s_barrier')
        with p.capture() as main:
            self.kgen_values()
        half = len(main) // 2
        p.merge(main[:half], groups[:12])
        self.stamp('khalf')
        self.ln_flag()
        self.stamp('flagA')
        p.merge(main[half:], groups[12:])
        self.V.free('w1off')
        self.stamp('kvals')
        p('s_waitcnt lgkmcnt(0)\ns_barrier')
        self.kgen_mfma()
        p('s_waitcnt lgkmcnt(0)\ns_barrier')
        self.stamp('kmfma')
        if 'table' in self.dump: self.dump_lds(L_T, 2 * T_CH, WS_DBG + 0x100000)
        self.expand()
        p.wait_tag('w1dma')
        p('s_waitcnt lgkmcnt(0)\ns_barrier')
        self.stamp('expand')
        if 'kc' in self.dump: self.dump_lds(L_KC, 8 * KC_STR, WS_DBG + 0x400000)
        self.gemm1()
        self.stamp('gemm1')
        self.act_flag()
        self.conv_load_u()
        self.stamp('uload')
        self.conv()
        self.stamp('conv')
        self.st_flag()
        for rnd in range(2):
            p('s_barrier')
            self.w2_stage(rnd)
            p.wait_tag(f'w2dma{rnd}')
            p('s_barrier')
            self.w2_read(rnd)
            p('s_waitcnt lgkmcnt(0)')
        self.stamp('w2regs')
        self.gemm2()
        self.stamp('end')
        self.finish()
        body = self.p.render()
        names = ''.join(l + '\n' for l in getattr(self, 'stamp_lines', []))
        hdr = f'''; S4D conv + mish MLP gated block, single persistent launch (generated by gen/kern.py)
; @launch grid=(256,1,1) block=(256,1,1) lds={LDS_BYTES}
{names}.amdgcn_target "amdgcn-amd-amdhsa--gfx950"
.text
.globl {NAME}
.p2align 8
.type {NAME},@function
{NAME}:
'''
        tail = f'''
.section .rodata,"a"
.p2align 6
.amdhsa_kernel {NAME}
  .amdhsa_next_free_vgpr 512
  .amdhsa_next_free_sgpr 102
  .amdhsa_accum_offset 256
  .amdhsa_group_segment_fixed_size 0
  .amdhsa_kernarg_size 112
  .amdhsa_user_sgpr_count 2
  .amdhsa_user_sgpr_kernarg_segment_ptr 1
  .amdhsa_system_sgpr_workgroup_id_x 1
  .amdhsa_ieee_mode 0
  .amdhsa_dx10_clamp 0
.end_amdhsa_kernel
'''
        return hdr + body + tail

if __name__ == '__main__':
    import argparse
    ap = argparse.ArgumentParser()
    ap.add_argument('-o', default='k.s')
    ap.add_argument('--stamps', action='store_true')
    ap.add_argument('--stop', default=None)
    ap.add_argument('--dump', default=None)
    a = ap.parse_args()
    g = Gen(stop=a.stop, stamps=a.stamps, dump=set(a.dump.split(',')) if a.dump else None)
    s = g.build()
    open(a.o, 'w').write(s)
    print('vgpr hi', g.V.hi, 'agpr hi', g.A.hi, 'lines', s.count('\n'))
```

```python
import sys, math
from asmgen import Prog
from regs import Regs, vr

NAME = 'recurrent_scan__ssm_conv_s4d__dense_activation_mish__prompt_kernel'

WS_XNF  = 0x000000
WS_UBLK = 0x200000
WS_ACT  = 0x400000
WS_ST   = 0xA00000
WS_FLG  = 0xC00000
FL_A    = WS_FLG + 0x1000
FL_B    = WS_FLG + 0x2000
FL_C    = WS_FLG + 0x4000
WS_DBG  = 0x1000000
WS_BYTES = 0x10000000

L_W   = 0
L_F   = 98304
F_WAVE = 14416
L_T   = L_F + 4 * F_WAVE
T_CH  = 3104
T_ZERO = 3072
L_MISC = L_T + 2 * T_CH
LDS_BYTES = 163840
TBF_STR, TH_STR = 1056, 1088
L_TBF = L_F
L_TH  = L_F + 8 * TBF_STR
KC_STR = 4416
L_KC  = L_F
L_U   = L_F + 2 * 4 * KC_STR
U_CH  = 7680
X0 = 2080

LOG2E = 1.4426950408889634
def f32(x):
    import struct
    return '0x%08x' % struct.unpack('<I', struct.pack('<f', x))[0]

sBETA, sWAVE, sTT, sFB0, sNBLK = 's3', 's4', 's5', 's6', 's7'
SX, SW1, SW2, SWS, SOUT, SB1 = 's[8:11]', 's[12:15]', 's[16:19]', 's[20:23]', 's[24:27]', 's[28:31]'
pLOGA, pAIM, pCRE, pCIM, pLOGDT, pDSK = 's[32:33]', 's[34:35]', 's[36:37]', 's[38:39]', 's[40:41]', 's[42:43]'
sNONCE, sTG, sCG, sLDT, sDSK = 's46', 's47', 's48', 's49', 's50'
sSIG, sDV = 's44', 's45'
pDBG = 's[92:93]'

class Gen:
    def __init__(self, stop=None, stamps=False, dump=None, dbgstamps=None):
        self.dbgstamps = dbgstamps
        self.stop = stop; self.stamps = stamps; self.dump = dump or set()
        cfgs = [dict(w=w, nblk=n) for w in range(4) for n in (2, 3)]
        self.p = Prog(cfgs)
        self.V = Regs('v', 255 if stamps else 256, reserved=2)
        self.A = Regs('a', 256)
        self.nstamp = 0
        self.uid = 0
    def lab(self, s):
        self.uid += 1
        return f'L_{s}_{self.uid}'
    def stamp(self, name):
        if not self.stamps: return
        p = self.p
        i = self.nstamp; self.nstamp += 1
        self.stamp_names = getattr(self, 'stamp_names', []) + [name]
        p('s_memtime s[94:95]')
        p('s_waitcnt lgkmcnt(0)')
        self.stamp_lines = getattr(self, 'stamp_lines', []) + [f'; stamp {name}']
        p(f'v_writelane_b32 v255, s94, {i}')
    def prologue(self):
        p = self.p
        p(f'''
        s_load_dwordx16 s[64:79], s[0:1], 0
        s_load_dwordx8 s[80:87], s[0:1], 64
        s_load_dwordx4 s[88:91], s[0:1], 96
        s_cmp_ge_u32 s2, 256
        s_cbranch_scc1 L_end
        v_and_b32 v1, 63, v0
        v_lshrrev_b32 v2, 6, v0
        s_and_b32 s52, s2, 7
        s_lshr_b32 s53, s2, 3
        v_readfirstlane_b32 {sWAVE}, v2
        s_lshl_b32 {sBETA}, s52, 5
        s_add_u32 {sBETA}, {sBETA}, s53
        s_lshr_b32 {sTT}, {sBETA}, 4
        s_and_b32 s54, {sBETA}, 15
        s_mul_i32 {sFB0}, s54, 3
        s_lshl_b32 s55, s54, 1
        s_add_u32 s55, s55, 11
        s_cmp_lt_u32 s54, 11
        s_cselect_b32 {sFB0}, {sFB0}, s55
        s_cselect_b32 {sNBLK}, 3, 2
        s_lshr_b32 {sTG}, {sBETA}, 3
        s_and_b32 {sCG}, {sBETA}, 7
        s_waitcnt lgkmcnt(0)
        s_mov_b32 s8, s64
        s_mov_b32 s9, s65
        s_mov_b32 s10, 0x200000
        s_mov_b32 s11, 0x20000
        s_mov_b32 s12, s80
        s_mov_b32 s13, s81
        s_mov_b32 s14, {512*1376*2}
        s_mov_b32 s15, 0x20000
        s_mov_b32 s16, s84
        s_mov_b32 s17, s85
        s_mov_b32 s18, {512*1376*2}
        s_mov_b32 s19, 0x20000
        s_mov_b32 s20, s90
        s_mov_b32 s21, s91
        s_mov_b32 s22, {WS_BYTES}
        s_mov_b32 s23, 0x20000
        s_mov_b32 s24, s86
        s_mov_b32 s25, s87
        s_mov_b32 s26, 0x200000
        s_mov_b32 s27, 0x20000
        s_mov_b32 s28, s82
        s_mov_b32 s29, s83
        s_mov_b32 s30, {1376*2}
        s_mov_b32 s31, 0x20000
        s_mov_b64 {pLOGA}, s[66:67]
        s_mov_b64 {pAIM}, s[68:69]
        s_mov_b64 {pCRE}, s[70:71]
        s_mov_b64 {pCIM}, s[72:73]
        s_mov_b64 {pLOGDT}, s[74:75]
        s_mov_b64 {pDSK}, s[76:77]
        s_mov_b64 {pDBG}, s[88:89]
        ''')
        self.stamp('start')
        if self.stamps:
            p('s_memrealtime s[94:95]\ns_waitcnt lgkmcnt(0)\nv_writelane_b32 v255, s94, 62')
    def initial_loads(self):
        p, V = self.p, self.V
        x0 = V.alloc('x0', 4); x1 = V.alloc('x1', 4)
        t = V.alloc('t0'); t2 = V.alloc('t1')
        p(f'''
        s_lshl_b32 s52, {sBETA}, 3
        s_lshl_b32 s53, {sWAVE}, 1
        s_add_u32 s52, s52, s53
        s_lshl_b32 s52, s52, 10
        v_lshlrev_b32 v{t}, 4, v1
        buffer_load_dwordx4 {vr(x0,4)}, v{t}, {SX}, s52 offen
        buffer_load_dwordx4 {vr(x1,4)}, v{t}, {SX}, s52 offen offset:1024
        ''')
        pr = V.alloc('par', 6)
        p(f'''
        s_lshr_b32 s53, {sWAVE}, 1
        s_lshl_b32 s54, {sBETA}, 1
        s_add_u32 s54, s54, s53
        s_lshl_b32 s54, s54, 8
        s_and_b32 s55, {sWAVE}, 1
        s_lshl_b32 s55, s55, 7
        s_add_u32 s56, s54, s55
        s_xor_b32 s55, s55, 128
        s_add_u32 s57, s54, s55
        v_lshlrev_b32 v{t2}, 1, v1
        v_add_u32 v{t}, s57, v{t2}
        v_add_u32 v{t2}, s56, v{t2}
        global_load_ushort v{pr}, v{t2}, {pLOGA}
        global_load_ushort v{pr+1}, v{t2}, {pAIM}
        global_load_ushort v{pr+2}, v{t2}, {pCRE}
        global_load_ushort v{pr+3}, v{t2}, {pCIM}
        global_load_ushort v{pr+4}, v{t}, {pCRE}
        global_load_ushort v{pr+5}, v{t}, {pCIM}
        s_lshl_b32 s52, {sBETA}, 2
        s_load_dword {sLDT}, {pLOGDT}, s52
        s_load_dword {sDSK}, {pDSK}, s52
        ''')
        nv = V.alloc('nonce')
        p(f'''
        v_mov_b32 v{t}, {WS_FLG}
        buffer_load_dword v{nv}, v{t}, {SWS}, 0 offen sc1
        ''')
        b = V.alloc('bias', 24)
        p(f'''
        v_lshrrev_b32 v{t}, 5, v1
        v_lshlrev_b32 v{t}, 3, v{t}
        s_lshl_b32 s52, {sFB0}, 6
        ''')
        for blk in range(3):
            for q in range(4):
                p(f'buffer_load_dwordx2 {vr(b+8*blk+2*q,2)}, v{t}, {SB1}, s52 offen offset:{64*blk+16*q}')
        V.free('t0', 't1')
    def w1_dma_groups(self):
        p, V = self.p, self.V
        vo = V.alloc('w1off', 3); t = V.alloc('w1t', 2)
        for k in range(3):
            p(f'''
            v_add_u32 v{t}, {64*k}, v1
            v_mul_u32_u24 v{t+1}, 171, v{t}
            v_lshrrev_b32 v{t+1}, 11, v{t+1}
            v_mul_u32_u24 v{vo+k}, 12, v{t+1}
            v_sub_u32 v{vo+k}, v{t}, v{vo+k}
            v_lshlrev_b32 v{vo+k}, 4, v{vo+k}
            v_mul_u32_u24 v{t+1}, 2752, v{t+1}
            v_add_u32 v{vo+k}, v{vo+k}, v{t+1}
            ''')
        V.free('w1t')
        p(f'''
        s_mul_i32 s60, {sWAVE}, {128*2752}
        s_lshl_b32 s61, {sFB0}, 6
        s_add_u32 s60, s60, s61
        s_mul_i32 s61, {sWAVE}, {24*1024}
        s_add_u32 s61, s61, {L_W}
        ''')
        groups = []
        for g in range(8):
            for k in range(3):
                with p.capture() as b:
                    p(f's_mov_b32 m0, s61')
                    p(f's_add_u32 s61, s61, 1024')
                    p(f'buffer_load_dwordx4 v{vo+k}, {SW1}, s60 offen lds', tag='w1dma')
                    if k == 2: p(f's_add_u32 s60, s60, {16*2752}')
                groups.append(b)
        return groups
    def idle_setup(self):
        p, V = self.p, self.V
        ea = V.alloc('expad', 11); t = V.alloc('ist', 6, align=2)
        p(f'v_lshlrev_b32 v{t}, 3, v0')
        p(f'v_sub_u32 v{t}, 2033, v{t}')
        for d in range(0, 11):
            J = t + 1; fJ = t + 2; c = ea + d
            p(f'''
            v_add_u32 v{J}, {d}, v{t}
            v_cvt_f32_i32 v{fJ}, v{J}
            v_cvt_pk_bf16_f32 v{fJ}, v{fJ}, v{fJ}
            v_and_b32 v{fJ}, 0xffff, v{fJ}
            v_subrev_u32 v{c}, 17024, v{fJ}
            v_cmp_gt_i32 vcc, 128, v{J}
            v_cndmask_b32 v{c}, v{c}, v{J}, vcc
            v_cmp_gt_i32 vcc, 0, v{J}
            v_mov_b32 v{fJ}, {T_ZERO//4}
            v_cndmask_b32 v{c}, v{c}, v{fJ}, vcc
            v_lshlrev_b32 v{c}, 2, v{c}
            v_add_u32 v{c}, {L_T}, v{c}
            ''')
        z = t + 2
        for k in range(4): p(f'v_mov_b32 v{z+k}, 0')
        p(f'v_lshlrev_b32 v{t}, 4, v0')
        p(f'v_add_u32 v{t}, {L_T}, v{t}')
        p(f'ds_write_b128 v{t}, {vr(z,4)}')
        p(f'''
        v_cmp_gt_u32 vcc, {(2*T_CH-4096)//16}, v0
        s_and_saveexec_b64 s[62:63], vcc
        ds_write_b128 v{t}, {vr(z,4)} offset:4096
        s_mov_b64 exec, s[62:63]
        ''')
        V.free('ist')
    def cmul(self, d, a, b):
        p = self.p
        p(f'v_pk_mul_f32 {vr(d,2)}, {vr(a,2)}, {vr(b,2)} op_sel:[0,0] op_sel_hi:[0,1]')
        p(f'v_pk_fma_f32 {vr(d,2)}, {vr(a,2)}, {vr(b,2)}, {vr(d,2)} op_sel:[1,1,0] op_sel_hi:[1,0,1] neg_lo:[1,0,0]')
    def cmul_multi(self, items):
        p = self.p
        for d, a, b in items:
            p(f'v_pk_mul_f32 {vr(d,2)}, {vr(a,2)}, {vr(b,2)} op_sel:[0,0] op_sel_hi:[0,1]')
        for d, a, b in items:
            p(f'v_pk_fma_f32 {vr(d,2)}, {vr(a,2)}, {vr(b,2)}, {vr(d,2)} op_sel:[1,1,0] op_sel_hi:[1,0,1] neg_lo:[1,0,0]')
    def kgen_setup(self):
        p, V = self.p, self.V
        pr = V['par']
        t = V.alloc('kt', 8, align=2)
        z = V.alloc('z', 2); Z = V.alloc('Z256', 2); C = V.alloc('Cn', 2)
        p(f'''
        s_lshr_b32 s52, {sWAVE}, 1
        s_lshl_b32 s53, {sLDT}, 16
        s_and_b32 s54, {sLDT}, 0xffff0000
        s_lshl_b32 s56, {sDSK}, 16
        s_and_b32 s55, {sDSK}, 0xffff0000
        s_cmp_eq_u32 s52, 0
        s_cselect_b32 s53, s53, s54
        s_cselect_b32 {sDV}, s56, s55
        v_mov_b32 v{t}, s53
        v_mul_f32 v{t}, {f32(LOG2E)}, v{t}
        v_lshlrev_b32 v{t+1}, 16, v{pr}
        v_mul_f32 v{t+1}, {f32(LOG2E)}, v{t+1}
        v_exp_f32 v{t}, v{t}
        v_exp_f32 v{t+1}, v{t+1}
        v_and_b32 v{t+2}, 0x7fff, v{pr+2}
        v_and_b32 v{t+3}, 0x7fff, v{pr+3}
        v_and_b32 v{t+4}, 0x7fff, v{pr+4}
        v_and_b32 v{t+5}, 0x7fff, v{pr+5}
        v_cvt_pk_bf16_f32 v{t}, v{t}, v{t+1}
        v_max3_u32 v{t+2}, v{t+2}, v{t+3}, v{t+4}
        v_max_u32 v{t+2}, v{t+2}, v{t+5}
        v_and_b32 v{t+1}, 0xffff0000, v{t}
        v_lshlrev_b32 v{t}, 16, v{t}
        ''')
        ctl = ['row_shr:1 row_mask:0xf bank_mask:0xf bound_ctrl:1', 'row_shr:2 row_mask:0xf bank_mask:0xf bound_ctrl:1',
               'row_shr:4 row_mask:0xf bank_mask:0xf bound_ctrl:1', 'row_shr:8 row_mask:0xf bank_mask:0xf bound_ctrl:1',
               'row_bcast:15 row_mask:0xa bank_mask:0xf', 'row_bcast:31 row_mask:0xc bank_mask:0xf']
        fill = [f'v_mul_f32 v{t+3}, v{t+1}, v{t}',
                f'v_lshlrev_b32 v{t+4}, 16, v{pr+1}',
                f'v_mul_f32 v{t+4}, v{t+4}, v{t}',
                f'v_mul_f32 v{t+3}, {f32(-LOG2E)}, v{t+3}',
                f'v_mul_f32 v{t+4}, {f32(1/(2*math.pi))}, v{t+4}',
                f'v_mul_f32 v{t+5}, {f32(256.0)}, v{t+3}']
        for c, f in zip(ctl, fill):
            p(f'v_max_u32_dpp v{t+2}, v{t+2}, v{t+2} {c}')
            p(f)
        p(f'''
        v_mul_f32 v{t+6}, {f32(256.0)}, v{t+4}
        v_readlane_b32 s52, v{t+2}, 63
        v_fract_f32 v{t+7}, v{t+4}
        v_fract_f32 v{t+6}, v{t+6}
        v_exp_f32 v{t+3}, v{t+3}
        v_exp_f32 v{t+5}, v{t+5}
        s_and_b32 s52, s52, 0x7f80
        s_lshl_b32 s52, s52, 16
        s_sub_u32 s53, 0x7f000000, s52
        v_cos_f32 v{z}, v{t+7}
        v_sin_f32 v{z+1}, v{t+7}
        v_cos_f32 v{Z}, v{t+6}
        v_sin_f32 v{Z+1}, v{t+6}
        v_mul_f32 v{t}, s52, v{t}
        v_lshlrev_b32 v{C}, 16, v{pr+2}
        v_lshlrev_b32 v{C+1}, 16, v{pr+3}
        v_add_f32 v{t}, v{t}, v{t}
        v_mul_f32 v{C}, s53, v{C}
        v_mul_f32 v{C+1}, s53, v{C+1}
        v_readfirstlane_b32 {sSIG}, v{t}
        v_mul_f32 v{z}, v{z}, v{t+3}
        v_mul_f32 v{z+1}, v{z+1}, v{t+3}
        v_mul_f32 v{Z}, v{Z}, v{t+5}
        v_mul_f32 v{Z+1}, v{Z+1}, v{t+5}
        ''')
        V.free('kt', 'par')
    def kgen_values(self):
        p, V = self.p, self.V
        z, Z, C = V['z'], V['Z256'], V['Cn']
        fa = V.alloc('fa')
        p(f's_mul_i32 s52, {sWAVE}, {F_WAVE}\ns_add_u32 s52, s52, {L_F}')
        p(f'v_lshlrev_b32 v{fa}, 2, v1\nv_add_u32 v{fa}, s52, v{fa}')
        cv = V.alloc('cv', 4); self._cvi = 0
        def put(row, r, neg=False):
            c = cv + (self._cvi & 3); self._cvi += 1
            p(f'v_cvt_pk_f16_f32 v{c}, v{r}, {"-" if neg else ""}v{r+1}')
            p(f'ds_write_b32 v{fa}, v{c} offset:{row*272}')
        z2 = V.alloc('z2', 2); z4 = V.alloc('z4', 2); w = V.alloc('w', 2); w2 = V.alloc('w2', 2); w4 = V.alloc('w4', 2)
        ch = V.alloc('chains', 16, align=2)
        put(0, C)
        self.cmul(z2, z, z)
        La, Lb, Ma, Mb = ch, ch + 2, ch + 4, ch + 6
        self.cmul_multi([(La, C, z), (Ma, C, Z), (z4, z2, z2)])
        put(1, La); put(8, Ma)
        self.cmul_multi([(Lb, La, z), (Mb, Ma, Z), (w, z4, z4), (ch + 8, Ma, z2)])
        put(2, Lb); put(12, Mb); put(9, ch + 8)
        self.cmul_multi([(La, Lb, z), (Ma, Mb, Z), (w2, w, w), (ch + 10, ch + 8, z2), (ch + 12, Mb, z4)])
        put(3, La); put(14, Ma); put(10, ch + 10); put(13, ch + 12)
        self.cmul_multi([(Lb, La, z), (Mb, Ma, Z), (w4, w2, w2), (ch + 8, ch + 10, z2), (ch + 12, Ma, z4), (ch + 14, w2, w)])
        put(4, Lb); put(16, Mb); put(11, ch + 8); put(15, ch + 12)
        c = cv + (self._cvi & 3); self._cvi += 1
        p(f'v_mov_b32 v{c}, 0x3c00')
        p(f'ds_write_b32 v{fa}, v{c} offset:{21*272}')
        put(22, w, True); put(23, w2, True); put(24, ch + 14, True)
        self.cmul_multi([(La, Lb, z), (Ma, Mb, Z)])
        put(5, La); put(17, Ma)
        self.cmul_multi([(Lb, La, z), (Mb, Ma, Z)])
        put(6, Lb); put(18, Mb)
        self.cmul_multi([(La, Lb, z), (Ma, Mb, Z)])
        put(7, La); put(19, Ma)
        self.cmul_multi([(Mb, Ma, Z)])
        put(20, Mb)
        A_ = [ch, ch + 2, ch + 4, ch + 6]; B_ = [ch + 8, ch + 10, ch + 12, z]
        Z2 = Z
        r3 = ch + 14
        self.cmul_multi([(A_[1], w, w4), (A_[2], w2, w4), (A_[3], r3, w4)])
        put(21 + 4, w4, True); put(21 + 5, A_[1], True); put(21 + 6, A_[2], True); put(21 + 7, A_[3], True)
        cur = [w4, A_[1], A_[2], A_[3]]
        nxt_sets = [[B_[0], B_[1], B_[2], B_[3]], [A_[0], A_[1], A_[2], A_[3]]]
        for step in range(2, 8):
            nx = nxt_sets[step & 1]
            self.cmul_multi([(nx[k], cur[k], w4) for k in range(4)])
            for k in range(4): put(21 + 4 * step + k, nx[k], True)
            cur = nx
        V.free('z', 'Z256', 'Cn', 'z2', 'z4', 'w', 'w2', 'w4', 'chains', 'cv', 'fa')
    def kgen_mfma(self):
        p, V = self.p, self.V
        acc = V.alloc('kacc', 8, align=2); fr = V.alloc('kfr', 36, align=2); ra = V.alloc('kra', 2); ta = V.alloc('kta', 4)
        p(f'''
        v_and_b32 v{ra}, 15, v1
        v_lshrrev_b32 v{ra+1}, 4, v1
        v_lshlrev_b32 v{ta}, 4, v{ra+1}
        v_mul_u32_u24 v{ta+1}, 272, v{ra}
        v_add_u32 v{ta}, v{ta}, v{ta+1}
        s_and_b32 s52, {sWAVE}, 2
        s_mul_i32 s52, s52, {F_WAVE}
        s_add_u32 s52, s52, {L_F}
        v_add_u32 v{ta}, s52, v{ta}
        s_and_b32 s53, {sWAVE}, 1
        s_mul_i32 s53, s53, {16*272}
        s_add_u32 s53, s53, {21*272}
        v_add_u32 v{ta+1}, s53, v{ta}
        ''')
        def rd(s):
            b = fr + 12 * (s % 3); o = F_WAVE * (s >> 2) + 64 * (s & 3)
            p(f'ds_read_b128 {vr(b,4)}, v{ta} offset:{o}')
            p(f'ds_read_b128 {vr(b+4,4)}, v{ta} offset:{o+16*272}')
            p(f'ds_read_b128 {vr(b+8,4)}, v{ta+1} offset:{o}')
        for s_ in range(2): rd(s_)
        for s_ in range(8):
            if s_ + 2 < 8: rd(s_ + 2)
            b = fr + 12 * (s_ % 3)
            p(f'v_mfma_f32_16x16x32_f16 {vr(acc,4)}, {vr(b,4)}, {vr(b+8,4)}, {"0" if s_ == 0 else vr(acc,4)}')
            p(f'v_mfma_f32_16x16x32_f16 {vr(acc+4,4)}, {vr(b+4,4)}, {vr(b+8,4)}, {"0" if s_ == 0 else vr(acc+4,4)}')
        j8 = ra; g = ra + 1
        p(f'''
        s_and_b32 s53, {sWAVE}, 1
        s_lshl_b32 s53, s53, 4
        v_add_u32 v{j8}, s53, v{j8}
        s_lshr_b32 s52, {sWAVE}, 1
        s_mul_i32 s52, s52, {T_CH}
        s_add_u32 s52, s52, {L_T}
        v_lshlrev_b32 v{ta}, 5, v{j8}
        v_lshlrev_b32 v{ta+1}, 4, v{g}
        v_add_u32 v{ta}, v{ta}, v{ta+1}
        v_lshlrev_b32 v{ta+1}, 4, v{j8}
        v_add_u32 v{ta+1}, 1024, v{ta+1}
        v_cmp_eq_u32 vcc, 2, v{g}
        v_cndmask_b32 v{ta}, v{ta}, v{ta+1}, vcc
        v_lshlrev_b32 v{ta+1}, 3, v{j8}
        v_add_u32 v{ta+1}, 1536, v{ta+1}
        v_cmp_eq_u32 vcc, 3, v{g}
        v_cndmask_b32 v{ta}, v{ta}, v{ta+1}, vcc
        v_mov_b32 v{ta+1}, 8
        v_mov_b32 v{ta+2}, 256
        v_cndmask_b32 v{ta+1}, v{ta+1}, v{ta+2}, vcc
        v_add_u32 v{ta}, s52, v{ta}
        v_add_u32 v{ta+1}, v{ta+1}, v{ta}
        v_min_u32 v{ta+2}, 1, v{g}
        v_lshlrev_b32 v{ta+2}, 9, v{ta+2}
        v_lshlrev_b32 v{ta+3}, 2, v{j8}
        v_add_u32 v{ta+2}, v{ta+2}, v{ta+3}
        v_add_u32 v{ta+2}, s52, v{ta+2}
        v_add_u32 v{ta+2}, 2048, v{ta+2}
        ''')
        for r in range(2): p(f'ds_write_b32 v{ta}, v{acc+r} offset:{4*r}')
        for r in range(2): p(f'ds_write_b32 v{ta+1}, v{acc+2+r} offset:{4*r}')
        p(f'v_cmp_gt_u32 vcc, 2, v{g}\ns_and_saveexec_b64 s[62:63], vcc')
        for r in range(4): p(f'ds_write_b32 v{ta+2}, v{acc+4+r} offset:{128*r}')
        p('s_mov_b64 exec, s[62:63]')
        V.free('kacc', 'kfr', 'kra', 'kta')
    def expand(self):
        p, V = self.p, self.V
        ea = V['expad']
        val = V.alloc('ev', 22); o = V.alloc('eo', 16, align=2); ad = V.alloc('ead', 2)
        for c in range(2):
            for d in range(11):
                p(f'ds_read_b32 v{val+11*c+d}, v{ea+d} offset:{c*T_CH}')
        p(f'v_lshlrev_b32 v{ad}, 4, v0\nv_add_u32 v{ad}, {L_KC+80}, v{ad}')
        for c in range(2):
            for rho in range(4):
                b = o + 4 * rho
                for k in range(4):
                    p(f'v_cvt_pk_f16_f32 v{b+k}, v{val+11*c+7+rho-2*k}, v{val+11*c+6+rho-2*k}')
                p(f'ds_write_b128 v{ad}, {vr(b,4)} offset:{c*4*KC_STR+rho*KC_STR}')
        V.free('ev', 'eo', 'expad')
        t = V.alloc('ext', 8, align=2)
        l1 = self.lab('x1'); l2 = self.lab('x2'); l3 = self.lab('x3')
        p(f's_cmp_eq_u32 {sWAVE}, 0\ns_cbranch_scc0 {l1}')
        with p.cond(lambda c: c['w'] == 0):
            p(f'''
            v_bfe_u32 v{t}, v1, 3, 2
            v_and_b32 v{t+1}, 7, v1
            v_sub_u32 v{t+2}, v{t+1}, v{t}
            v_cmp_lt_i32 vcc, 4, v{t+2}
            v_mov_b32 v{t+3}, {L_T+640*4}
            v_mov_b32 v{t+4}, {L_T+639*4}
            v_cndmask_b32 v{t+3}, v{t+3}, v{t+4}, vcc
            v_lshrrev_b32 v{t+4}, 5, v1
            v_mul_u32_u24 v{t+5}, {T_CH}, v{t+4}
            v_add_u32 v{t+3}, v{t+3}, v{t+5}
            ds_read_b32 v{t+3}, v{t+3}
            v_mul_u32_u24 v{t+4}, {4*KC_STR}, v{t+4}
            v_mul_u32_u24 v{t}, {KC_STR}, v{t}
            v_add_u32 v{t}, v{t}, v{t+4}
            v_lshlrev_b32 v{t+1}, 1, v{t+1}
            v_add_u32 v{t}, v{t}, v{t+1}
            v_add_u32 v{t}, {L_KC+64}, v{t}
            v_cvt_f16_f32 v{t+3}, v{t+3}
            ds_write_b16 v{t}, v{t+3}
            ''')
        p(f's_branch {l3}\n{l1}:')
        p(f's_cmp_eq_u32 {sWAVE}, 1\ns_cbranch_scc0 {l2}')
        with p.cond(lambda c: c['w'] == 1):
            p(f'''
            v_lshrrev_b32 v{t}, 3, v1
            v_mul_u32_u24 v{t}, {KC_STR}, v{t}
            v_and_b32 v{t+1}, 7, v1
            v_lshlrev_b32 v{t+2}, 4, v{t+1}
            v_lshrrev_b32 v{t+1}, 2, v{t+1}
            v_mul_u32_u24 v{t+1}, {4176-64}, v{t+1}
            v_add_u32 v{t}, v{t}, v{t+2}
            v_add_u32 v{t}, v{t}, v{t+1}
            v_add_u32 v{t}, {L_KC}, v{t}
            v_mov_b32 v{t+4}, 0
            v_mov_b32 v{t+5}, 0
            v_mov_b32 v{t+6}, 0
            v_mov_b32 v{t+7}, 0
            ds_write_b128 v{t}, {vr(t+4,4)}
            ''')
        p(f's_branch {l3}\n{l2}:')
        with p.cond(lambda c: c['w'] >= 2):
            p(f'''
            s_sub_u32 s52, {sWAVE}, 2
            s_mul_i32 s52, s52, {U_CH}
            s_add_u32 s52, s52, {L_U}
            v_lshlrev_b32 v{t}, 4, v1
            v_add_u32 v{t}, s52, v{t}
            v_mov_b32 v{t+4}, 0
            v_mov_b32 v{t+5}, 0
            v_mov_b32 v{t+6}, 0
            v_mov_b32 v{t+7}, 0
            ds_write_b128 v{t}, {vr(t+4,4)}
            ds_write_b128 v{t}, {vr(t+4,4)} offset:1024
            v_cmp_gt_u32 vcc, 32, v1
            s_and_saveexec_b64 s[62:63], vcc
            ds_write_b128 v{t}, {vr(t+4,4)} offset:2048
            s_mov_b64 exec, s[62:63]
            ''')
        p(f'{l3}:')
        V.free('ext')
    def poll(self, vaddr, nlanes, width=1, name='poll'):
        p, V = self.p, self.V
        t = V.alloc('pl', 4, align=2)
        lp = self.lab(name); dn = self.lab(name + 'd')
        p(f's_mov_b32 s52, 0')
        p(f's_mov_b64 s[62:63], exec')
        if nlanes < 64: p(f's_mov_b64 exec, {hex((1 << nlanes) - 1)}')
        p(f'{lp}:')
        if width == 1:
            p(f'buffer_load_dword v{t}, v{vaddr}, {SWS}, 0 offen sc1')
            p('s_waitcnt vmcnt(0)')
            p(f'v_cmp_ne_u32 vcc, {sNONCE}, v{t}')
        else:
            p(f'buffer_load_dwordx4 {vr(t,4)}, v{vaddr}, {SWS}, 0 offen sc1')
            p('s_waitcnt vmcnt(0)')
            p(f'v_cmp_ne_u32 vcc, {sNONCE}, v{t}')
            p(f'v_cmp_ne_u32 s[54:55], {sNONCE}, v{t+2}')
            p(f's_or_b64 vcc, vcc, s[54:55]')
        p(f'''
        s_add_u32 s52, s52, 1
        s_cmp_eq_u64 vcc, 0
        s_cbranch_scc1 {dn}
        s_cmp_lt_u32 s52, 0x40000
        s_cbranch_scc1 {lp}
        ''')
        p(f'''
        v_mov_b32 v{t}, 0
        v_mov_b32 v{t+1}, 0xdead
        global_store_dword v{t}, v{t+1}, {pDBG}
        {dn}:
        s_mov_b64 exec, s[62:63]
        ''')
        V.free('pl')
    def gemm1(self):
        p, V, A = self.p, self.V, self.A
        xf = A.alloc('xnf', 128, align=4)
        t = V.alloc('g1t', 4)
        p(f'''
        s_lshl_b32 s56, {sTT}, 2
        s_add_u32 s56, s56, {sWAVE}
        s_lshl_b32 s57, s56, 6
        s_add_u32 s57, s57, {FL_A}
        v_lshlrev_b32 v{t}, 3, v1
        v_add_u32 v{t}, s57, v{t}
        ''')
        self.poll(t, 8, 1, 'pollA1')
        self.stamp('pollA1')
        p(f'''
        s_lshl_b32 s57, s56, 15
        s_add_u32 s57, s57, {WS_XNF}
        v_lshlrev_b32 v{t}, 4, v1
        ''')
        for ks in range(32):
            if ks % 4 == 0 and ks: p(f's_add_u32 s57, s57, 4096')
            p(f'buffer_load_dwordx4 {vr(xf+4*ks,4,"a")}, v{t}, {SWS}, s57 offen offset:{1024*(ks%4)} sc1')
        wa = V.alloc('w1a', 2)
        p(f'''
        v_lshrrev_b32 v{t}, 5, v1
        v_lshlrev_b32 v{t}, 3, v{t}
        v_bfe_u32 v{t+1}, v1, 2, 2
        v_add_u32 v{t}, v{t}, v{t+1}
        v_mul_u32_u24 v{t}, 192, v{t}
        v_bfe_u32 v{t+1}, v1, 4, 1
        v_lshlrev_b32 v{t+1}, 5, v{t+1}
        v_add_u32 v{t}, v{t}, v{t+1}
        v_and_b32 v{t+1}, 3, v1
        v_lshlrev_b32 v{t+1}, 3, v{t+1}
        v_add_u32 v{wa}, v{t}, v{t+1}
        v_add_u32 v{wa}, {L_W}, v{wa}
        v_add_u32 v{wa+1}, {16*3072}, v{wa}
        ''')
        sa = V.alloc('acta')
        p(f'''
        v_lshlrev_b32 v{sa}, 4, v1
        s_mul_i32 s58, s56, {86*1024}
        s_lshl_b32 s59, {sFB0}, 11
        s_add_u32 s58, s58, s59
        s_add_u32 s58, s58, {WS_ACT}
        ''')
        acc = V.alloc('g1acc', 16, align=2); fr = V.alloc('g1fr', 16, align=2); tm = V.alloc('g1tm', 16, align=2); pk = V.alloc('g1pk', 8, align=2)
        bias = V['bias']
        skip = self.lab('g1skip')
        for blk in range(3):
            ctx = p.cond(lambda c: c['nblk'] == 3) if blk == 2 else None
            if blk == 2:
                p(f's_cmp_eq_u32 {sNBLK}, 2\ns_cbranch_scc1 {skip}')
                ctx.__enter__()
            for q in range(4):
                for e in range(2):
                    b = bias + 8 * blk + 2 * q + e
                    p(f'v_lshlrev_b32 v{acc+4*q+2*e}, 16, v{b}')
                    p(f'v_and_b32 v{acc+4*q+2*e+1}, 0xffff0000, v{b}')
            def rd(ks):
                b = fr + 4 * (ks & 3); base = wa + (ks >> 4); o = (ks & 15) * 3072 + 64 * blk
                p(f'ds_read_b64_tr_b16 {vr(b,2)}, v{base} offset:{o}')
                p(f'ds_read_b64_tr_b16 {vr(b+2,2)}, v{base} offset:{o+768}')
            for ks in range(3): rd(ks)
            for ks in range(32):
                if ks + 3 < 32: rd(ks + 3)
                p(f'v_mfma_f32_32x32x16_bf16 {vr(acc,16)}, {vr(fr+4*(ks&3),4)}, {vr(xf+4*ks,4,"a")}, {vr(acc,16)}')
            self.mish(acc, tm, pk)
            p(f's_add_u32 s59, s58, {2048*blk}')
            p(f'buffer_store_dwordx4 {vr(pk,4)}, v{sa}, {SWS}, s59 offen sc1', tag='actst')
            p(f'buffer_store_dwordx4 {vr(pk+4,4)}, v{sa}, {SWS}, s59 offen offset:1024 sc1', tag='actst')
            if blk == 2:
                ctx.__exit__(None, None, None)
                p(f'{skip}:')
        V.free('g1t', 'w1a', 'acta', 'g1acc', 'g1fr', 'g1tm', 'g1pk', 'bias')
        A.free('xnf')
    def mish(self, acc, tm, pk):
        p = self.p
        for r in range(16): p(f'v_mul_f32 v{tm+r}, {f32(LOG2E)}, v{acc+r}')
        for r in range(16): p(f'v_exp_f32 v{tm+r}, v{tm+r}')
        for r in range(0, 16, 2):
            p(f'v_pk_add_f32 {vr(pk+(r&2),2)}, {vr(tm+r,2)}, 2.0 op_sel_hi:[1,0]')
            p(f'v_pk_fma_f32 {vr(tm+r,2)}, {vr(tm+r,2)}, {vr(pk+(r&2),2)}, 2.0 op_sel_hi:[1,1,0]')
        for r in range(16): p(f'v_rcp_f32 v{tm+r}, v{tm+r}')
        for r in range(0, 16, 2):
            p(f'v_pk_fma_f32 {vr(tm+r,2)}, {vr(tm+r,2)}, -2.0, 1.0 op_sel_hi:[1,0,0]')
        for r in range(0, 16, 2):
            p(f'v_pk_mul_f32 {vr(tm+r,2)}, {vr(tm+r,2)}, {vr(acc+r,2)}')
        for r in range(0, 16, 2):
            p(f'v_cvt_pk_bf16_f32 v{pk+r//2}, v{tm+r}, v{tm+r+1}')
    def act_flag(self):
        p = self.p
        p.wait_tag('actst')
        p(f'''
        s_lshl_b32 s53, {sTT}, 2
        s_add_u32 s53, s53, {sWAVE}
        s_lshl_b32 s53, s53, 4
        s_and_b32 s54, {sBETA}, 15
        s_add_u32 s53, s53, s54
        s_lshl_b32 s53, s53, 3
        ''')
        self.flag_store('s53', FL_B)
    def conv_load_u(self):
        p, V = self.p, self.V
        t = V.alloc('cut', 4); d = V.alloc('cud', 8, align=2)
        p(f'''
        s_lshl_b32 s56, {sWAVE}, 10
        s_add_u32 s56, s56, {FL_A}
        v_lshlrev_b32 v{t}, 4, v1
        v_add_u32 v{t}, s56, v{t}
        ''')
        self.poll(t, 64, 4, 'pollA2')
        self.stamp('pollA2')
        p(f'''
        s_lshl_b32 s56, {sWAVE}, 19
        s_lshl_b32 s57, {sBETA}, 5
        s_add_u32 s56, s56, s57
        s_add_u32 s56, s56, {WS_UBLK}
        v_lshlrev_b32 v{t}, 13, v1
        buffer_load_dwordx4 {vr(d,4)}, v{t}, {SWS}, s56 offen sc1
        buffer_load_dwordx4 {vr(d+4,4)}, v{t}, {SWS}, s56 offen offset:16 sc1
        s_lshl_b32 s57, {sWAVE}, 6
        s_add_u32 s57, s57, 128
        v_add_u32 v{t}, s57, v1
        v_lshrrev_b32 v{t+1}, 2, v{t}
        v_mul_u32_u24 v{t+1}, 80, v{t+1}
        v_and_b32 v{t}, 3, v{t}
        v_lshlrev_b32 v{t}, 4, v{t}
        v_add_u32 v{t}, v{t}, v{t+1}
        v_add_u32 v{t}, {L_U}, v{t}
        ds_write_b128 v{t}, {vr(d,4)}
        ds_write_b128 v{t}, {vr(d+4,4)} offset:{U_CH}
        s_waitcnt lgkmcnt(0)
        s_barrier
        ''')
        V.free('cut', 'cud')
        lab = self.lab('nw')
        p(f's_or_b32 s52, {sBETA}, {sWAVE}\ns_cmp_lg_u32 s52, 0\ns_cbranch_scc1 {lab}')
        with p.cond(lambda c: c['w'] == 0):
            p('s_mov_b32 s53, 0')
            self.flag_store('s53', WS_FLG)
        p(f'{lab}:')
    def conv(self):
        p, V = self.p, self.V
        t = V.alloc('cvt', 4)
        aA = V.alloc('cA', 3); aB = V.alloc('cB', 2)
        p(f'''
        v_and_b32 v{t}, 3, v1
        v_mul_u32_u24 v{t}, {KC_STR}, v{t}
        v_bfe_u32 v{t+1}, v1, 2, 3
        v_lshlrev_b32 v{t+1}, 3, v{t+1}
        v_sub_u32 v{t}, v{t}, v{t+1}
        v_lshrrev_b32 v{t+2}, 5, v1
        v_lshlrev_b32 v{t+3}, 4, v{t+2}
        v_add_u32 v{t}, v{t}, v{t+3}
        s_lshr_b32 s56, {sWAVE}, 1
        s_and_b32 s57, {sWAVE}, 1
        s_mul_i32 s58, s56, {4*KC_STR}
        s_add_u32 s58, s58, {L_KC + 2*X0}
        ''')
        p(f'''
        s_lshl_b32 s59, s57, 10
        s_sub_u32 s59, s58, s59
        s_sub_u32 s59, s59, 1024
        v_add_u32 v{aA}, s59, v{t}
        v_subrev_u32 v{aA+1}, 2048, v{aA}
        s_lshl_b32 s59, s57, 5
        s_sub_u32 s59, s58, s59
        s_add_u32 s59, s59, 32
        v_add_u32 v{aA+2}, s59, v{t}
        ''')
        p(f'''
        v_and_b32 v{t}, 31, v1
        v_mul_u32_u24 v{t}, 80, v{t}
        v_add_u32 v{t}, v{t}, v{t+3}
        s_mul_i32 s58, s56, {U_CH}
        s_add_u32 s58, s58, {L_U}
        s_mul_i32 s59, s57, {80*16}
        s_sub_u32 s59, s58, s59
        s_add_u32 s59, s59, {80*16}
        v_add_u32 v{aB}, s59, v{t}
        s_lshl_b32 s59, s57, 5
        s_sub_u32 s59, s58, s59
        s_add_u32 s59, s59, {80*32+32}
        v_add_u32 v{aB+1}, s59, v{t}
        ''')
        acc = V.alloc('cacc', 32, align=2); fr = V.alloc('cfr', 32, align=2)
        a0, a1 = acc, acc + 16
        def rd(i):
            b = fr + 16 * (i & 1)
            oa = 32 * (31 - i)
            ob = 80 * (15 - i // 2) + (32 if i % 2 == 0 else 0)
            p(f'ds_read_b64 {vr(b,2)}, v{aA} offset:{oa}')
            p(f'ds_read_b64 {vr(b+2,2)}, v{aA} offset:{oa+8}')
            p(f'ds_read_b128 {vr(b+8,4)}, v{aB} offset:{ob}')
            p(f'ds_read_b128 {vr(b+12,4)}, v{aB} offset:{ob+2560}')
            p(f'ds_read_b64 {vr(b+4,2)}, v{aA+1} offset:{oa}')
            p(f'ds_read_b64 {vr(b+6,2)}, v{aA+1} offset:{oa+8}')
        b = fr + 16
        p(f'ds_read_b64 {vr(b,2)}, v{aA+2}')
        p(f'ds_read_b64 {vr(b+2,2)}, v{aA+2} offset:8')
        p(f'ds_read_b128 {vr(b+8,4)}, v{aB+1}')
        p(f'ds_read_b128 {vr(b+12,4)}, v{aB+1} offset:2560')
        rd(0)
        p(f'v_mfma_f32_32x32x16_f16 {vr(a0,16)}, {vr(b,4)}, {vr(b+8,4)}, 0')
        p(f'v_mfma_f32_32x32x16_f16 {vr(a1,16)}, {vr(b,4)}, {vr(b+12,4)}, 0')
        for i in range(32):
            if i + 1 < 32: rd(i + 1)
            b = fr + 16 * (i & 1)
            p(f'v_mfma_f32_32x32x16_f16 {vr(a0,16)}, {vr(b,4)}, {vr(b+8,4)}, {vr(a0,16)}')
            p(f'v_mfma_f32_32x32x16_f16 {vr(a1,16)}, {vr(b,4)}, {vr(b+12,4)}, {vr(a1,16)}')
            p(f'v_mfma_f32_32x32x16_f16 {vr(a1,16)}, {vr(b+4,4)}, {vr(b+8,4)}, {vr(a1,16)}')
        V.free('cfr', 'cA', 'cB')
        self.stamp('convmm')
        p('s_barrier')
        ex = V.alloc('cex', 16, align=2)
        p(f'''
        s_lshl_b32 s58, {sWAVE}, 12
        s_add_u32 s58, s58, {L_KC}
        v_lshlrev_b32 v{t}, 4, v1
        v_add_u32 v{t+1}, s58, v{t}
        s_xor_b32 s58, {sWAVE}, 1
        s_lshl_b32 s58, s58, 12
        s_add_u32 s58, s58, {L_KC}
        v_add_u32 v{t+2}, s58, v{t}
        ''')
        l0 = self.lab('cr0'); l1 = self.lab('cr1')
        p(f's_cmp_eq_u32 s57, 0\ns_cbranch_scc0 {l0}')
        with p.cond(lambda c: c['w'] % 2 == 0):
            for q in range(4): p(f'ds_write_b128 v{t+1}, {vr(a1+4*q,4)} offset:{1024*q}')
        p(f's_branch {l1}\n{l0}:')
        with p.cond(lambda c: c['w'] % 2 == 1):
            for q in range(4): p(f'ds_write_b128 v{t+1}, {vr(a0+4*q,4)} offset:{1024*q}')
            for r in range(16): p(f'v_mov_b32 v{a0+r}, v{a1+r}')
        p(f'{l1}:')
        p('s_waitcnt lgkmcnt(0)\ns_barrier')
        for q in range(4): p(f'ds_read_b128 {vr(ex+4*q,4)}, v{t+2} offset:{1024*q}')
        uu = V.alloc('cuu', 8, align=2)
        p(f'''
        v_and_b32 v{t}, 31, v1
        v_mul_u32_u24 v{t}, 80, v{t}
        v_lshrrev_b32 v{t+3}, 5, v1
        v_lshlrev_b32 v{t+3}, 3, v{t+3}
        v_add_u32 v{t}, v{t}, v{t+3}
        s_mul_i32 s58, s56, {U_CH}
        s_mul_i32 s59, s57, 2560
        s_add_u32 s58, s58, s59
        s_add_u32 s58, s58, {L_U + 2560}
        v_add_u32 v{t}, s58, v{t}
        ''')
        for q in range(4): p(f'ds_read_b64 {vr(uu+2*q,2)}, v{t} offset:{16*q}')
        for r in range(16): p(f'v_add_f32 v{a0+r}, v{a0+r}, v{ex+r}')
        for r in range(16): p(f'v_mul_f32 v{a0+r}, {sSIG}, v{a0+r}')
        for r in range(16):
            p(f'v_fma_mix_f32 v{a0+r}, v{uu+r//2}, {sDV}, v{a0+r} op_sel:[{r&1},0,0] op_sel_hi:[1,0,0]')
        for r in range(8): p(f'v_cvt_pk_bf16_f32 v{ex+r}, v{a0+2*r}, v{a0+2*r+1}')
        p(f'''
        v_and_b32 v{t}, 31, v1
        v_bfe_u32 v{t+1}, v1, 1, 2
        v_lshlrev_b32 v{t+2}, 6, v{t}
        v_add_u32 v{t+2}, v{t+2}, v{t+3}
        s_lshl_b32 s58, {sWAVE}, 11
        s_add_u32 s58, s58, {L_KC + 16384}
        v_add_u32 v{t+2}, s58, v{t+2}
        ''')
        for q in range(4):
            p(f'v_xor_b32 v{t+3}, {q}, v{t+1}')
            p(f'v_lshlrev_b32 v{t+3}, 4, v{t+3}')
            p(f'v_add_u32 v{t+3}, v{t+3}, v{t+2}')
            p(f'ds_write_b64 v{t+3}, {vr(ex+2*q,2)}')
        p(f'''
        v_lshrrev_b32 v{t}, 2, v1
        v_bfe_u32 v{t+1}, v1, 3, 2
        v_and_b32 v{t+3}, 3, v1
        v_xor_b32 v{t+1}, v{t+1}, v{t+3}
        v_lshlrev_b32 v{t+1}, 4, v{t+1}
        v_lshlrev_b32 v{t}, 6, v{t}
        v_add_u32 v{t}, v{t}, v{t+1}
        v_add_u32 v{t}, s58, v{t}
        ds_read_b128 {vr(ex+8,4)}, v{t}
        ds_read_b128 {vr(ex+12,4)}, v{t} offset:1024
        s_lshl_b32 s58, {sBETA}, 1
        s_add_u32 s58, s58, s56
        s_lshl_b32 s58, s58, 12
        s_lshl_b32 s59, s57, 11
        s_add_u32 s58, s58, s59
        s_add_u32 s58, s58, {WS_ST}
        v_lshlrev_b32 v{t}, 4, v1
        ''')
        p(f'buffer_store_dwordx4 {vr(ex+8,4)}, v{t}, {SWS}, s58 offen sc1', tag='stst')
        p(f'buffer_store_dwordx4 {vr(ex+12,4)}, v{t}, {SWS}, s58 offen offset:1024 sc1', tag='stst')
        V.free('cvt', 'cacc', 'cex', 'cuu')
    def st_flag(self):
        p = self.p
        p.wait_tag('stst')
        p(f'''
        s_and_b32 s53, {sWAVE}, 1
        s_lshl_b32 s53, s53, 9
        s_lshl_b32 s54, {sBETA}, 1
        s_add_u32 s53, s53, s54
        s_lshr_b32 s54, {sWAVE}, 1
        s_add_u32 s53, s53, s54
        s_lshl_b32 s53, s53, 3
        ''')
        self.flag_store('s53', FL_C)
    def w2_stage(self, rnd):
        p, V = self.p, self.V
        ns = 22 if rnd == 0 else 21
        t = V.alloc('w2t', 3)
        p(f'''
        v_lshrrev_b32 v{t}, 3, v1
        v_bfe_u32 v{t+1}, v1, 4, 1
        v_lshlrev_b32 v{t+1}, 2, v{t+1}
        v_and_b32 v{t+2}, 7, v1
        v_xor_b32 v{t+1}, v{t+1}, v{t+2}
        v_lshlrev_b32 v{t+1}, 4, v{t+1}
        v_lshlrev_b32 v{t}, 10, v{t}
        v_add_u32 v{t}, v{t}, v{t+1}
        ''')
        p(f'''
        s_lshr_b32 s56, {sWAVE}, 1
        s_and_b32 s57, {sWAVE}, 1
        s_mul_i32 s58, s56, {43*16*1024}
        s_lshl_b32 s59, s57, 13
        s_add_u32 s58, s58, s59
        s_lshl_b32 s59, {sCG}, 7
        s_add_u32 s58, s58, s59
        s_add_u32 s58, s58, {22*rnd*16*1024}
        s_mul_i32 s59, s56, {22*2048}
        s_lshl_b32 s60, s57, 10
        s_add_u32 s59, s59, s60
        s_add_u32 s59, s59, {L_W}
        ''')
        for s_ in range(ns):
            p(f's_mov_b32 m0, s59')
            p(f's_add_u32 s59, s59, 2048')
            p(f'buffer_load_dwordx4 v{t}, {SW2}, s58 offen lds', tag=f'w2dma{rnd}')
            p(f's_add_u32 s58, s58, {16*1024}')
        V.free('w2t')
    def w2_read(self, rnd):
        p, V, A = self.p, self.V, self.A
        if rnd == 0: A.alloc('w2f', 172, align=4)
        wf = A['w2f']
        ns = 22 if rnd == 0 else 21
        t = V.alloc('w2r', 3)
        p(f'''
        v_lshrrev_b32 v{t}, 5, v1
        v_lshlrev_b32 v{t}, 2, v{t}
        v_bfe_u32 v{t+1}, v1, 2, 2
        v_add_u32 v{t}, v{t}, v{t+1}
        v_lshlrev_b32 v{t}, 7, v{t}
        v_bfe_u32 v{t+1}, v1, 3, 1
        s_and_b32 s57, {sWAVE}, 1
        v_xor_b32 v{t+1}, s57, v{t+1}
        v_lshlrev_b32 v{t+1}, 6, v{t+1}
        v_add_u32 v{t}, v{t}, v{t+1}
        v_bfe_u32 v{t+1}, v1, 4, 1
        v_lshlrev_b32 v{t+1}, 5, v{t+1}
        v_add_u32 v{t}, v{t}, v{t+1}
        v_and_b32 v{t+1}, 3, v1
        v_lshlrev_b32 v{t+1}, 3, v{t+1}
        v_add_u32 v{t}, v{t}, v{t+1}
        s_lshr_b32 s56, {sWAVE}, 1
        s_mul_i32 s56, s56, {22*2048}
        s_add_u32 s56, s56, {L_W}
        v_add_u32 v{t}, s56, v{t}
        ''')
        for s_ in range(ns):
            b = wf + 4 * (22 * rnd + s_)
            p(f'ds_read_b64_tr_b16 {vr(b,2,"a")}, v{t} offset:{2048*s_}')
            p(f'ds_read_b64_tr_b16 {vr(b+2,2,"a")}, v{t} offset:{2048*s_+1024}')
        V.free('w2r')
    def gemm2(self):
        p, V, A = self.p, self.V, self.A
        wf = A['w2f']
        t = V.alloc('g2t', 4)
        p(f'''
        s_lshr_b32 s56, {sTG}, 1
        s_lshl_b32 s56, s56, 2
        s_and_b32 s57, {sTG}, 1
        s_lshl_b32 s57, s57, 1
        s_add_u32 s56, s56, s57
        s_lshl_b32 s56, s56, 7
        s_add_u32 s56, s56, {FL_B}
        v_lshlrev_b32 v{t}, 3, v1
        v_add_u32 v{t}, s56, v{t}
        ''')
        self.poll(t, 32, 1, 'pollB')
        self.stamp('pollB')
        R1 = 36
        p(f'''
        s_lshr_b32 s56, {sWAVE}, 1
        s_and_b32 s57, {sWAVE}, 1
        s_lshl_b32 s58, {sTG}, 1
        s_add_u32 s58, s58, s57
        s_mul_i32 s58, s58, {86*1024}
        s_mul_i32 s59, s56, {43*1024}
        s_add_u32 s58, s58, s59
        s_add_u32 s58, s58, {WS_ACT}
        s_mul_i32 s59, s56, {R1*2048}
        s_lshl_b32 s60, s57, 10
        s_add_u32 s59, s59, s60
        v_lshlrev_b32 v{t}, 4, v1
        s_mul_i32 s61, s56, {R1*2048}
        v_add_u32 v{t+1}, s61, v{t}
        v_add_u32 v{t+2}, 0x10000, v{t+1}
        ''')
        def dma(sl, slot):
            p(f's_add_u32 m0, s59, {slot*2048}')
            p(f's_add_u32 s60, s58, {sl*1024}')
            p(f'buffer_load_dwordx4 v{t}, {SWS}, s60 offen sc1 lds', tag=f'act{sl}')
        p('s_barrier')
        for sl in range(R1): dma(sl, sl)
        acc = V.alloc('g2acc', 32, align=2); fr = V.alloc('g2fr', 24, align=2)
        def rd(sl):
            slot = sl if sl < R1 else sl - R1
            o = slot * 2048; base = t + 1
            if o >= 0x10000 - 2048: o -= 0x10000; base = t + 2
            b = fr + 8 * (sl % 3)
            if o < 0:
                o += 0x10000; base = t + 1
            p(f'ds_read_b128 {vr(b,4)}, v{base} offset:{o}')
            p(f'ds_read_b128 {vr(b+4,4)}, v{base} offset:{o+1024}')
        stages = [0, 6, 12, 18, 24, 30, 36, 43]
        for si in range(len(stages) - 1):
            lo, hi = stages[si], stages[si + 1]
            p.wait_tag(f'act{hi-1}')
            p('s_barrier')
            if si == 1:
                for sl in range(R1, 42): dma(sl, sl - R1)
            if si == 2: dma(42, 6)
            for sl in range(lo, min(lo + 2, hi)): rd(sl)
            for sl in range(lo, hi):
                if sl + 2 < hi: rd(sl + 2)
                b = fr + 8 * (sl % 3)
                c0 = '0' if sl == 0 else vr(acc, 16); c1 = '0' if sl == 0 else vr(acc + 16, 16)
                p(f'v_mfma_f32_32x32x16_bf16 {vr(acc,16)}, {vr(wf+4*sl,4,"a")}, {vr(b,4)}, {c0}')
                p(f'v_mfma_f32_32x32x16_bf16 {vr(acc+16,16)}, {vr(wf+4*sl,4,"a")}, {vr(b+4,4)}, {c1}')
        V.free('g2fr'); A.free('w2f')
        self.stamp('g2mm')
        p('s_barrier')
        ex = V.alloc('g2ex', 16, align=2)
        p(f'''
        s_lshl_b32 s58, {sWAVE}, 12
        v_lshlrev_b32 v{t}, 4, v1
        v_add_u32 v{t+1}, s58, v{t}
        s_xor_b32 s58, {sWAVE}, 2
        s_lshl_b32 s58, s58, 12
        v_add_u32 v{t+2}, s58, v{t}
        ''')
        l0 = self.lab('g20'); l1 = self.lab('g21')
        p(f's_cmp_lt_u32 {sWAVE}, 2\ns_cbranch_scc0 {l0}')
        with p.cond(lambda c: c['w'] < 2):
            for q in range(4): p(f'ds_write_b128 v{t+1}, {vr(acc+16+4*q,4)} offset:{1024*q}')
        p(f's_branch {l1}\n{l0}:')
        with p.cond(lambda c: c['w'] >= 2):
            for q in range(4): p(f'ds_write_b128 v{t+1}, {vr(acc+4*q,4)} offset:{1024*q}')
            for r in range(16): p(f'v_mov_b32 v{acc+r}, v{acc+16+r}')
        p(f'{l1}:')
        ST_L = 32768; ST_STR = 144
        p(f'''
        s_lshr_b32 s56, {sTG}, 4
        s_lshl_b32 s56, s56, 9
        s_lshl_b32 s57, {sCG}, 6
        s_add_u32 s56, s56, s57
        s_lshl_b32 s56, s56, 3
        s_add_u32 s56, s56, {FL_C}
        v_lshlrev_b32 v{t+3}, 3, v1
        v_add_u32 v{t+3}, s56, v{t+3}
        ''')
        self.poll(t + 3, 64, 1, 'pollC')
        self.stamp('pollC')
        sd = V.alloc('g2sd', 8, align=2); xd = V.alloc('g2xd', 8, align=2); ad = V.alloc('g2ad', 4)
        p(f'''
        v_lshrrev_b32 v{ad}, 3, v0
        v_and_b32 v{ad+1}, 7, v0
        v_lshlrev_b32 v{ad+1}, 4, v{ad+1}
        v_lshlrev_b32 v{ad+2}, 12, v{ad}
        v_add_u32 v{ad+2}, v{ad+2}, v{ad+1}
        s_lshl_b32 s56, {sCG}, 18
        s_lshl_b32 s57, {sTG}, 7
        s_add_u32 s56, s56, s57
        s_add_u32 s56, s56, {WS_ST}
        s_add_u32 s57, s56, {32*4096}
        buffer_load_dwordx4 {vr(sd,4)}, v{ad+2}, {SWS}, s56 offen sc1
        buffer_load_dwordx4 {vr(sd+4,4)}, v{ad+2}, {SWS}, s57 offen sc1
        v_lshlrev_b32 v{ad+2}, 10, v{ad}
        v_add_u32 v{ad+2}, v{ad+2}, v{ad+1}
        s_lshl_b32 s56, {sTG}, 16
        s_lshl_b32 s57, {sCG}, 7
        s_add_u32 s56, s56, s57
        s_add_u32 s57, s56, {32*1024}
        buffer_load_dwordx4 {vr(xd,4)}, v{ad+2}, {SX}, s56 offen
        buffer_load_dwordx4 {vr(xd+4,4)}, v{ad+2}, {SX}, s57 offen
        v_mul_u32_u24 v{ad+3}, {ST_STR}, v{ad}
        v_add_u32 v{ad+3}, v{ad+3}, v{ad+1}
        v_add_u32 v{ad+3}, {ST_L}, v{ad+3}
        ds_write_b128 v{ad+3}, {vr(sd,4)}
        ds_write_b128 v{ad+3}, {vr(sd+4,4)} offset:{32*ST_STR}
        s_waitcnt lgkmcnt(0)
        s_barrier
        ''')
        for q in range(4): p(f'ds_read_b128 {vr(ex+4*q,4)}, v{t+2} offset:{1024*q}')
        sv = sd
        p(f'''
        v_lshrrev_b32 v{t}, 5, v1
        v_lshlrev_b32 v{t}, 2, v{t}
        v_bfe_u32 v{t+1}, v1, 2, 2
        v_add_u32 v{t}, v{t}, v{t+1}
        s_and_b32 s57, {sWAVE}, 1
        s_lshl_b32 s57, s57, 5
        v_add_u32 v{t}, s57, v{t}
        v_mul_u32_u24 v{t}, {ST_STR}, v{t}
        v_bfe_u32 v{t+1}, v1, 4, 1
        v_lshlrev_b32 v{t+1}, 5, v{t+1}
        v_add_u32 v{t}, v{t}, v{t+1}
        v_and_b32 v{t+1}, 3, v1
        v_lshlrev_b32 v{t+1}, 3, v{t+1}
        v_add_u32 v{t}, v{t}, v{t+1}
        s_lshr_b32 s56, {sWAVE}, 1
        s_lshl_b32 s56, s56, 6
        s_add_u32 s56, s56, {ST_L}
        v_add_u32 v{t}, s56, v{t}
        ''')
        for q in range(4): p(f'ds_read_b64_tr_b16 {vr(sv+2*q,2)}, v{t} offset:{8*q*ST_STR}')
        for r in range(16): p(f'v_add_f32 v{acc+r}, v{acc+r}, v{ex+r}')
        for r in range(16): p(f'v_mul_f32 v{ex+r}, {f32(-LOG2E)}, v{acc+r}')
        for r in range(16): p(f'v_exp_f32 v{ex+r}, v{ex+r}')
        for r in range(0, 16, 2): p(f'v_pk_add_f32 {vr(ex+r,2)}, {vr(ex+r,2)}, 1.0 op_sel_hi:[1,0]')
        for r in range(16): p(f'v_rcp_f32 v{ex+r}, v{ex+r}')
        for r in range(0, 16, 2): p(f'v_pk_mul_f32 {vr(acc+r,2)}, {vr(acc+r,2)}, {vr(ex+r,2)}')
        for r in range(16):
            if r % 2 == 0: p(f'v_lshlrev_b32 v{ex+r}, 16, v{sv+r//2}')
            else: p(f'v_and_b32 v{ex+r}, 0xffff0000, v{sv+r//2}')
        for r in range(0, 16, 2): p(f'v_pk_mul_f32 {vr(acc+r,2)}, {vr(acc+r,2)}, {vr(ex+r,2)}')
        for r in range(8): p(f'v_cvt_pk_bf16_f32 v{ex+r}, v{acc+2*r}, v{acc+2*r+1}')
        SG_L = 49152
        p(f'''
        v_and_b32 v{t}, 31, v1
        s_lshr_b32 s56, {sWAVE}, 1
        s_lshl_b32 s56, s56, 5
        v_add_u32 v{t}, s56, v{t}
        v_mul_u32_u24 v{t}, {ST_STR}, v{t}
        v_lshrrev_b32 v{t+1}, 5, v1
        v_lshlrev_b32 v{t+1}, 3, v{t+1}
        v_add_u32 v{t}, v{t}, v{t+1}
        s_and_b32 s57, {sWAVE}, 1
        s_lshl_b32 s57, s57, 6
        s_add_u32 s57, s57, {SG_L}
        v_add_u32 v{t}, s57, v{t}
        ''')
        for q in range(4): p(f'ds_write_b64 v{t}, {vr(ex+2*q,2)} offset:{16*q}')
        p('s_waitcnt lgkmcnt(0)\ns_barrier')
        p(f'v_add_u32 v{ad+3}, {SG_L-ST_L}, v{ad+3}')
        p(f'ds_read_b128 {vr(sd,4)}, v{ad+3}')
        p(f'ds_read_b128 {vr(sd+4,4)}, v{ad+3} offset:{32*ST_STR}')
        for k in range(2):
            for j in range(4):
                a_, b_ = sd + 4 * k + j, xd + 4 * k + j
                p(f'v_lshlrev_b32 v{ex}, 16, v{a_}')
                p(f'v_and_b32 v{ex+1}, 0xffff0000, v{a_}')
                p(f'v_lshlrev_b32 v{ex+2}, 16, v{b_}')
                p(f'v_and_b32 v{ex+3}, 0xffff0000, v{b_}')
                p(f'v_pk_add_f32 {vr(ex,2)}, {vr(ex,2)}, {vr(ex+2,2)}')
                p(f'v_cvt_pk_bf16_f32 v{b_}, v{ex}, v{ex+1}')
        p(f'''
        s_lshl_b32 s56, {sTG}, 16
        s_lshl_b32 s57, {sCG}, 7
        s_add_u32 s56, s56, s57
        s_add_u32 s57, s56, {32*1024}
        buffer_store_dwordx4 {vr(xd,4)}, v{ad+2}, {SOUT}, s56 offen
        buffer_store_dwordx4 {vr(xd+4,4)}, v{ad+2}, {SOUT}, s57 offen
        ''')
        V.free('g2t', 'g2acc', 'g2ex', 'g2sd', 'g2xd', 'g2ad')
    def dump_lds(self, lds_off, nbytes, ws_off):
        p, V = self.p, self.V
        t = V.alloc('dmp', 6, align=2)
        p('s_waitcnt lgkmcnt(0)\ns_barrier')
        stride = (nbytes + 4095) // 4096 * 4096
        p(f's_mul_i32 s52, {sBETA}, {stride}\ns_add_u32 s52, s52, {ws_off}')
        p(f'v_lshlrev_b32 v{t}, 4, v0')
        for k in range(stride // 4096):
            p(f'v_add_u32 v{t+1}, {lds_off + 4096*k}, v{t}')
            p(f'ds_read_b128 {vr(t+2,4)}, v{t+1}')
            p(f'buffer_store_dwordx4 {vr(t+2,4)}, v{t}, {SWS}, s52 offen')
            p(f's_add_u32 s52, s52, 4096')
            p('s_waitcnt vmcnt(0)')
        p('s_barrier')
        V.free('dmp')
    def ln(self):
        p, V = self.p, self.V
        x = [V['x0'], V['x1']]
        d = [V.alloc('d0', 8), V.alloc('d1', 8)]
        s1 = V.alloc('s1', 2); s2 = V.alloc('s2', 2)
        tp = V.alloc('lnt', 8)
        for k in range(2):
            for j in range(4):
                p(f'v_lshlrev_b32 v{d[k]+2*j}, 16, v{x[k]+j}')
                p(f'v_and_b32 v{d[k]+2*j+1}, 0xffff0000, v{x[k]+j}')
        p(f'v_readlane_b32 s52, v{d[0]}, 0')
        p(f'v_readlane_b32 s54, v{d[1]}, 0')
        p(f's_mov_b32 s53, s52\ns_mov_b32 s55, s54')
        for k in range(2):
            sp = 's[52:53]' if k == 0 else 's[54:55]'
            for j in range(4):
                p(f'v_pk_add_f32 {vr(d[k]+2*j,2)}, {vr(d[k]+2*j,2)}, {sp} neg_lo:[0,1] neg_hi:[0,1]')
        for k in range(2):
            a = tp + 4 * k
            p(f'v_pk_add_f32 {vr(a,2)}, {vr(d[k],2)}, {vr(d[k]+2,2)}')
            p(f'v_pk_add_f32 {vr(a+2,2)}, {vr(d[k]+4,2)}, {vr(d[k]+6,2)}')
        for k in range(2):
            a = tp + 4 * k
            p(f'v_pk_add_f32 {vr(a,2)}, {vr(a,2)}, {vr(a+2,2)}')
        for k in range(2):
            a = tp + 4 * k
            p(f'v_add_f32 v{s1+k}, v{a}, v{a+1}')
        for k in range(2):
            a = tp + 4 * k
            p(f'v_pk_mul_f32 {vr(a,2)}, {vr(d[k],2)}, {vr(d[k],2)}')
        for j in range(1, 4):
            for k in range(2):
                a = tp + 4 * k
                p(f'v_pk_fma_f32 {vr(a,2)}, {vr(d[k]+2*j,2)}, {vr(d[k]+2*j,2)}, {vr(a,2)}')
        for k in range(2):
            a = tp + 4 * k
            p(f'v_add_f32 v{s2+k}, v{a}, v{a+1}')
        regs = [s1, s1 + 1, s2, s2 + 1]
        for ctl in ('row_shr:1 row_mask:0xf bank_mask:0xf bound_ctrl:1', 'row_shr:2 row_mask:0xf bank_mask:0xf bound_ctrl:1',
                    'row_shr:4 row_mask:0xf bank_mask:0xf bound_ctrl:1', 'row_shr:8 row_mask:0xf bank_mask:0xf bound_ctrl:1',
                    'row_bcast:15 row_mask:0xa bank_mask:0xf', 'row_bcast:31 row_mask:0xc bank_mask:0xf'):
            for r in regs:
                p(f'v_add_f32_dpp v{r}, v{r}, v{r} {ctl}')
        for n, r in enumerate(regs):
            p(f'v_readlane_b32 s{56+n}, v{r}, 63')
        m = [tp, tp + 1]; va = [tp + 2, tp + 3]; t4 = tp + 4; t5 = tp + 5
        inv = f32(1.0 / 512)
        for k in range(2):
            p(f'v_mov_b32 v{m[k]}, s{56+k}')
            p(f'v_mov_b32 v{va[k]}, s{58+k}')
        for k in range(2):
            p(f'v_mul_f32 v{m[k]}, {inv}, v{m[k]}')
            p(f'v_mul_f32 v{va[k]}, {inv}, v{va[k]}')
        for k in range(2):
            p(f'v_fma_f32 v{va[k]}, -v{m[k]}, v{m[k]}, v{va[k]}')
        for k in range(2):
            p(f'v_max_f32 v{va[k]}, 0, v{va[k]}')
        p(f'v_add_f32 v{t4}, s52, v{m[0]}')
        p(f'v_add_f32 v{t5}, s54, v{m[1]}')
        p(f'v_cvt_pk_bf16_f32 v{t4}, v{t4}, v{t5}')
        p(f'v_cvt_pk_bf16_f32 v{t5}, v{va[0]}, v{va[1]}')
        p(f'v_lshlrev_b32 v{m[0]}, 16, v{t4}')
        p(f'v_and_b32 v{m[1]}, 0xffff0000, v{t4}')
        p(f'v_lshlrev_b32 v{va[0]}, 16, v{t5}')
        p(f'v_and_b32 v{va[1]}, 0xffff0000, v{t5}')
        eps = f32(1e-5)
        for k in range(2): p(f'v_add_f32 v{va[k]}, {eps}, v{va[k]}')
        p(f'v_cvt_pk_bf16_f32 v{t5}, v{va[0]}, v{va[1]}')
        p(f'v_lshlrev_b32 v{va[0]}, 16, v{t5}')
        p(f'v_and_b32 v{va[1]}, 0xffff0000, v{t5}')
        for k in range(2): p(f'v_sqrt_f32 v{va[k]}, v{va[k]}')
        p(f'v_cvt_pk_bf16_f32 v{t5}, v{va[0]}, v{va[1]}')
        p(f'v_lshlrev_b32 v{va[0]}, 16, v{t5}')
        p(f'v_and_b32 v{va[1]}, 0xffff0000, v{t5}')
        for k in range(2): p(f'v_rcp_f32 v{va[k]}, v{va[k]}')
        p(f'v_sub_f32 v{m[0]}, s52, v{m[0]}')
        p(f'v_sub_f32 v{m[1]}, s54, v{m[1]}')
        for k in range(2): p(f'v_mul_f32 v{m[k]}, v{m[k]}, v{va[k]}')
        for k in range(2):
            for j in range(4):
                p(f'v_pk_fma_f32 {vr(d[k]+2*j,2)}, {vr(d[k]+2*j,2)}, {vr(va[k]-(va[k]&1),2)}, {vr(m[k]-(m[k]&1),2)} '
                  f'op_sel:[0,{va[k]&1},{m[k]&1}] op_sel_hi:[1,{va[k]&1},{m[k]&1}]')
        ad = V.alloc('lnad', 2)
        p(f'''
        s_lshl_b32 s52, {sWAVE}, 1
        s_mul_i32 s53, s52, {TBF_STR}
        s_add_u32 s53, s53, {L_TBF}
        s_mul_i32 s54, s52, {TH_STR}
        s_add_u32 s54, s54, {L_TH}
        v_lshlrev_b32 v{ad+1}, 4, v1
        v_add_u32 v{ad}, s53, v{ad+1}
        v_add_u32 v{ad+1}, s54, v{ad+1}
        ''')
        for k in range(2):
            for j in range(4):
                p(f'v_cvt_pk_bf16_f32 v{x[k]+j}, v{d[k]+2*j}, v{d[k]+2*j+1}')
            p(f'ds_write_b128 v{ad}, {vr(x[k],4)} offset:{k*TBF_STR}')
        for k in range(2):
            for j in range(4):
                p(f'v_cvt_pk_f16_f32 v{d[k]+j}, v{d[k]+2*j}, v{d[k]+2*j+1}')
            p(f'ds_write_b128 v{ad+1}, {vr(d[k],4)} offset:{k*TH_STR}')
        lab = self.lab('nn')
        p(f's_cmp_lg_u32 {sWAVE}, 0\ns_cbranch_scc1 {lab}')
        with p.cond(lambda c: c['w'] == 0):
            p(f'v_add_u32 v{V["nonce"]}, 1, v{V["nonce"]}')
            p(f'v_mov_b32 v{ad}, {L_MISC}')
            p(f'ds_write_b32 v{ad}, v{V["nonce"]}')
        p(f'{lab}:')
        p('s_waitcnt lgkmcnt(0)\ns_barrier')
        V.free('d0', 'd1', 's1', 's2', 'lnt', 'lnad', 'x0', 'x1')
        nv = V['nonce']
        p(f'v_mov_b32 v{nv}, {L_MISC}')
        p(f'ds_read_b32 v{nv}, v{nv}')
        p(f'v_readfirstlane_b32 {sNONCE}, v{nv}')
        V.free('nonce')
        self.stamp('ln_compute')
        lab = self.lab('lnst')
        p(f's_cmp_ge_u32 {sWAVE}, 2\ns_cbranch_scc1 {lab}')
        with p.cond(lambda c: c['w'] < 2):
            a = V.alloc('lsa', 4); dt = V.alloc('lsd', 16, align=2); u = V.alloc('lsu', 16, align=2)
            p(f'''
            v_and_b32 v{a}, 7, v0
            v_lshrrev_b32 v{a+1}, 3, v0
            v_mul_u32_u24 v{a+2}, {TBF_STR}, v{a}
            v_lshlrev_b32 v{a+3}, 4, v{a+1}
            v_add_u32 v{a+2}, v{a+2}, v{a+3}
            v_add_u32 v{a+2}, {L_TBF}, v{a+2}
            ''')
            for k in range(4):
                p(f'ds_read_b128 {vr(dt+4*k,4)}, v{a+2} offset:{256*k}')
            p(f'''
            v_bfe_u32 v{a+3}, v1, 2, 2
            v_mul_u32_u24 v{a+3}, {TH_STR}, v{a+3}
            v_lshrrev_b32 v{u}, 4, v1
            v_lshlrev_b32 v{u}, 5, v{u}
            v_add_u32 v{a+3}, v{a+3}, v{u}
            v_and_b32 v{u}, 3, v1
            v_lshlrev_b32 v{u}, 3, v{u}
            v_add_u32 v{a+3}, v{a+3}, v{u}
            s_lshl_b32 s52, {sWAVE}, 9
            s_add_u32 s52, s52, {L_TH}
            v_add_u32 v{a+3}, s52, v{a+3}
            ''')
            for it in range(4):
                p(f'ds_read_b64_tr_b16 {vr(u+4*it,2)}, v{a+3} offset:{128*it}')
                p(f'ds_read_b64_tr_b16 {vr(u+4*it+2,2)}, v{a+3} offset:{128*it+4*TH_STR}')
            p(f'''
            v_lshrrev_b32 v{a+2}, 1, v{a+1}
            v_lshlrev_b32 v{a+2}, 10, v{a+2}
            v_and_b32 v{a+1}, 1, v{a+1}
            v_lshlrev_b32 v{a+1}, 9, v{a+1}
            v_add_u32 v{a+2}, v{a+2}, v{a+1}
            v_lshlrev_b32 v{a}, 4, v{a}
            v_add_u32 v{a+2}, v{a+2}, v{a}
            s_lshr_b32 s52, {sBETA}, 2
            s_lshl_b32 s52, s52, 15
            s_and_b32 s53, {sBETA}, 3
            s_lshl_b32 s53, s53, 7
            s_add_u32 s52, s52, s53
            s_add_u32 s52, s52, {WS_XNF}
            ''')
            for k in range(4):
                p(f's_add_u32 s53, s52, {8192*k}')
                p(f'buffer_store_dwordx4 {vr(dt+4*k,4)}, v{a+2}, {SWS}, s53 offen sc1', tag='lnst')
            p(f'''
            v_lshlrev_b32 v{a}, 4, v1
            s_lshl_b32 s52, {sBETA}, 13
            s_lshl_b32 s53, {sWAVE}, 12
            s_add_u32 s52, s52, s53
            s_add_u32 s52, s52, {WS_UBLK}
            ''')
            for it in range(4):
                p(f'buffer_store_dwordx4 {vr(u+4*it,4)}, v{a}, {SWS}, s52 offen offset:{1024*it} sc1', tag='lnst')
            V.free('lsa', 'lsd', 'lsu')
        p(f'{lab}:')
    def flag_store(self, off_expr_sgpr, base):
        p, V = self.p, self.V
        t = V.alloc('fl', 2)
        p(f'''
        s_add_u32 s52, {off_expr_sgpr}, {base}
        v_mov_b32 v{t}, s52
        v_mov_b32 v{t+1}, {sNONCE}
        s_mov_b64 s[62:63], exec
        s_mov_b64 exec, 1
        buffer_store_dword v{t+1}, v{t}, {SWS}, 0 offen sc1
        s_mov_b64 exec, s[62:63]
        ''')
        V.free('fl')
    def ln_flag(self):
        p = self.p
        lab = self.lab('lnfl')
        p(f's_cmp_ge_u32 {sWAVE}, 2\ns_cbranch_scc1 {lab}')
        with p.cond(lambda c: c['w'] < 2):
            p.wait_tag('lnst')
            p(f's_lshl_b32 s53, {sBETA}, 4\ns_lshl_b32 s54, {sWAVE}, 3\ns_add_u32 s53, s53, s54')
            self.flag_store('s53', FL_A)
        p(f'{lab}:')
    def finish(self):
        p = self.p
        if self.stamps:
            V = self.V
            t = V.alloc('stt'); t2 = V.alloc('stt2')
            p(f'''
            s_waitcnt vmcnt(0) lgkmcnt(0)
            s_memrealtime s[94:95]
            s_waitcnt lgkmcnt(0)
            v_writelane_b32 v255, s94, 63
            s_lshl_b32 s52, s2, 2
            s_add_u32 s52, s52, {sWAVE}
            s_lshl_b32 s52, s52, 8
            s_add_u32 s52, s52, {WS_DBG}
            v_lshlrev_b32 v{t}, 2, v1
            buffer_store_dword v255, v{t}, {SWS}, s52 offen
            ''')
            if self.dbgstamps:
                lab = self.lab('dbgst')
                sel = self.dbgstamps
                p(f's_or_b32 s52, s2, {sWAVE}\ns_cmp_lg_u32 s52, 0\ns_cbranch_scc1 {lab}')
                p('v_readlane_b32 s53, v255, 0')
                for k, nm in enumerate(sel):
                    idx = self.stamp_names.index(nm)
                    p(f'v_readlane_b32 s54, v255, {idx}')
                    p(f's_sub_u32 s54, s54, s53')
                    p(f'v_mov_b32 v{t}, {4*k}')
                    p(f'v_mov_b32 v{t2}, s54')
                    p(f'global_store_dword v{t}, v{t2}, {pDBG}')
                p('v_readlane_b32 s53, v255, 62\nv_readlane_b32 s54, v255, 63\ns_sub_u32 s54, s54, s53')
                p(f'v_mov_b32 v{t}, 60\nv_mov_b32 v{t2}, s54\nglobal_store_dword v{t}, v{t2}, {pDBG}')
                p(f'{lab}:')
        p('L_end:\ns_endpgm')
    def build(self):
        self.prologue()
        self.initial_loads()
        self.idle_setup()
        self.ln()
        p = self.p
        self.stamp('lnst')
        groups = self.w1_dma_groups()
        self.kgen_setup()
        self.stamp('ksetup')
        p('s_barrier')
        with p.capture() as main:
            self.kgen_values()
        half = len(main) // 2
        p.merge(main[:half], groups[:12])
        self.stamp('khalf')
        self.ln_flag()
        self.stamp('flagA')
        p.merge(main[half:], groups[12:])
        self.V.free('w1off')
        self.stamp('kvals')
        p('s_waitcnt lgkmcnt(0)\ns_barrier')
        self.kgen_mfma()
        p('s_waitcnt lgkmcnt(0)\ns_barrier')
        self.stamp('kmfma')
        if 'table' in self.dump: self.dump_lds(L_T, 2 * T_CH, WS_DBG + 0x100000)
        self.expand()
        p.wait_tag('w1dma')
        p('s_waitcnt lgkmcnt(0)\ns_barrier')
        self.stamp('expand')
        if 'kc' in self.dump: self.dump_lds(L_KC, 8 * KC_STR, WS_DBG + 0x400000)
        self.gemm1()
        self.stamp('gemm1')
        self.act_flag()
        self.conv_load_u()
        self.stamp('uload')
        self.conv()
        self.stamp('conv')
        self.st_flag()
        for rnd in range(2):
            p('s_barrier')
            self.w2_stage(rnd)
            p.wait_tag(f'w2dma{rnd}')
            p('s_barrier')
            self.w2_read(rnd)
            p('s_waitcnt lgkmcnt(0)')
        self.stamp('w2regs')
        self.gemm2()
        self.stamp('end')
        self.finish()
        body = self.p.render()
        names = ''.join(l + '\n' for l in getattr(self, 'stamp_lines', []))
        hdr = f'''; S4D conv + mish MLP gated block, single persistent launch (generated by gen/kern.py)
; @launch grid=(256,1,1) block=(256,1,1) lds={LDS_BYTES}
{names}.amdgcn_target "amdgcn-amd-amdhsa--gfx950"
.text
.globl {NAME}
.p2align 8
.type {NAME},@function
{NAME}:
'''
        tail = f'''
.section .rodata,"a"
.p2align 6
.amdhsa_kernel {NAME}
  .amdhsa_next_free_vgpr 512
  .amdhsa_next_free_sgpr 102
  .amdhsa_accum_offset 256
  .amdhsa_group_segment_fixed_size 0
  .amdhsa_kernarg_size 112
  .amdhsa_user_sgpr_count 2
  .amdhsa_user_sgpr_kernarg_segment_ptr 1
  .amdhsa_system_sgpr_workgroup_id_x 1
  .amdhsa_ieee_mode 0
  .amdhsa_dx10_clamp 0
.end_amdhsa_kernel
'''
        return hdr + body + tail

if __name__ == '__main__':
    import argparse
    ap = argparse.ArgumentParser()
    ap.add_argument('-o', default='k.s')
    ap.add_argument('--stamps', action='store_true')
    ap.add_argument('--stop', default=None)
    ap.add_argument('--dump', default=None)
    ap.add_argument('--dbg', default=None)
    a = ap.parse_args()
    g = Gen(stop=a.stop, stamps=a.stamps, dump=set(a.dump.split(',')) if a.dump else None, dbgstamps=a.dbg.split(',') if a.dbg else None)
    s = g.build()
    open(a.o, 'w').write(s)
    print('vgpr hi', g.V.hi, 'agpr hi', g.A.hi, 'lines', s.count('\n'))
```

```python
import sys, math, struct
from asmgen import Prog
from regs import Regs, vr
from kern import (NAME, WS_XNF, WS_UBLK, WS_ACT, WS_ST, WS_FLG, FL_A, FL_B, FL_C, WS_DBG, WS_BYTES,
                  L_W, L_F, F_WAVE, L_T, T_CH, T_ZERO, L_MISC, LDS_BYTES, TBF_STR, TH_STR, L_TBF, L_TH,
                  KC_STR, L_KC, L_U, U_CH, X0, LOG2E, f32)
import pads as PADS

sBETA, sWAVE, sTT, sFB0, sNBLK = 's3', 's4', 's5', 's6', 's7'
SX, SW1, SW2, SWS, SOUT, SB1 = 's[8:11]', 's[12:15]', 's[16:19]', 's[20:23]', 's[24:27]', 's[28:31]'
pLOGA, pAIM, pCRE, pCIM, pLOGDT, pDSK = 's[66:67]', 's[68:69]', 's[70:71]', 's[72:73]', 's[74:75]', 's[76:77]'
sSIG, sDV, sNONCE, sTG, sCG, sLDT, sDSK = 's44', 's45', 's46', 's47', 's48', 's49', 's50'
sCH, sROLE = 's32', 's33'
pDBG = 's[92:93]'
ST_L = 147456; ST_STR = 144
R1 = 36

class Gen:
    def __init__(self, stamps=False, dump=None, dbgstamps=None, opts=None):
        self.stamps = stamps; self.dump = dump or set(); self.dbgstamps = dbgstamps
        self.o = dict(pads=True, touch=True, touch64=False, lead=10)
        self.o.update(opts or {})
        cfgs = [dict(w=w, nblk=n) for w in range(4) for n in (2, 3)]
        self.p = Prog(cfgs)
        self.V = Regs('v', 255 if stamps else 256, reserved=2)
        self.A = Regs('a', 256)
        self.nstamp = 0; self.uid = 0; self.stamp_names = []
    def lab(self, s):
        self.uid += 1
        return f'L_{s}_{self.uid}'
    def stamp(self, name):
        if not self.stamps: return
        p = self.p
        p('s_memtime s[94:95]')
        p('s_waitcnt lgkmcnt(0)')
        p(f'v_writelane_b32 v255, s94, {self.nstamp}')
        self.nstamp += 1; self.stamp_names.append(name)
    def exec_lanes(self, n):
        if n >= 64: return
        if n > 32: raise ValueError
        self.p(f's_mov_b32 exec_lo, {hex((1 << n) - 1) if n < 32 else -1}\ns_mov_b32 exec_hi, 0')
    def exec_all(self): self.p('s_mov_b64 exec, -1')
    def cap(self, fn, *a):
        with self.p.capture() as b: fn(*a)
        return b
    def weave(self, main, fill, per=None, start=0):
        p = self.p
        nm = sum(1 for i in main if i.kind == 'mfma') - start
        k = 0; seen = 0
        for i in main:
            p.ins.append(i)
            if i.kind == 'mfma':
                seen += 1
                if seen > start:
                    tgt = min(len(fill), (seen - start) * per) if per else (len(fill) * (seen - start) + nm - 1) // nm
                    while k < tgt: p.ins.append(fill[k]); k += 1
        while k < len(fill): p.ins.append(fill[k]); k += 1
    def entry(self):
        p, V = self.p, self.V
        x0 = V.alloc('x0', 4); x1 = V.alloc('x1', 4)
        l16 = V.alloc('l16'); t = V.alloc('t0'); t2 = V.alloc('t1')
        p(f'''
        s_load_dwordx16 s[64:79], s[0:1], 0
        s_load_dwordx8 s[80:87], s[0:1], 64
        s_load_dwordx4 s[88:91], s[0:1], 96
        s_cmp_ge_u32 s2, 256
        s_cbranch_scc1 L_end
        v_and_b32 v1, 63, v0
        v_lshrrev_b32 v2, 6, v0
        s_and_b32 s52, s2, 7
        s_lshr_b32 s53, s2, 3
        v_readfirstlane_b32 {sWAVE}, v2
        s_lshl_b32 {sBETA}, s52, 5
        s_add_u32 {sBETA}, {sBETA}, s53
        v_lshlrev_b32 v{l16}, 4, v1
        s_lshl_b32 s52, {sBETA}, 3
        s_lshl_b32 s53, {sWAVE}, 1
        s_add_u32 s52, s52, s53
        s_lshl_b32 s52, s52, 10
        s_mov_b32 s10, 0x200000
        s_mov_b32 s11, 0x20000
        s_lshr_b32 {sCH}, {sWAVE}, 1
        s_and_b32 {sROLE}, {sWAVE}, 1
        s_lshl_b32 s54, {sBETA}, 1
        s_add_u32 s54, s54, {sCH}
        s_lshl_b32 s54, s54, 8
        s_lshl_b32 s55, {sROLE}, 7
        s_add_u32 s56, s54, s55
        s_xor_b32 s55, s55, 128
        s_add_u32 s57, s54, s55
        v_lshlrev_b32 v{t2}, 1, v1
        v_add_u32 v{t}, s57, v{t2}
        v_add_u32 v{t2}, s56, v{t2}
        s_lshl_b32 s58, {sBETA}, 2
        s_waitcnt lgkmcnt(0)
        s_mov_b32 s8, s64
        s_mov_b32 s9, s65
        ''')
        if self.o.get('fine'): self.stamp('e0')
        p(f'buffer_load_dwordx4 {vr(x0,4)}, v{l16}, {SX}, s52 offen')
        p(f'buffer_load_dwordx4 {vr(x1,4)}, v{l16}, {SX}, s52 offen offset:1024')
        pr = V.alloc('par', 6)
        if self.o.get('fine'): self.stamp('e1')
        p(f'''
        global_load_ushort v{pr}, v{t2}, {pLOGA}
        global_load_ushort v{pr+1}, v{t2}, {pAIM}
        global_load_ushort v{pr+2}, v{t2}, {pCRE}
        global_load_ushort v{pr+3}, v{t2}, {pCIM}
        global_load_ushort v{pr+4}, v{t}, {pCRE}
        global_load_ushort v{pr+5}, v{t}, {pCIM}
        s_load_dword {sLDT}, {pLOGDT}, s58
        s_load_dword {sDSK}, {pDSK}, s58
        s_mov_b32 s20, s90
        s_mov_b32 s21, s91
        s_mov_b32 s22, {WS_BYTES}
        s_mov_b32 s23, 0x20000
        ''')
        nv = V.alloc('nonce')
        if self.o.get('fine'): self.stamp('e2')
        p(f'''
        v_mov_b32 v{t}, {WS_FLG}
        buffer_load_dword v{nv}, v{t}, {SWS}, 0 offen sc1
        s_mov_b32 s12, s80
        s_mov_b32 s13, s81
        s_mov_b32 s14, {512*1376*2}
        s_mov_b32 s15, 0x20000
        s_mov_b32 s16, s84
        s_mov_b32 s17, s85
        s_mov_b32 s18, {512*1376*2}
        s_mov_b32 s19, 0x20000
        s_mov_b32 s24, s86
        s_mov_b32 s25, s87
        s_mov_b32 s26, 0x200000
        s_mov_b32 s27, 0x20000
        s_mov_b32 s28, s82
        s_mov_b32 s29, s83
        s_mov_b32 s30, {1376*2}
        s_mov_b32 s31, 0x20000
        s_mov_b64 {pDBG}, s[88:89]
        s_lshr_b32 {sTT}, {sBETA}, 4
        s_and_b32 s54, {sBETA}, 15
        s_mul_i32 {sFB0}, s54, 3
        s_lshl_b32 s55, s54, 1
        s_add_u32 s55, s55, 11
        s_cmp_lt_u32 s54, 11
        s_cselect_b32 {sFB0}, {sFB0}, s55
        s_cselect_b32 {sNBLK}, 3, 2
        s_lshr_b32 {sTG}, {sBETA}, 3
        s_and_b32 {sCG}, {sBETA}, 7
        ''')
        if self.o.get('fine'): self.stamp('e3')
        if self.o['touch']:
            lab = self.lab('tch')
            tv = V.alloc('touch', 6)
            p(f's_cmp_lt_u32 {sWAVE}, 2\ns_cbranch_scc1 {lab}')
            with p.cond(lambda c: c['w'] >= 2):
                step = 64 if self.o['touch64'] else 128
                n = 6 if self.o['touch64'] else 3
                p(f'''
                s_lshr_b32 s52, s2, 3
                s_mul_i32 s52, s52, 44032
                s_sub_u32 s53, {sWAVE}, 2
                s_mul_i32 s53, s53, 22016
                s_add_u32 s52, s52, s53
                v_mul_u32_u24 v{t}, {step}, v1
                ''')
                for k in range(n):
                    p(f'buffer_load_dword v{tv+k}, v{t}, {SW1}, s52 offen')
                    if k + 1 < n: p(f's_add_u32 s52, s52, {64*step}')
            p(f'{lab}:')
        b = V.alloc('bias', 24)
        if self.o.get('fine'): self.stamp('e4')
        p(f'''
        v_lshrrev_b32 v{t}, 5, v1
        v_lshlrev_b32 v{t}, 3, v{t}
        s_lshl_b32 s52, {sFB0}, 6
        ''')
        for blk in range(3):
            for q in range(4):
                p(f'buffer_load_dwordx2 {vr(b+8*blk+2*q,2)}, v{t}, {SB1}, s52 offen offset:{64*blk+16*q}')
        V.free('t0', 't1')
        self.stamp('start')
        if self.stamps:
            p('s_memrealtime s[94:95]\ns_waitcnt lgkmcnt(0)\nv_writelane_b32 v255, s94, 62')
        if self.o['pads']:
            p('s_mov_b64 s[62:63], exec\ns_mov_b64 exec, 0\n;WARM\nL_warm_ret:\ns_mov_b64 exec, s[62:63]')
        p('s_branch L_main\n.p2align 12\nL_main:')
    def idle_setup(self):
        p, V = self.p, self.V
        l16 = V['l16']
        t = V.alloc('ist', 8, align=2)
        n31 = V.alloc('n31'); hh = V.alloc('hh')
        p(f'v_and_b32 v{n31}, 31, v1\nv_lshrrev_b32 v{hh}, 5, v1')
        z = t + 4
        for k in range(4): p(f'v_mov_b32 v{z+k}, 0')
        p(f'v_lshlrev_b32 v{t}, 4, v0\nv_add_u32 v{t}, {L_T}, v{t}')
        p(f'ds_write_b128 v{t}, {vr(z,4)}')
        p(f'''
        v_cmp_gt_u32 vcc, {(2*T_CH-4096)//16}, v0
        s_and_saveexec_b64 s[62:63], vcc
        ds_write_b128 v{t}, {vr(z,4)} offset:4096
        s_mov_b64 exec, s[62:63]
        ''')
        vo = V.alloc('w1off', 3)
        for k in range(3):
            p(f'''
            v_add_u32 v{t}, {64*k}, v1
            v_mul_u32_u24 v{t+1}, 171, v{t}
            v_lshrrev_b32 v{t+1}, 11, v{t+1}
            v_mul_u32_u24 v{vo+k}, 12, v{t+1}
            v_sub_u32 v{vo+k}, v{t}, v{vo+k}
            v_lshlrev_b32 v{vo+k}, 4, v{vo+k}
            v_mul_u32_u24 v{t+1}, 2752, v{t+1}
            v_add_u32 v{vo+k}, v{vo+k}, v{t+1}
            ''')
            if k: p(f'v_subrev_u32 v{vo+k}, {1024*k}, v{vo+k}')
        fa = V.alloc('fa'); kr = V.alloc('kr', 2); kt = V.alloc('ktb', 3)
        p(f'''
        s_mul_i32 s52, {sWAVE}, {F_WAVE}
        s_add_u32 s52, s52, {L_F}
        v_lshlrev_b32 v{fa}, 2, v1
        v_add_u32 v{fa}, s52, v{fa}
        v_and_b32 v{t}, 15, v1
        v_lshrrev_b32 v{t+1}, 4, v1
        v_lshlrev_b32 v{kr}, 4, v{t+1}
        v_mul_u32_u24 v{t+2}, 272, v{t}
        v_add_u32 v{kr}, v{kr}, v{t+2}
        s_mul_i32 s52, {sCH}, {2*F_WAVE}
        s_add_u32 s52, s52, {L_F}
        v_add_u32 v{kr}, s52, v{kr}
        s_mul_i32 s53, {sROLE}, {16*272}
        s_add_u32 s53, s53, {21*272}
        v_add_u32 v{kr+1}, s53, v{kr}
        s_lshl_b32 s53, {sROLE}, 4
        v_add_u32 v{t}, s53, v{t}
        s_mul_i32 s52, {sCH}, {T_CH}
        s_add_u32 s52, s52, {L_T}
        v_lshlrev_b32 v{kt}, 5, v{t}
        v_lshlrev_b32 v{t+2}, 4, v{t+1}
        v_add_u32 v{kt}, v{kt}, v{t+2}
        v_lshlrev_b32 v{t+2}, 4, v{t}
        v_add_u32 v{t+2}, 1024, v{t+2}
        v_cmp_eq_u32 s[54:55], 2, v{t+1}
        v_cndmask_b32 v{kt}, v{kt}, v{t+2}, s[54:55]
        v_lshlrev_b32 v{t+2}, 3, v{t}
        v_add_u32 v{t+2}, 1536, v{t+2}
        v_cmp_eq_u32 s[54:55], 3, v{t+1}
        v_cndmask_b32 v{kt}, v{kt}, v{t+2}, s[54:55]
        v_mov_b32 v{kt+1}, 8
        v_mov_b32 v{t+2}, 256
        v_cndmask_b32 v{kt+1}, v{kt+1}, v{t+2}, s[54:55]
        v_add_u32 v{kt}, s52, v{kt}
        v_add_u32 v{kt+1}, v{kt+1}, v{kt}
        v_min_u32 v{kt+2}, 1, v{t+1}
        v_lshlrev_b32 v{kt+2}, 9, v{kt+2}
        v_lshlrev_b32 v{t+2}, 2, v{t}
        v_add_u32 v{kt+2}, v{kt+2}, v{t+2}
        v_add_u32 v{kt+2}, s52, v{kt+2}
        v_add_u32 v{kt+2}, 2048, v{kt+2}
        ''')
        ea = V.alloc('expad', 11)
        p(f'v_lshlrev_b32 v{t}, 3, v0\nv_sub_u32 v{t}, 2033, v{t}')
        p(f'v_mov_b32 v{t+3}, {T_ZERO//4}')
        for d in range(11):
            J = t + 1; fJ = t + 2; c = ea + d
            p(f'''
            v_add_u32 v{J}, {d}, v{t}
            v_cvt_f32_i32 v{fJ}, v{J}
            v_cvt_pk_bf16_f32 v{fJ}, v{fJ}, v{fJ}
            v_cmp_gt_i32 s[54:55], 64, v{J}
            v_cmp_gt_i32 s[56:57], 0, v{J}
            v_and_b32 v{fJ}, 0xffff, v{fJ}
            v_subrev_u32 v{c}, 17024, v{fJ}
            v_cmp_gt_i32 s[58:59], s34, v{J}
            v_cndmask_b32 v{c}, v{c}, v{J}, s[58:59]
            v_cndmask_b32 v{c}, v{c}, v{t+3}, s[56:57]
            v_lshlrev_b32 v{c}, 2, v{c}
            v_add_u32 v{c}, {L_T}, v{c}
            '''.replace('v_cmp_gt_i32 s[54:55], 64, v{J}\n'.format(J=J), ''))
        V.free('ist')
    def gemm_addr_setup(self):
        p, V = self.p, self.V
        n31, hh, l16 = V['n31'], V['hh'], V['l16']
        t = V.alloc('gst', 4, align=2)
        aA = V.alloc('cA', 3); aB = V.alloc('cB', 2)
        p(f'''
        v_and_b32 v{t}, 3, v1
        v_mul_u32_u24 v{t}, {KC_STR}, v{t}
        v_bfe_u32 v{t+1}, v1, 2, 3
        v_lshlrev_b32 v{t+1}, 3, v{t+1}
        v_sub_u32 v{t}, v{t}, v{t+1}
        v_lshlrev_b32 v{t+3}, 4, v{hh}
        v_add_u32 v{t}, v{t}, v{t+3}
        s_mul_i32 s58, {sCH}, {4*KC_STR}
        s_add_u32 s58, s58, {L_KC + 2*X0}
        s_lshl_b32 s59, {sROLE}, 10
        s_sub_u32 s59, s58, s59
        s_sub_u32 s59, s59, 1024
        v_add_u32 v{aA}, s59, v{t}
        v_subrev_u32 v{aA+1}, 2048, v{aA}
        s_lshl_b32 s59, {sROLE}, 5
        s_sub_u32 s59, s58, s59
        s_add_u32 s59, s59, 32
        v_add_u32 v{aA+2}, s59, v{t}
        v_mul_u32_u24 v{t}, 80, v{n31}
        v_add_u32 v{t+1}, v{t}, v{t+3}
        s_mul_i32 s58, {sCH}, {U_CH}
        s_add_u32 s58, s58, {L_U}
        s_mul_i32 s59, {sROLE}, {80*16}
        s_sub_u32 s59, s58, s59
        s_add_u32 s59, s59, {80*16}
        v_add_u32 v{aB}, s59, v{t+1}
        s_lshl_b32 s59, {sROLE}, 5
        s_sub_u32 s59, s58, s59
        s_add_u32 s59, s59, {80*32+32}
        v_add_u32 v{aB+1}, s59, v{t+1}
        ''')
        ce = V.alloc('ce', 6)
        p(f'''
        s_lshl_b32 s59, {sWAVE}, 12
        s_add_u32 s59, s59, {L_KC}
        v_add_u32 v{ce}, s59, v{l16}
        s_xor_b32 s59, {sWAVE}, 1
        s_lshl_b32 s59, s59, 12
        s_add_u32 s59, s59, {L_KC}
        v_add_u32 v{ce+1}, s59, v{l16}
        v_lshlrev_b32 v{t+3}, 3, v{hh}
        v_add_u32 v{t}, v{t}, v{t+3}
        s_mul_i32 s59, {sROLE}, 2560
        s_add_u32 s59, s59, s58
        s_add_u32 s59, s59, 2560
        v_add_u32 v{ce+2}, s59, v{t}
        v_lshlrev_b32 v{t}, 6, v{n31}
        v_add_u32 v{t}, v{t}, v{t+3}
        s_lshl_b32 s59, {sWAVE}, 11
        s_add_u32 s59, s59, {L_KC + 16384}
        v_add_u32 v{ce+3}, s59, v{t}
        v_bfe_u32 v{ce+4}, v1, 1, 2
        v_lshlrev_b32 v{ce+4}, 4, v{ce+4}
        v_lshrrev_b32 v{t}, 2, v1
        v_bfe_u32 v{t+1}, v1, 3, 2
        v_and_b32 v{t+3}, 3, v1
        v_xor_b32 v{t+1}, v{t+1}, v{t+3}
        v_lshlrev_b32 v{t+1}, 4, v{t+1}
        v_lshlrev_b32 v{t}, 6, v{t}
        v_add_u32 v{t}, v{t}, v{t+1}
        v_add_u32 v{ce+5}, s59, v{t}
        ''')
        us = V.alloc('us', 3)
        p(f'''
        v_lshlrev_b32 v{us}, 13, v1
        s_lshl_b32 s59, {sWAVE}, 6
        s_add_u32 s59, s59, 128
        v_add_u32 v{t}, s59, v1
        v_lshrrev_b32 v{t+1}, 2, v{t}
        v_mul_u32_u24 v{t+1}, 80, v{t+1}
        v_and_b32 v{t}, 3, v{t}
        v_lshlrev_b32 v{t}, 4, v{t}
        v_add_u32 v{t}, v{t}, v{t+1}
        v_add_u32 v{us+1}, {L_U}, v{t}
        s_lshl_b32 s59, {sWAVE}, 10
        s_add_u32 s59, s59, {FL_A}
        v_add_u32 v{us+2}, s59, v{l16}
        ''')
        w2 = V.alloc('w2a', 2)
        p(f'''
        v_lshrrev_b32 v{t}, 3, v1
        v_bfe_u32 v{t+1}, v1, 4, 1
        v_lshlrev_b32 v{t+1}, 2, v{t+1}
        v_and_b32 v{t+2}, 7, v1
        v_xor_b32 v{t+1}, v{t+1}, v{t+2}
        v_lshlrev_b32 v{t+1}, 4, v{t+1}
        v_lshlrev_b32 v{t}, 10, v{t}
        v_add_u32 v{w2}, v{t}, v{t+1}
        v_lshlrev_b32 v{t}, 2, v{hh}
        v_bfe_u32 v{t+1}, v1, 2, 2
        v_add_u32 v{t}, v{t}, v{t+1}
        v_lshlrev_b32 v{t}, 7, v{t}
        v_bfe_u32 v{t+1}, v1, 3, 1
        v_xor_b32 v{t+1}, {sROLE}, v{t+1}
        v_lshlrev_b32 v{t+1}, 6, v{t+1}
        v_add_u32 v{t}, v{t}, v{t+1}
        v_bfe_u32 v{t+1}, v1, 4, 1
        v_lshlrev_b32 v{t+1}, 5, v{t+1}
        v_add_u32 v{t}, v{t}, v{t+1}
        v_and_b32 v{t+1}, 3, v1
        v_lshlrev_b32 v{t+1}, 3, v{t+1}
        v_add_u32 v{t}, v{t}, v{t+1}
        s_mul_i32 s59, {sCH}, {22*2048}
        s_add_u32 s59, s59, {L_W}
        v_add_u32 v{w2+1}, s59, v{t}
        ''')
        g2 = V.alloc('g2a', 11)
        p(f'''
        s_lshl_b32 s59, {sCH}, 11
        v_add_u32 v{g2}, s59, v{l16}
        v_add_u32 v{g2+1}, 0x10000, v{g2}
        v_add_u32 v{g2+10}, 0x20000, v{g2}
        s_lshr_b32 s58, {sTG}, 1
        s_lshl_b32 s58, s58, 2
        s_and_b32 s59, {sTG}, 1
        s_lshl_b32 s59, s59, 1
        s_add_u32 s58, s58, s59
        s_lshl_b32 s58, s58, 7
        s_add_u32 s58, s58, {FL_B}
        v_lshlrev_b32 v{t}, 3, v1
        v_add_u32 v{g2+2}, s58, v{t}
        s_lshr_b32 s58, {sTG}, 4
        s_lshl_b32 s58, s58, 9
        s_lshl_b32 s59, {sCG}, 6
        s_add_u32 s58, s58, s59
        s_lshl_b32 s58, s58, 3
        s_add_u32 s58, s58, {FL_C}
        v_add_u32 v{g2+3}, s58, v{t}
        s_lshl_b32 s58, {sWAVE}, 12
        v_add_u32 v{g2+4}, s58, v{l16}
        s_xor_b32 s58, {sWAVE}, 2
        s_lshl_b32 s58, s58, 12
        v_add_u32 v{g2+5}, s58, v{l16}
        v_lshrrev_b32 v{t}, 3, v0
        v_and_b32 v{t+1}, 7, v0
        v_lshlrev_b32 v{t+1}, 4, v{t+1}
        v_lshlrev_b32 v{g2+6}, 12, v{t}
        v_add_u32 v{g2+6}, v{g2+6}, v{t+1}
        v_mul_u32_u24 v{g2+7}, {ST_STR}, v{t}
        v_add_u32 v{g2+7}, v{g2+7}, v{t+1}
        v_add_u32 v{g2+7}, {ST_L}, v{g2+7}
        v_lshlrev_b32 v{t}, 2, v{hh}
        v_bfe_u32 v{t+1}, v1, 2, 2
        v_add_u32 v{t}, v{t}, v{t+1}
        s_lshl_b32 s58, {sROLE}, 5
        v_add_u32 v{t}, s58, v{t}
        v_mul_u32_u24 v{t}, {ST_STR}, v{t}
        v_bfe_u32 v{t+1}, v1, 4, 1
        v_lshlrev_b32 v{t+1}, 5, v{t+1}
        v_add_u32 v{t}, v{t}, v{t+1}
        v_and_b32 v{t+1}, 3, v1
        v_lshlrev_b32 v{t+1}, 3, v{t+1}
        v_add_u32 v{t}, v{t}, v{t+1}
        s_lshl_b32 s58, {sCH}, 6
        s_add_u32 s58, s58, {ST_L}
        v_add_u32 v{g2+8}, s58, v{t}
        v_lshlrev_b32 v{t}, 10, v{n31}
        v_lshlrev_b32 v{t+1}, 3, v{hh}
        v_add_u32 v{g2+9}, v{t}, v{t+1}
        ''')
        V.free('gst')
    def gemm1_addr_setup(self):
        p, V = self.p, self.V
        t = V.alloc('g1st', 2); wa = V.alloc('w1a', 2); pa = V.alloc('pA1')
        hh = V['hh']
        p(f'''
        v_lshlrev_b32 v{t}, 3, v{hh}
        v_bfe_u32 v{t+1}, v1, 2, 2
        v_add_u32 v{t}, v{t}, v{t+1}
        v_mul_u32_u24 v{t}, 192, v{t}
        v_bfe_u32 v{t+1}, v1, 4, 1
        v_lshlrev_b32 v{t+1}, 5, v{t+1}
        v_add_u32 v{t}, v{t}, v{t+1}
        v_and_b32 v{t+1}, 3, v1
        v_lshlrev_b32 v{t+1}, 3, v{t+1}
        v_add_u32 v{wa}, v{t}, v{t+1}
        v_add_u32 v{wa}, {L_W}, v{wa}
        v_add_u32 v{wa+1}, {16*3072}, v{wa}
        s_lshl_b32 s56, {sTT}, 2
        s_add_u32 s56, s56, {sWAVE}
        s_lshl_b32 s57, s56, 6
        s_add_u32 s57, s57, {FL_A}
        v_lshlrev_b32 v{t}, 3, v1
        v_add_u32 v{pa}, s57, v{t}
        ''')
        V.free('g1st')
    def ln(self):
        p, V = self.p, self.V
        x = [V['x0'], V['x1']]
        d = [V.alloc('d0', 8), V.alloc('d1', 8)]
        s1 = V.alloc('s1', 2); s2 = V.alloc('s2', 2); tp = V.alloc('lnt', 8); ad = V.alloc('lnad', 2)
        l16 = V['l16']
        p(f'''
        s_lshl_b32 s52, {sWAVE}, 1
        s_mul_i32 s53, s52, {TBF_STR}
        s_add_u32 s53, s53, {L_TBF}
        s_mul_i32 s54, s52, {TH_STR}
        s_add_u32 s54, s54, {L_TH}
        v_add_u32 v{ad}, s53, v{l16}
        v_add_u32 v{ad+1}, s54, v{l16}
        ''')
        for k in range(2):
            for j in range(4):
                p(f'v_lshlrev_b32 v{d[k]+2*j}, 16, v{x[k]+j}')
                p(f'v_and_b32 v{d[k]+2*j+1}, 0xffff0000, v{x[k]+j}')
        p(f'v_readlane_b32 s52, v{d[0]}, 0')
        p(f'v_readlane_b32 s54, v{d[1]}, 0')
        p(f's_mov_b32 s53, s52\ns_mov_b32 s55, s54')
        for k in range(2):
            sp = 's[52:53]' if k == 0 else 's[54:55]'
            for j in range(4):
                p(f'v_pk_add_f32 {vr(d[k]+2*j,2)}, {vr(d[k]+2*j,2)}, {sp} neg_lo:[0,1] neg_hi:[0,1]')
        for k in range(2):
            a = tp + 4 * k
            p(f'v_pk_add_f32 {vr(a,2)}, {vr(d[k],2)}, {vr(d[k]+2,2)}')
            p(f'v_pk_add_f32 {vr(a+2,2)}, {vr(d[k]+4,2)}, {vr(d[k]+6,2)}')
        for k in range(2):
            a = tp + 4 * k
            p(f'v_pk_add_f32 {vr(a,2)}, {vr(a,2)}, {vr(a+2,2)}')
        for k in range(2):
            a = tp + 4 * k
            p(f'v_add_f32 v{s1+k}, v{a}, v{a+1}')
        for k in range(2):
            a = tp + 4 * k
            p(f'v_pk_mul_f32 {vr(a,2)}, {vr(d[k],2)}, {vr(d[k],2)}')
        for j in range(1, 4):
            for k in range(2):
                a = tp + 4 * k
                p(f'v_pk_fma_f32 {vr(a,2)}, {vr(d[k]+2*j,2)}, {vr(d[k]+2*j,2)}, {vr(a,2)}')
        for k in range(2):
            a = tp + 4 * k
            p(f'v_add_f32 v{s2+k}, v{a}, v{a+1}')
        regs = [s1, s1 + 1, s2, s2 + 1]
        for ctl in ('row_shr:1 row_mask:0xf bank_mask:0xf bound_ctrl:1', 'row_shr:2 row_mask:0xf bank_mask:0xf bound_ctrl:1',
                    'row_shr:4 row_mask:0xf bank_mask:0xf bound_ctrl:1', 'row_shr:8 row_mask:0xf bank_mask:0xf bound_ctrl:1',
                    'row_bcast:15 row_mask:0xa bank_mask:0xf', 'row_bcast:31 row_mask:0xc bank_mask:0xf'):
            for r in regs:
                p(f'v_add_f32_dpp v{r}, v{r}, v{r} {ctl}')
        for n, r in enumerate(regs):
            p(f'v_readlane_b32 s{56+n}, v{r}, 63')
        m = [tp, tp + 1]; va = [tp + 2, tp + 3]; t4 = tp + 4; t5 = tp + 5
        inv = f32(1.0 / 512)
        p(f's_mov_b32 s60, {inv}')
        for k in range(2):
            p(f'v_mov_b32 v{m[k]}, s{56+k}')
            p(f'v_mov_b32 v{va[k]}, s{58+k}')
        p(f'v_pk_mul_f32 {vr(m[0],2)}, {vr(m[0],2)}, s[60:61] op_sel_hi:[1,0]')
        p(f'v_pk_mul_f32 {vr(va[0],2)}, {vr(va[0],2)}, s[60:61] op_sel_hi:[1,0]')
        p(f'v_pk_fma_f32 {vr(va[0],2)}, {vr(m[0],2)}, {vr(m[0],2)}, {vr(va[0],2)} neg_lo:[1,0,0] neg_hi:[1,0,0]')
        p(f'v_add_f32 v{t4}, s52, v{m[0]}')
        p(f'v_add_f32 v{t5}, s54, v{m[1]}')
        for k in range(2): p(f'v_max_f32 v{va[k]}, 0, v{va[k]}')
        p(f'v_cvt_pk_bf16_f32 v{t4}, v{t4}, v{t5}')
        p(f'v_cvt_pk_bf16_f32 v{t5}, v{va[0]}, v{va[1]}')
        p(f's_mov_b32 s60, {f32(1e-5)}')
        p(f'v_lshlrev_b32 v{va[0]}, 16, v{t5}')
        p(f'v_and_b32 v{va[1]}, 0xffff0000, v{t5}')
        p(f'v_lshlrev_b32 v{m[0]}, 16, v{t4}')
        p(f'v_pk_add_f32 {vr(va[0],2)}, {vr(va[0],2)}, s[60:61] op_sel_hi:[1,0]')
        p(f'v_and_b32 v{m[1]}, 0xffff0000, v{t4}')
        p(f'v_cvt_pk_bf16_f32 v{t5}, v{va[0]}, v{va[1]}')
        p(f'v_sub_f32 v{m[0]}, s52, v{m[0]}')
        p(f'v_lshlrev_b32 v{va[0]}, 16, v{t5}')
        p(f'v_and_b32 v{va[1]}, 0xffff0000, v{t5}')
        for k in range(2): p(f'v_sqrt_f32 v{va[k]}, v{va[k]}')
        p(f'v_sub_f32 v{m[1]}, s54, v{m[1]}')
        p(f'v_cvt_pk_bf16_f32 v{t5}, v{va[0]}, v{va[1]}')
        p(f'v_lshlrev_b32 v{va[0]}, 16, v{t5}')
        p(f'v_and_b32 v{va[1]}, 0xffff0000, v{t5}')
        for k in range(2): p(f'v_rcp_f32 v{va[k]}, v{va[k]}')
        p(f'v_pk_mul_f32 {vr(m[0],2)}, {vr(m[0],2)}, {vr(va[0],2)}')
        for k in range(2):
            for j in range(4):
                p(f'v_pk_fma_f32 {vr(d[k]+2*j,2)}, {vr(d[k]+2*j,2)}, {vr(va[0],2)}, {vr(m[0],2)} '
                  f'op_sel:[0,{k},{k}] op_sel_hi:[1,{k},{k}]')
        for k in range(2):
            for j in range(4):
                p(f'v_cvt_pk_bf16_f32 v{x[k]+j}, v{d[k]+2*j}, v{d[k]+2*j+1}')
            p(f'ds_write_b128 v{ad}, {vr(x[k],4)} offset:{k*TBF_STR}')
        for k in range(2):
            for j in range(4):
                p(f'v_cvt_pk_f16_f32 v{tp+4*k+j}, v{d[k]+2*j}, v{d[k]+2*j+1}')
            p(f'ds_write_b128 v{ad+1}, {vr(tp+4*k,4)} offset:{k*TH_STR}')
        lab = self.lab('nn')
        p(f's_cmp_lg_u32 {sWAVE}, 0\ns_cbranch_scc1 {lab}')
        with p.cond(lambda c: c['w'] == 0):
            p(f'v_add_u32 v{V["nonce"]}, 1, v{V["nonce"]}')
            p(f'v_mov_b32 v{ad}, {L_MISC}')
            p(f'ds_write_b32 v{ad}, v{V["nonce"]}')
        p(f'{lab}:')
        self.ln_hook()
        p('s_waitcnt lgkmcnt(0)\ns_barrier')
        V.free('d0', 'd1', 's1', 's2', 'lnt', 'lnad', 'x0', 'x1')
        nv = V['nonce']
        p(f'v_mov_b32 v{nv}, {L_MISC}')
        p(f'ds_read_b32 v{nv}, v{nv}')
        self.stamp('ln')
        lab = self.lab('lnst')
        p(f's_cmp_ge_u32 {sWAVE}, 2\ns_cbranch_scc1 {lab}')
        with p.cond(lambda c: c['w'] < 2):
            a = V.alloc('lsa', 4); dt = V.alloc('lsd', 16, align=2); u = V.alloc('lsu', 16, align=2)
            p(f'''
            v_and_b32 v{a}, 7, v0
            v_lshrrev_b32 v{a+1}, 3, v0
            v_mul_u32_u24 v{a+2}, {TBF_STR}, v{a}
            v_lshlrev_b32 v{a+3}, 4, v{a+1}
            v_add_u32 v{a+2}, v{a+2}, v{a+3}
            v_add_u32 v{a+2}, {L_TBF}, v{a+2}
            ''')
            for k in range(4):
                p(f'ds_read_b128 {vr(dt+4*k,4)}, v{a+2} offset:{256*k}')
            p(f'''
            v_bfe_u32 v{a+3}, v1, 2, 2
            v_mul_u32_u24 v{a+3}, {TH_STR}, v{a+3}
            v_lshrrev_b32 v{u}, 4, v1
            v_lshlrev_b32 v{u}, 5, v{u}
            v_add_u32 v{a+3}, v{a+3}, v{u}
            v_and_b32 v{u}, 3, v1
            v_lshlrev_b32 v{u}, 3, v{u}
            v_add_u32 v{a+3}, v{a+3}, v{u}
            s_lshl_b32 s52, {sWAVE}, 9
            s_add_u32 s52, s52, {L_TH}
            v_add_u32 v{a+3}, s52, v{a+3}
            ''')
            for it in range(4):
                p(f'ds_read_b64_tr_b16 {vr(u+4*it,2)}, v{a+3} offset:{128*it}')
                p(f'ds_read_b64_tr_b16 {vr(u+4*it+2,2)}, v{a+3} offset:{128*it+4*TH_STR}')
            p(f'''
            v_lshrrev_b32 v{a+2}, 1, v{a+1}
            v_lshlrev_b32 v{a+2}, 10, v{a+2}
            v_and_b32 v{a+1}, 1, v{a+1}
            v_lshlrev_b32 v{a+1}, 9, v{a+1}
            v_add_u32 v{a+2}, v{a+2}, v{a+1}
            v_lshlrev_b32 v{a}, 4, v{a}
            v_add_u32 v{a+2}, v{a+2}, v{a}
            s_lshr_b32 s52, {sBETA}, 2
            s_lshl_b32 s52, s52, 15
            s_and_b32 s53, {sBETA}, 3
            s_lshl_b32 s53, s53, 7
            s_add_u32 s52, s52, s53
            s_add_u32 s52, s52, {WS_XNF}
            ''')
            for k in range(4):
                p(f's_add_u32 s53, s52, {8192*k}')
                p(f'buffer_store_dwordx4 {vr(dt+4*k,4)}, v{a+2}, {SWS}, s53 offen sc1', tag='lnst')
                if self.o.get('dblx'): p(f'buffer_store_dwordx4 {vr(dt+4*k,4)}, v{a+2}, {SWS}, s53 offen', tag='lnst2')
            p(f'''
            s_lshl_b32 s52, {sBETA}, 13
            s_lshl_b32 s53, {sWAVE}, 12
            s_add_u32 s52, s52, s53
            s_add_u32 s52, s52, {WS_UBLK}
            ''')
            for it in range(4):
                p(f'buffer_store_dwordx4 {vr(u+4*it,4)}, v{V["l16"]}, {SWS}, s52 offen offset:{1024*it} sc1', tag='lnst')
            V.free('lsa', 'lsd', 'lsu')
        p(f'{lab}:')
        p(f'v_readfirstlane_b32 {sNONCE}, v{nv}')
        V.free('nonce')
    def ln_hook(self): pass
    def flag_store(self, off_sgpr, base):
        p, V = self.p, self.V
        t = V.alloc('fl', 2)
        p(f'''
        s_add_u32 s100, {off_sgpr}, {base}
        v_mov_b32 v{t}, s100
        v_mov_b32 v{t+1}, {sNONCE}
        s_mov_b64 exec, 1
        buffer_store_dword v{t+1}, v{t}, {SWS}, 0 offen sc1
        s_mov_b64 exec, -1
        ''')
        V.free('fl')
    def ln_flag(self):
        p = self.p
        lab = self.lab('lnfl')
        p(f's_cmp_ge_u32 {sWAVE}, 2\ns_cbranch_scc1 {lab}')
        with p.cond(lambda c: c['w'] < 2):
            p.wait_tag('lnst')
            p(f's_lshl_b32 s101, {sBETA}, 4\ns_lshl_b32 s100, {sWAVE}, 3\ns_add_u32 s101, s101, s100')
            self.flag_store('s101', FL_A)
        p(f'{lab}:')
    def poll_issue(self, name, vaddr, nlanes, width):
        p, V = self.p, self.V
        t = V.alloc('pl_' + name, 4 if width == 4 else 1, align=2 if width == 4 else 1)
        self.exec_lanes(nlanes)
        if width == 1: p(f'buffer_load_dword v{t}, v{vaddr}, {SWS}, 0 offen sc1')
        else: p(f'buffer_load_dwordx4 {vr(t,4)}, v{vaddr}, {SWS}, 0 offen sc1')
        if nlanes < 64: self.exec_all()
    def poll_check(self, name, vaddr, nlanes, width):
        p, V = self.p, self.V
        t = V['pl_' + name]
        lp = self.lab(name); ck = self.lab(name + 'c'); dn = self.lab(name + 'd')
        p('s_mov_b32 s38, 0')
        self.exec_lanes(nlanes)
        p(f'{ck}:')
        p(f'v_cmp_ne_u32 vcc, {sNONCE}, v{t}')
        if width == 4:
            p(f'v_cmp_ne_u32 s[36:37], {sNONCE}, v{t+2}')
            p(f's_or_b64 vcc, vcc, s[36:37]')
        p(f's_cmp_eq_u64 vcc, 0\ns_cbranch_scc1 {dn}')
        with p.cond(lambda c: False):
            p(f's_add_u32 s38, s38, 1\ns_cmp_lt_u32 s38, 0x40000\ns_cbranch_scc0 {lp}')
            if width == 1: p(f'buffer_load_dword v{t}, v{vaddr}, {SWS}, 0 offen sc1')
            else: p(f'buffer_load_dwordx4 {vr(t,4)}, v{vaddr}, {SWS}, 0 offen sc1')
            p(f's_waitcnt vmcnt(0)\ns_branch {ck}')
            p(f'{lp}:')
            tz = V.alloc('plz', 2)
            p(f'v_mov_b32 v{tz}, 0\nv_mov_b32 v{tz+1}, 0xdead\nglobal_store_dword v{tz}, v{tz+1}, {pDBG}')
            V.free('plz')
        p(f'{dn}:')
        if nlanes < 64: self.exec_all()
        V.free('pl_' + name)
    def w1_dma_groups(self):
        p, V = self.p, self.V
        vo = V['w1off']
        p(f'''
        s_mul_i32 s96, {sWAVE}, {128*2752}
        s_lshl_b32 s97, {sFB0}, 6
        s_add_u32 s96, s96, s97
        s_mul_i32 s97, {sWAVE}, {24*1024}
        s_add_u32 s97, s97, {L_W}
        ''')
        groups = []
        for g in range(8):
            for k in range(3):
                with p.capture() as b:
                    if k == 0: p('s_mov_b32 m0, s97')
                    p(f'buffer_load_dwordx4 v{vo+k}, {SW1}, s96 offen offset:{1024*k} lds', tag='w1dma')
                    if k == 2: p(f's_add_u32 s96, s96, {16*2752}\ns_add_u32 s97, s97, 3072')
                groups.append(b)
        return groups
    def w2_touch(self):
        p, V = self.p, self.V
        if not self.o['touch']: return []
        step = 64 if self.o['touch64'] else 128
        n = 3 if self.o['touch64'] else 2
        tv = V['touch']; t = V.alloc('w2tv')
        with p.capture() as b:
            p(f'''
            s_lshr_b32 s98, s2, 3
            s_mul_i32 s98, s98, 44032
            s_mul_i32 s99, {sWAVE}, 11008
            s_add_u32 s98, s98, s99
            v_mul_u32_u24 v{t}, {step}, v1
            ''')
            for k in range(n):
                p(f'buffer_load_dword v{tv+k}, v{t}, {SW2}, s98 offen')
                if k + 1 < n: p(f's_add_u32 s98, s98, {64*step}')
        V.free('w2tv')
        return b
    def kgen_setup(self):
        p, V = self.p, self.V
        pr = V['par']
        t = V.alloc('kt', 8, align=2)
        z = V.alloc('z', 2); Z = V.alloc('Z256', 2); C = V.alloc('Cn', 2)
        p(f'''
        s_lshl_b32 s53, {sLDT}, 16
        s_and_b32 s54, {sLDT}, 0xffff0000
        s_lshl_b32 s56, {sDSK}, 16
        s_and_b32 s55, {sDSK}, 0xffff0000
        s_cmp_eq_u32 {sCH}, 0
        s_cselect_b32 s53, s53, s54
        s_cselect_b32 {sDV}, s56, s55
        v_mov_b32 v{t}, s53
        v_mul_f32 v{t}, {f32(LOG2E)}, v{t}
        v_lshlrev_b32 v{t+1}, 16, v{pr}
        v_mul_f32 v{t+1}, {f32(LOG2E)}, v{t+1}
        v_exp_f32 v{t}, v{t}
        v_exp_f32 v{t+1}, v{t+1}
        v_and_b32 v{t+2}, 0x7fff, v{pr+2}
        v_and_b32 v{t+3}, 0x7fff, v{pr+3}
        v_and_b32 v{t+4}, 0x7fff, v{pr+4}
        v_and_b32 v{t+5}, 0x7fff, v{pr+5}
        v_cvt_pk_bf16_f32 v{t}, v{t}, v{t+1}
        v_max3_u32 v{t+2}, v{t+2}, v{t+3}, v{t+4}
        v_max_u32 v{t+2}, v{t+2}, v{t+5}
        v_and_b32 v{t+1}, 0xffff0000, v{t}
        v_lshlrev_b32 v{t}, 16, v{t}
        ''')
        ctl = ['row_shr:1 row_mask:0xf bank_mask:0xf bound_ctrl:1', 'row_shr:2 row_mask:0xf bank_mask:0xf bound_ctrl:1',
               'row_shr:4 row_mask:0xf bank_mask:0xf bound_ctrl:1', 'row_shr:8 row_mask:0xf bank_mask:0xf bound_ctrl:1',
               'row_bcast:15 row_mask:0xa bank_mask:0xf', 'row_bcast:31 row_mask:0xc bank_mask:0xf']
        fill = [[f'v_mul_f32 v{t+3}, v{t+1}, v{t}', f'v_lshlrev_b32 v{t+4}, 16, v{pr+1}'],
                [f'v_mul_f32 v{t+4}, v{t+4}, v{t}', f'v_mul_f32 v{t+3}, {f32(-LOG2E)}, v{t+3}'],
                [f'v_mul_f32 v{t+4}, {f32(1/(2*math.pi))}, v{t+4}', f'v_mul_f32 v{t+5}, {f32(256.0)}, v{t+3}'],
                [f'v_mul_f32 v{t+6}, {f32(256.0)}, v{t+4}', f'v_fract_f32 v{t+7}, v{t+4}'],
                [f'v_fract_f32 v{t+6}, v{t+6}', f'v_exp_f32 v{t+3}, v{t+3}'],
                [f'v_exp_f32 v{t+5}, v{t+5}', f'v_cos_f32 v{z}, v{t+7}']]
        for c, f in zip(ctl, fill):
            p(f'v_max_u32_dpp v{t+2}, v{t+2}, v{t+2} {c}')
            for x in f: p(x)
        p(f'''
        v_sin_f32 v{z+1}, v{t+7}
        v_readlane_b32 s52, v{t+2}, 63
        v_cos_f32 v{Z}, v{t+6}
        v_sin_f32 v{Z+1}, v{t+6}
        s_and_b32 s52, s52, 0x7f80
        s_lshl_b32 s52, s52, 16
        s_sub_u32 s53, 0x7f000000, s52
        v_lshlrev_b32 v{C}, 16, v{pr+2}
        v_lshlrev_b32 v{C+1}, 16, v{pr+3}
        v_mul_f32 v{t}, s52, v{t}
        v_mul_f32 v{C}, s53, v{C}
        v_mul_f32 v{C+1}, s53, v{C+1}
        v_add_f32 v{t}, v{t}, v{t}
        v_mul_f32 v{z}, v{z}, v{t+3}
        v_mul_f32 v{z+1}, v{z+1}, v{t+3}
        v_readfirstlane_b32 {sSIG}, v{t}
        v_mul_f32 v{Z}, v{Z}, v{t+5}
        v_mul_f32 v{Z+1}, v{Z+1}, v{t+5}
        ''')
        V.free('kt', 'par')
    def kgen_values(self):
        p, V = self.p, self.V
        z, Z, C, fa = V['z'], V['Z256'], V['Cn'], V['fa']
        cv = V.alloc('cv', 8); self._cvi = 0
        valu = []; stores = []
        def emit(s):
            with p.capture() as b: p(s)
            valu.extend(b)
        def put(row, r, neg=False):
            c = cv + (self._cvi & 7); self._cvi += 1
            emit(f'v_cvt_pk_f16_f32 v{c}, v{r}, {"-" if neg else ""}v{r+1}')
            with p.capture() as b: p(f'ds_write_b32 v{fa}, v{c} offset:{row*272}')
            stores.append((len(valu), b[0]))
        def cm(items):
            for d, a, b in items: emit(f'v_pk_mul_f32 {vr(d,2)}, {vr(a,2)}, {vr(b,2)} op_sel:[0,0] op_sel_hi:[0,1]')
            for d, a, b in items: emit(f'v_pk_fma_f32 {vr(d,2)}, {vr(a,2)}, {vr(b,2)}, {vr(d,2)} op_sel:[1,1,0] op_sel_hi:[1,0,1] neg_lo:[1,0,0]')
        z2 = V.alloc('z2', 2); z4 = V.alloc('z4', 2); w = V.alloc('w', 2); w2 = V.alloc('w2', 2); w4 = V.alloc('w4', 2)
        ch = V.alloc('chains', 16, align=2)
        put(0, C)
        cm([(z2, z, z)])
        La, Lb, Ma, Mb = ch, ch + 2, ch + 4, ch + 6
        cm([(La, C, z), (Ma, C, Z), (z4, z2, z2)])
        put(1, La); put(8, Ma)
        cm([(Lb, La, z), (Mb, Ma, Z), (w, z4, z4), (ch + 8, Ma, z2)])
        put(2, Lb); put(12, Mb); put(9, ch + 8)
        cm([(La, Lb, z), (Ma, Mb, Z), (w2, w, w), (ch + 10, ch + 8, z2), (ch + 12, Mb, z4)])
        put(3, La); put(14, Ma); put(10, ch + 10); put(13, ch + 12)
        cm([(Lb, La, z), (Mb, Ma, Z), (w4, w2, w2), (ch + 8, ch + 10, z2), (ch + 12, Ma, z4), (ch + 14, w2, w)])
        put(4, Lb); put(16, Mb); put(11, ch + 8); put(15, ch + 12)
        c = cv + (self._cvi & 7); self._cvi += 1
        emit(f'v_mov_b32 v{c}, 0x3c00')
        with p.capture() as b: p(f'ds_write_b32 v{fa}, v{c} offset:{21*272}')
        stores.append((len(valu), b[0]))
        put(22, w, True); put(23, w2, True); put(24, ch + 14, True)
        cm([(La, Lb, z), (Ma, Mb, Z)]); put(5, La); put(17, Ma)
        cm([(Lb, La, z), (Mb, Ma, Z)]); put(6, Lb); put(18, Mb)
        cm([(La, Lb, z), (Ma, Mb, Z)]); put(7, La); put(19, Ma)
        cm([(Mb, Ma, Z)]); put(20, Mb)
        A_ = [ch, ch + 2, ch + 4, ch + 6]; B_ = [ch + 8, ch + 10, ch + 12, z]
        r3 = ch + 14
        cm([(A_[1], w, w4), (A_[2], w2, w4), (A_[3], r3, w4)])
        put(25, w4, True); put(26, A_[1], True); put(27, A_[2], True); put(28, A_[3], True)
        cur = [w4, A_[1], A_[2], A_[3]]
        nxt = [B_, A_]
        for step in range(2, 8):
            nx = nxt[step & 1]
            cm([(nx[k], cur[k], w4) for k in range(4)])
            for k in range(4): put(21 + 4 * step + k, nx[k], True)
            cur = nx
        out = []; si = 0; last = -10
        for idx, ins in enumerate(valu):
            pend = [k for k in range(si, len(stores)) if stores[k][0] <= idx and (stores[k][1].uses & ins.defs)]
            if pend:
                while si <= pend[-1]: out.append(stores[si][1]); si += 1
                last = idx
            elif si < len(stores) and stores[si][0] <= idx and idx - last >= 3:
                out.append(stores[si][1]); si += 1; last = idx
            out.append(ins)
        while si < len(stores): out.append(stores[si][1]); si += 1
        return out
    def kgen_mfma(self):
        p, V = self.p, self.V
        acc = V.alloc('kacc', 8, align=2); fr = V.alloc('kfr', 36, align=2)
        kr, kt = V['kr'], V['ktb']
        def rd(s):
            b = fr + 12 * (s % 3); o = F_WAVE * (s >> 2) + 64 * (s & 3)
            p(f'ds_read_b128 {vr(b,4)}, v{kr} offset:{o}')
            p(f'ds_read_b128 {vr(b+8,4)}, v{kr+1} offset:{o}')
            p(f'ds_read_b128 {vr(b+4,4)}, v{kr} offset:{o+16*272}')
        for s_ in range(2): rd(s_)
        for s_ in range(8):
            if s_ + 2 < 8: rd(s_ + 2)
            b = fr + 12 * (s_ % 3)
            p(f'v_mfma_f32_16x16x32_f16 {vr(acc,4)}, {vr(b,4)}, {vr(b+8,4)}, {"0" if s_ == 0 else vr(acc,4)}')
            p(f'v_mfma_f32_16x16x32_f16 {vr(acc+4,4)}, {vr(b+4,4)}, {vr(b+8,4)}, {"0" if s_ == 0 else vr(acc+4,4)}')
        for r in range(2): p(f'ds_write_b32 v{kt}, v{acc+r} offset:{4*r}')
        for r in range(2): p(f'ds_write_b32 v{kt+1}, v{acc+2+r} offset:{4*r}')
        p('s_mov_b32 exec_hi, 0')
        for r in range(4): p(f'ds_write_b32 v{kt+2}, v{acc+4+r} offset:{128*r}')
        p('s_mov_b32 exec_hi, -1')
        V.free('kacc', 'kfr', 'kr', 'ktb')
    def expand(self):
        p, V = self.p, self.V
        ea = V['expad']
        val = V.alloc('ev', 22); o = V.alloc('eo', 16, align=2); ad = V.alloc('ead')
        for c in range(2):
            for d in range(11):
                p(f'ds_read_b32 v{val+11*c+d}, v{ea+d} offset:{c*T_CH}')
        p(f'v_lshlrev_b32 v{ad}, 4, v0\nv_add_u32 v{ad}, {L_KC+80}, v{ad}')
        for c in range(2):
            for rho in range(4):
                b = o + 4 * rho
                for k in range(4):
                    p(f'v_cvt_pk_f16_f32 v{b+k}, v{val+11*c+7+rho-2*k}, v{val+11*c+6+rho-2*k}')
                p(f'ds_write_b128 v{ad}, {vr(b,4)} offset:{c*4*KC_STR+rho*KC_STR}')
        V.free('ev', 'eo', 'expad', 'ead')
        t = V.alloc('ext', 8, align=2)
        l1 = self.lab('x1'); l2 = self.lab('x2'); l3 = self.lab('x3')
        p(f's_cmp_eq_u32 {sWAVE}, 0\ns_cbranch_scc0 {l1}')
        with p.cond(lambda c: c['w'] == 0):
            p(f'''
            v_bfe_u32 v{t}, v1, 3, 2
            v_and_b32 v{t+1}, 7, v1
            v_sub_u32 v{t+2}, v{t+1}, v{t}
            v_cmp_lt_i32 s[54:55], 4, v{t+2}
            v_mov_b32 v{t+3}, {L_T+640*4}
            v_mov_b32 v{t+4}, {L_T+639*4}
            v_cndmask_b32 v{t+3}, v{t+3}, v{t+4}, s[54:55]
            v_mul_u32_u24 v{t+5}, {T_CH}, v{V['hh']}
            v_add_u32 v{t+3}, v{t+3}, v{t+5}
            ds_read_b32 v{t+3}, v{t+3}
            v_mul_u32_u24 v{t+4}, {4*KC_STR}, v{V['hh']}
            v_mul_u32_u24 v{t}, {KC_STR}, v{t}
            v_add_u32 v{t}, v{t}, v{t+4}
            v_lshlrev_b32 v{t+1}, 1, v{t+1}
            v_add_u32 v{t}, v{t}, v{t+1}
            v_add_u32 v{t}, {L_KC+64}, v{t}
            v_cvt_f16_f32 v{t+3}, v{t+3}
            ds_write_b16 v{t}, v{t+3}
            ''')
        p(f's_branch {l3}\n{l1}:')
        p(f's_cmp_eq_u32 {sWAVE}, 1\ns_cbranch_scc0 {l2}')
        with p.cond(lambda c: c['w'] == 1):
            p(f'''
            v_lshrrev_b32 v{t}, 3, v1
            v_mul_u32_u24 v{t}, {KC_STR}, v{t}
            v_and_b32 v{t+1}, 7, v1
            v_lshlrev_b32 v{t+2}, 4, v{t+1}
            v_lshrrev_b32 v{t+1}, 2, v{t+1}
            v_mul_u32_u24 v{t+1}, {4176-64}, v{t+1}
            v_add_u32 v{t}, v{t}, v{t+2}
            v_add_u32 v{t}, v{t}, v{t+1}
            v_add_u32 v{t}, {L_KC}, v{t}
            v_mov_b32 v{t+4}, 0
            v_mov_b32 v{t+5}, 0
            v_mov_b32 v{t+6}, 0
            v_mov_b32 v{t+7}, 0
            ds_write_b128 v{t}, {vr(t+4,4)}
            ''')
        p(f's_branch {l3}\n{l2}:')
        with p.cond(lambda c: c['w'] >= 2):
            p(f'''
            s_sub_u32 s52, {sWAVE}, 2
            s_mul_i32 s52, s52, {U_CH}
            s_add_u32 s52, s52, {L_U}
            v_add_u32 v{t}, s52, v{V['l16']}
            v_mov_b32 v{t+4}, 0
            v_mov_b32 v{t+5}, 0
            v_mov_b32 v{t+6}, 0
            v_mov_b32 v{t+7}, 0
            ds_write_b128 v{t}, {vr(t+4,4)}
            ds_write_b128 v{t}, {vr(t+4,4)} offset:1024
            s_mov_b32 exec_hi, 0
            ds_write_b128 v{t}, {vr(t+4,4)} offset:2048
            s_mov_b32 exec_hi, -1
            ''')
        p(f'{l3}:')
        V.free('ext')
    def xn_loads(self):
        p, V, A = self.p, self.V, self.A
        xf = A.alloc('xnf', 128, align=4, at=0)
        p(f'''
        s_lshl_b32 s56, {sTT}, 2
        s_add_u32 s56, s56, {sWAVE}
        s_lshl_b32 s57, s56, 15
        s_add_u32 s57, s57, {WS_XNF}
        ''')
        for ks in range(32):
            if ks % 4 == 0 and ks: p(f's_add_u32 s57, s57, 4096')
            p(f'buffer_load_dwordx4 {vr(xf+4*ks,4,"a")}, v{V["l16"]}, {SWS}, s57 offen offset:{1024*(ks%4)} sc1')
    def bias_init(self, acc, blk):
        p, bias = self.p, self.V['bias']
        for q in range(4):
            for e in range(2):
                b = bias + 8 * blk + 2 * q + e
                p(f'v_lshlrev_b32 v{acc+4*q+2*e}, 16, v{b}')
                p(f'v_and_b32 v{acc+4*q+2*e+1}, 0xffff0000, v{b}')
    def mish(self, acc, tm, pk, packed):
        p = self.p
        if packed:
            for r in range(0, 16, 2): p(f'v_pk_mul_f32 {vr(tm+r,2)}, {vr(acc+r,2)}, s[34:35] op_sel_hi:[1,0]')
            for r in range(16): p(f'v_exp_f32 v{tm+r}, v{tm+r}')
            for r in range(0, 16, 2):
                p(f'v_pk_add_f32 {vr(pk+(r&2),2)}, {vr(tm+r,2)}, 2.0 op_sel_hi:[1,0]')
                p(f'v_pk_fma_f32 {vr(tm+r,2)}, {vr(tm+r,2)}, {vr(pk+(r&2),2)}, 2.0 op_sel_hi:[1,1,0]')
            for r in range(16): p(f'v_rcp_f32 v{tm+r}, v{tm+r}')
            for r in range(0, 16, 2): p(f'v_pk_fma_f32 {vr(tm+r,2)}, {vr(tm+r,2)}, -2.0, 1.0 op_sel_hi:[1,0,0]')
            for r in range(0, 16, 2): p(f'v_pk_mul_f32 {vr(tm+r,2)}, {vr(tm+r,2)}, {vr(acc+r,2)}')
            for r in range(0, 16, 2): p(f'v_cvt_pk_bf16_f32 v{pk+r//2}, v{tm+r}, v{tm+r+1}')
        else:
            for r0 in range(0, 16, 4):
                R = range(r0, r0 + 4)
                for r in R: p(f'v_mul_f32 v{tm+r}, s34, v{acc+r}')
                for r in R: p(f'v_exp_f32 v{tm+r}, v{tm+r}')
                for r in R: p(f'v_add_f32 v{pk+(r&3)+4}, 2.0, v{tm+r}')
                for r in R: p(f'v_fma_f32 v{tm+r}, v{tm+r}, v{pk+(r&3)+4}, 2.0')
                for r in R: p(f'v_rcp_f32 v{tm+r}, v{tm+r}')
                for r in R: p(f'v_fma_f32 v{tm+r}, v{tm+r}, -2.0, 1.0')
                for r in R: p(f'v_mul_f32 v{tm+r}, v{tm+r}, v{acc+r}')
            for r in range(0, 16, 2): p(f'v_cvt_pk_bf16_f32 v{pk+r//2}, v{tm+r}, v{tm+r+1}')
    def act_store(self, pk, blk):
        p = self.p
        p(f's_add_u32 s39, s35, {2048*blk}')
        p(f'buffer_store_dwordx4 {vr(pk,4)}, v{self.V["l16"]}, {SWS}, s39 offen sc1', tag='actst')
        p(f'buffer_store_dwordx4 {vr(pk+4,4)}, v{self.V["l16"]}, {SWS}, s39 offen offset:1024 sc1', tag='actst')
    def gemm1(self):
        p, V, A = self.p, self.V, self.A
        xf = A['xnf']; wa = V['w1a']
        acc = V.alloc('g1acc', 48, align=2); fr = V.alloc('g1fr', 32, align=2); tm = V.alloc('g1tm', 16, align=2); pk = V.alloc('g1pk', 16, align=2)
        p(f'''
        s_mov_b32 s34, {f32(LOG2E)}
        s_lshl_b32 s56, {sTT}, 2
        s_add_u32 s56, s56, {sWAVE}
        s_mul_i32 s35, s56, {86*1024}
        s_lshl_b32 s59, {sFB0}, 11
        s_add_u32 s35, s35, s59
        s_add_u32 s35, s35, {WS_ACT}
        ''')
        self.bias_init(acc, 0); self.bias_init(acc + 16, 1)
        def rd(ks, blk, slot):
            b = fr + 4 * slot; base = wa + (ks >> 4); o = (ks & 15) * 3072 + 64 * blk
            p(f'ds_read_b64_tr_b16 {vr(b,2)}, v{base} offset:{o}')
            p(f'ds_read_b64_tr_b16 {vr(b+2,2)}, v{base} offset:{o+768}')
        with p.capture() as main:
            for ks in range(2): rd(ks, 0, 2 * (ks % 4)); rd(ks, 1, 2 * (ks % 4) + 1)
            for ks in range(32):
                if ks + 2 < 32: rd(ks + 2, 0, 2 * ((ks + 2) % 4)); rd(ks + 2, 1, 2 * ((ks + 2) % 4) + 1)
                p(f'v_mfma_f32_32x32x16_bf16 {vr(acc,16)}, {vr(fr+8*(ks%4),4)}, {vr(xf+4*ks,4,"a")}, {vr(acc,16)}')
                p(f'v_mfma_f32_32x32x16_bf16 {vr(acc+16,16)}, {vr(fr+8*(ks%4)+4,4)}, {vr(xf+4*ks,4,"a")}, {vr(acc+16,16)}')
        fill = self.cap(self.gemm_addr_setup)
        fill += self.cap(self.bias_init, acc + 32, 2)
        fill += self.cap(self.poll_issue, 'A2', V['us'] + 2, 64, 4)
        self.weave(main, fill, start=4)
        self.stamp('g1p1')
        self.poll_check('A2', V['us'] + 2, 64, 4)
        ud = V.alloc('ud', 8, align=2)
        p(f'''
        s_lshl_b32 s56, {sWAVE}, 19
        s_lshl_b32 s57, {sBETA}, 5
        s_add_u32 s56, s56, s57
        s_add_u32 s56, s56, {WS_UBLK}
        buffer_load_dwordx4 {vr(ud,4)}, v{V['us']}, {SWS}, s56 offen sc1
        buffer_load_dwordx4 {vr(ud+4,4)}, v{V['us']}, {SWS}, s56 offen offset:16 sc1
        ''')
        l2 = self.lab('g1n2'); l3 = self.lab('g1j')
        p(f's_cmp_eq_u32 {sNBLK}, 2\ns_cbranch_scc1 {l2}')
        with p.cond(lambda c: c['nblk'] == 3):
            with p.capture() as main:
                for ks in range(3): rd(ks, 2, ks % 4)
                for ks in range(32):
                    if ks + 3 < 32: rd(ks + 3, 2, (ks + 3) % 4)
                    p(f'v_mfma_f32_32x32x16_bf16 {vr(acc+32,16)}, {vr(fr+4*(ks%4),4)}, {vr(xf+4*ks,4,"a")}, {vr(acc+32,16)}')
            with p.capture() as fill:
                self.mish(acc, tm, pk, False); self.act_store(pk, 0)
                self.mish(acc + 16, tm, pk + 8, False); self.act_store(pk + 8, 1)
            self.weave(main, fill)
            p('s_barrier')
            self.w2_dma(0)
            self.mish(acc + 32, tm, pk, True); self.act_store(pk, 2)
        p(f's_branch {l3}\n{l2}:')
        with p.cond(lambda c: c['nblk'] == 2):
            p('s_barrier')
            self.w2_dma(0)
            self.mish(acc, tm, pk, True); self.act_store(pk, 0)
            self.mish(acc + 16, tm, pk + 8, True); self.act_store(pk + 8, 1)
        p(f'{l3}:')
        us = V['us']
        p(f'ds_write_b128 v{us+1}, {vr(ud,4)}')
        p(f'ds_write_b128 v{us+1}, {vr(ud+4,4)} offset:{U_CH}')
        p('s_waitcnt lgkmcnt(0)\ns_barrier')
        V.free('g1acc', 'g1fr', 'g1tm', 'g1pk', 'bias', 'w1a', 'ud', 'us')
        A.free('xnf')
        lab = self.lab('nw')
        p(f's_or_b32 s52, {sBETA}, {sWAVE}\ns_cmp_lg_u32 s52, 0\ns_cbranch_scc1 {lab}')
        with p.cond(lambda c: c['w'] == 0):
            p('s_mov_b32 s101, 0')
            self.flag_store('s101', WS_FLG)
        p(f'{lab}:')
    def act_flag(self):
        p = self.p
        p.wait_tag('actst')
        p(f'''
        s_lshl_b32 s101, {sTT}, 2
        s_add_u32 s101, s101, {sWAVE}
        s_lshl_b32 s101, s101, 4
        s_and_b32 s100, {sBETA}, 15
        s_add_u32 s101, s101, s100
        s_lshl_b32 s101, s101, 3
        ''')
        self.flag_store('s101', FL_B)
    def w2_dma(self, rnd):
        p, V = self.p, self.V
        ns = 22 if rnd == 0 else 21
        p(f'''
        s_mul_i32 s98, {sCH}, {43*16*1024}
        s_lshl_b32 s99, {sROLE}, 13
        s_add_u32 s98, s98, s99
        s_lshl_b32 s99, {sCG}, 7
        s_add_u32 s98, s98, s99
        s_add_u32 s98, s98, {22*rnd*16*1024}
        s_mul_i32 s99, {sCH}, {22*2048}
        s_lshl_b32 s97, {sROLE}, 10
        s_add_u32 s99, s99, s97
        s_add_u32 m0, s99, {L_W}
        ''')
        for s_ in range(ns):
            p(f'buffer_load_dwordx4 v{V["w2a"]}, {SW2}, s98 offen lds', tag=f'w2dma{rnd}')
            if s_ + 1 < ns: p(f's_add_u32 m0, m0, 2048\ns_add_u32 s98, s98, {16*1024}')
    def w2_read(self, rnd):
        p, V, A = self.p, self.V, self.A
        ns = 22 if rnd == 0 else 21
        t = V['w2a'] + 1
        for s_ in range(ns):
            b = self.w2reg(22 * rnd + s_)
            p(f'ds_read_b64_tr_b16 {vr(b,2,"a")}, v{t} offset:{2048*s_}')
            p(f'ds_read_b64_tr_b16 {vr(b+2,2,"a")}, v{t} offset:{2048*s_+1024}')
    def w2reg(self, sl): return 4 * sl
    def conv(self):
        p, V, A = self.p, self.V, self.A
        A.alloc('w2f', 172, align=4, at=0)
        aA, aB, ce = V['cA'], V['cB'], V['ce']
        acc = V.alloc('cacc', 32, align=2); fr = V.alloc('cfr', 32, align=2)
        a0, a1 = acc, acc + 16
        def rd(i):
            b = fr + 16 * (i & 1)
            oa = 32 * (31 - i); ob = 80 * (15 - i // 2) + (32 if i % 2 == 0 else 0)
            p(f'ds_read_b64 {vr(b,2)}, v{aA} offset:{oa}')
            p(f'ds_read_b64 {vr(b+2,2)}, v{aA} offset:{oa+8}')
            p(f'ds_read_b128 {vr(b+8,4)}, v{aB} offset:{ob}')
            p(f'ds_read_b128 {vr(b+12,4)}, v{aB} offset:{ob+2560}')
            p(f'ds_read_b64 {vr(b+4,2)}, v{aA+1} offset:{oa}')
            p(f'ds_read_b64 {vr(b+6,2)}, v{aA+1} offset:{oa+8}')
        def group(i):
            if i + 1 < 32: rd(i + 1)
            b = fr + 16 * (i & 1)
            p(f'v_mfma_f32_32x32x16_f16 {vr(a0,16)}, {vr(b,4)}, {vr(b+8,4)}, {vr(a0,16)}')
            p(f'v_mfma_f32_32x32x16_f16 {vr(a1,16)}, {vr(b,4)}, {vr(b+12,4)}, {vr(a1,16)}')
            p(f'v_mfma_f32_32x32x16_f16 {vr(a1,16)}, {vr(b+4,4)}, {vr(b+8,4)}, {vr(a1,16)}')
        b = fr + 16
        p(f'ds_read_b64 {vr(b,2)}, v{aA+2}')
        p(f'ds_read_b64 {vr(b+2,2)}, v{aA+2} offset:8')
        p(f'ds_read_b128 {vr(b+8,4)}, v{aB+1}')
        p(f'ds_read_b128 {vr(b+12,4)}, v{aB+1} offset:2560')
        rd(0)
        p(f'v_mfma_f32_32x32x16_f16 {vr(a0,16)}, {vr(b,4)}, {vr(b+8,4)}, 0')
        p(f'v_mfma_f32_32x32x16_f16 {vr(a1,16)}, {vr(b,4)}, {vr(b+12,4)}, 0')
        G1, G2, G3 = 12, 13, 21
        for i in range(G1): group(i)
        self.act_flag()
        for i in range(G1, G2): group(i)
        p.wait_tag('w2dma0'); p('s_barrier')
        main = self.cap(lambda: [group(i) for i in range(G2, G3)])
        self.weave(main, self.cap(self.w2_read, 0))
        p('s_waitcnt lgkmcnt(0)\ns_barrier')
        self.w2_dma(1)
        for i in range(G3, 32): group(i)
        V.free('cfr', 'cA', 'cB')
        self.stamp('convmm')
        self.poll_issue('B', V['g2a'] + 2, 32, 1)
        p.wait_tag('w2dma1'); p('s_barrier')
        ex = V.alloc('cex', 16, align=2); uu = V.alloc('cuu', 8, align=2); t = V.alloc('cvt', 2)
        l0 = self.lab('cr0'); l1 = self.lab('cr1')
        p(f's_cmp_eq_u32 {sROLE}, 0\ns_cbranch_scc0 {l0}')
        with p.cond(lambda c: c['w'] % 2 == 0):
            for q in range(4): p(f'ds_write_b128 v{ce}, {vr(a1+4*q,4)} offset:{1024*q}')
        p(f's_branch {l1}\n{l0}:')
        with p.cond(lambda c: c['w'] % 2 == 1):
            for q in range(4):
                p(f'ds_write_b128 v{ce}, {vr(a0+4*q,4)} offset:{1024*q}')
                if q:
                    for r in range(4 * (q - 1), 4 * q): p(f'v_mov_b32 v{a0+r}, v{a1+r}')
            for r in range(12, 16): p(f'v_mov_b32 v{a0+r}, v{a1+r}')
        p(f'{l1}:')
        for q in range(4): p(f'ds_read_b64 {vr(uu+2*q,2)}, v{ce+2} offset:{16*q}')
        self.w2_read(1)
        p('s_waitcnt lgkmcnt(0)\ns_barrier')
        for q in range(4): p(f'ds_read_b128 {vr(ex+4*q,4)}, v{ce+1} offset:{1024*q}')
        self.poll_check('B', V['g2a'] + 2, 32, 1)
        self.stamp('pollB')
        self.act_dma_setup()
        dm = [self.cap(self.act_dma, sl, sl) for sl in range(self.o['lead'])]
        with p.capture() as epi:
            for r in range(16): p(f'v_add_f32 v{a0+r}, v{a0+r}, v{ex+r}')
            for r in range(16): p(f'v_mul_f32 v{a0+r}, {sSIG}, v{a0+r}')
            for r in range(16):
                p(f'v_fma_mix_f32 v{a0+r}, v{uu+r//2}, {sDV}, v{a0+r} op_sel:[{r&1},0,0] op_sel_hi:[1,0,0]')
            for r in range(8): p(f'v_cvt_pk_bf16_f32 v{ex+r}, v{a0+2*r}, v{a0+2*r+1}')
            for q in range(4):
                p(f'v_xor_b32 v{t}, {16*q}, v{ce+4}')
                p(f'v_add_u32 v{t}, v{t}, v{ce+3}')
                p(f'ds_write_b64 v{t}, {vr(ex+2*q,2)}')
            p(f'ds_read_b128 {vr(ex+8,4)}, v{ce+5}')
            p(f'ds_read_b128 {vr(ex+12,4)}, v{ce+5} offset:1024')
            p(f'''
            s_lshl_b32 s58, {sBETA}, 1
            s_add_u32 s58, s58, {sCH}
            s_lshl_b32 s58, s58, 12
            s_lshl_b32 s59, {sROLE}, 11
            s_add_u32 s58, s58, s59
            s_add_u32 s58, s58, {WS_ST}
            ''')
            p(f'buffer_store_dwordx4 {vr(ex+8,4)}, v{V["l16"]}, {SWS}, s58 offen sc1', tag='stst')
            p(f'buffer_store_dwordx4 {vr(ex+12,4)}, v{V["l16"]}, {SWS}, s58 offen offset:1024 sc1', tag='stst')
        p.merge(epi, dm, 0, len(epi) - 10)
        V.free('cvt', 'cacc', 'cex', 'cuu', 'ce', 'w2a')
    def st_flag(self):
        p = self.p
        p.wait_tag('stst')
        p(f'''
        s_lshl_b32 s101, {sROLE}, 9
        s_lshl_b32 s100, {sBETA}, 1
        s_add_u32 s101, s101, s100
        s_add_u32 s101, s101, {sCH}
        s_lshl_b32 s101, s101, 3
        ''')
        self.flag_store('s101', FL_C)
    def act_dma_setup(self):
        p = self.p
        p(f'''
        s_lshl_b32 s96, {sTG}, 1
        s_add_u32 s96, s96, {sROLE}
        s_mul_i32 s96, s96, {86*1024}
        s_mul_i32 s97, {sCH}, {43*1024}
        s_add_u32 s96, s96, s97
        s_add_u32 s96, s96, {WS_ACT}
        s_lshl_b32 s97, {sCH}, 11
        s_lshl_b32 s98, {sROLE}, 10
        s_add_u32 s97, s97, s98
        ''')
    def act_dma(self, sl, slot):
        p = self.p
        p(f's_add_u32 m0, s97, {slot*4096}')
        p(f's_add_u32 s98, s96, {sl*1024}')
        p(f'buffer_load_dwordx4 v{self.V["l16"]}, {SWS}, s98 offen sc1 lds', tag=f'act{sl}')
    def gemm2(self):
        p, V, A = self.p, self.V, self.A
        g2 = V['g2a']
        p('s_barrier')
        lead = self.o['lead']
        acc = V.alloc('g2acc', 32, align=2); fr = V.alloc('g2fr', 24, align=2)
        xd = V.alloc('g2xd', 8, align=2); sd = V.alloc('g2sd', 8, align=2)
        def rd(sl):
            slot = sl if sl < R1 else sl - R1
            o = slot * 4096; base = g2
            if o >= 0x20000: o -= 0x20000; base = g2 + 10
            elif o >= 0x10000: o -= 0x10000; base = g2 + 1
            b = fr + 8 * (sl % 3)
            p(f'ds_read_b128 {vr(b,4)}, v{base} offset:{o}')
            p(f'ds_read_b128 {vr(b+4,4)}, v{base} offset:{o+1024}')
        def mm(lo, hi):
            for sl in range(lo, min(lo + 2, hi)): rd(sl)
            for sl in range(lo, hi):
                if sl + 2 < hi: rd(sl + 2)
                if sl + lead < 43: self.act_dma(sl + lead, (sl + lead) % R1)
                b = fr + 8 * (sl % 3); wf = self.w2reg(sl)
                c0 = '0' if sl == 0 else vr(acc, 16); c1 = '0' if sl == 0 else vr(acc + 16, 16)
                p(f'v_mfma_f32_32x32x16_bf16 {vr(acc,16)}, {vr(wf,4,"a")}, {vr(b,4)}, {c0}')
                p(f'v_mfma_f32_32x32x16_bf16 {vr(acc+16,16)}, {vr(wf,4,"a")}, {vr(b+4,4)}, {c1}')
        stages = [0, 6, 12, 18, 24, 30, 36, 43]
        for si in range(len(stages) - 1):
            lo, hi = stages[si], stages[si + 1]
            p.wait_tag(f'act{hi-1}')
            p('s_barrier')
            if si == 2:
                self.st_flag()
                p(f'''
                s_lshl_b32 s56, {sTG}, 16
                s_lshl_b32 s57, {sCH}, 15
                s_add_u32 s56, s56, s57
                s_lshl_b32 s57, {sCG}, 7
                s_add_u32 s56, s56, s57
                s_lshl_b32 s57, {sROLE}, 6
                s_add_u32 s39, s56, s57
                ''')
                for q in range(4): p(f'buffer_load_dwordx2 {vr(xd+2*q,2)}, v{g2+9}, {SX}, s39 offen offset:{16*q}')
            if si == 5: self.poll_issue('C', g2 + 3, 64, 1)
            if si == 6:
                self.poll_check('C', g2 + 3, 64, 1)
                p(f'''
                s_lshl_b32 s56, {sCG}, 18
                s_lshl_b32 s57, {sTG}, 7
                s_add_u32 s56, s56, s57
                s_add_u32 s56, s56, {WS_ST}
                s_add_u32 s57, s56, {32*4096}
                buffer_load_dwordx4 {vr(sd,4)}, v{g2+6}, {SWS}, s56 offen sc1
                buffer_load_dwordx4 {vr(sd+4,4)}, v{g2+6}, {SWS}, s57 offen sc1
                ''')
            mm(lo, hi)
        V.free('g2fr'); A.free('w2f')
        self.stamp('g2mm')
        p(f'ds_write_b128 v{g2+7}, {vr(sd,4)}')
        p(f'ds_write_b128 v{g2+7}, {vr(sd+4,4)} offset:{32*ST_STR}')
        p('s_barrier')
        ex = V.alloc('g2ex', 16, align=2)
        l0 = self.lab('g20'); l1 = self.lab('g21')
        p(f's_cmp_eq_u32 {sCH}, 0\ns_cbranch_scc0 {l0}')
        with p.cond(lambda c: c['w'] < 2):
            for q in range(4): p(f'ds_write_b128 v{g2+4}, {vr(acc+16+4*q,4)} offset:{1024*q}')
        p(f's_branch {l1}\n{l0}:')
        with p.cond(lambda c: c['w'] >= 2):
            for q in range(4):
                p(f'ds_write_b128 v{g2+4}, {vr(acc+4*q,4)} offset:{1024*q}')
                if q:
                    for r in range(4 * (q - 1), 4 * q): p(f'v_mov_b32 v{acc+r}, v{acc+16+r}')
            for r in range(12, 16): p(f'v_mov_b32 v{acc+r}, v{acc+16+r}')
        p(f'{l1}:')
        p('s_waitcnt lgkmcnt(0)\ns_barrier')
        for q in range(4): p(f'ds_read_b128 {vr(ex+4*q,4)}, v{g2+5} offset:{1024*q}')
        for q in range(4): p(f'ds_read_b64_tr_b16 {vr(sd+2*q,2)}, v{g2+8} offset:{8*q*ST_STR}')
        p(f's_mov_b32 s34, {f32(-LOG2E)}')
        for r in range(0, 16, 2): p(f'v_pk_add_f32 {vr(acc+r,2)}, {vr(acc+r,2)}, {vr(ex+r,2)}')
        for r in range(0, 16, 2): p(f'v_pk_mul_f32 {vr(ex+r,2)}, {vr(acc+r,2)}, s[34:35] op_sel_hi:[1,0]')
        for r in range(16): p(f'v_exp_f32 v{ex+r}, v{ex+r}')
        for r in range(0, 16, 2): p(f'v_pk_add_f32 {vr(ex+r,2)}, {vr(ex+r,2)}, 1.0 op_sel_hi:[1,0]')
        for r in range(16): p(f'v_rcp_f32 v{ex+r}, v{ex+r}')
        for r in range(0, 16, 2): p(f'v_pk_mul_f32 {vr(acc+r,2)}, {vr(acc+r,2)}, {vr(ex+r,2)}')
        for r in range(16):
            if r % 2 == 0: p(f'v_lshlrev_b32 v{ex+r}, 16, v{sd+r//2}')
            else: p(f'v_and_b32 v{ex+r}, 0xffff0000, v{sd+r//2}')
        for r in range(0, 16, 2): p(f'v_pk_mul_f32 {vr(acc+r,2)}, {vr(acc+r,2)}, {vr(ex+r,2)}')
        for r in range(8): p(f'v_cvt_pk_bf16_f32 v{sd+r}, v{acc+2*r}, v{acc+2*r+1}')
        for r in range(8):
            p(f'v_lshlrev_b32 v{ex}, 16, v{sd+r}')
            p(f'v_and_b32 v{ex+1}, 0xffff0000, v{sd+r}')
            p(f'v_lshlrev_b32 v{ex+2}, 16, v{xd+r}')
            p(f'v_and_b32 v{ex+3}, 0xffff0000, v{xd+r}')
            p(f'v_pk_add_f32 {vr(ex,2)}, {vr(ex,2)}, {vr(ex+2,2)}')
            p(f'v_cvt_pk_bf16_f32 v{xd+r}, v{ex}, v{ex+1}')
            if r % 2 == 1:
                q = r // 2
                p(f'buffer_store_dwordx2 {vr(xd+2*q,2)}, v{g2+9}, {SOUT}, s39 offen offset:{16*q}')
        V.free('g2acc', 'g2ex', 'g2sd', 'g2xd', 'g2a')
    def dump_lds(self, lds_off, nbytes, ws_off):
        p, V = self.p, self.V
        t = V.alloc('dmp', 6, align=2)
        p('s_waitcnt lgkmcnt(0)\ns_barrier')
        stride = (nbytes + 4095) // 4096 * 4096
        p(f's_mul_i32 s52, {sBETA}, {stride}\ns_add_u32 s52, s52, {ws_off}')
        p(f'v_lshlrev_b32 v{t}, 4, v0')
        for k in range(stride // 4096):
            p(f'v_add_u32 v{t+1}, {lds_off + 4096*k}, v{t}')
            p(f'ds_read_b128 {vr(t+2,4)}, v{t+1}')
            p(f'buffer_store_dwordx4 {vr(t+2,4)}, v{t}, {SWS}, s52 offen')
            p(f's_add_u32 s52, s52, 4096')
            p('s_waitcnt vmcnt(0)')
        p('s_barrier')
        V.free('dmp')
    def finish(self):
        p = self.p
        if self.stamps:
            V = self.V
            t = V.alloc('stt'); t2 = V.alloc('stt2')
            p(f'''
            s_waitcnt vmcnt(0) lgkmcnt(0)
            s_memrealtime s[94:95]
            s_waitcnt lgkmcnt(0)
            v_writelane_b32 v255, s94, 63
            s_lshl_b32 s52, s2, 2
            s_add_u32 s52, s52, {sWAVE}
            s_lshl_b32 s52, s52, 8
            s_add_u32 s52, s52, {WS_DBG}
            v_lshlrev_b32 v{t}, 2, v1
            buffer_store_dword v255, v{t}, {SWS}, s52 offen
            ''')
            if self.dbgstamps:
                lab = self.lab('dbgst')
                p(f's_or_b32 s52, s2, {sWAVE}\ns_cmp_lg_u32 s52, 0\ns_cbranch_scc1 {lab}')
                p('v_readlane_b32 s53, v255, 0')
                for k, nm in enumerate(self.dbgstamps):
                    idx = self.stamp_names.index(nm)
                    p(f'v_readlane_b32 s54, v255, {idx}')
                    p(f's_sub_u32 s54, s54, s53')
                    p(f'v_mov_b32 v{t}, {4*k}')
                    p(f'v_mov_b32 v{t2}, s54')
                    p(f'global_store_dword v{t}, v{t2}, {pDBG}')
                p('v_readlane_b32 s53, v255, 62\nv_readlane_b32 s54, v255, 63\ns_sub_u32 s54, s54, s53')
                p(f'v_mov_b32 v{t}, 60\nv_mov_b32 v{t2}, s54\nglobal_store_dword v{t}, v{t2}, {pDBG}')
                p(f'{lab}:')
        p('L_end:\ns_endpgm')
    def build(self):
        p, V = self.p, self.V
        self.entry()
        p('s_mov_b32 s34, 128')
        self.idle_setup()
        self.gemm1_addr_setup()
        self.stamp('idle')
        self.ln()
        self.stamp('lnst')
        groups = self.w1_dma_groups()
        self.kgen_setup()
        p('s_barrier')
        self.stamp('ksetup')
        main = self.kgen_values()
        n1 = len(main) * 11 // 20
        if self.o.get('nodmak'):
            p.ins.extend(main[:n1]); self.stamp('khalf'); self.ln_flag(); self.stamp('flagA'); p.ins.extend(main[n1:]); self.stamp('kpure')
            for g_ in groups + [self.w2_touch()]: p.ins.extend(g_)
        else:
            p.merge(main[:n1], groups[:13])
            self.ln_flag()
            p.merge(main[n1:], groups[13:] + [self.w2_touch()])
        V.free('w1off', 'z', 'Z256', 'Cn', 'z2', 'z4', 'w', 'w2', 'w4', 'chains', 'cv', 'fa')
        self.stamp('kvals')
        self.poll_issue('A1', V['pA1'], 8, 1)
        p('s_waitcnt lgkmcnt(0)\ns_barrier')
        self.kgen_mfma()
        self.poll_check('A1', V['pA1'], 8, 1)
        V.free('pA1')
        self.stamp('pollA1')
        xl = self.cap(self.xn_loads)
        p('s_waitcnt lgkmcnt(0)\ns_barrier')
        if 'table' in self.dump: self.dump_lds(L_T, 2 * T_CH, WS_DBG + 0x100000)
        ex = self.cap(self.expand)
        grp = []; cur = []
        for i in xl:
            cur.append(i)
            if i.kind == 'vm_load': grp.append(cur); cur = []
        ncommon = next(k for k, i in enumerate(ex) if i.kind == 'branch')
        p.merge(ex[:ncommon - 1], grp)
        p.ins.extend(ex[ncommon - 1:])
        p('s_waitcnt lgkmcnt(0)\ns_barrier')
        self.stamp('expand')
        if 'kc' in self.dump: self.dump_lds(L_KC, 8 * KC_STR, WS_DBG + 0x400000)
        self.gemm1()
        self.stamp('gemm1')
        self.conv()
        self.stamp('conv')
        self.gemm2()
        self.stamp('end')
        self.finish()
        body = p.render().rstrip('\n').split('\n')
        if self.o['pads']:
            wi = [l.strip() for l in body].index(';WARM')
            tmp = body[:wi] + body[wi + 1:]
            tmp, padl = PADS.add_page_pads(tmp, 'L_main', 'L_warm_ret')
            wi = tmp.index('L_warm_ret:')
            warm = []
            for w in range(min(4, len(padl))):
                warm += [f'    s_cmp_eq_u32 {sWAVE}, {w}', f'    s_cbranch_scc1 {padl[w]}']
            body = tmp[:wi] + warm + tmp[wi:]
            self.npads = len(padl)
        names = ''.join(f'; stamp {n}\n' for n in self.stamp_names)
        hdr = f'''; S4D conv + mish MLP gated block, single persistent launch (generated by gen/kern2.py)
; @launch grid=(256,1,1) block=(256,1,1) lds={LDS_BYTES}
{names}.amdgcn_target "amdgcn-amd-amdhsa--gfx950"
.text
.globl {NAME}
.p2align 8
.type {NAME},@function
{NAME}:
'''
        tail = f'''
.section .rodata,"a"
.p2align 6
.amdhsa_kernel {NAME}
  .amdhsa_next_free_vgpr 512
  .amdhsa_next_free_sgpr 102
  .amdhsa_accum_offset 256
  .amdhsa_group_segment_fixed_size 0
  .amdhsa_kernarg_size 112
  .amdhsa_user_sgpr_count 2
  .amdhsa_user_sgpr_kernarg_segment_ptr 1
  .amdhsa_system_sgpr_workgroup_id_x 1
  .amdhsa_ieee_mode 0
  .amdhsa_dx10_clamp 0
.end_amdhsa_kernel
'''
        return hdr + '\n'.join(body) + '\n' + tail

if __name__ == '__main__':
    import argparse
    ap = argparse.ArgumentParser()
    ap.add_argument('-o', default='k.s')
    ap.add_argument('--stamps', action='store_true')
    ap.add_argument('--dump', default=None)
    ap.add_argument('--dbg', default=None)
    ap.add_argument('--opt', default='')
    a = ap.parse_args()
    opts = {}
    for kv in a.opt.split(','):
        if kv:
            k, v = kv.split('='); opts[k] = int(v)
    g = Gen(stamps=a.stamps, dump=set(a.dump.split(',')) if a.dump else None, dbgstamps=a.dbg.split(',') if a.dbg else None, opts=opts)
    s = g.build()
    open(a.o, 'w').write(s)
    print('vgpr hi', g.V.hi, 'agpr hi', g.A.hi, 'lines', s.count('\n'), 'pads', getattr(g, 'npads', 0))
```

```python
class Regs:
    def __init__(self, kind, n, reserved=0):
        self.kind = kind; self.n = n
        self.owner = [None] * n
        for i in range(reserved): self.owner[i] = '_res'
        self.map = {}
        self.hi = reserved
    def alloc(self, name, cnt=1, align=None, at=None):
        if name in getattr(self, 'pre', {}):
            i, c = self.pre.pop(name); assert c == cnt, name
            return i
        assert name not in self.map, name
        if align is None: align = 1 if cnt == 1 else 2
        if at is not None:
            assert all(self.owner[j] is None for j in range(at, at + cnt)), (name, at, [self.owner[j] for j in range(at, at + cnt)])
            i = at
        else:
            i = 0
            while True:
                i = (i + align - 1) // align * align
                assert i + cnt <= self.n, f'out of {self.kind} regs for {name} x{cnt}'
                if all(self.owner[j] is None for j in range(i, i + cnt)): break
                i += 1
        for j in range(i, i + cnt): self.owner[j] = name
        self.map[name] = (i, cnt)
        self.hi = max(self.hi, i + cnt)
        return i
    def prealloc(self, name, cnt=1, align=None, at=None):
        i = self.alloc(name, cnt, align, at)
        if not hasattr(self, 'pre'): self.pre = {}
        self.pre[name] = (i, cnt)
        return i
    def free(self, *names):
        for name in names:
            i, cnt = self.map.pop(name)
            for j in range(i, i + cnt): self.owner[j] = None
    def __getitem__(self, name): return self.map[name][0]
    def r(self, name, off=0, cnt=1):
        b = self.map[name][0] + off
        assert off + cnt <= self.map[name][1], (name, off, cnt)
        return f'{self.kind}{b}' if cnt == 1 else f'{self.kind}[{b}:{b+cnt-1}]'
def vr(b, cnt=1, k='v'):
    return f'{k}{b}' if cnt == 1 else f'{k}[{b}:{b+cnt-1}]'
```

```python
import sys, math
from regs import vr
import kern2
from kern2 import *
import pads as PADS

L_BIAS = L_MISC + 64
L_X = L_F + 50688
W1B = 32768
ROUNDS = [(0, 8), (8, 16), (16, 24), (24, 32), (32, 40), (40, 43)]
RREG = [L_W, L_W + W1B, L_W + 2 * W1B, L_W, L_W + W1B, L_X]
NRING = 12
ST3_L = L_U

class Gen3(kern2.Gen):
    def __init__(self, **kw):
        super().__init__(**kw)
        self.o.setdefault('xlead', 10); self.o.setdefault('alead', 10)
    def fstamp(self, name):
        if self.o.get('fine'): self.stamp(name)
    def entry(self):
        p, V = self.p, self.V
        x0 = V.alloc('x0', 4); x1 = V.alloc('x1', 4)
        l16 = V.alloc('l16'); t = V.alloc('t0'); t2 = V.alloc('t1')
        if self.stamps: p('s_memrealtime s[98:99]')
        p(f'''
        s_load_dwordx16 s[64:79], s[0:1], 0
        s_load_dwordx8 s[80:87], s[0:1], 64
        s_load_dwordx4 s[88:91], s[0:1], 96
        s_cmp_ge_u32 s2, 256
        s_cbranch_scc1 L_end
        v_and_b32 v1, 63, v0
        v_lshrrev_b32 v2, 6, v0
        s_and_b32 s52, s2, 7
        s_lshr_b32 s53, s2, 3
        v_readfirstlane_b32 {sWAVE}, v2
        s_lshl_b32 {sBETA}, s52, 5
        s_add_u32 {sBETA}, {sBETA}, s53
        v_lshlrev_b32 v{l16}, 4, v1
        s_lshl_b32 s52, {sBETA}, 3
        s_lshl_b32 s53, {sWAVE}, 1
        s_add_u32 s52, s52, s53
        s_lshl_b32 s52, s52, 10
        s_mov_b32 s10, 0x200000
        s_mov_b32 s11, 0x20000
        s_lshr_b32 {sCH}, {sWAVE}, 1
        s_and_b32 {sROLE}, {sWAVE}, 1
        s_lshl_b32 s54, {sBETA}, 1
        s_add_u32 s54, s54, {sCH}
        s_lshl_b32 s54, s54, 8
        v_lshlrev_b32 v{t2}, 2, v1
        v_add_u32 v{t}, s54, v{t2}
        s_lshl_b32 s58, {sBETA}, 2
        s_and_b32 s54, {sBETA}, 15
        s_mul_i32 {sFB0}, s54, 3
        s_lshl_b32 s55, s54, 1
        s_add_u32 s55, s55, 11
        s_cmp_lt_u32 s54, 11
        s_cselect_b32 {sFB0}, {sFB0}, s55
        s_cselect_b32 {sNBLK}, 3, 2
        s_waitcnt lgkmcnt(0)
        s_mov_b32 s8, s64
        s_mov_b32 s9, s65
        ''')
        if self.stamps: p('s_mov_b32 s36, s98')
        p(f'buffer_load_dwordx4 {vr(x0,4)}, v{l16}, {SX}, s52 offen')
        p(f'buffer_load_dwordx4 {vr(x1,4)}, v{l16}, {SX}, s52 offen offset:1024')
        pr = V.alloc('par', 4)
        p(f'''
        global_load_dword v{pr}, v{t}, {pLOGA}
        global_load_dword v{pr+1}, v{t}, {pAIM}
        global_load_dword v{pr+2}, v{t}, {pCRE}
        global_load_dword v{pr+3}, v{t}, {pCIM}
        s_load_dword {sLDT}, {pLOGDT}, s58
        s_load_dword {sDSK}, {pDSK}, s58
        s_mov_b32 s20, s90
        s_mov_b32 s21, s91
        s_mov_b32 s22, {WS_BYTES}
        s_mov_b32 s23, 0x20000
        s_mov_b32 s12, s80
        s_mov_b32 s13, s81
        s_mov_b32 s14, {512*1376*2}
        s_mov_b32 s15, 0x20000
        s_mov_b32 s28, s82
        s_mov_b32 s29, s83
        s_mov_b32 s30, {1376*2}
        s_mov_b32 s31, 0x20000
        ''')
        nv = V.alloc('nonce'); vo = V.alloc('w1off', 4)
        p(f'''
        v_lshrrev_b32 v{t}, 2, v1
        v_mul_u32_u24 v{t}, 2752, v{t}
        v_and_b32 v{vo}, 3, v1
        v_lshlrev_b32 v{vo}, 4, v{vo}
        v_add_u32 v{vo}, v{vo}, v{t}
        v_add_u32 v{vo+1}, {16*2752-1024}, v{vo}
        v_add_u32 v{vo+2}, {2*(16*2752-1024)}, v{vo}
        v_add_u32 v{vo+3}, {3*(16*2752-1024)}, v{vo}
        ''')
        l0 = self.lab('e0'); l1 = self.lab('e1'); l2 = self.lab('e2')
        p(f's_cmp_ge_u32 {sWAVE}, 2\ns_cbranch_scc1 {l1}')
        p(f's_cmp_eq_u32 {sWAVE}, 0\ns_cbranch_scc0 {l0}')
        with p.cond(lambda c: c['w'] == 0):
            p(f'v_mov_b32 v{t}, {WS_FLG}')
            p(f'buffer_load_dword v{nv}, v{t}, {SWS}, 0 offen sc1')
        p(f's_branch {l2}\n{l0}:')
        with p.cond(lambda c: c['w'] == 1):
            p(f's_lshl_b32 s52, {sFB0}, 6')
            p(f'buffer_load_dword v{nv}, v{t2}, {SB1}, s52 offen')
        p(f's_branch {l2}\n{l1}:')
        with p.cond(lambda c: c['w'] >= 2):
            p(f'''
            s_sub_u32 s52, {sWAVE}, 2
            s_mul_i32 s53, s52, {12*16*2752}
            s_lshl_b32 s54, {sFB0}, 6
            s_add_u32 s96, s53, s54
            s_mul_i32 s53, s52, {12*1024}
            s_add_u32 m0, s53, {L_W}
            ''')
            for g in range(3):
                for k in range(4):
                    p(f'buffer_load_dwordx4 v{vo+k}, {SW1}, s96 offen offset:{1024*k} lds', tag='w1dma')
                if g < 2: p(f's_add_u32 s96, s96, {4*16*2752}\ns_add_u32 m0, m0, 4096')
        p(f'{l2}:')
        p(f'''
        s_mov_b32 s16, s84
        s_mov_b32 s17, s85
        s_mov_b32 s18, {512*1376*2}
        s_mov_b32 s19, 0x20000
        s_mov_b32 s24, s86
        s_mov_b32 s25, s87
        s_mov_b32 s26, 0x200000
        s_mov_b32 s27, 0x20000
        s_mov_b64 {pDBG}, s[88:89]
        s_lshr_b32 {sTT}, {sBETA}, 4
        s_lshr_b32 {sTG}, {sBETA}, 3
        s_and_b32 {sCG}, {sBETA}, 7
        ''')
        V.free('t0', 't1')
        self.stamp('start')
        if self.stamps:
            p('v_writelane_b32 v255, s36, 62')
        if self.o['pads']:
            p('s_mov_b64 exec, 0\n;WARM\nL_warm_ret:\ns_mov_b64 exec, -1')
        p('s_branch L_main\n.p2align 12\nL_main:')
    def idle_setup(self):
        p, V = self.p, self.V
        t = V.alloc('ist', 8, align=2)
        n31 = V.alloc('n31'); hh = V.alloc('hh')
        p(f'v_and_b32 v{n31}, 31, v1\nv_lshrrev_b32 v{hh}, 5, v1')
        z = t + 4
        for k in range(4): p(f'v_mov_b32 v{z+k}, 0')
        p(f'v_lshlrev_b32 v{t}, 4, v0\nv_add_u32 v{t}, {L_T}, v{t}')
        p(f'ds_write_b128 v{t}, {vr(z,4)}')
        p(f'''
        v_cmp_gt_u32 vcc, {(2*T_CH-4096)//16}, v0
        s_and_saveexec_b64 s[62:63], vcc
        ds_write_b128 v{t}, {vr(z,4)} offset:4096
        s_mov_b64 exec, s[62:63]
        ''')
        fa = V.alloc('fa', 14); kr = V.alloc('kr', 2); kt = V.alloc('ktb', 3)
        p(f'''
        s_mul_i32 s52, {sWAVE}, {F_WAVE}
        s_add_u32 s52, s52, {L_F}
        v_lshlrev_b32 v{fa}, 2, v1
        v_add_u32 v{fa}, s52, v{fa}
        ''')
        for k in range(1, 6): p(f'v_add_u32 v{fa+k}, {4*272*k}, v{fa}')
        for k in range(8): p(f'v_add_u32 v{fa+6+k}, {(21+4*k)*272}, v{fa}')
        p(f'''
        v_and_b32 v{t}, 15, v1
        v_lshrrev_b32 v{t+1}, 4, v1
        v_lshlrev_b32 v{kr}, 4, v{t+1}
        v_mul_u32_u24 v{t+2}, 272, v{t}
        v_add_u32 v{kr}, v{kr}, v{t+2}
        s_mul_i32 s52, {sCH}, {2*F_WAVE}
        s_add_u32 s52, s52, {L_F}
        v_add_u32 v{kr}, s52, v{kr}
        s_mul_i32 s53, {sROLE}, {16*272}
        s_add_u32 s53, s53, {21*272}
        v_add_u32 v{kr+1}, s53, v{kr}
        s_lshl_b32 s53, {sROLE}, 4
        v_add_u32 v{t}, s53, v{t}
        s_mul_i32 s52, {sCH}, {T_CH}
        s_add_u32 s52, s52, {L_T}
        v_lshlrev_b32 v{kt}, 5, v{t}
        v_lshlrev_b32 v{t+2}, 4, v{t+1}
        v_add_u32 v{kt}, v{kt}, v{t+2}
        v_lshlrev_b32 v{t+2}, 4, v{t}
        v_add_u32 v{t+2}, 1024, v{t+2}
        v_cmp_eq_u32 s[54:55], 2, v{t+1}
        v_cndmask_b32 v{kt}, v{kt}, v{t+2}, s[54:55]
        v_lshlrev_b32 v{t+2}, 3, v{t}
        v_add_u32 v{t+2}, 1536, v{t+2}
        v_cmp_eq_u32 s[54:55], 3, v{t+1}
        v_cndmask_b32 v{kt}, v{kt}, v{t+2}, s[54:55]
        v_mov_b32 v{kt+1}, 8
        v_mov_b32 v{t+2}, 256
        v_cndmask_b32 v{kt+1}, v{kt+1}, v{t+2}, s[54:55]
        v_add_u32 v{kt}, s52, v{kt}
        v_add_u32 v{kt+1}, v{kt+1}, v{kt}
        v_min_u32 v{kt+2}, 1, v{t+1}
        v_lshlrev_b32 v{kt+2}, 9, v{kt+2}
        v_lshlrev_b32 v{t+2}, 2, v{t}
        v_add_u32 v{kt+2}, v{kt+2}, v{t+2}
        v_add_u32 v{kt+2}, s52, v{kt+2}
        v_add_u32 v{kt+2}, 2048, v{kt+2}
        ''')
        ea = V.alloc('expad', 11)
        p(f'v_lshlrev_b32 v{t}, 3, v0\nv_sub_u32 v{t}, 2033, v{t}')
        p(f'v_mov_b32 v{t+3}, {T_ZERO//4}')
        p('s_mov_b32 s34, 128')
        for d in range(11):
            J = t + 1; fJ = t + 2; c = ea + d
            p(f'''
            v_add_u32 v{J}, {d}, v{t}
            v_cvt_f32_i32 v{fJ}, v{J}
            v_cmp_gt_i32 s[56:57], 0, v{J}
            v_cvt_pk_bf16_f32 v{fJ}, v{fJ}, v{fJ}
            v_cmp_gt_i32 s[58:59], s34, v{J}
            v_and_b32 v{fJ}, 0xffff, v{fJ}
            v_subrev_u32 v{c}, 17024, v{fJ}
            v_cndmask_b32 v{c}, v{c}, v{J}, s[58:59]
            v_cndmask_b32 v{c}, v{c}, v{t+3}, s[56:57]
            v_lshlrev_b32 v{c}, 2, v{c}
            v_add_u32 v{c}, {L_T}, v{c}
            ''')
        V.free('ist')
    def gemm1_addr_setup(self):
        p, V = self.p, self.V
        t = V.alloc('g1st', 2); wa = V.alloc('w1a', 2); pa = V.alloc('pA1'); bi = V.alloc('bia')
        hh = V['hh']
        p(f'''
        v_lshlrev_b32 v{t}, 3, v{hh}
        v_bfe_u32 v{t+1}, v1, 2, 2
        v_add_u32 v{t}, v{t}, v{t+1}
        v_lshlrev_b32 v{t}, 6, v{t}
        v_bfe_u32 v{t+1}, v1, 4, 1
        v_lshlrev_b32 v{t+1}, 5, v{t+1}
        v_add_u32 v{t}, v{t}, v{t+1}
        v_and_b32 v{t+1}, 3, v1
        v_lshlrev_b32 v{t+1}, 3, v{t+1}
        v_add_u32 v{wa}, v{t}, v{t+1}
        v_add_u32 v{wa}, {L_W}, v{wa}
        v_add_u32 v{wa+1}, {2*W1B}, v{wa}
        s_lshl_b32 s56, {sTT}, 2
        s_add_u32 s56, s56, {sWAVE}
        s_lshl_b32 s57, s56, 6
        s_add_u32 s57, s57, {FL_A}
        v_lshlrev_b32 v{t}, 3, v1
        v_add_u32 v{pa}, s57, v{t}
        v_lshlrev_b32 v{bi}, 4, v{hh}
        v_add_u32 v{bi}, {L_BIAS}, v{bi}
        ''')
        V.free('g1st')
    def bias_to_lds(self):
        p, V = self.p, self.V
        nv = V['nonce']; t = V.alloc('btl', 4, align=2)
        p(f'''
        v_lshlrev_b32 v{t}, 16, v{nv}
        v_and_b32 v{t+1}, 0xffff0000, v{nv}
        v_lshlrev_b32 v{t+2}, 3, v1
        v_add_u32 v{t+2}, {L_BIAS}, v{t+2}
        s_mov_b32 exec_lo, -1
        s_mov_b32 exec_hi, 0xffff
        ds_write_b64 v{t+2}, {vr(t,2)}
        s_mov_b64 exec, -1
        ''')
        V.free('btl')
    def bias_init(self, acc, blk):
        p = self.p
        for q in range(4): p(f'ds_read_b128 {vr(acc+4*q,4)}, v{self.V["bia"]} offset:{128*blk+32*q}')
    def w1_late_groups(self):
        p, V = self.p, self.V
        vo = V['w1off']
        def run(blk, rg0_expr, n):
            gs = []
            with p.capture() as b:
                p(rg0_expr)
                p(f'''
                s_mul_i32 s96, s98, {16*2752}
                s_lshl_b32 s97, {sFB0}, 6
                s_add_u32 s96, s96, s97
                s_add_u32 s96, s96, {64*blk}
                s_lshl_b32 s97, s98, 10
                s_add_u32 m0, s97, {L_W + W1B*blk}
                ''')
                p(f'buffer_load_dwordx4 v{vo}, {SW1}, s96 offen lds', tag='w1dma')
            gs.append(b)
            for k in range(1, n):
                with p.capture() as b:
                    if k % 4 == 0: p(f's_add_u32 s96, s96, {4*16*2752}\ns_add_u32 m0, m0, 4096')
                    p(f'buffer_load_dwordx4 v{vo+k%4}, {SW1}, s96 offen offset:{1024*(k%4)} lds', tag='w1dma')
                gs.append(b)
            return gs
        a = run(0, f's_lshl_b32 s98, {sWAVE}, 1\ns_add_u32 s98, s98, 24', 2)
        a += run(1, f's_lshl_b32 s98, {sWAVE}, 3', 8)
        with p.cond(lambda c: c['nblk'] == 3):
            b = run(2, f's_lshl_b32 s98, {sWAVE}, 3', 8)
        return a, b
    def kgen_setup(self):
        p, V = self.p, self.V
        pr = V['par']
        t = V.alloc('kt', 8, align=2)
        z = V.alloc('z', 2); Z = V.alloc('Z256', 2); C = V.alloc('Cn', 2)
        p(f'''
        s_lshl_b32 s53, {sLDT}, 16
        s_and_b32 s54, {sLDT}, 0xffff0000
        s_lshl_b32 s56, {sDSK}, 16
        s_and_b32 s55, {sDSK}, 0xffff0000
        s_cmp_eq_u32 {sCH}, 0
        s_cselect_b32 s53, s53, s54
        s_cselect_b32 {sDV}, s56, s55
        s_cmp_eq_u32 {sROLE}, 0
        s_cselect_b32 s57, 16, 0
        v_mov_b32 v{t}, s53
        v_mul_f32 v{t}, {f32(LOG2E)}, v{t}
        v_lshlrev_b32 v{t+1}, s57, v{pr}
        v_and_b32 v{t+1}, 0xffff0000, v{t+1}
        v_mul_f32 v{t+1}, {f32(LOG2E)}, v{t+1}
        v_exp_f32 v{t}, v{t}
        v_exp_f32 v{t+1}, v{t+1}
        v_and_b32 v{t+2}, 0x7fff7fff, v{pr+2}
        v_and_b32 v{t+3}, 0x7fff7fff, v{pr+3}
        v_pk_max_u16 v{t+2}, v{t+2}, v{t+3}
        v_cvt_pk_bf16_f32 v{t}, v{t}, v{t+1}
        v_lshrrev_b32 v{t+3}, 16, v{t+2}
        v_and_b32 v{t+2}, 0xffff, v{t+2}
        v_max_u32 v{t+2}, v{t+2}, v{t+3}
        v_and_b32 v{t+1}, 0xffff0000, v{t}
        v_lshlrev_b32 v{t}, 16, v{t}
        v_lshlrev_b32 v{pr+1}, s57, v{pr+1}
        v_lshlrev_b32 v{pr+2}, s57, v{pr+2}
        v_lshlrev_b32 v{pr+3}, s57, v{pr+3}
        ''')
        ctl = ['row_shr:1 row_mask:0xf bank_mask:0xf bound_ctrl:1', 'row_shr:2 row_mask:0xf bank_mask:0xf bound_ctrl:1',
               'row_shr:4 row_mask:0xf bank_mask:0xf bound_ctrl:1', 'row_shr:8 row_mask:0xf bank_mask:0xf bound_ctrl:1',
               'row_bcast:15 row_mask:0xa bank_mask:0xf', 'row_bcast:31 row_mask:0xc bank_mask:0xf']
        fill = [[f'v_mul_f32 v{t+3}, v{t+1}, v{t}', f'v_and_b32 v{t+4}, 0xffff0000, v{pr+1}'],
                [f'v_mul_f32 v{t+4}, v{t+4}, v{t}', f'v_mul_f32 v{t+3}, {f32(-LOG2E)}, v{t+3}'],
                [f'v_mul_f32 v{t+4}, {f32(1/(2*math.pi))}, v{t+4}', f'v_mul_f32 v{t+5}, {f32(256.0)}, v{t+3}'],
                [f'v_mul_f32 v{t+6}, {f32(256.0)}, v{t+4}', f'v_fract_f32 v{t+7}, v{t+4}'],
                [f'v_fract_f32 v{t+6}, v{t+6}', f'v_exp_f32 v{t+3}, v{t+3}'],
                [f'v_exp_f32 v{t+5}, v{t+5}', f'v_cos_f32 v{z}, v{t+7}']]
        for c, f in zip(ctl, fill):
            p(f'v_max_u32_dpp v{t+2}, v{t+2}, v{t+2} {c}')
            for x in f: p(x)
        p(f'''
        v_sin_f32 v{z+1}, v{t+7}
        v_readlane_b32 s52, v{t+2}, 63
        v_cos_f32 v{Z}, v{t+6}
        v_sin_f32 v{Z+1}, v{t+6}
        s_and_b32 s52, s52, 0x7f80
        s_lshl_b32 s52, s52, 16
        s_sub_u32 s53, 0x7f000000, s52
        v_and_b32 v{C}, 0xffff0000, v{pr+2}
        v_and_b32 v{C+1}, 0xffff0000, v{pr+3}
        v_mul_f32 v{t}, s52, v{t}
        v_mul_f32 v{C}, s53, v{C}
        v_mul_f32 v{C+1}, s53, v{C+1}
        v_add_f32 v{t}, v{t}, v{t}
        v_mul_f32 v{z}, v{z}, v{t+3}
        v_mul_f32 v{z+1}, v{z+1}, v{t+3}
        v_readfirstlane_b32 {sSIG}, v{t}
        v_mul_f32 v{Z}, v{Z}, v{t+5}
        v_mul_f32 v{Z+1}, v{Z+1}, v{t+5}
        ''')
        V.free('kt', 'par')
    def kgen_values(self):
        p, V = self.p, self.V
        z, Z, C, fa = V['z'], V['Z256'], V['Cn'], V['fa']
        cv = V.alloc('cv', 24)
        valu = []; stores = []; have = {}
        self._cvi = 0
        def emit(s):
            with p.capture() as b: p(s)
            valu.extend(b)
        def win(row):
            if row < 21: return fa + row // 4, (row % 4) * 68
            return fa + 6 + (row - 21) // 4, ((row - 21) % 4) * 68
        def partner(row):
            if row == 20: return None
            if row < 21: return row ^ 1
            return 21 + ((row - 21) ^ 1)
        def done(row, c):
            have[row] = c
            q = partner(row)
            if q is None:
                b_, o = win(row)
                with p.capture() as b: p(f'ds_write_b32 v{b_}, v{c} offset:{4*o}')
                stores.append((len(valu), b[0]))
            elif q in have:
                lo, hi = min(row, q), max(row, q)
                b_, o0 = win(lo); _, o1 = win(hi)
                with p.capture() as b: p(f'ds_write2_b32 v{b_}, v{have[lo]}, v{have[hi]} offset0:{o0} offset1:{o1}')
                stores.append((len(valu), b[0]))
        def put(row, r, neg=False):
            c = cv + (self._cvi % 24); self._cvi += 1
            emit(f'v_cvt_pk_f16_f32 v{c}, v{r}, {"-" if neg else ""}v{r+1}')
            done(row, c)
        def cm(items):
            for d, a, b in items: emit(f'v_pk_mul_f32 {vr(d,2)}, {vr(a,2)}, {vr(b,2)} op_sel:[0,0] op_sel_hi:[0,1]')
            for d, a, b in items: emit(f'v_pk_fma_f32 {vr(d,2)}, {vr(a,2)}, {vr(b,2)}, {vr(d,2)} op_sel:[1,1,0] op_sel_hi:[1,0,1] neg_lo:[1,0,0]')
        z2 = V.alloc('z2', 2); z4 = V.alloc('z4', 2); w = V.alloc('w', 2); w2 = V.alloc('w2', 2); w4 = V.alloc('w4', 2)
        ch = V.alloc('chains', 16, align=2)
        put(0, C)
        cm([(z2, z, z)])
        La, Lb, Ma, Mb = ch, ch + 2, ch + 4, ch + 6
        cm([(La, C, z), (Ma, C, Z), (z4, z2, z2)])
        put(1, La); put(8, Ma)
        cm([(Lb, La, z), (Mb, Ma, Z), (w, z4, z4), (ch + 8, Ma, z2)])
        put(2, Lb); put(12, Mb); put(9, ch + 8)
        cm([(La, Lb, z), (Ma, Mb, Z), (w2, w, w), (ch + 10, ch + 8, z2), (ch + 12, Mb, z4)])
        put(3, La); put(14, Ma); put(10, ch + 10); put(13, ch + 12)
        cm([(Lb, La, z), (Mb, Ma, Z), (w4, w2, w2), (ch + 8, ch + 10, z2), (ch + 12, Ma, z4), (ch + 14, w2, w)])
        put(4, Lb); put(16, Mb); put(11, ch + 8); put(15, ch + 12)
        c = cv + (self._cvi % 24); self._cvi += 1
        emit(f'v_mov_b32 v{c}, 0x3c00'); done(21, c)
        put(22, w, True); put(23, w2, True); put(24, ch + 14, True)
        cm([(La, Lb, z), (Ma, Mb, Z)]); put(5, La); put(17, Ma)
        cm([(Lb, La, z), (Mb, Ma, Z)]); put(6, Lb); put(18, Mb)
        cm([(La, Lb, z), (Ma, Mb, Z)]); put(7, La); put(19, Ma)
        cm([(Mb, Ma, Z)]); put(20, Mb)
        A_ = [ch, ch + 2, ch + 4, ch + 6]; B_ = [ch + 8, ch + 10, ch + 12, z]
        r3 = ch + 14
        cm([(A_[1], w, w4), (A_[2], w2, w4), (A_[3], r3, w4)])
        put(25, w4, True); put(26, A_[1], True); put(27, A_[2], True); put(28, A_[3], True)
        cur = [w4, A_[1], A_[2], A_[3]]; nxt = [B_, A_]
        for step in range(2, 8):
            nx = nxt[step & 1]
            cm([(nx[k], cur[k], w4) for k in range(4)])
            for k in range(4): put(21 + 4 * step + k, nx[k], True)
            cur = nx
        out = []; si = 0; last = -10
        gap = self.o.get('kgap', 5)
        for idx, ins in enumerate(valu):
            pend = [k for k in range(si, len(stores)) if stores[k][0] <= idx and (stores[k][1].uses & ins.defs)]
            if pend:
                while si <= pend[-1]: out.append(stores[si][1]); si += 1
                last = idx
            elif si < len(stores) and stores[si][0] <= idx and idx - last >= gap:
                out.append(stores[si][1]); si += 1; last = idx
            out.append(ins)
        while si < len(stores): out.append(stores[si][1]); si += 1
        return out
    def act_store(self, pk, blk):
        p = self.p
        p(f's_add_u32 s39, s35, {2048*blk}')
        p(f'buffer_store_dwordx4 {vr(pk,4)}, v{self.V["l16"]}, {SWS}, s39 offen sc1', tag='actst')
        p(f'buffer_store_dwordx4 {vr(pk+4,4)}, v{self.V["l16"]}, {SWS}, s39 offen offset:1024 sc1', tag='actst')
        if self.o.get('dbl'):
            p(f'buffer_store_dwordx4 {vr(pk,4)}, v{self.V["l16"]}, {SWS}, s39 offen', tag='actst2')
            p(f'buffer_store_dwordx4 {vr(pk+4,4)}, v{self.V["l16"]}, {SWS}, s39 offen offset:1024', tag='actst2')
    def xn_setup(self):
        p, A = self.p, self.A
        A.alloc('xnf', 128, align=4, at=0)
        p(f'''
        s_lshl_b32 s40, {sTT}, 2
        s_add_u32 s40, s40, {sWAVE}
        s_lshl_b32 s40, s40, 15
        s_add_u32 s40, s40, {WS_XNF}
        ''')
    def xn_load(self, ks):
        p = self.p
        xf = self.A['xnf']
        if ks % 4 == 0 and ks: p('s_add_u32 s40, s40, 4096')
        p(f'buffer_load_dwordx4 {vr(xf+4*ks,4,"a")}, v{self.V["l16"]}, {SWS}, s40 offen offset:{1024*(ks%4)} sc1')
    def gemm1(self):
        p, V, A = self.p, self.V, self.A
        xf = A['xnf']; wa = V['w1a']; xlead = self.o['xlead']
        acc = V.alloc('g1acc', 48, align=2); fr = V.alloc('g1fr', 32, align=2); tm = V.alloc('g1tm', 16, align=2); pk = V.alloc('g1pk', 16, align=2)
        p(f'''
        s_mov_b32 s34, {f32(LOG2E)}
        s_lshl_b32 s56, {sTT}, 2
        s_add_u32 s56, s56, {sWAVE}
        s_mul_i32 s35, s56, {86*1024}
        s_lshl_b32 s59, {sFB0}, 11
        s_add_u32 s35, s35, s59
        s_add_u32 s35, s35, {WS_ACT}
        ''')
        self.bias_init(acc, 0); self.bias_init(acc + 16, 1); self.bias_init(acc + 32, 2)
        def rd(ks, blk, slot):
            b = fr + 4 * slot; base = wa + (blk >> 1); o = ks * 1024 + W1B * (blk & 1)
            p(f'ds_read_b64_tr_b16 {vr(b,2)}, v{base} offset:{o}')
            p(f'ds_read_b64_tr_b16 {vr(b+2,2)}, v{base} offset:{o+256}')
        with p.capture() as main:
            for ks in range(2): rd(ks, 0, 2 * (ks % 4)); rd(ks, 1, 2 * (ks % 4) + 1)
            for ks in range(32):
                if ks + 2 < 32: rd(ks + 2, 0, 2 * ((ks + 2) % 4)); rd(ks + 2, 1, 2 * ((ks + 2) % 4) + 1)
                if ks + xlead < 32: self.xn_load(ks + xlead)
                p(f'v_mfma_f32_32x32x16_bf16 {vr(acc,16)}, {vr(fr+8*(ks%4),4)}, {vr(xf+4*ks,4,"a")}, {vr(acc,16)}')
                p(f'v_mfma_f32_32x32x16_bf16 {vr(acc+16,16)}, {vr(fr+8*(ks%4)+4,4)}, {vr(xf+4*ks,4,"a")}, {vr(acc+16,16)}')
        fill = self.cap(self.gemm_addr_setup)
        fill += self.cap(self.poll_issue, 'A2', V['us'] + 2, 64, 4)
        self.weave(main, fill, start=2)
        self.stamp('g1p1')
        self.poll_check('A2', V['us'] + 2, 64, 4)
        ud = V.alloc('ud', 8, align=2)
        p(f'''
        s_lshl_b32 s56, {sWAVE}, 19
        s_lshl_b32 s57, {sBETA}, 5
        s_add_u32 s56, s56, s57
        s_add_u32 s56, s56, {WS_UBLK}
        buffer_load_dwordx4 {vr(ud,4)}, v{V['us']}, {SWS}, s56 offen sc1
        buffer_load_dwordx4 {vr(ud+4,4)}, v{V['us']}, {SWS}, s56 offen offset:16 sc1
        s_barrier
        ''')
        self.fstamp('g1bar')
        self.w2_dma_setup()
        l2 = self.lab('g1n2'); l3 = self.lab('g1j')
        p(f's_cmp_eq_u32 {sNBLK}, 2\ns_cbranch_scc1 {l2}')
        import copy
        with p.cond(lambda c: c['nblk'] == 3):
            with p.capture() as main:
                for ks in range(3): rd(ks, 2, ks % 4)
                for ks in range(32):
                    if ks + 3 < 32: rd(ks + 3, 2, (ks + 3) % 4)
                    if ks % 2 == 0:
                        for i in self.cap(self.w2_dma, ks // 16, (ks // 2) % 8): p.ins.append(i)
                    p(f'v_mfma_f32_32x32x16_bf16 {vr(acc+32,16)}, {vr(fr+4*(ks%4),4)}, {vr(xf+4*ks,4,"a")}, {vr(acc+32,16)}')
            with p.capture() as fill:
                self.mish(acc, tm, pk, False); self.act_store(pk, 0)
                self.mish(acc + 16, tm, pk + 8, False); self.act_store(pk + 8, 1)
            self.weave(main, fill)
            self.fstamp('g1p2')
            p('s_barrier')
            m2 = self.cap(self.mish, acc + 32, tm, pk, True)
            p.merge(m2, [self.cap(self.w2_dma, 2, k) for k in range(8)])
            self.act_store(pk, 2)
        p(f's_branch {l3}\n{l2}:')
        with p.cond(lambda c: c['nblk'] == 2):
            m0_ = self.cap(self.mish, acc, tm, pk, True)
            p.merge(m0_, [self.cap(self.w2_dma, 0, k) for k in range(8)])
            self.act_store(pk, 0)
            p('s_barrier')
            m1_ = self.cap(self.mish, acc + 16, tm, pk + 8, True)
            p.merge(m1_, [self.cap(self.w2_dma, 1, k) for k in range(8)])
            self.act_store(pk + 8, 1)
            for k in range(8): self.w2_dma(2, k)
        p(f'{l3}:')
        self.fstamp('g1mish')
        us = V['us']
        p(f'ds_write_b128 v{us+1}, {vr(ud,4)}')
        p(f'ds_write_b128 v{us+1}, {vr(ud+4,4)} offset:{U_CH}')
        p.wait_tag('w2dma1')
        p('s_waitcnt lgkmcnt(0)\ns_barrier')
        V.free('g1acc', 'g1fr', 'g1tm', 'g1pk', 'bia', 'w1a', 'ud', 'us')
        A.free('xnf')
        lab = self.lab('nw')
        p(f's_or_b32 s52, {sBETA}, {sWAVE}\ns_cmp_lg_u32 s52, 0\ns_cbranch_scc1 {lab}')
        with p.cond(lambda c: c['w'] == 0):
            p('s_mov_b32 s101, 0')
            self.flag_store('s101', WS_FLG)
        p(f'{lab}:')
    def w2_dma_setup(self):
        p = self.p
        p(f'''
        s_mul_i32 s41, {sCH}, {43*16*1024}
        s_lshl_b32 s98, {sROLE}, 13
        s_add_u32 s41, s41, s98
        s_lshl_b32 s98, {sCG}, 7
        s_add_u32 s41, s41, s98
        s_lshl_b32 s42, {sCH}, 11
        s_lshl_b32 s98, {sROLE}, 10
        s_add_u32 s42, s42, s98
        ''')
    def w2_dma(self, r, k):
        p = self.p
        lo, hi = ROUNDS[r]
        sl = lo + k
        if sl >= hi: return
        p(f's_add_u32 m0, s42, {RREG[r] + 4096*k}')
        p(f's_add_u32 s97, s41, {sl*16*1024}')
        p(f'buffer_load_dwordx4 v{self.V["w2a"]}, {SW2}, s97 offen lds', tag=f'w2dma{r}')
    def w2reg(self, sl, c):
        if sl < 32: return vr(8 * sl + 4 * c, 4, 'a'), 8 * sl + 4 * c, 'a'
        b = self.V['w2v'] + 8 * (sl - 32) + 4 * c
        return vr(b, 4), b, 'v'
    def w2_read_list(self, r):
        p, V = self.p, self.V
        lo, hi = ROUNDS[r]
        out = []
        for sl in range(lo, hi):
            for c in range(2):
                _, b, k = self.w2reg(sl, c)
                base = V['w2a'] + 1 + c + (2 if RREG[r] >= 65536 else 0)
                o = RREG[r] - (65536 if RREG[r] >= 65536 else 0) + 4096 * (sl - lo)
                if RREG[r] == L_X: base = V['w2a'] + 5 + c; o = 4096 * (sl - lo)
                with p.capture() as bb:
                    p(f'ds_read_b64_tr_b16 {vr(b,2,k)}, v{base} offset:{o}')
                    p(f'ds_read_b64_tr_b16 {vr(b+2,2,k)}, v{base} offset:{o+1024}')
                out += bb
        return out
    def gemm_addr_setup(self):
        p, V = self.p, self.V
        n31, hh, l16 = V['n31'], V['hh'], V['l16']
        t = V.alloc('gst', 4, align=2)
        aA = V.alloc('cA', 3); aB = V.alloc('cB', 2)
        p(f'''
        v_and_b32 v{t}, 3, v1
        v_mul_u32_u24 v{t}, {KC_STR}, v{t}
        v_bfe_u32 v{t+1}, v1, 2, 3
        v_lshlrev_b32 v{t+1}, 3, v{t+1}
        v_sub_u32 v{t}, v{t}, v{t+1}
        v_lshlrev_b32 v{t+3}, 4, v{hh}
        v_add_u32 v{t}, v{t}, v{t+3}
        s_mul_i32 s58, {sCH}, {4*KC_STR}
        s_add_u32 s58, s58, {L_KC + 2*X0}
        s_lshl_b32 s59, {sROLE}, 10
        s_sub_u32 s59, s58, s59
        s_sub_u32 s59, s59, 1024
        v_add_u32 v{aA}, s59, v{t}
        v_subrev_u32 v{aA+1}, 2048, v{aA}
        s_lshl_b32 s59, {sROLE}, 5
        s_sub_u32 s59, s58, s59
        s_add_u32 s59, s59, 32
        v_add_u32 v{aA+2}, s59, v{t}
        v_mul_u32_u24 v{t}, 80, v{n31}
        v_add_u32 v{t+1}, v{t}, v{t+3}
        s_mul_i32 s58, {sCH}, {U_CH}
        s_add_u32 s58, s58, {L_U}
        s_mul_i32 s59, {sROLE}, {80*16}
        s_sub_u32 s59, s58, s59
        s_add_u32 s59, s59, {80*16}
        v_add_u32 v{aB}, s59, v{t+1}
        s_lshl_b32 s59, {sROLE}, 5
        s_sub_u32 s59, s58, s59
        s_add_u32 s59, s59, {80*32+32}
        v_add_u32 v{aB+1}, s59, v{t+1}
        ''')
        ce = V.alloc('ce', 6)
        p(f'''
        s_lshl_b32 s59, {sWAVE}, 12
        s_add_u32 s59, s59, {L_KC}
        v_add_u32 v{ce}, s59, v{l16}
        s_xor_b32 s59, {sWAVE}, 1
        s_lshl_b32 s59, s59, 12
        s_add_u32 s59, s59, {L_KC}
        v_add_u32 v{ce+1}, s59, v{l16}
        v_lshlrev_b32 v{t+3}, 3, v{hh}
        v_add_u32 v{t}, v{t}, v{t+3}
        s_mul_i32 s59, {sROLE}, 2560
        s_add_u32 s59, s59, s58
        s_add_u32 s59, s59, 2560
        v_add_u32 v{ce+2}, s59, v{t}
        v_lshlrev_b32 v{t}, 6, v{n31}
        v_add_u32 v{t}, v{t}, v{t+3}
        s_lshl_b32 s59, {sWAVE}, 11
        s_add_u32 s59, s59, {L_KC + 16384}
        v_add_u32 v{ce+3}, s59, v{t}
        v_bfe_u32 v{ce+4}, v1, 1, 2
        v_lshlrev_b32 v{ce+4}, 4, v{ce+4}
        v_lshrrev_b32 v{t}, 2, v1
        v_bfe_u32 v{t+1}, v1, 3, 2
        v_and_b32 v{t+3}, 3, v1
        v_xor_b32 v{t+1}, v{t+1}, v{t+3}
        v_lshlrev_b32 v{t+1}, 4, v{t+1}
        v_lshlrev_b32 v{t}, 6, v{t}
        v_add_u32 v{t}, v{t}, v{t+1}
        v_add_u32 v{ce+5}, s59, v{t}
        ''')
        us = V.alloc('us', 3)
        p(f'''
        v_lshlrev_b32 v{us}, 13, v1
        s_lshl_b32 s59, {sWAVE}, 6
        s_add_u32 s59, s59, 128
        v_add_u32 v{t}, s59, v1
        v_lshrrev_b32 v{t+1}, 2, v{t}
        v_mul_u32_u24 v{t+1}, 80, v{t+1}
        v_and_b32 v{t}, 3, v{t}
        v_lshlrev_b32 v{t}, 4, v{t}
        v_add_u32 v{t}, v{t}, v{t+1}
        v_add_u32 v{us+1}, {L_U}, v{t}
        s_lshl_b32 s59, {sWAVE}, 10
        s_add_u32 s59, s59, {FL_A}
        v_add_u32 v{us+2}, s59, v{l16}
        ''')
        w2 = V.alloc('w2a', 7)
        p(f'''
        v_lshrrev_b32 v{t}, 3, v1
        v_bfe_u32 v{t+1}, v1, 4, 1
        v_lshlrev_b32 v{t+1}, 2, v{t+1}
        v_and_b32 v{t+2}, 7, v1
        v_xor_b32 v{t+1}, v{t+1}, v{t+2}
        v_lshlrev_b32 v{t+1}, 4, v{t+1}
        v_lshlrev_b32 v{t}, 10, v{t}
        v_add_u32 v{w2}, v{t}, v{t+1}
        v_lshlrev_b32 v{t}, 2, v{hh}
        v_bfe_u32 v{t+1}, v1, 2, 2
        v_add_u32 v{t}, v{t}, v{t+1}
        v_lshlrev_b32 v{t}, 7, v{t}
        v_bfe_u32 v{t+1}, v1, 4, 1
        v_lshlrev_b32 v{t+1}, 5, v{t+1}
        v_add_u32 v{t}, v{t}, v{t+1}
        v_and_b32 v{t+1}, 3, v1
        v_lshlrev_b32 v{t+1}, 3, v{t+1}
        v_add_u32 v{t}, v{t}, v{t+1}
        s_lshl_b32 s59, {sCH}, 11
        v_add_u32 v{t}, s59, v{t}
        v_bfe_u32 v{t+1}, v1, 3, 1
        v_lshlrev_b32 v{t+1}, 6, v{t+1}
        v_add_u32 v{w2+1}, v{t}, v{t+1}
        v_xor_b32 v{t+1}, 64, v{t+1}
        v_add_u32 v{w2+2}, v{t}, v{t+1}
        v_add_u32 v{w2+3}, 0x10000, v{w2+1}
        v_add_u32 v{w2+4}, 0x10000, v{w2+2}
        v_add_u32 v{w2+5}, {L_X}, v{w2+1}
        v_add_u32 v{w2+6}, {L_X}, v{w2+2}
        ''')
        g2 = V.alloc('g2a', 8)
        p(f'''
        s_lshr_b32 s58, {sTG}, 1
        s_lshl_b32 s58, s58, 2
        s_and_b32 s59, {sTG}, 1
        s_lshl_b32 s59, s59, 1
        s_add_u32 s58, s58, s59
        s_add_u32 s58, s58, {sROLE}
        s_lshl_b32 s58, s58, 7
        s_add_u32 s58, s58, {FL_B}
        v_lshlrev_b32 v{t}, 3, v1
        v_add_u32 v{g2}, s58, v{t}
        s_lshr_b32 s58, {sTG}, 4
        s_lshl_b32 s58, s58, 9
        s_lshl_b32 s59, {sCG}, 6
        s_add_u32 s58, s58, s59
        s_lshl_b32 s58, s58, 3
        s_add_u32 s58, s58, {FL_C}
        v_add_u32 v{g2+1}, s58, v{t}
        s_lshl_b32 s58, {sWAVE}, 12
        v_add_u32 v{g2+2}, s58, v{l16}
        s_xor_b32 s58, {sWAVE}, 2
        s_lshl_b32 s58, s58, 12
        v_add_u32 v{g2+3}, s58, v{l16}
        v_lshrrev_b32 v{t}, 3, v0
        v_and_b32 v{t+1}, 7, v0
        v_lshlrev_b32 v{t+1}, 4, v{t+1}
        v_lshlrev_b32 v{g2+4}, 12, v{t}
        v_add_u32 v{g2+4}, v{g2+4}, v{t+1}
        v_mul_u32_u24 v{g2+5}, {ST_STR}, v{t}
        v_add_u32 v{g2+5}, v{g2+5}, v{t+1}
        v_add_u32 v{g2+5}, {ST3_L}, v{g2+5}
        v_lshlrev_b32 v{t}, 2, v{hh}
        v_bfe_u32 v{t+1}, v1, 2, 2
        v_add_u32 v{t}, v{t}, v{t+1}
        s_lshl_b32 s58, {sCH}, 5
        v_add_u32 v{t}, s58, v{t}
        v_mul_u32_u24 v{t}, {ST_STR}, v{t}
        v_bfe_u32 v{t+1}, v1, 4, 1
        v_lshlrev_b32 v{t+1}, 5, v{t+1}
        v_add_u32 v{t}, v{t}, v{t+1}
        v_and_b32 v{t+1}, 3, v1
        v_lshlrev_b32 v{t+1}, 3, v{t+1}
        v_add_u32 v{t}, v{t}, v{t+1}
        s_lshl_b32 s58, {sROLE}, 6
        s_add_u32 s58, s58, {ST3_L}
        v_add_u32 v{g2+6}, s58, v{t}
        v_lshlrev_b32 v{t}, 10, v{n31}
        v_lshlrev_b32 v{t+1}, 3, v{hh}
        v_add_u32 v{g2+7}, v{t}, v{t+1}
        ''')
        V.free('gst')
    def conv(self):
        p, V, A = self.p, self.V, self.A
        A.alloc('w2f', 256, align=4, at=0)
        V.alloc('w2v', 88, align=2)
        aA, aB, ce = V['cA'], V['cB'], V['ce']
        acc = V.alloc('cacc', 32, align=2); fr = V.alloc('cfr', 32, align=2)
        a0, a1 = acc, acc + 16
        def rd(i):
            b = fr + 16 * (i & 1)
            oa = 32 * (31 - i); ob = 80 * (15 - i // 2) + (32 if i % 2 == 0 else 0)
            p(f'ds_read_b64 {vr(b,2)}, v{aA} offset:{oa}')
            p(f'ds_read_b64 {vr(b+2,2)}, v{aA} offset:{oa+8}')
            p(f'ds_read_b128 {vr(b+8,4)}, v{aB} offset:{ob}')
            p(f'ds_read_b128 {vr(b+12,4)}, v{aB} offset:{ob+2560}')
            p(f'ds_read_b64 {vr(b+4,2)}, v{aA+1} offset:{oa}')
            p(f'ds_read_b64 {vr(b+6,2)}, v{aA+1} offset:{oa+8}')
        def group(i, dma=None):
            if i + 1 < 32: rd(i + 1)
            if dma: self.w2_dma(*dma)
            b = fr + 16 * (i & 1)
            p(f'v_mfma_f32_32x32x16_f16 {vr(a0,16)}, {vr(b,4)}, {vr(b+8,4)}, {vr(a0,16)}')
            p(f'v_mfma_f32_32x32x16_f16 {vr(a1,16)}, {vr(b,4)}, {vr(b+12,4)}, {vr(a1,16)}')
            p(f'v_mfma_f32_32x32x16_f16 {vr(a1,16)}, {vr(b+4,4)}, {vr(b+8,4)}, {vr(a1,16)}')
        b = fr + 16
        p(f'ds_read_b64 {vr(b,2)}, v{aA+2}')
        p(f'ds_read_b64 {vr(b+2,2)}, v{aA+2} offset:8')
        p(f'ds_read_b128 {vr(b+8,4)}, v{aB+1}')
        p(f'ds_read_b128 {vr(b+12,4)}, v{aB+1} offset:2560')
        rd(0)
        p(f'v_mfma_f32_32x32x16_f16 {vr(a0,16)}, {vr(b,4)}, {vr(b+8,4)}, 0')
        p(f'v_mfma_f32_32x32x16_f16 {vr(a1,16)}, {vr(b,4)}, {vr(b+12,4)}, 0')
        G1, G2 = self.o.get('G1', 10), 14
        rl = self.w2_read_list(0) + self.w2_read_list(1)
        main = self.cap(lambda: [group(i, (5, i) if i < 3 else None) for i in range(G1)])
        n1 = len(rl) * G1 // G2
        self.weave(main, rl[:n1])
        self.fstamp('cG1')
        self.act_flag()
        self.fstamp('cflag')
        main = self.cap(lambda: [group(i) for i in range(G1, G2)])
        self.weave(main, rl[n1:])
        p('s_waitcnt lgkmcnt(0)\ns_barrier')
        self.fstamp('cG2')
        dq = [(3, k) for k in range(8)] + [(4, k) for k in range(8)]
        for i in range(G2, 32): group(i, dq[i - G2] if i - G2 < len(dq) else None)
        V.free('cfr', 'cA', 'cB')
        self.stamp('convmm')
        self.poll_issue('B', V['g2a'], 16, 1)
        p.wait_tag('w2dma4'); p('s_barrier')
        ex = V.alloc('cex', 16, align=2); uu = V.alloc('cuu', 8, align=2); t = V.alloc('cvt', 2)
        l0 = self.lab('cr0'); l1 = self.lab('cr1')
        p(f's_cmp_eq_u32 {sROLE}, 0\ns_cbranch_scc0 {l0}')
        with p.cond(lambda c: c['w'] % 2 == 0):
            for q in range(4): p(f'ds_write_b128 v{ce}, {vr(a1+4*q,4)} offset:{1024*q}')
        p(f's_branch {l1}\n{l0}:')
        with p.cond(lambda c: c['w'] % 2 == 1):
            for q in range(4):
                p(f'ds_write_b128 v{ce}, {vr(a0+4*q,4)} offset:{1024*q}')
                if q:
                    for r in range(4 * (q - 1), 4 * q): p(f'v_mov_b32 v{a0+r}, v{a1+r}')
            for r in range(12, 16): p(f'v_mov_b32 v{a0+r}, v{a1+r}')
        p(f'{l1}:')
        for q in range(4): p(f'ds_read_b64 {vr(uu+2*q,2)}, v{ce+2} offset:{16*q}')
        self.poll_check('B', V['g2a'], 16, 1)
        self.stamp('pollB')
        self.act_setup()
        for sl in range(4): self.act_load(sl)
        p('s_waitcnt lgkmcnt(0)\ns_barrier')
        for q in range(4): p(f'ds_read_b128 {vr(ex+4*q,4)}, v{ce+1} offset:{1024*q}')
        al = [self.cap(self.act_load, sl) for sl in range(4, self.o['alead'])]
        with p.capture() as epi:
            for r in range(16): p(f'v_add_f32 v{a0+r}, v{a0+r}, v{ex+r}')
            for r in range(16): p(f'v_mul_f32 v{a0+r}, {sSIG}, v{a0+r}')
            for r in range(16):
                p(f'v_fma_mix_f32 v{a0+r}, v{uu+r//2}, {sDV}, v{a0+r} op_sel:[{r&1},0,0] op_sel_hi:[1,0,0]')
            for r in range(8): p(f'v_cvt_pk_bf16_f32 v{ex+r}, v{a0+2*r}, v{a0+2*r+1}')
            for q in range(4):
                p(f'v_xor_b32 v{t}, {16*q}, v{ce+4}')
                p(f'v_add_u32 v{t}, v{t}, v{ce+3}')
                p(f'ds_write_b64 v{t}, {vr(ex+2*q,2)}')
            p(f'ds_read_b128 {vr(ex+8,4)}, v{ce+5}')
            p(f'ds_read_b128 {vr(ex+12,4)}, v{ce+5} offset:1024')
            p(f'''
            s_lshl_b32 s58, {sBETA}, 1
            s_add_u32 s58, s58, {sCH}
            s_lshl_b32 s58, s58, 12
            s_lshl_b32 s59, {sROLE}, 11
            s_add_u32 s58, s58, s59
            s_add_u32 s58, s58, {WS_ST}
            ''')
            p(f'buffer_store_dwordx4 {vr(ex+8,4)}, v{V["l16"]}, {SWS}, s58 offen sc1', tag='stst')
            p(f'buffer_store_dwordx4 {vr(ex+12,4)}, v{V["l16"]}, {SWS}, s58 offen offset:1024 sc1', tag='stst')
        p.merge(epi, al, 0, len(epi) - 12)
        V.free('cvt', 'cacc', 'cex', 'cuu', 'ce')
    def act_setup(self):
        p, V = self.p, self.V
        V.alloc('ring', 4 * NRING, align=2)
        p(f'''
        s_lshl_b32 s43, {sTG}, 1
        s_add_u32 s43, s43, {sROLE}
        s_mul_i32 s43, s43, {86*1024}
        s_mul_i32 s98, {sCH}, {43*1024}
        s_add_u32 s43, s43, s98
        s_add_u32 s43, s43, {WS_ACT}
        ''')
    def act_load(self, sl):
        p, V = self.p, self.V
        if sl % 4 == 0 and sl: p('s_add_u32 s43, s43, 4096')
        b = V['ring'] + 4 * (sl % NRING)
        p(f'buffer_load_dwordx4 {vr(b,4)}, v{V["l16"]}, {SWS}, s43 offen offset:{1024*(sl%4)} sc1')
    def gemm2(self):
        p, V, A = self.p, self.V, self.A
        g2 = V['g2a']; lead = self.o['alead']; ring = V['ring']
        acc = V.alloc('g2acc', 32, align=2)
        xd = V.alloc('g2xd', 8, align=2); sd = V.alloc('g2sd', 8, align=2)
        rl = []
        for r in (2, 3, 4, 5): rl += self.w2_read_list(r)
        def extra(sl):
            if sl in (8, 16, 24, 32, 38): self.fstamp(f'g2s{sl}')
            if sl == 8: self.st_flag()
            if sl == 12:
                p(f'''
                s_lshl_b32 s56, {sTG}, 16
                s_lshl_b32 s57, {sROLE}, 15
                s_add_u32 s56, s56, s57
                s_lshl_b32 s57, {sCG}, 7
                s_add_u32 s56, s56, s57
                s_lshl_b32 s57, {sCH}, 6
                s_add_u32 s39, s56, s57
                ''')
                for q in range(4): p(f'buffer_load_dwordx2 {vr(xd+2*q,2)}, v{g2+7}, {SX}, s39 offen offset:{16*q}')
            if sl == 33: self.poll_issue('C', g2 + 1, 64, 1)
            if sl == 38:
                self.poll_check('C', g2 + 1, 64, 1)
                p(f'''
                s_lshl_b32 s56, {sCG}, 18
                s_lshl_b32 s57, {sTG}, 7
                s_add_u32 s56, s56, s57
                s_add_u32 s56, s56, {WS_ST}
                s_add_u32 s57, s56, {32*4096}
                buffer_load_dwordx4 {vr(sd,4)}, v{g2+4}, {SWS}, s56 offen sc1
                buffer_load_dwordx4 {vr(sd+4,4)}, v{g2+4}, {SWS}, s57 offen sc1
                ''')
        k = 0
        per = 6
        for sl in range(43):
            extra(sl)
            if sl + lead < 43: self.act_load(sl + lead)
            b = ring + 4 * (sl % NRING)
            c0 = '0' if sl == 0 else vr(acc, 16); c1 = '0' if sl == 0 else vr(acc + 16, 16)
            p(f'v_mfma_f32_32x32x16_bf16 {vr(acc,16)}, {self.w2reg(sl,0)[0]}, {vr(b,4)}, {c0}')
            for _ in range(per // 2):
                if k < len(rl): p.ins.append(rl[k]); k += 1
            p(f'v_mfma_f32_32x32x16_bf16 {vr(acc+16,16)}, {self.w2reg(sl,1)[0]}, {vr(b,4)}, {c1}')
            for _ in range(per // 2):
                if k < len(rl): p.ins.append(rl[k]); k += 1
        assert k == len(rl)
        V.free('ring', 'w2v', 'w2a'); A.free('w2f')
        self.stamp('g2mm')
        p(f'ds_write_b128 v{g2+5}, {vr(sd,4)}')
        p(f'ds_write_b128 v{g2+5}, {vr(sd+4,4)} offset:{32*ST_STR}')
        ex = V.alloc('g2ex', 16, align=2)
        l0 = self.lab('g20'); l1 = self.lab('g21')
        p('s_barrier')
        p(f's_cmp_eq_u32 {sCH}, 0\ns_cbranch_scc0 {l0}')
        with p.cond(lambda c: c['w'] < 2):
            for q in range(4): p(f'ds_write_b128 v{g2+2}, {vr(acc+16+4*q,4)} offset:{1024*q}')
        p(f's_branch {l1}\n{l0}:')
        with p.cond(lambda c: c['w'] >= 2):
            for q in range(4):
                p(f'ds_write_b128 v{g2+2}, {vr(acc+4*q,4)} offset:{1024*q}')
                if q:
                    for r in range(4 * (q - 1), 4 * q): p(f'v_mov_b32 v{acc+r}, v{acc+16+r}')
            for r in range(12, 16): p(f'v_mov_b32 v{acc+r}, v{acc+16+r}')
        p(f'{l1}:')
        p('s_waitcnt lgkmcnt(0)\ns_barrier')
        for q in range(4): p(f'ds_read_b128 {vr(ex+4*q,4)}, v{g2+3} offset:{1024*q}')
        for q in range(4): p(f'ds_read_b64_tr_b16 {vr(sd+2*q,2)}, v{g2+6} offset:{8*q*ST_STR}')
        p(f's_mov_b32 s34, {f32(-LOG2E)}')
        for r in range(0, 16, 2): p(f'v_pk_add_f32 {vr(acc+r,2)}, {vr(acc+r,2)}, {vr(ex+r,2)}')
        for r in range(0, 16, 2): p(f'v_pk_mul_f32 {vr(ex+r,2)}, {vr(acc+r,2)}, s[34:35] op_sel_hi:[1,0]')
        for r in range(16): p(f'v_exp_f32 v{ex+r}, v{ex+r}')
        for r in range(0, 16, 2): p(f'v_pk_add_f32 {vr(ex+r,2)}, {vr(ex+r,2)}, 1.0 op_sel_hi:[1,0]')
        for r in range(16): p(f'v_rcp_f32 v{ex+r}, v{ex+r}')
        for r in range(0, 16, 2): p(f'v_pk_mul_f32 {vr(acc+r,2)}, {vr(acc+r,2)}, {vr(ex+r,2)}')
        for r in range(16):
            if r % 2 == 0: p(f'v_lshlrev_b32 v{ex+r}, 16, v{sd+r//2}')
            else: p(f'v_and_b32 v{ex+r}, 0xffff0000, v{sd+r//2}')
        for r in range(0, 16, 2): p(f'v_pk_mul_f32 {vr(acc+r,2)}, {vr(acc+r,2)}, {vr(ex+r,2)}')
        for r in range(8): p(f'v_cvt_pk_bf16_f32 v{sd+r}, v{acc+2*r}, v{acc+2*r+1}')
        for r in range(8):
            p(f'v_lshlrev_b32 v{ex}, 16, v{sd+r}')
            p(f'v_and_b32 v{ex+1}, 0xffff0000, v{sd+r}')
            p(f'v_lshlrev_b32 v{ex+2}, 16, v{xd+r}')
            p(f'v_and_b32 v{ex+3}, 0xffff0000, v{xd+r}')
            p(f'v_pk_add_f32 {vr(ex,2)}, {vr(ex,2)}, {vr(ex+2,2)}')
            p(f'v_cvt_pk_bf16_f32 v{xd+r}, v{ex}, v{ex+1}')
            if r % 2 == 1:
                q = r // 2
                p(f'buffer_store_dwordx2 {vr(xd+2*q,2)}, v{g2+7}, {SOUT}, s39 offen offset:{16*q}')
        V.free('g2acc', 'g2ex', 'g2sd', 'g2xd', 'g2a')
    def ln_hook(self):
        p = self.p
        lab = self.lab('bl')
        p(f's_cmp_lg_u32 {sWAVE}, 1\ns_cbranch_scc1 {lab}')
        with p.cond(lambda c: c['w'] == 1): self.bias_to_lds()
        p(f'{lab}:')
    def build(self):
        p, V = self.p, self.V
        self.entry()
        self.idle_setup()
        self.gemm1_addr_setup()
        self.stamp('idle')
        self.ln()
        self.stamp('lnst')
        ga, gb = self.w1_late_groups()
        ks = self.cap(self.kgen_setup)
        p.merge(ks, ga[:3])
        p('s_barrier')
        self.stamp('ksetup')
        main = self.kgen_values()
        n1 = len(main) // 2
        p.merge(main[:n1], ga[3:7])
        self.ln_flag()
        p.merge(main[n1:], ga[7:])
        V.free('z', 'Z256', 'Cn', 'z2', 'z4', 'w', 'w2', 'w4', 'chains', 'cv', 'fa')
        self.stamp('kvals')
        lab = self.lab('w1b2')
        self.poll_issue('A1', V['pA1'], 8, 1)
        p('s_waitcnt lgkmcnt(0)\ns_barrier')
        km = self.cap(self.kgen_mfma)
        p.ins.extend(km)
        self.poll_check('A1', V['pA1'], 8, 1)
        V.free('pA1')
        self.stamp('pollA1')
        self.xn_setup()
        p(f's_cmp_eq_u32 {sNBLK}, 2\ns_cbranch_scc1 {lab}')
        for g_ in gb[:4]: p.ins.extend(g_)
        p(f'{lab}:')
        p('s_waitcnt lgkmcnt(0)\ns_barrier')
        if 'table' in self.dump: self.dump_lds(L_T, 2 * T_CH, WS_DBG + 0x100000)
        ex = self.cap(self.expand)
        grp = [self.cap(self.xn_load, k) for k in range(self.o['xlead'])]
        ncommon = next(k for k, i in enumerate(ex) if i.kind == 'branch')
        p.merge(ex[:ncommon - 1], grp)
        p.ins.extend(ex[ncommon - 1:])
        lab = self.lab('w1b2b')
        p(f's_cmp_eq_u32 {sNBLK}, 2\ns_cbranch_scc1 {lab}')
        for g_ in gb[4:]: p.ins.extend(g_)
        p(f'{lab}:')
        V.free('w1off')
        p('s_waitcnt lgkmcnt(0)\ns_barrier')
        self.stamp('expand')
        if 'kc' in self.dump: self.dump_lds(L_KC, 8 * KC_STR, WS_DBG + 0x400000)
        self.gemm1()
        self.stamp('gemm1')
        self.conv()
        self.stamp('conv')
        self.gemm2()
        self.stamp('end')
        self.finish()
        return self.finalize()
    def finalize(self):
        p = self.p
        drop = self.o.get('drop', 0)
        if drop:
            def keep(i):
                t = i.tag or ''
                if i.kind == 'dma' and ((drop & 1 and t.startswith('w1dma')) or (drop & 2 and t.startswith('xdma')) or (drop & 4 and t.startswith('w2dma'))): return False
                return True
            p.ins = [i for i in p.ins if keep(i)]
        body = p.render().rstrip('\n').split('\n')
        if self.o['pads']:
            wi = [l.strip() for l in body].index(';WARM')
            tmp = body[:wi] + body[wi + 1:]
            tmp, padl = PADS.add_page_pads(tmp, 'L_main', 'L_warm_ret')
            wi = tmp.index('L_warm_ret:')
            warm = []
            for w in range(min(4, len(padl))):
                warm += [f'    s_cmp_eq_u32 {sWAVE}, {w}', f'    s_cbranch_scc1 {padl[w]}']
            body = tmp[:wi] + warm + tmp[wi:]
            self.npads = len(padl)
        names = ''.join(f'; stamp {n}\n' for n in self.stamp_names)
        hdr = f'''; S4D conv + mish MLP gated block, single persistent launch (generated by gen/kern3.py)
; @launch grid=(256,1,1) block=(256,1,1) lds={LDS_BYTES}
{names}.amdgcn_target "amdgcn-amd-amdhsa--gfx950"
.text
.globl {NAME}
.p2align 8
.type {NAME},@function
{NAME}:
'''
        tail = f'''
.section .rodata,"a"
.p2align 6
.amdhsa_kernel {NAME}
  .amdhsa_next_free_vgpr 512
  .amdhsa_next_free_sgpr 102
  .amdhsa_accum_offset 256
  .amdhsa_group_segment_fixed_size 0
  .amdhsa_kernarg_size 112
  .amdhsa_user_sgpr_count 2
  .amdhsa_user_sgpr_kernarg_segment_ptr 1
  .amdhsa_system_sgpr_workgroup_id_x 1
  .amdhsa_ieee_mode 0
  .amdhsa_dx10_clamp 0
.end_amdhsa_kernel
'''
        return hdr + '\n'.join(body) + '\n' + tail


def main(cls=Gen3):
    import argparse
    ap = argparse.ArgumentParser()
    ap.add_argument('-o', default='k.s')
    ap.add_argument('--stamps', action='store_true')
    ap.add_argument('--dump', default=None)
    ap.add_argument('--dbg', default=None)
    ap.add_argument('--opt', default='')
    a = ap.parse_args()
    opts = {}
    for kv in a.opt.split(','):
        if kv:
            k, v = kv.split('='); opts[k] = int(v)
    g = cls(stamps=a.stamps, dump=set(a.dump.split(',')) if a.dump else None, dbgstamps=a.dbg.split(',') if a.dbg else None, opts=opts)
    s = g.build()
    open(a.o, 'w').write(s)
    print('vgpr hi', g.V.hi, 'agpr hi', g.A.hi, 'lines', s.count('\n'), 'pads', getattr(g, 'npads', 0))
if __name__ == '__main__':
    main()
```

```python
import sys, math
from regs import vr
import kern2, kern3
from kern2 import *
from kern3 import *
import pads as PADS

WS_STAT = WS_FLG + 0x8000
L_XS = L_W + 2 * W1B
L_SP = L_X
L_BIAS16 = L_MISC + 64

class Gen4(kern3.Gen3):
    def entry(self):
        p, V = self.p, self.V
        for nm, cnt in (('l16', 1), ('n31', 1), ('hh', 1), ('cA', 3), ('cB', 2), ('ce', 6), ('us', 3), ('w2a', 7), ('g2a', 8)): V.prealloc(nm, cnt, align=1)
        x0 = V.alloc('x0', 4); x1 = V.alloc('x1', 4)
        l16 = V.alloc('l16'); t = V.alloc('t0'); t2 = V.alloc('t1')
        if self.stamps: p('s_memrealtime s[98:99]')
        p(f'''
        s_load_dwordx16 s[64:79], s[0:1], 0
        s_load_dwordx8 s[80:87], s[0:1], 64
        s_load_dwordx4 s[88:91], s[0:1], 96
        s_cmp_ge_u32 s2, 256
        s_cbranch_scc1 L_end
        v_and_b32 v1, 63, v0
        v_lshrrev_b32 v2, 6, v0
        s_and_b32 s52, s2, 7
        s_lshr_b32 s53, s2, 3
        v_readfirstlane_b32 {sWAVE}, v2
        s_lshl_b32 {sBETA}, s52, 5
        s_add_u32 {sBETA}, {sBETA}, s53
        v_lshlrev_b32 v{l16}, 4, v1
        s_lshl_b32 s52, {sBETA}, 3
        s_lshl_b32 s53, {sWAVE}, 1
        s_add_u32 s52, s52, s53
        s_lshl_b32 s52, s52, 10
        s_mov_b32 s10, 0x200000
        s_mov_b32 s11, 0x20000
        s_lshr_b32 {sCH}, {sWAVE}, 1
        s_and_b32 {sROLE}, {sWAVE}, 1
        s_lshl_b32 s54, {sBETA}, 1
        s_add_u32 s54, s54, {sCH}
        s_lshl_b32 s54, s54, 8
        v_lshlrev_b32 v{t2}, 2, v1
        v_add_u32 v{t}, s54, v{t2}
        s_lshl_b32 s58, {sBETA}, 2
        s_and_b32 s54, {sBETA}, 15
        s_mul_i32 {sFB0}, s54, 3
        s_lshl_b32 s55, s54, 1
        s_add_u32 s55, s55, 11
        s_cmp_lt_u32 s54, 11
        s_cselect_b32 {sFB0}, {sFB0}, s55
        s_cselect_b32 {sNBLK}, 3, 2
        s_lshr_b32 {sTT}, {sBETA}, 4
        s_waitcnt lgkmcnt(0)
        s_mov_b32 s8, s64
        s_mov_b32 s9, s65
        ''')
        if self.stamps: p('s_mov_b32 s36, s98')
        p(f'buffer_load_dwordx4 {vr(x0,4)}, v{l16}, {SX}, s52 offen')
        p(f'buffer_load_dwordx4 {vr(x1,4)}, v{l16}, {SX}, s52 offen offset:1024')
        pr = V.alloc('par', 4); nv = V.alloc('nonce'); bv = V.alloc('biasv', 2, align=1)
        p(f'''
        global_load_dword v{pr}, v{t}, {pLOGA}
        global_load_dword v{pr+1}, v{t}, {pAIM}
        global_load_dword v{pr+2}, v{t}, {pCRE}
        global_load_dword v{pr+3}, v{t}, {pCIM}
        s_load_dword {sLDT}, {pLOGDT}, s58
        s_load_dword {sDSK}, {pDSK}, s58
        s_mov_b32 s20, s90
        s_mov_b32 s21, s91
        s_mov_b32 s22, {WS_BYTES}
        s_mov_b32 s23, 0x20000
        v_mov_b32 v{t}, {WS_FLG}
        buffer_load_dword v{nv}, v{t}, {SWS}, 0 offen sc1
        s_mov_b32 s28, s82
        s_mov_b32 s29, s83
        s_mov_b32 s30, {1376*2}
        s_mov_b32 s31, 0x20000
        ''')
        xv = V.alloc('xv', 4)
        p(f'''
        v_lshrrev_b32 v{t}, 3, v1
        v_lshlrev_b32 v{t}, 10, v{t}
        v_lshrrev_b32 v{xv}, 4, v1
        v_and_b32 v{xv+1}, 7, v1
        v_xor_b32 v{xv}, v{xv}, v{xv+1}
        v_lshlrev_b32 v{xv}, 4, v{xv}
        v_add_u32 v{xv}, v{xv}, v{t}
        v_xor_b32 v{xv+1}, 64, v{xv}
        v_add_u32 v{xv+1}, {8192-1024}, v{xv+1}
        v_add_u32 v{xv+2}, {2*(8192-1024)}, v{xv}
        v_add_u32 v{xv+3}, {2*(8192-1024)}, v{xv+1}
        s_lshl_b32 s40, {sTT}, 2
        s_add_u32 s40, s40, {sWAVE}
        s_lshl_b32 s40, s40, 15
        s_lshl_b32 s41, {sWAVE}, 13
        s_add_u32 s41, s41, {L_XS}
        ''')
        vo = V.alloc('w1off', 4)
        p(f'''
        s_mov_b32 s12, s80
        s_mov_b32 s13, s81
        s_mov_b32 s14, {512*1376*2}
        s_mov_b32 s15, 0x20000
        s_mov_b32 s16, s84
        s_mov_b32 s17, s85
        s_mov_b32 s18, {512*1376*2}
        s_mov_b32 s19, 0x20000
        s_mov_b32 s24, s86
        s_mov_b32 s25, s87
        s_mov_b32 s26, 0x200000
        s_mov_b32 s27, 0x20000
        s_lshr_b32 {sTG}, {sBETA}, 3
        s_and_b32 {sCG}, {sBETA}, 7
        ''')
        tv = V.alloc('touch', 2)
        l1 = self.lab('e1'); l2 = self.lab('e2'); l3 = self.lab('e3'); le = self.lab('ee')
        p(f's_cmp_eq_u32 {sWAVE}, 1\ns_cbranch_scc0 {l1}')
        with p.cond(lambda c: c['w'] == 1):
            p(f's_lshl_b32 s52, {sFB0}, 6\nv_lshlrev_b32 v{t}, 1, v1')
            p(f'buffer_load_ushort v{bv}, v{t}, {SB1}, s52 offen')
            p(f'buffer_load_ushort v{bv+1}, v{t}, {SB1}, s52 offen offset:128')
        p(f's_branch {le}\n{l1}:')
        if True:
            p(f's_cmp_eq_u32 {sWAVE}, 3\ns_cbranch_scc1 {l3}')
            p(f's_mul_i32 s52, s2, 5504\nv_lshlrev_b32 v{t}, 7, v1\ns_mov_b32 exec_hi, 0x7ff')
            p(f's_cmp_eq_u32 {sWAVE}, 0\ns_cbranch_scc0 {l2}')
            with p.cond(lambda c: c['w'] == 0):
                if self.o.get('mtouch', 1) & 1: p(f'buffer_load_dword v{tv}, v{t}, {SW1}, s52 offen')
            p(f's_mov_b32 exec_hi, -1\ns_branch {le}\n{l2}:')
            with p.cond(lambda c: c['w'] == 2):
                if self.o.get('mtouch', 1) & 4: p(f'buffer_load_dword v{tv}, v{t}, {SW2}, s52 offen')
            p(f's_mov_b32 exec_hi, -1\ns_branch {le}\n{l3}:')
            with p.cond(lambda c: c['w'] == 3):
                if self.o.get('mtouch', 1) & 2:
                    p(f'v_lshlrev_b32 v{t}, 21, v1\ns_mov_b64 exec, 0x3f')
                    p(f'buffer_load_dword v{tv}, v{t}, {SWS}, 0 offen')
                    p(f's_mov_b64 exec, 1')
                    p(f'buffer_load_dword v{tv+1}, v{t}, {SOUT}, 0 offen')
                    p(f's_mov_b64 exec, -1')
        p(f'{le}:')
        p(f'''
        v_lshrrev_b32 v{t}, 2, v1
        v_mul_u32_u24 v{t}, 2752, v{t}
        v_and_b32 v{vo}, 3, v1
        v_lshlrev_b32 v{vo}, 4, v{vo}
        v_add_u32 v{vo}, v{vo}, v{t}
        v_add_u32 v{vo+1}, {16*2752-1024}, v{vo}
        v_add_u32 v{vo+2}, {2*(16*2752-1024)}, v{vo}
        v_add_u32 v{vo+3}, {3*(16*2752-1024)}, v{vo}
        s_mov_b64 {pDBG}, s[88:89]
        ''')
        self.w1first = self.w1_run(0, swap=True); self.w1second = self.w1_run(1, swap=True)
        for g_ in self.w1first: p.ins.extend(g_)
        V.free('t0', 't1')
        self.stamp('start')
        if self.stamps: p('v_writelane_b32 v255, s36, 62')
        if self.o['pads']:
            p('s_mov_b64 exec, 0\n;WARM\nL_warm_ret:\ns_mov_b64 exec, -1')
        p('s_branch L_main\n.p2align 12\nL_main:')
    def x_dma(self, r):
        p, xv = self.p, self.V['xv']
        for k in range(2):
            c = 2 * r + k
            p(f's_add_u32 m0, s41, {4096*k}')
            p(f's_add_u32 s42, s40, {128*c}')
            for j in range(4):
                p(f'buffer_load_dwordx4 v{xv+j}, {SX}, s42 offen offset:{1024*j} lds', tag=f'xdma{r}')
    def x_dma_groups(self, r):
        ins = self.cap(self.x_dma, r)
        gs = []; cur = []
        for i in ins:
            cur.append(i)
            if i.kind == 'dma': gs.append(cur); cur = []
        return gs
    def x_read(self, r):
        p, V, A = self.p, self.V, self.A
        xf, xr = A['xnf'], V['xr']
        p.wait_tag(f'xdma{r}')
        for k in range(2):
            for j in range(4):
                ks = 8 * r + 4 * k + j
                p(f'ds_read_b128 {vr(xf+4*ks,4,"a")}, v{xr+j} offset:{4096*k}', tag=f'xrd{r}')
    def x_next(self, r):
        self.p.wait_lgkm_tag(f'xrd{r-1}')
        self.x_dma(r)
    def gemm1_addr_setup(self):
        p, V, A = self.p, self.V, self.A
        A.alloc('xnf', 128, align=4, at=0)
        t = V.alloc('g1st', 3); wa = V.alloc('w1a', 2); xr = V.alloc('xr', 4); sa = V.alloc('stat_a'); sp = V.alloc('spa', 2); ba = V.alloc('bia')
        hh, n31 = V['hh'], V['n31']
        p(f'''
        v_lshlrev_b32 v{t}, 3, v{hh}
        v_bfe_u32 v{t+1}, v1, 2, 2
        v_add_u32 v{t}, v{t}, v{t+1}
        v_lshlrev_b32 v{t}, 6, v{t}
        v_bfe_u32 v{t+1}, v1, 4, 1
        v_lshlrev_b32 v{t+1}, 5, v{t+1}
        v_add_u32 v{t}, v{t}, v{t+1}
        v_and_b32 v{t+1}, 3, v1
        v_lshlrev_b32 v{t+1}, 3, v{t+1}
        v_add_u32 v{wa}, v{t}, v{t+1}
        v_add_u32 v{wa}, {L_W}, v{wa}
        v_add_u32 v{wa+1}, {2*W1B}, v{wa}
        v_bfe_u32 v{t}, v1, 1, 3
        v_xor_b32 v{t}, v{t}, v{hh}
        v_lshlrev_b32 v{t+1}, 7, v{n31}
        v_add_u32 v{t+1}, s41, v{t+1}
        ''')
        for j in range(4):
            p(f'v_xor_b32 v{t+2}, {2*j}, v{t}\nv_lshlrev_b32 v{t+2}, 4, v{t+2}\nv_add_u32 v{xr+j}, v{t+1}, v{t+2}')
        p(f'''
        s_lshl_b32 s56, {sTT}, 2
        s_add_u32 s56, s56, {sWAVE}
        s_lshl_b32 s56, s56, 8
        s_add_u32 s56, s56, {WS_STAT}
        v_lshlrev_b32 v{t}, 3, v{n31}
        v_add_u32 v{sa}, s56, v{t}
        v_lshlrev_b32 v{t}, 4, v{n31}
        v_add_u32 v{sp}, {L_SP}, v{t}
        s_lshl_b32 s56, {sWAVE}, 2
        v_add_u32 v{sp+1}, s56, v{sp}
        v_lshlrev_b32 v{t}, 2, v{n31}
        v_add_u32 v{ba}, {L_BIAS16}, v{t}
        ''')
        V.free('g1st')
    def ln_hook(self):
        p, V = self.p, self.V
        lab = self.lab('bl')
        bv = V['biasv']; t = V.alloc('btl', 3)
        p(f's_cmp_lg_u32 {sWAVE}, 1\ns_cbranch_scc1 {lab}')
        with p.cond(lambda c: c['w'] == 1):
            p(f'''
            v_lshlrev_b32 v{t+2}, 2, v1
            v_add_u32 v{t+2}, {L_BIAS16}, v{t+2}
            ds_write_b32 v{t+2}, v{bv}
            s_mov_b32 exec_hi, 0
            ds_write_b32 v{t+2}, v{bv+1} offset:256
            s_mov_b32 exec_hi, -1
            ''')
        p(f'{lab}:')
        V.free('btl', 'biasv')
    def ln(self):
        p, V = self.p, self.V
        x = [V['x0'], V['x1']]
        d = [V.alloc('d0', 8), V.alloc('d1', 8)]
        s1 = V.alloc('s1', 2); s2 = V.alloc('s2', 2); tp = V.alloc('lnt', 8); ad = V.alloc('lnad', 2); sg = V.alloc('lnsg', 4, align=2)
        l16 = V['l16']; nv = V['nonce']
        p(f'''
        s_lshl_b32 s52, {sWAVE}, 1
        s_mul_i32 s54, s52, {TH_STR}
        s_add_u32 s54, s54, {L_TH}
        v_add_u32 v{ad+1}, s54, v{l16}
        s_lshl_b32 s53, {sBETA}, 3
        s_add_u32 s53, s53, s52
        s_lshl_b32 s53, s53, 3
        s_add_u32 s53, s53, {WS_STAT}
        v_lshlrev_b32 v{ad}, 3, v1
        v_add_u32 v{ad}, s53, v{ad}
        v_lshlrev_b32 v{sg+2}, 4, v1
        ''')
        for k in range(2):
            for j in range(4):
                p(f'v_lshlrev_b32 v{d[k]+2*j}, 16, v{x[k]+j}')
                p(f'v_and_b32 v{d[k]+2*j+1}, 0xffff0000, v{x[k]+j}')
        p(f'v_readlane_b32 s52, v{d[0]}, 0')
        p(f'v_readlane_b32 s54, v{d[1]}, 0')
        p(f's_mov_b32 s53, s52\ns_mov_b32 s55, s54')
        for k in range(2):
            sp = 's[52:53]' if k == 0 else 's[54:55]'
            for j in range(4):
                p(f'v_pk_add_f32 {vr(d[k]+2*j,2)}, {vr(d[k]+2*j,2)}, {sp} neg_lo:[0,1] neg_hi:[0,1]')
        for k in range(2):
            a = tp + 4 * k
            p(f'v_pk_add_f32 {vr(a,2)}, {vr(d[k],2)}, {vr(d[k]+2,2)}')
            p(f'v_pk_add_f32 {vr(a+2,2)}, {vr(d[k]+4,2)}, {vr(d[k]+6,2)}')
        for k in range(2):
            a = tp + 4 * k
            p(f'v_pk_add_f32 {vr(a,2)}, {vr(a,2)}, {vr(a+2,2)}')
        for k in range(2):
            a = tp + 4 * k
            p(f'v_add_f32 v{s1+k}, v{a}, v{a+1}')
        for k in range(2):
            a = tp + 4 * k
            p(f'v_pk_mul_f32 {vr(a,2)}, {vr(d[k],2)}, {vr(d[k],2)}')
        for j in range(1, 4):
            for k in range(2):
                a = tp + 4 * k
                p(f'v_pk_fma_f32 {vr(a,2)}, {vr(d[k]+2*j,2)}, {vr(d[k]+2*j,2)}, {vr(a,2)}')
        for k in range(2):
            a = tp + 4 * k
            p(f'v_add_f32 v{s2+k}, v{a}, v{a+1}')
        regs = [s1, s1 + 1, s2, s2 + 1]
        for ctl in ('row_shr:1 row_mask:0xf bank_mask:0xf bound_ctrl:1', 'row_shr:2 row_mask:0xf bank_mask:0xf bound_ctrl:1',
                    'row_shr:4 row_mask:0xf bank_mask:0xf bound_ctrl:1', 'row_shr:8 row_mask:0xf bank_mask:0xf bound_ctrl:1',
                    'row_bcast:15 row_mask:0xa bank_mask:0xf', 'row_bcast:31 row_mask:0xc bank_mask:0xf'):
            for r in regs:
                p(f'v_add_f32_dpp v{r}, v{r}, v{r} {ctl}')
        for n, r in enumerate(regs):
            p(f'v_readlane_b32 s{56+n}, v{r}, 63')
        m = [tp, tp + 1]; va = [tp + 2, tp + 3]; t4 = tp + 4; t5 = tp + 5
        p(f's_mov_b32 s60, {f32(1.0 / 512)}')
        for k in range(2):
            p(f'v_mov_b32 v{m[k]}, s{56+k}')
            p(f'v_mov_b32 v{va[k]}, s{58+k}')
        p(f'v_pk_mul_f32 {vr(m[0],2)}, {vr(m[0],2)}, s[60:61] op_sel_hi:[1,0]')
        p(f'v_pk_mul_f32 {vr(va[0],2)}, {vr(va[0],2)}, s[60:61] op_sel_hi:[1,0]')
        p(f'v_pk_fma_f32 {vr(va[0],2)}, {vr(m[0],2)}, {vr(m[0],2)}, {vr(va[0],2)} neg_lo:[1,0,0] neg_hi:[1,0,0]')
        p(f'v_add_f32 v{t4}, s52, v{m[0]}')
        p(f'v_add_f32 v{t5}, s54, v{m[1]}')
        for k in range(2): p(f'v_max_f32 v{va[k]}, 0, v{va[k]}')
        p(f'v_cvt_pk_bf16_f32 v{t4}, v{t4}, v{t5}')
        p(f'v_cvt_pk_bf16_f32 v{t5}, v{va[0]}, v{va[1]}')
        p(f's_mov_b32 s60, {f32(1e-5)}')
        p(f'v_lshlrev_b32 v{va[0]}, 16, v{t5}')
        p(f'v_and_b32 v{va[1]}, 0xffff0000, v{t5}')
        p(f'v_lshlrev_b32 v{m[0]}, 16, v{t4}')
        p(f'v_pk_add_f32 {vr(va[0],2)}, {vr(va[0],2)}, s[60:61] op_sel_hi:[1,0]')
        p(f'v_and_b32 v{m[1]}, 0xffff0000, v{t4}')
        p(f'v_cvt_pk_bf16_f32 v{t5}, v{va[0]}, v{va[1]}')
        p(f'v_sub_f32 v{m[0]}, s52, v{m[0]}')
        p(f'v_lshlrev_b32 v{va[0]}, 16, v{t5}')
        p(f'v_and_b32 v{va[1]}, 0xffff0000, v{t5}')
        for k in range(2): p(f'v_sqrt_f32 v{va[k]}, v{va[k]}')
        p(f'v_sub_f32 v{m[1]}, s54, v{m[1]}')
        p(f'v_lshrrev_b32 v{sg}, v{sg+2}, v{t4}')
        p(f'v_cvt_pk_bf16_f32 v{t5}, v{va[0]}, v{va[1]}')
        p(f'v_and_b32 v{sg}, 0xffff, v{sg}')
        p(f'v_xor_b32 v{sg}, 0x8000, v{sg}')
        p(f'v_lshrrev_b32 v{sg+3}, v{sg+2}, v{t5}')
        p(f'v_lshlrev_b32 v{va[0]}, 16, v{t5}')
        p(f'v_and_b32 v{va[1]}, 0xffff0000, v{t5}')
        p(f'v_lshl_or_b32 v{sg}, v{sg+3}, 16, v{sg}')
        p(f'v_add_u32 v{sg+1}, 1, v{nv}')
        for k in range(2): p(f'v_rcp_f32 v{va[k]}, v{va[k]}')
        p(f's_mov_b64 exec, 3')
        p(f'buffer_store_dwordx2 {vr(sg,2)}, v{ad}, {SWS}, 0 offen sc1')
        p(f's_mov_b64 exec, -1')
        p(f'v_readfirstlane_b32 {sNONCE}, v{sg+1}')
        p(f'v_pk_mul_f32 {vr(m[0],2)}, {vr(m[0],2)}, {vr(va[0],2)}')
        for k in range(2):
            for j in range(4):
                p(f'v_pk_fma_f32 {vr(d[k]+2*j,2)}, {vr(d[k]+2*j,2)}, {vr(va[0],2)}, {vr(m[0],2)} '
                  f'op_sel:[0,{k},{k}] op_sel_hi:[1,{k},{k}]')
        for k in range(2):
            for j in range(4):
                p(f'v_cvt_pk_f16_f32 v{x[k]+j}, v{d[k]+2*j}, v{d[k]+2*j+1}')
            p(f'ds_write_b128 v{ad+1}, {vr(x[k],4)} offset:{k*TH_STR}')
        self.ln_hook()
        p('s_waitcnt lgkmcnt(0)\ns_barrier')
        V.free('d0', 'd1', 's1', 's2', 'lnt', 'lnad', 'x0', 'x1', 'lnsg', 'nonce')
        self.stamp('ln')
        lab = self.lab('lnst')
        p(f's_cmp_ge_u32 {sWAVE}, 2\ns_cbranch_scc1 {lab}')
        with p.cond(lambda c: c['w'] < 2):
            a = V.alloc('lsa', 2); u = V.alloc('lsu', 16, align=2)
            p(f'''
            v_bfe_u32 v{a}, v1, 2, 2
            v_mul_u32_u24 v{a}, {TH_STR}, v{a}
            v_lshrrev_b32 v{a+1}, 4, v1
            v_lshlrev_b32 v{a+1}, 5, v{a+1}
            v_add_u32 v{a}, v{a}, v{a+1}
            v_and_b32 v{a+1}, 3, v1
            v_lshlrev_b32 v{a+1}, 3, v{a+1}
            v_add_u32 v{a}, v{a}, v{a+1}
            s_lshl_b32 s52, {sWAVE}, 9
            s_add_u32 s52, s52, {L_TH}
            v_add_u32 v{a}, s52, v{a}
            ''')
            for it in range(4):
                p(f'ds_read_b64_tr_b16 {vr(u+4*it,2)}, v{a} offset:{128*it}')
                p(f'ds_read_b64_tr_b16 {vr(u+4*it+2,2)}, v{a} offset:{128*it+4*TH_STR}')
            p(f'''
            s_lshl_b32 s52, {sBETA}, 13
            s_lshl_b32 s53, {sWAVE}, 12
            s_add_u32 s52, s52, s53
            s_add_u32 s52, s52, {WS_UBLK}
            ''')
            for it in range(4):
                p(f'buffer_store_dwordx4 {vr(u+4*it,4)}, v{l16}, {SWS}, s52 offen offset:{1024*it} sc1', tag='lnst')
            V.free('lsa', 'lsu')
        p(f'{lab}:')
    def w1_run(self, blk, swap=False):
        p, V = self.p, self.V
        vo = V['w1off']; gs = []
        for k in range(8):
            with p.capture() as b:
                if k == 0:
                    p(f'''
                    s_lshl_b32 s98, {sWAVE}, 3
                    s_mul_i32 s96, s98, {16*2752}
                    s_lshl_b32 s97, {sFB0}, 6
                    s_add_u32 s96, s96, s97
                    s_lshl_b32 s97, s98, 10
                    ''')
                    if swap:
                        p(f'''
                        s_and_b32 s98, {sTT}, 1
                        s_xor_b32 s98, s98, {blk}
                        s_lshl_b32 s99, s98, 6
                        s_add_u32 s96, s96, s99
                        s_lshl_b32 s99, s98, 15
                        s_add_u32 s97, s97, s99
                        s_add_u32 s97, s97, {L_W}
                        ''')
                    else:
                        p(f's_add_u32 s96, s96, {64*blk}\ns_add_u32 s97, s97, {L_W + W1B*blk}')
                if k == 4: p(f's_add_u32 s96, s96, {4*16*2752}\ns_add_u32 s97, s97, 4096')
                p('s_mov_b32 m0, s97')
                p(f'buffer_load_dwordx4 v{vo+k%4}, {SW1}, s96 offen offset:{1024*(k%4)} lds', tag=f'w1dma{blk}')
            gs.append(b)
        return gs
    def colsum(self, blk, accS, fr, ones):
        p, V = self.p, self.V
        wa = V['w1a']; cs = V['csa']
        def rd(j):
            b = fr + 4 * (j % 3); base = cs + (blk >> 1); o = j * 1024 + W1B * (blk & 1)
            p(f'ds_read_b64_tr_b16 {vr(b,2)}, v{base} offset:{o}')
            p(f'ds_read_b64_tr_b16 {vr(b+2,2)}, v{base} offset:{o+256}')
        for j in range(2): rd(j)
        for j in range(8):
            if j + 2 < 8: rd(j + 2)
            p(f'v_mfma_f32_32x32x16_bf16 {vr(accS,16)}, {vr(ones,4)}, {vr(fr+4*(j%3),4)}, {"0" if j == 0 else vr(accS,16)}')
    def colsum_write(self, blk, accS):
        p, V = self.p, self.V
        p('s_mov_b32 exec_hi, 0')
        p(f'ds_write_b32 v{V["spa"]+1}, v{accS} offset:{512*blk}')
        p('s_mov_b32 exec_hi, -1')
    def ax_build(self, blk, ax, tq):
        p, V = self.p, self.V
        msk = V['hmask']
        p(f'ds_read_b128 {vr(tq,4)}, v{V["spa"]} offset:{512*blk}')
        p(f'ds_read_b32 v{ax+1}, v{V["bia"]} offset:{128*blk}')
        p(f'''
        v_add_f32 v{tq}, v{tq}, v{tq+1}
        v_add_f32 v{tq+2}, v{tq+2}, v{tq+3}
        v_add_f32 v{tq}, v{tq}, v{tq+2}
        v_cvt_pk_bf16_f32 v{tq+1}, v{tq}, v{tq}
        v_lshlrev_b32 v{tq+1}, 16, v{tq+1}
        v_sub_f32 v{tq+1}, v{tq}, v{tq+1}
        v_cvt_pk_bf16_f32 v{ax}, v{tq}, v{tq+1}
        v_and_b32 v{ax}, v{ax}, v{msk}
        v_and_b32 v{ax+1}, v{ax+1}, v{msk}
        v_mov_b32 v{ax+2}, 0
        v_mov_b32 v{ax+3}, 0
        ''')
    def stat_build(self):
        p, V = self.p, self.V
        st = V['pl_S']; bx = V['bx']; sc = V['scl']; msk = V['hmask']
        p(f'''
        v_and_b32 v{bx}, 0xffff, v{st}
        v_lshrrev_b32 v{bx+1}, 16, v{st}
        v_and_b32 v{sc+4}, 0xffff0000, v{st}
        v_lshl_or_b32 v{bx}, v{bx}, 16, v{bx}
        v_rcp_f32 v{sc+4}, v{sc+4}
        v_and_b32 v{bx+1}, v{bx+1}, v{msk}
        v_and_b32 v{bx}, v{bx}, v{msk}
        v_mov_b32 v{bx+2}, 0
        v_mov_b32 v{bx+3}, 0
        v_mul_f32 v{sc}, {f32(LOG2E)}, v{sc+4}
        v_mul_f32 v{sc+2}, -2.0, v{sc+4}
        ''')
    def mish(self, acc, tm, pk, packed):
        p = self.p
        sc = self.V['scl']; rl, m2r, rr = sc, sc + 2, sc + 4
        if packed:
            for r in range(0, 16, 2): p(f'v_pk_mul_f32 {vr(tm+r,2)}, {vr(acc+r,2)}, {vr(rl,2)} op_sel_hi:[1,0]')
            for r in range(16): p(f'v_exp_f32 v{tm+r}, v{tm+r}')
            for r in range(0, 16, 2):
                p(f'v_pk_add_f32 {vr(pk+(r&2),2)}, {vr(tm+r,2)}, 2.0 op_sel_hi:[1,0]')
                p(f'v_pk_fma_f32 {vr(tm+r,2)}, {vr(tm+r,2)}, {vr(pk+(r&2),2)}, 2.0 op_sel_hi:[1,1,0]')
            for r in range(16): p(f'v_rcp_f32 v{tm+r}, v{tm+r}')
            for r in range(0, 16, 2): p(f'v_pk_fma_f32 {vr(tm+r,2)}, {vr(tm+r,2)}, {vr(m2r,2)}, {vr(rr,2)} op_sel_hi:[1,0,0]')
            for r in range(0, 16, 2): p(f'v_pk_mul_f32 {vr(tm+r,2)}, {vr(tm+r,2)}, {vr(acc+r,2)}')
            for r in range(0, 16, 2): p(f'v_cvt_pk_bf16_f32 v{pk+r//2}, v{tm+r}, v{tm+r+1}')
        else:
            for r0 in range(0, 16, 4):
                R = range(r0, r0 + 4)
                for r in R: p(f'v_mul_f32 v{tm+r}, v{rl}, v{acc+r}')
                for r in R: p(f'v_exp_f32 v{tm+r}, v{tm+r}')
                for r in R: p(f'v_add_f32 v{pk+(r&3)+4}, 2.0, v{tm+r}')
                for r in R: p(f'v_fma_f32 v{tm+r}, v{tm+r}, v{pk+(r&3)+4}, 2.0')
                for r in R: p(f'v_rcp_f32 v{tm+r}, v{tm+r}')
                for r in R: p(f'v_fma_f32 v{tm+r}, v{tm+r}, v{m2r}, v{rr}')
                for r in R: p(f'v_mul_f32 v{tm+r}, v{tm+r}, v{acc+r}')
            for r in range(0, 16, 2): p(f'v_cvt_pk_bf16_f32 v{pk+r//2}, v{tm+r}, v{tm+r+1}')
    def stat_issue(self):
        p, V = self.p, self.V
        t = V.alloc('pl_S', 2)
        p(f'buffer_load_dwordx2 {vr(t,2)}, v{V["stat_a"]}, {SWS}, 0 offen sc1')
    def stat_check(self):
        p, V = self.p, self.V
        t = V['pl_S']
        lp = self.lab('S'); ck = self.lab('Sc'); dn = self.lab('Sd')
        p(f's_mov_b32 s38, 0\n{ck}:')
        p(f'v_cmp_ne_u32 vcc, {sNONCE}, v{t+1}')
        p(f's_cmp_eq_u64 vcc, 0\ns_cbranch_scc1 {dn}')
        with p.cond(lambda c: False):
            p(f's_add_u32 s38, s38, 1\ns_cmp_lt_u32 s38, 0x40000\ns_cbranch_scc0 {lp}')
            p(f'buffer_load_dwordx2 {vr(t,2)}, v{V["stat_a"]}, {SWS}, 0 offen sc1')
            p(f's_waitcnt vmcnt(0)\ns_branch {ck}')
            p(f'{lp}:')
            tz = V.alloc('plz', 2)
            p(f'v_mov_b32 v{tz}, 0\nv_mov_b32 v{tz+1}, 0xdead\nglobal_store_dword v{tz}, v{tz+1}, {pDBG}')
            V.free('plz')
        p(f'{dn}:')
    def gemm1(self):
        p, V, A = self.p, self.V, self.A
        xf = A['xnf']; wa = V['w1a']
        acc = V.alloc('g1acc', 48, align=2); fr = V.alloc('g1fr', 32, align=2); tm = V.alloc('g1tm', 16, align=2); pk = V.alloc('g1pk', 16, align=2)
        ax = V.alloc('ax', 12, align=2); bx = V.alloc('bx', 4, align=2); sc = V.alloc('scl', 6, align=2); tq = V.alloc('axt', 4, align=2)
        p(f'''
        s_lshl_b32 s56, {sTT}, 2
        s_add_u32 s56, s56, {sWAVE}
        s_mul_i32 s35, s56, {86*1024}
        s_lshl_b32 s59, {sFB0}, 11
        s_add_u32 s35, s35, s59
        s_add_u32 s35, s35, {WS_ACT}
        ''')
        self.stat_issue()
        def rd(ks, blk, slot):
            b = fr + 4 * slot; base = wa + (blk >> 1); o = ks * 1024 + W1B * (blk & 1)
            p(f'ds_read_b64_tr_b16 {vr(b,2)}, v{base} offset:{o}')
            p(f'ds_read_b64_tr_b16 {vr(b+2,2)}, v{base} offset:{o+256}')
        w1b2 = self.w1b2
        with p.capture() as main:
            for ks in range(2): rd(ks, 0, 2 * (ks % 4)); rd(ks, 1, 2 * (ks % 4) + 1)
            for ks in range(32):
                if ks + 2 < 32: rd(ks + 2, 0, 2 * ((ks + 2) % 4)); rd(ks + 2, 1, 2 * ((ks + 2) % 4) + 1)
                c0 = '0' if ks == 0 else vr(acc, 16); c1 = '0' if ks == 0 else vr(acc + 16, 16)
                p(f'v_mfma_f32_32x32x16_bf16 {vr(acc,16)}, {vr(fr+8*(ks%4),4)}, {vr(xf+4*ks,4,"a")}, {c0}')
                p(f'v_mfma_f32_32x32x16_bf16 {vr(acc+16,16)}, {vr(fr+8*(ks%4)+4,4)}, {vr(xf+4*ks,4,"a")}, {c1}')
        fill = self.cap(self.ax_build, 0, ax, tq) + self.cap(self.ax_build, 1, ax + 4, tq)
        fill += self.cap(self.gemm_addr_setup)
        fill += self.cap(self.poll_issue, 'A2', V['us'] + 2, 64, 4)
        half = len(main) // 2
        lab = self.lab('b2a')
        p(f's_cmp_eq_u32 {sNBLK}, 2\ns_cbranch_scc1 {lab}')
        for g_ in w1b2[:4]: p.ins.extend(g_)
        p(f'{lab}:')
        nf = len(fill) // 2
        self.weave(main[:half], fill[:nf], start=2)
        lab = self.lab('b2b')
        p(f's_cmp_eq_u32 {sNBLK}, 2\ns_cbranch_scc1 {lab}')
        for g_ in w1b2[4:]: p.ins.extend(g_)
        p(f'{lab}:')
        self.weave(main[half:], fill[nf:])
        V.free('w1off')
        self.stat_check()
        self.stat_build()
        V.free('pl_S')
        p(f'v_mfma_f32_32x32x16_bf16 {vr(acc,16)}, {vr(ax,4)}, {vr(bx,4)}, {vr(acc,16)}')
        p(f'v_mfma_f32_32x32x16_bf16 {vr(acc+16,16)}, {vr(ax+4,4)}, {vr(bx,4)}, {vr(acc+16,16)}')
        self.stamp('g1p1')
        self.poll_check('A2', V['us'] + 2, 64, 4)
        ud = V.alloc('ud', 8, align=2)
        p(f'''
        s_lshl_b32 s56, {sWAVE}, 19
        s_lshl_b32 s57, {sBETA}, 5
        s_add_u32 s56, s56, s57
        s_add_u32 s56, s56, {WS_UBLK}
        buffer_load_dwordx4 {vr(ud,4)}, v{V['us']}, {SWS}, s56 offen sc1
        buffer_load_dwordx4 {vr(ud+4,4)}, v{V['us']}, {SWS}, s56 offen offset:16 sc1
        ''')
        p.wait_tag('w1dma2')
        p('s_barrier')
        self.fstamp('g1bar')
        self.w2_dma_setup()
        l2 = self.lab('g1n2'); l3 = self.lab('g1j')
        p(f's_cmp_eq_u32 {sNBLK}, 2\ns_cbranch_scc1 {l2}')
        with p.cond(lambda c: c['nblk'] == 3):
            accS = V.alloc('accS', 16, align=2); ones = V['ones']
            self.colsum(2, accS, fr + 16, ones)
            with p.capture() as main:
                for ks in range(3): rd(ks, 2, ks % 4)
                for ks in range(32):
                    if ks + 3 < 32: rd(ks + 3, 2, (ks + 3) % 4)
                    if ks % 2 == 0:
                        for i in self.cap(self.w2_dma, ks // 16, (ks // 2) % 8): p.ins.append(i)
                    c0 = '0' if ks == 0 else vr(acc + 32, 16)
                    p(f'v_mfma_f32_32x32x16_bf16 {vr(acc+32,16)}, {vr(fr+4*(ks%4),4)}, {vr(xf+4*ks,4,"a")}, {c0}')
            with p.capture() as fill:
                self.mish(acc, tm, pk, False); self.act_store(pk, 0)
                self.mish(acc + 16, tm, pk + 8, False); self.act_store(pk + 8, 1)
            self.colsum_write(2, accS)
            self.weave(main, fill)
            V.free('accS')
            self.fstamp('g1p2')
            p('s_waitcnt lgkmcnt(0)\ns_barrier')
            self.ax_build(2, ax + 8, tq)
            d2 = [self.cap(self.w2_dma, 2, k) for k in range(8)]
            for g_ in d2[:2]: p.ins.extend(g_)
            p(f'v_mfma_f32_32x32x16_bf16 {vr(acc+32,16)}, {vr(ax+8,4)}, {vr(bx,4)}, {vr(acc+32,16)}')
            m2 = self.cap(self.mish, acc + 32, tm, pk, True)
            p.merge(m2, d2[2:])
            self.act_store(pk, 2)
        p(f's_branch {l3}\n{l2}:')
        with p.cond(lambda c: c['nblk'] == 2):
            m0_ = self.cap(self.mish, acc, tm, pk, True)
            p.merge(m0_, [self.cap(self.w2_dma, 0, k) for k in range(8)])
            self.act_store(pk, 0)
            p('s_barrier')
            m1_ = self.cap(self.mish, acc + 16, tm, pk + 8, True)
            p.merge(m1_, [self.cap(self.w2_dma, 1, k) for k in range(8)])
            self.act_store(pk + 8, 1)
            for k in range(8): self.w2_dma(2, k)
        p(f'{l3}:')
        self.fstamp('g1mish')
        us = V['us']
        p(f'ds_write_b128 v{us+1}, {vr(ud,4)}')
        p(f'ds_write_b128 v{us+1}, {vr(ud+4,4)} offset:{U_CH}')
        p.wait_tag('w2dma1')
        p('s_waitcnt lgkmcnt(0)\ns_barrier')
        V.free('g1acc', 'g1fr', 'g1tm', 'g1pk', 'bia', 'w1a', 'ud', 'us', 'ax', 'bx', 'scl', 'axt', 'spa', 'stat_a', 'hmask', 'ones', 'csa')
        A.free('xnf')
        lab = self.lab('nw')
        p(f's_or_b32 s52, {sBETA}, {sWAVE}\ns_cmp_lg_u32 s52, 0\ns_cbranch_scc1 {lab}')
        with p.cond(lambda c: c['w'] == 0):
            p('s_mov_b32 s101, 0')
            self.flag_store('s101', WS_FLG)
        p(f'{lab}:')
    def w2_dma_setup(self):
        super().w2_dma_setup()
    def build(self):
        p, V, A = self.p, self.V, self.A
        self.entry()
        self.idle_setup()
        self.gemm1_addr_setup()
        hm = V.alloc('hmask'); ones = V.alloc('ones', 4, align=2); cs = V.alloc('csa', 2)
        p(f'v_add_u32 v{hm}, -1, v{V["hh"]}')
        for k in range(4): p(f'v_mov_b32 v{ones+k}, 0x3f803f80')
        p(f's_lshl_b32 s52, {sWAVE}, 13')
        p(f'v_add_u32 v{cs}, s52, v{V["w1a"]}\nv_add_u32 v{cs+1}, s52, v{V["w1a"]+1}')
        self.stamp('idle')
        self.ln()
        self.stamp('lnst')
        ks = self.cap(self.kgen_setup)
        p.merge(ks, self.w1second)
        with p.cond(lambda c: c['nblk'] == 3): self.w1b2 = self.w1_run(2)
        p('s_barrier')
        self.stamp('ksetup')
        main = self.kgen_values()
        n1 = len(main) * self.o.get('kx1', 5) // 10; n2 = len(main) * 8 // 10
        p.merge(main[:n1 // 2], self.x_dma_groups(0))
        p.ins.extend(main[n1 // 2:n1])
        self.x_read(0)
        p.ins.extend(main[n1:n1 + 12])
        p.wait_lgkm_tag('xrd0')
        p.merge(main[n1 + 12:n2], self.x_dma_groups(1))
        self.ln_flag()
        p.ins.extend(main[n2:])
        V.free('z', 'Z256', 'Cn', 'z2', 'z4', 'w', 'w2', 'w4', 'chains', 'cv', 'fa')
        self.x_read(1)
        self.x_next(2)
        self.stamp('kvals')
        p('s_waitcnt lgkmcnt(0)\ns_barrier')
        km = self.cap(self.kgen_mfma)
        p.ins.extend(km)
        self.x_read(2)
        self.x_next(3)
        self.stamp('kmfma')
        p('s_waitcnt lgkmcnt(0)\ns_barrier')
        if 'table' in self.dump: self.dump_lds(L_T, 2 * T_CH, WS_DBG + 0x100000)
        accS = V.alloc('accS', 32, align=2); sfr = V.alloc('sfr', 24, align=2)
        cs0 = self.cap(self.colsum, 0, accS, sfr, ones); cs1 = self.cap(self.colsum, 1, accS + 16, sfr + 12, ones)
        ex = self.cap(self.expand)
        ncommon = next(k for k, i in enumerate(ex) if i.kind == 'branch')
        grp = []
        for a_, b_ in zip(self.split_mfma(cs0), self.split_mfma(cs1)): grp += [a_, b_]
        p.merge(ex[:ncommon - 1], grp)
        p.ins.extend(ex[ncommon - 1:])
        self.colsum_write(0, accS); self.colsum_write(1, accS + 16)
        V.free('accS', 'sfr')
        self.x_read(3)
        V.free('xv', 'xr')
        p('s_waitcnt lgkmcnt(0)\ns_barrier')
        self.stamp('expand')
        if 'kc' in self.dump: self.dump_lds(L_KC, 8 * KC_STR, WS_DBG + 0x400000)
        self.gemm1()
        self.stamp('gemm1')
        self.conv()
        self.stamp('conv')
        self.gemm2()
        self.stamp('end')
        self.finish()
        return self.finalize()
    def split_mfma(self, ins):
        gs = []; cur = []
        for i in ins:
            cur.append(i)
            if i.kind == 'mfma': gs.append(cur); cur = []
        if cur: gs[-1] += cur
        return gs

if __name__ == '__main__':
    kern3.main(Gen4)
```

```python
import sys, math, struct
from asmgen import Prog
from regs import Regs, vr
from kern import (NAME, WS_XNF, WS_UBLK, WS_ACT, WS_ST, WS_FLG, FL_A, FL_B, FL_C, WS_DBG, WS_BYTES,
                  L_W, L_F, F_WAVE, L_T, T_CH, T_ZERO, L_MISC, LDS_BYTES, TBF_STR, TH_STR, L_TBF, L_TH,
                  KC_STR, L_KC, L_U, U_CH, X0, LOG2E, f32)
import pads as PADS

sBETA, sWAVE, sTT, sFB0, sNBLK = 's3', 's4', 's5', 's6', 's7'
SX, SW1, SW2, SWS, SOUT, SB1 = 's[8:11]', 's[12:15]', 's[16:19]', 's[20:23]', 's[24:27]', 's[28:31]'
pLOGA, pAIM, pCRE, pCIM, pLOGDT, pDSK = 's[66:67]', 's[68:69]', 's[70:71]', 's[72:73]', 's[74:75]', 's[76:77]'
sSIG, sDV, sNONCE, sTG, sCG, sLDT, sDSK = 's44', 's45', 's46', 's47', 's48', 's49', 's50'
sCH, sROLE = 's32', 's33'
pDBG = 's[92:93]'
ST_L = 147456; ST_STR = 144
R1 = 36

class Gen:
    def __init__(self, stamps=False, dump=None, dbgstamps=None, opts=None):
        self.stamps = stamps; self.dump = dump or set(); self.dbgstamps = dbgstamps
        self.o = dict(pads=True, touch=True, touch64=False, lead=10)
        self.o.update(opts or {})
        cfgs = [dict(w=w, nblk=n) for w in range(4) for n in (2, 3)]
        self.p = Prog(cfgs)
        self.V = Regs('v', 255 if stamps else 256, reserved=2)
        self.A = Regs('a', 256)
        self.nstamp = 0; self.uid = 0; self.stamp_names = []
    def lab(self, s):
        self.uid += 1
        return f'L_{s}_{self.uid}'
    def stamp(self, name):
        if not self.stamps: return
        p = self.p
        only = getattr(self, 'only', None)
        if only is not None:
            if name not in only: return
            k = len(self.stamp_names)
            assert k < 14
            i = p(f's_memtime s[{64+2*k}:{65+2*k}]')
            i.kind = 'salu'; i.defs = set(); i.uses = set()
            self.stamp_names.append(name); self.nstamp += 1
            return
        p('s_memtime s[94:95]')
        p('s_waitcnt lgkmcnt(0)')
        p(f'v_writelane_b32 v255, s94, {self.nstamp}')
        self.nstamp += 1; self.stamp_names.append(name)
    def exec_lanes(self, n):
        if n >= 64: return
        if n > 32: raise ValueError
        self.p(f's_mov_b32 exec_lo, {hex((1 << n) - 1) if n < 32 else -1}\ns_mov_b32 exec_hi, 0')
    def exec_all(self): self.p('s_mov_b64 exec, -1')
    def cap(self, fn, *a):
        with self.p.capture() as b: fn(*a)
        return b
    def weave(self, main, fill, per=None, start=0):
        p = self.p
        nm = sum(1 for i in main if i.kind == 'mfma') - start
        k = 0; seen = 0
        for i in main:
            p.ins.append(i)
            if i.kind == 'mfma':
                seen += 1
                if seen > start:
                    tgt = min(len(fill), (seen - start) * per) if per else (len(fill) * (seen - start) + nm - 1) // nm
                    while k < tgt: p.ins.append(fill[k]); k += 1
        while k < len(fill): p.ins.append(fill[k]); k += 1
    def entry(self):
        p, V = self.p, self.V
        x0 = V.alloc('x0', 4); x1 = V.alloc('x1', 4)
        l16 = V.alloc('l16'); t = V.alloc('t0'); t2 = V.alloc('t1')
        p(f'''
        s_load_dwordx16 s[64:79], s[0:1], 0
        s_load_dwordx8 s[80:87], s[0:1], 64
        s_load_dwordx4 s[88:91], s[0:1], 96
        s_cmp_ge_u32 s2, 256
        s_cbranch_scc1 L_end
        v_and_b32 v1, 63, v0
        v_lshrrev_b32 v2, 6, v0
        s_and_b32 s52, s2, 7
        s_lshr_b32 s53, s2, 3
        v_readfirstlane_b32 {sWAVE}, v2
        s_lshl_b32 {sBETA}, s52, 5
        s_add_u32 {sBETA}, {sBETA}, s53
        v_lshlrev_b32 v{l16}, 4, v1
        s_lshl_b32 s52, {sBETA}, 3
        s_lshl_b32 s53, {sWAVE}, 1
        s_add_u32 s52, s52, s53
        s_lshl_b32 s52, s52, 10
        s_mov_b32 s10, 0x200000
        s_mov_b32 s11, 0x20000
        s_lshr_b32 {sCH}, {sWAVE}, 1
        s_and_b32 {sROLE}, {sWAVE}, 1
        s_lshl_b32 s54, {sBETA}, 1
        s_add_u32 s54, s54, {sCH}
        s_lshl_b32 s54, s54, 8
        s_lshl_b32 s55, {sROLE}, 7
        s_add_u32 s56, s54, s55
        s_xor_b32 s55, s55, 128
        s_add_u32 s57, s54, s55
        v_lshlrev_b32 v{t2}, 1, v1
        v_add_u32 v{t}, s57, v{t2}
        v_add_u32 v{t2}, s56, v{t2}
        s_lshl_b32 s58, {sBETA}, 2
        s_waitcnt lgkmcnt(0)
        s_mov_b32 s8, s64
        s_mov_b32 s9, s65
        ''')
        if self.o.get('fine'): self.stamp('e0')
        p(f'buffer_load_dwordx4 {vr(x0,4)}, v{l16}, {SX}, s52 offen')
        p(f'buffer_load_dwordx4 {vr(x1,4)}, v{l16}, {SX}, s52 offen offset:1024')
        pr = V.alloc('par', 6)
        if self.o.get('fine'): self.stamp('e1')
        p(f'''
        global_load_ushort v{pr}, v{t2}, {pLOGA}
        global_load_ushort v{pr+1}, v{t2}, {pAIM}
        global_load_ushort v{pr+2}, v{t2}, {pCRE}
        global_load_ushort v{pr+3}, v{t2}, {pCIM}
        global_load_ushort v{pr+4}, v{t}, {pCRE}
        global_load_ushort v{pr+5}, v{t}, {pCIM}
        s_load_dword {sLDT}, {pLOGDT}, s58
        s_load_dword {sDSK}, {pDSK}, s58
        s_mov_b32 s20, s90
        s_mov_b32 s21, s91
        s_mov_b32 s22, {WS_BYTES}
        s_mov_b32 s23, 0x20000
        ''')
        nv = V.alloc('nonce')
        if self.o.get('fine'): self.stamp('e2')
        p(f'''
        v_mov_b32 v{t}, {WS_FLG}
        buffer_load_dword v{nv}, v{t}, {SWS}, 0 offen sc1
        s_mov_b32 s12, s80
        s_mov_b32 s13, s81
        s_mov_b32 s14, {512*1376*2}
        s_mov_b32 s15, 0x20000
        s_mov_b32 s16, s84
        s_mov_b32 s17, s85
        s_mov_b32 s18, {512*1376*2}
        s_mov_b32 s19, 0x20000
        s_mov_b32 s24, s86
        s_mov_b32 s25, s87
        s_mov_b32 s26, 0x200000
        s_mov_b32 s27, 0x20000
        s_mov_b32 s28, s82
        s_mov_b32 s29, s83
        s_mov_b32 s30, {1376*2}
        s_mov_b32 s31, 0x20000
        s_mov_b64 {pDBG}, s[88:89]
        s_lshr_b32 {sTT}, {sBETA}, 4
        s_and_b32 s54, {sBETA}, 15
        s_mul_i32 {sFB0}, s54, 3
        s_lshl_b32 s55, s54, 1
        s_add_u32 s55, s55, 11
        s_cmp_lt_u32 s54, 11
        s_cselect_b32 {sFB0}, {sFB0}, s55
        s_cselect_b32 {sNBLK}, 3, 2
        s_lshr_b32 {sTG}, {sBETA}, 3
        s_and_b32 {sCG}, {sBETA}, 7
        ''')
        if self.o.get('fine'): self.stamp('e3')
        if self.o['touch']:
            lab = self.lab('tch')
            tv = V.alloc('touch', 6)
            p(f's_cmp_lt_u32 {sWAVE}, 2\ns_cbranch_scc1 {lab}')
            with p.cond(lambda c: c['w'] >= 2):
                step = 64 if self.o['touch64'] else 128
                n = 6 if self.o['touch64'] else 3
                p(f'''
                s_lshr_b32 s52, s2, 3
                s_mul_i32 s52, s52, 44032
                s_sub_u32 s53, {sWAVE}, 2
                s_mul_i32 s53, s53, 22016
                s_add_u32 s52, s52, s53
                v_mul_u32_u24 v{t}, {step}, v1
                ''')
                for k in range(n):
                    p(f'buffer_load_dword v{tv+k}, v{t}, {SW1}, s52 offen')
                    if k + 1 < n: p(f's_add_u32 s52, s52, {64*step}')
            p(f'{lab}:')
        b = V.alloc('bias', 24)
        if self.o.get('fine'): self.stamp('e4')
        p(f'''
        v_lshrrev_b32 v{t}, 5, v1
        v_lshlrev_b32 v{t}, 3, v{t}
        s_lshl_b32 s52, {sFB0}, 6
        ''')
        for blk in range(3):
            for q in range(4):
                p(f'buffer_load_dwordx2 {vr(b+8*blk+2*q,2)}, v{t}, {SB1}, s52 offen offset:{64*blk+16*q}')
        V.free('t0', 't1')
        self.stamp('start')
        if self.stamps:
            p('s_memrealtime s[94:95]\ns_waitcnt lgkmcnt(0)\nv_writelane_b32 v255, s94, 62')
        if self.o['pads']:
            p('s_mov_b64 s[62:63], exec\ns_mov_b64 exec, 0\n;WARM\nL_warm_ret:\ns_mov_b64 exec, s[62:63]')
        p('s_branch L_main\n.p2align 12\nL_main:')
    def idle_setup(self):
        p, V = self.p, self.V
        l16 = V['l16']
        t = V.alloc('ist', 8, align=2)
        n31 = V.alloc('n31'); hh = V.alloc('hh')
        p(f'v_and_b32 v{n31}, 31, v1\nv_lshrrev_b32 v{hh}, 5, v1')
        z = t + 4
        for k in range(4): p(f'v_mov_b32 v{z+k}, 0')
        p(f'v_lshlrev_b32 v{t}, 4, v0\nv_add_u32 v{t}, {L_T}, v{t}')
        p(f'ds_write_b128 v{t}, {vr(z,4)}')
        p(f'''
        v_cmp_gt_u32 vcc, {(2*T_CH-4096)//16}, v0
        s_and_saveexec_b64 s[62:63], vcc
        ds_write_b128 v{t}, {vr(z,4)} offset:4096
        s_mov_b64 exec, s[62:63]
        ''')
        vo = V.alloc('w1off', 3)
        for k in range(3):
            p(f'''
            v_add_u32 v{t}, {64*k}, v1
            v_mul_u32_u24 v{t+1}, 171, v{t}
            v_lshrrev_b32 v{t+1}, 11, v{t+1}
            v_mul_u32_u24 v{vo+k}, 12, v{t+1}
            v_sub_u32 v{vo+k}, v{t}, v{vo+k}
            v_lshlrev_b32 v{vo+k}, 4, v{vo+k}
            v_mul_u32_u24 v{t+1}, 2752, v{t+1}
            v_add_u32 v{vo+k}, v{vo+k}, v{t+1}
            ''')
            if k: p(f'v_subrev_u32 v{vo+k}, {1024*k}, v{vo+k}')
        fa = V.alloc('fa'); kr = V.alloc('kr', 2); kt = V.alloc('ktb', 3)
        p(f'''
        s_mul_i32 s52, {sWAVE}, {F_WAVE}
        s_add_u32 s52, s52, {L_F}
        v_lshlrev_b32 v{fa}, 2, v1
        v_add_u32 v{fa}, s52, v{fa}
        v_and_b32 v{t}, 15, v1
        v_lshrrev_b32 v{t+1}, 4, v1
        v_lshlrev_b32 v{kr}, 4, v{t+1}
        v_mul_u32_u24 v{t+2}, 272, v{t}
        v_add_u32 v{kr}, v{kr}, v{t+2}
        s_mul_i32 s52, {sCH}, {2*F_WAVE}
        s_add_u32 s52, s52, {L_F}
        v_add_u32 v{kr}, s52, v{kr}
        s_mul_i32 s53, {sROLE}, {16*272}
        s_add_u32 s53, s53, {21*272}
        v_add_u32 v{kr+1}, s53, v{kr}
        s_lshl_b32 s53, {sROLE}, 4
        v_add_u32 v{t}, s53, v{t}
        s_mul_i32 s52, {sCH}, {T_CH}
        s_add_u32 s52, s52, {L_T}
        v_lshlrev_b32 v{kt}, 5, v{t}
        v_lshlrev_b32 v{t+2}, 4, v{t+1}
        v_add_u32 v{kt}, v{kt}, v{t+2}
        v_lshlrev_b32 v{t+2}, 4, v{t}
        v_add_u32 v{t+2}, 1024, v{t+2}
        v_cmp_eq_u32 s[54:55], 2, v{t+1}
        v_cndmask_b32 v{kt}, v{kt}, v{t+2}, s[54:55]
        v_lshlrev_b32 v{t+2}, 3, v{t}
        v_add_u32 v{t+2}, 1536, v{t+2}
        v_cmp_eq_u32 s[54:55], 3, v{t+1}
        v_cndmask_b32 v{kt}, v{kt}, v{t+2}, s[54:55]
        v_mov_b32 v{kt+1}, 8
        v_mov_b32 v{t+2}, 256
        v_cndmask_b32 v{kt+1}, v{kt+1}, v{t+2}, s[54:55]
        v_add_u32 v{kt}, s52, v{kt}
        v_add_u32 v{kt+1}, v{kt+1}, v{kt}
        v_min_u32 v{kt+2}, 1, v{t+1}
        v_lshlrev_b32 v{kt+2}, 9, v{kt+2}
        v_lshlrev_b32 v{t+2}, 2, v{t}
        v_add_u32 v{kt+2}, v{kt+2}, v{t+2}
        v_add_u32 v{kt+2}, s52, v{kt+2}
        v_add_u32 v{kt+2}, 2048, v{kt+2}
        ''')
        ea = V.alloc('expad', 11)
        p(f'v_lshlrev_b32 v{t}, 3, v0\nv_sub_u32 v{t}, 2033, v{t}')
        p(f'v_mov_b32 v{t+3}, {T_ZERO//4}')
        for d in range(11):
            J = t + 1; fJ = t + 2; c = ea + d
            p(f'''
            v_add_u32 v{J}, {d}, v{t}
            v_cvt_f32_i32 v{fJ}, v{J}
            v_cvt_pk_bf16_f32 v{fJ}, v{fJ}, v{fJ}
            v_cmp_gt_i32 s[54:55], 64, v{J}
            v_cmp_gt_i32 s[56:57], 0, v{J}
            v_and_b32 v{fJ}, 0xffff, v{fJ}
            v_subrev_u32 v{c}, 17024, v{fJ}
            v_cmp_gt_i32 s[58:59], s34, v{J}
            v_cndmask_b32 v{c}, v{c}, v{J}, s[58:59]
            v_cndmask_b32 v{c}, v{c}, v{t+3}, s[56:57]
            v_lshlrev_b32 v{c}, 2, v{c}
            v_add_u32 v{c}, {L_T}, v{c}
            '''.replace('v_cmp_gt_i32 s[54:55], 64, v{J}\n'.format(J=J), ''))
        V.free('ist')
    def gemm_addr_setup(self):
        p, V = self.p, self.V
        n31, hh, l16 = V['n31'], V['hh'], V['l16']
        t = V.alloc('gst', 4, align=2)
        aA = V.alloc('cA', 3); aB = V.alloc('cB', 2)
        p(f'''
        v_and_b32 v{t}, 3, v1
        v_mul_u32_u24 v{t}, {KC_STR}, v{t}
        v_bfe_u32 v{t+1}, v1, 2, 3
        v_lshlrev_b32 v{t+1}, 3, v{t+1}
        v_sub_u32 v{t}, v{t}, v{t+1}
        v_lshlrev_b32 v{t+3}, 4, v{hh}
        v_add_u32 v{t}, v{t}, v{t+3}
        s_mul_i32 s58, {sCH}, {4*KC_STR}
        s_add_u32 s58, s58, {L_KC + 2*X0}
        s_lshl_b32 s59, {sROLE}, 10
        s_sub_u32 s59, s58, s59
        s_sub_u32 s59, s59, 1024
        v_add_u32 v{aA}, s59, v{t}
        v_subrev_u32 v{aA+1}, 2048, v{aA}
        s_lshl_b32 s59, {sROLE}, 5
        s_sub_u32 s59, s58, s59
        s_add_u32 s59, s59, 32
        v_add_u32 v{aA+2}, s59, v{t}
        v_mul_u32_u24 v{t}, 80, v{n31}
        v_add_u32 v{t+1}, v{t}, v{t+3}
        s_mul_i32 s58, {sCH}, {U_CH}
        s_add_u32 s58, s58, {L_U}
        s_mul_i32 s59, {sROLE}, {80*16}
        s_sub_u32 s59, s58, s59
        s_add_u32 s59, s59, {80*16}
        v_add_u32 v{aB}, s59, v{t+1}
        s_lshl_b32 s59, {sROLE}, 5
        s_sub_u32 s59, s58, s59
        s_add_u32 s59, s59, {80*32+32}
        v_add_u32 v{aB+1}, s59, v{t+1}
        ''')
        ce = V.alloc('ce', 6)
        p(f'''
        s_lshl_b32 s59, {sWAVE}, 12
        s_add_u32 s59, s59, {L_KC}
        v_add_u32 v{ce}, s59, v{l16}
        s_xor_b32 s59, {sWAVE}, 1
        s_lshl_b32 s59, s59, 12
        s_add_u32 s59, s59, {L_KC}
        v_add_u32 v{ce+1}, s59, v{l16}
        v_lshlrev_b32 v{t+3}, 3, v{hh}
        v_add_u32 v{t}, v{t}, v{t+3}
        s_mul_i32 s59, {sROLE}, 2560
        s_add_u32 s59, s59, s58
        s_add_u32 s59, s59, 2560
        v_add_u32 v{ce+2}, s59, v{t}
        v_lshlrev_b32 v{t}, 6, v{n31}
        v_add_u32 v{t}, v{t}, v{t+3}
        s_lshl_b32 s59, {sWAVE}, 11
        s_add_u32 s59, s59, {L_KC + 16384}
        v_add_u32 v{ce+3}, s59, v{t}
        v_bfe_u32 v{ce+4}, v1, 1, 2
        v_lshlrev_b32 v{ce+4}, 4, v{ce+4}
        v_lshrrev_b32 v{t}, 2, v1
        v_bfe_u32 v{t+1}, v1, 3, 2
        v_and_b32 v{t+3}, 3, v1
        v_xor_b32 v{t+1}, v{t+1}, v{t+3}
        v_lshlrev_b32 v{t+1}, 4, v{t+1}
        v_lshlrev_b32 v{t}, 6, v{t}
        v_add_u32 v{t}, v{t}, v{t+1}
        v_add_u32 v{ce+5}, s59, v{t}
        ''')
        us = V.alloc('us', 3)
        p(f'''
        v_lshlrev_b32 v{us}, 13, v1
        s_lshl_b32 s59, {sWAVE}, 6
        s_add_u32 s59, s59, 128
        v_add_u32 v{t}, s59, v1
        v_lshrrev_b32 v{t+1}, 2, v{t}
        v_mul_u32_u24 v{t+1}, 80, v{t+1}
        v_and_b32 v{t}, 3, v{t}
        v_lshlrev_b32 v{t}, 4, v{t}
        v_add_u32 v{t}, v{t}, v{t+1}
        v_add_u32 v{us+1}, {L_U}, v{t}
        s_lshl_b32 s59, {sWAVE}, 10
        s_add_u32 s59, s59, {FL_A}
        v_add_u32 v{us+2}, s59, v{l16}
        ''')
        w2 = V.alloc('w2a', 2)
        p(f'''
        v_lshrrev_b32 v{t}, 3, v1
        v_bfe_u32 v{t+1}, v1, 4, 1
        v_lshlrev_b32 v{t+1}, 2, v{t+1}
        v_and_b32 v{t+2}, 7, v1
        v_xor_b32 v{t+1}, v{t+1}, v{t+2}
        v_lshlrev_b32 v{t+1}, 4, v{t+1}
        v_lshlrev_b32 v{t}, 10, v{t}
        v_add_u32 v{w2}, v{t}, v{t+1}
        v_lshlrev_b32 v{t}, 2, v{hh}
        v_bfe_u32 v{t+1}, v1, 2, 2
        v_add_u32 v{t}, v{t}, v{t+1}
        v_lshlrev_b32 v{t}, 7, v{t}
        v_bfe_u32 v{t+1}, v1, 3, 1
        v_xor_b32 v{t+1}, {sROLE}, v{t+1}
        v_lshlrev_b32 v{t+1}, 6, v{t+1}
        v_add_u32 v{t}, v{t}, v{t+1}
        v_bfe_u32 v{t+1}, v1, 4, 1
        v_lshlrev_b32 v{t+1}, 5, v{t+1}
        v_add_u32 v{t}, v{t}, v{t+1}
        v_and_b32 v{t+1}, 3, v1
        v_lshlrev_b32 v{t+1}, 3, v{t+1}
        v_add_u32 v{t}, v{t}, v{t+1}
        s_mul_i32 s59, {sCH}, {22*2048}
        s_add_u32 s59, s59, {L_W}
        v_add_u32 v{w2+1}, s59, v{t}
        ''')
        g2 = V.alloc('g2a', 11)
        p(f'''
        s_lshl_b32 s59, {sCH}, 11
        v_add_u32 v{g2}, s59, v{l16}
        v_add_u32 v{g2+1}, 0x10000, v{g2}
        v_add_u32 v{g2+10}, 0x20000, v{g2}
        s_lshr_b32 s58, {sTG}, 1
        s_lshl_b32 s58, s58, 2
        s_and_b32 s59, {sTG}, 1
        s_lshl_b32 s59, s59, 1
        s_add_u32 s58, s58, s59
        s_lshl_b32 s58, s58, 7
        s_add_u32 s58, s58, {FL_B}
        v_lshlrev_b32 v{t}, 3, v1
        v_add_u32 v{g2+2}, s58, v{t}
        s_lshr_b32 s58, {sTG}, 4
        s_lshl_b32 s58, s58, 9
        s_lshl_b32 s59, {sCG}, 6
        s_add_u32 s58, s58, s59
        s_lshl_b32 s58, s58, 3
        s_add_u32 s58, s58, {FL_C}
        v_add_u32 v{g2+3}, s58, v{t}
        s_lshl_b32 s58, {sWAVE}, 12
        v_add_u32 v{g2+4}, s58, v{l16}
        s_xor_b32 s58, {sWAVE}, 2
        s_lshl_b32 s58, s58, 12
        v_add_u32 v{g2+5}, s58, v{l16}
        v_lshrrev_b32 v{t}, 3, v0
        v_and_b32 v{t+1}, 7, v0
        v_lshlrev_b32 v{t+1}, 4, v{t+1}
        v_lshlrev_b32 v{g2+6}, 12, v{t}
        v_add_u32 v{g2+6}, v{g2+6}, v{t+1}
        v_mul_u32_u24 v{g2+7}, {ST_STR}, v{t}
        v_add_u32 v{g2+7}, v{g2+7}, v{t+1}
        v_add_u32 v{g2+7}, {ST_L}, v{g2+7}
        v_lshlrev_b32 v{t}, 2, v{hh}
        v_bfe_u32 v{t+1}, v1, 2, 2
        v_add_u32 v{t}, v{t}, v{t+1}
        s_lshl_b32 s58, {sROLE}, 5
        v_add_u32 v{t}, s58, v{t}
        v_mul_u32_u24 v{t}, {ST_STR}, v{t}
        v_bfe_u32 v{t+1}, v1, 4, 1
        v_lshlrev_b32 v{t+1}, 5, v{t+1}
        v_add_u32 v{t}, v{t}, v{t+1}
        v_and_b32 v{t+1}, 3, v1
        v_lshlrev_b32 v{t+1}, 3, v{t+1}
        v_add_u32 v{t}, v{t}, v{t+1}
        s_lshl_b32 s58, {sCH}, 6
        s_add_u32 s58, s58, {ST_L}
        v_add_u32 v{g2+8}, s58, v{t}
        v_lshlrev_b32 v{t}, 10, v{n31}
        v_lshlrev_b32 v{t+1}, 3, v{hh}
        v_add_u32 v{g2+9}, v{t}, v{t+1}
        ''')
        V.free('gst')
    def gemm1_addr_setup(self):
        p, V = self.p, self.V
        t = V.alloc('g1st', 2); wa = V.alloc('w1a', 2); pa = V.alloc('pA1')
        hh = V['hh']
        p(f'''
        v_lshlrev_b32 v{t}, 3, v{hh}
        v_bfe_u32 v{t+1}, v1, 2, 2
        v_add_u32 v{t}, v{t}, v{t+1}
        v_mul_u32_u24 v{t}, 192, v{t}
        v_bfe_u32 v{t+1}, v1, 4, 1
        v_lshlrev_b32 v{t+1}, 5, v{t+1}
        v_add_u32 v{t}, v{t}, v{t+1}
        v_and_b32 v{t+1}, 3, v1
        v_lshlrev_b32 v{t+1}, 3, v{t+1}
        v_add_u32 v{wa}, v{t}, v{t+1}
        v_add_u32 v{wa}, {L_W}, v{wa}
        v_add_u32 v{wa+1}, {16*3072}, v{wa}
        s_lshl_b32 s56, {sTT}, 2
        s_add_u32 s56, s56, {sWAVE}
        s_lshl_b32 s57, s56, 6
        s_add_u32 s57, s57, {FL_A}
        v_lshlrev_b32 v{t}, 3, v1
        v_add_u32 v{pa}, s57, v{t}
        ''')
        V.free('g1st')
    def ln(self):
        p, V = self.p, self.V
        x = [V['x0'], V['x1']]
        d = [V.alloc('d0', 8), V.alloc('d1', 8)]
        s1 = V.alloc('s1', 2); s2 = V.alloc('s2', 2); tp = V.alloc('lnt', 8); ad = V.alloc('lnad', 2)
        l16 = V['l16']
        p(f'''
        s_lshl_b32 s52, {sWAVE}, 1
        s_mul_i32 s53, s52, {TBF_STR}
        s_add_u32 s53, s53, {L_TBF}
        s_mul_i32 s54, s52, {TH_STR}
        s_add_u32 s54, s54, {L_TH}
        v_add_u32 v{ad}, s53, v{l16}
        v_add_u32 v{ad+1}, s54, v{l16}
        ''')
        for k in range(2):
            for j in range(4):
                p(f'v_lshlrev_b32 v{d[k]+2*j}, 16, v{x[k]+j}')
                p(f'v_and_b32 v{d[k]+2*j+1}, 0xffff0000, v{x[k]+j}')
        p(f'v_readlane_b32 s52, v{d[0]}, 0')
        p(f'v_readlane_b32 s54, v{d[1]}, 0')
        p(f's_mov_b32 s53, s52\ns_mov_b32 s55, s54')
        for k in range(2):
            sp = 's[52:53]' if k == 0 else 's[54:55]'
            for j in range(4):
                p(f'v_pk_add_f32 {vr(d[k]+2*j,2)}, {vr(d[k]+2*j,2)}, {sp} neg_lo:[0,1] neg_hi:[0,1]')
        for k in range(2):
            a = tp + 4 * k
            p(f'v_pk_add_f32 {vr(a,2)}, {vr(d[k],2)}, {vr(d[k]+2,2)}')
            p(f'v_pk_add_f32 {vr(a+2,2)}, {vr(d[k]+4,2)}, {vr(d[k]+6,2)}')
        for k in range(2):
            a = tp + 4 * k
            p(f'v_pk_add_f32 {vr(a,2)}, {vr(a,2)}, {vr(a+2,2)}')
        for k in range(2):
            a = tp + 4 * k
            p(f'v_add_f32 v{s1+k}, v{a}, v{a+1}')
        for k in range(2):
            a = tp + 4 * k
            p(f'v_pk_mul_f32 {vr(a,2)}, {vr(d[k],2)}, {vr(d[k],2)}')
        for j in range(1, 4):
            for k in range(2):
                a = tp + 4 * k
                p(f'v_pk_fma_f32 {vr(a,2)}, {vr(d[k]+2*j,2)}, {vr(d[k]+2*j,2)}, {vr(a,2)}')
        for k in range(2):
            a = tp + 4 * k
            p(f'v_add_f32 v{s2+k}, v{a}, v{a+1}')
        regs = [s1, s1 + 1, s2, s2 + 1]
        for ctl in ('row_shr:1 row_mask:0xf bank_mask:0xf bound_ctrl:1', 'row_shr:2 row_mask:0xf bank_mask:0xf bound_ctrl:1',
                    'row_shr:4 row_mask:0xf bank_mask:0xf bound_ctrl:1', 'row_shr:8 row_mask:0xf bank_mask:0xf bound_ctrl:1',
                    'row_bcast:15 row_mask:0xa bank_mask:0xf', 'row_bcast:31 row_mask:0xc bank_mask:0xf'):
            for r in regs:
                p(f'v_add_f32_dpp v{r}, v{r}, v{r} {ctl}')
        for n, r in enumerate(regs):
            p(f'v_readlane_b32 s{56+n}, v{r}, 63')
        m = [tp, tp + 1]; va = [tp + 2, tp + 3]; t4 = tp + 4; t5 = tp + 5
        inv = f32(1.0 / 512)
        p(f's_mov_b32 s60, {inv}')
        for k in range(2):
            p(f'v_mov_b32 v{m[k]}, s{56+k}')
            p(f'v_mov_b32 v{va[k]}, s{58+k}')
        p(f'v_pk_mul_f32 {vr(m[0],2)}, {vr(m[0],2)}, s[60:61] op_sel_hi:[1,0]')
        p(f'v_pk_mul_f32 {vr(va[0],2)}, {vr(va[0],2)}, s[60:61] op_sel_hi:[1,0]')
        p(f'v_pk_fma_f32 {vr(va[0],2)}, {vr(m[0],2)}, {vr(m[0],2)}, {vr(va[0],2)} neg_lo:[1,0,0] neg_hi:[1,0,0]')
        p(f'v_add_f32 v{t4}, s52, v{m[0]}')
        p(f'v_add_f32 v{t5}, s54, v{m[1]}')
        for k in range(2): p(f'v_max_f32 v{va[k]}, 0, v{va[k]}')
        p(f'v_cvt_pk_bf16_f32 v{t4}, v{t4}, v{t5}')
        p(f'v_cvt_pk_bf16_f32 v{t5}, v{va[0]}, v{va[1]}')
        p(f's_mov_b32 s60, {f32(1e-5)}')
        p(f'v_lshlrev_b32 v{va[0]}, 16, v{t5}')
        p(f'v_and_b32 v{va[1]}, 0xffff0000, v{t5}')
        p(f'v_lshlrev_b32 v{m[0]}, 16, v{t4}')
        p(f'v_pk_add_f32 {vr(va[0],2)}, {vr(va[0],2)}, s[60:61] op_sel_hi:[1,0]')
        p(f'v_and_b32 v{m[1]}, 0xffff0000, v{t4}')
        p(f'v_cvt_pk_bf16_f32 v{t5}, v{va[0]}, v{va[1]}')
        p(f'v_sub_f32 v{m[0]}, s52, v{m[0]}')
        p(f'v_lshlrev_b32 v{va[0]}, 16, v{t5}')
        p(f'v_and_b32 v{va[1]}, 0xffff0000, v{t5}')
        for k in range(2): p(f'v_sqrt_f32 v{va[k]}, v{va[k]}')
        p(f'v_sub_f32 v{m[1]}, s54, v{m[1]}')
        p(f'v_cvt_pk_bf16_f32 v{t5}, v{va[0]}, v{va[1]}')
        p(f'v_lshlrev_b32 v{va[0]}, 16, v{t5}')
        p(f'v_and_b32 v{va[1]}, 0xffff0000, v{t5}')
        for k in range(2): p(f'v_rcp_f32 v{va[k]}, v{va[k]}')
        p(f'v_pk_mul_f32 {vr(m[0],2)}, {vr(m[0],2)}, {vr(va[0],2)}')
        for k in range(2):
            for j in range(4):
                p(f'v_pk_fma_f32 {vr(d[k]+2*j,2)}, {vr(d[k]+2*j,2)}, {vr(va[0],2)}, {vr(m[0],2)} '
                  f'op_sel:[0,{k},{k}] op_sel_hi:[1,{k},{k}]')
        for k in range(2):
            for j in range(4):
                p(f'v_cvt_pk_bf16_f32 v{x[k]+j}, v{d[k]+2*j}, v{d[k]+2*j+1}')
            p(f'ds_write_b128 v{ad}, {vr(x[k],4)} offset:{k*TBF_STR}')
        for k in range(2):
            for j in range(4):
                p(f'v_cvt_pk_f16_f32 v{tp+4*k+j}, v{d[k]+2*j}, v{d[k]+2*j+1}')
            p(f'ds_write_b128 v{ad+1}, {vr(tp+4*k,4)} offset:{k*TH_STR}')
        lab = self.lab('nn')
        p(f's_cmp_lg_u32 {sWAVE}, 0\ns_cbranch_scc1 {lab}')
        with p.cond(lambda c: c['w'] == 0):
            p(f'v_add_u32 v{V["nonce"]}, 1, v{V["nonce"]}')
            p(f'v_mov_b32 v{ad}, {L_MISC}')
            p(f'ds_write_b32 v{ad}, v{V["nonce"]}')
        p(f'{lab}:')
        self.ln_hook()
        p('s_waitcnt lgkmcnt(0)\ns_barrier')
        V.free('d0', 'd1', 's1', 's2', 'lnt', 'lnad', 'x0', 'x1')
        nv = V['nonce']
        p(f'v_mov_b32 v{nv}, {L_MISC}')
        p(f'ds_read_b32 v{nv}, v{nv}')
        self.stamp('ln')
        lab = self.lab('lnst')
        p(f's_cmp_ge_u32 {sWAVE}, 2\ns_cbranch_scc1 {lab}')
        with p.cond(lambda c: c['w'] < 2):
            a = V.alloc('lsa', 4); dt = V.alloc('lsd', 16, align=2); u = V.alloc('lsu', 16, align=2)
            p(f'''
            v_and_b32 v{a}, 7, v0
            v_lshrrev_b32 v{a+1}, 3, v0
            v_mul_u32_u24 v{a+2}, {TBF_STR}, v{a}
            v_lshlrev_b32 v{a+3}, 4, v{a+1}
            v_add_u32 v{a+2}, v{a+2}, v{a+3}
            v_add_u32 v{a+2}, {L_TBF}, v{a+2}
            ''')
            for k in range(4):
                p(f'ds_read_b128 {vr(dt+4*k,4)}, v{a+2} offset:{256*k}')
            p(f'''
            v_bfe_u32 v{a+3}, v1, 2, 2
            v_mul_u32_u24 v{a+3}, {TH_STR}, v{a+3}
            v_lshrrev_b32 v{u}, 4, v1
            v_lshlrev_b32 v{u}, 5, v{u}
            v_add_u32 v{a+3}, v{a+3}, v{u}
            v_and_b32 v{u}, 3, v1
            v_lshlrev_b32 v{u}, 3, v{u}
            v_add_u32 v{a+3}, v{a+3}, v{u}
            s_lshl_b32 s52, {sWAVE}, 9
            s_add_u32 s52, s52, {L_TH}
            v_add_u32 v{a+3}, s52, v{a+3}
            ''')
            for it in range(4):
                p(f'ds_read_b64_tr_b16 {vr(u+4*it,2)}, v{a+3} offset:{128*it}')
                p(f'ds_read_b64_tr_b16 {vr(u+4*it+2,2)}, v{a+3} offset:{128*it+4*TH_STR}')
            p(f'''
            v_lshrrev_b32 v{a+2}, 1, v{a+1}
            v_lshlrev_b32 v{a+2}, 10, v{a+2}
            v_and_b32 v{a+1}, 1, v{a+1}
            v_lshlrev_b32 v{a+1}, 9, v{a+1}
            v_add_u32 v{a+2}, v{a+2}, v{a+1}
            v_lshlrev_b32 v{a}, 4, v{a}
            v_add_u32 v{a+2}, v{a+2}, v{a}
            s_lshr_b32 s52, {sBETA}, 2
            s_lshl_b32 s52, s52, 15
            s_and_b32 s53, {sBETA}, 3
            s_lshl_b32 s53, s53, 7
            s_add_u32 s52, s52, s53
            s_add_u32 s52, s52, {WS_XNF}
            ''')
            for k in range(4):
                p(f's_add_u32 s53, s52, {8192*k}')
                p(f'buffer_store_dwordx4 {vr(dt+4*k,4)}, v{a+2}, {SWS}, s53 offen sc1', tag='lnst')
                if self.o.get('dblx'): p(f'buffer_store_dwordx4 {vr(dt+4*k,4)}, v{a+2}, {SWS}, s53 offen', tag='lnst2')
            p(f'''
            s_lshl_b32 s52, {sBETA}, 13
            s_lshl_b32 s53, {sWAVE}, 12
            s_add_u32 s52, s52, s53
            s_add_u32 s52, s52, {WS_UBLK}
            ''')
            for it in range(4):
                p(f'buffer_store_dwordx4 {vr(u+4*it,4)}, v{V["l16"]}, {SWS}, s52 offen offset:{1024*it} sc1', tag='lnst')
            V.free('lsa', 'lsd', 'lsu')
        p(f'{lab}:')
        p(f'v_readfirstlane_b32 {sNONCE}, v{nv}')
        V.free('nonce')
    def ln_hook(self): pass
    def flag_store(self, off_sgpr, base):
        p, V = self.p, self.V
        t = V.alloc('fl', 2)
        p(f'''
        s_add_u32 s100, {off_sgpr}, {base}
        v_mov_b32 v{t}, s100
        v_mov_b32 v{t+1}, {sNONCE}
        s_mov_b64 exec, 1
        buffer_store_dword v{t+1}, v{t}, {SWS}, 0 offen sc1
        s_mov_b64 exec, -1
        ''')
        V.free('fl')
    def ln_flag(self):
        p = self.p
        lab = self.lab('lnfl')
        p(f's_cmp_ge_u32 {sWAVE}, 2\ns_cbranch_scc1 {lab}')
        with p.cond(lambda c: c['w'] < 2):
            p.wait_tag('lnst')
            p(f's_lshl_b32 s101, {sBETA}, 4\ns_lshl_b32 s100, {sWAVE}, 3\ns_add_u32 s101, s101, s100')
            self.flag_store('s101', FL_A)
        p(f'{lab}:')
    def poll_issue(self, name, vaddr, nlanes, width):
        p, V = self.p, self.V
        t = V.alloc('pl_' + name, 4 if width == 4 else 1, align=2 if width == 4 else 1)
        self.exec_lanes(nlanes)
        if width == 1: p(f'buffer_load_dword v{t}, v{vaddr}, {SWS}, 0 offen sc1')
        else: p(f'buffer_load_dwordx4 {vr(t,4)}, v{vaddr}, {SWS}, 0 offen sc1')
        if nlanes < 64: self.exec_all()
    def poll_check(self, name, vaddr, nlanes, width):
        p, V = self.p, self.V
        t = V['pl_' + name]
        lp = self.lab(name); ck = self.lab(name + 'c'); dn = self.lab(name + 'd')
        p('s_mov_b32 s38, 0')
        self.exec_lanes(nlanes)
        p(f'{ck}:')
        p(f'v_cmp_ne_u32 vcc, {sNONCE}, v{t}')
        if width == 4:
            p(f'v_cmp_ne_u32 s[36:37], {sNONCE}, v{t+2}')
            p(f's_or_b64 vcc, vcc, s[36:37]')
        p(f's_cmp_eq_u64 vcc, 0\ns_cbranch_scc1 {dn}')
        with p.cond(lambda c: False):
            p(f's_add_u32 s38, s38, 1\ns_cmp_lt_u32 s38, 0x40000\ns_cbranch_scc0 {lp}')
            if width == 1: p(f'buffer_load_dword v{t}, v{vaddr}, {SWS}, 0 offen sc1')
            else: p(f'buffer_load_dwordx4 {vr(t,4)}, v{vaddr}, {SWS}, 0 offen sc1')
            p(f's_waitcnt vmcnt(0)\ns_branch {ck}')
            p(f'{lp}:')
            tz = V.alloc('plz', 2)
            p(f'v_mov_b32 v{tz}, 0\nv_mov_b32 v{tz+1}, 0xdead\nglobal_store_dword v{tz}, v{tz+1}, {pDBG}')
            V.free('plz')
        p(f'{dn}:')
        if nlanes < 64: self.exec_all()
        V.free('pl_' + name)
    def w1_dma_groups(self):
        p, V = self.p, self.V
        vo = V['w1off']
        p(f'''
        s_mul_i32 s96, {sWAVE}, {128*2752}
        s_lshl_b32 s97, {sFB0}, 6
        s_add_u32 s96, s96, s97
        s_mul_i32 s97, {sWAVE}, {24*1024}
        s_add_u32 s97, s97, {L_W}
        ''')
        groups = []
        for g in range(8):
            for k in range(3):
                with p.capture() as b:
                    if k == 0: p('s_mov_b32 m0, s97')
                    p(f'buffer_load_dwordx4 v{vo+k}, {SW1}, s96 offen offset:{1024*k} lds', tag='w1dma')
                    if k == 2: p(f's_add_u32 s96, s96, {16*2752}\ns_add_u32 s97, s97, 3072')
                groups.append(b)
        return groups
    def w2_touch(self):
        p, V = self.p, self.V
        if not self.o['touch']: return []
        step = 64 if self.o['touch64'] else 128
        n = 3 if self.o['touch64'] else 2
        tv = V['touch']; t = V.alloc('w2tv')
        with p.capture() as b:
            p(f'''
            s_lshr_b32 s98, s2, 3
            s_mul_i32 s98, s98, 44032
            s_mul_i32 s99, {sWAVE}, 11008
            s_add_u32 s98, s98, s99
            v_mul_u32_u24 v{t}, {step}, v1
            ''')
            for k in range(n):
                p(f'buffer_load_dword v{tv+k}, v{t}, {SW2}, s98 offen')
                if k + 1 < n: p(f's_add_u32 s98, s98, {64*step}')
        V.free('w2tv')
        return b
    def kgen_setup(self):
        p, V = self.p, self.V
        pr = V['par']
        t = V.alloc('kt', 8, align=2)
        z = V.alloc('z', 2); Z = V.alloc('Z256', 2); C = V.alloc('Cn', 2)
        p(f'''
        s_lshl_b32 s53, {sLDT}, 16
        s_and_b32 s54, {sLDT}, 0xffff0000
        s_lshl_b32 s56, {sDSK}, 16
        s_and_b32 s55, {sDSK}, 0xffff0000
        s_cmp_eq_u32 {sCH}, 0
        s_cselect_b32 s53, s53, s54
        s_cselect_b32 {sDV}, s56, s55
        v_mov_b32 v{t}, s53
        v_mul_f32 v{t}, {f32(LOG2E)}, v{t}
        v_lshlrev_b32 v{t+1}, 16, v{pr}
        v_mul_f32 v{t+1}, {f32(LOG2E)}, v{t+1}
        v_exp_f32 v{t}, v{t}
        v_exp_f32 v{t+1}, v{t+1}
        v_and_b32 v{t+2}, 0x7fff, v{pr+2}
        v_and_b32 v{t+3}, 0x7fff, v{pr+3}
        v_and_b32 v{t+4}, 0x7fff, v{pr+4}
        v_and_b32 v{t+5}, 0x7fff, v{pr+5}
        v_cvt_pk_bf16_f32 v{t}, v{t}, v{t+1}
        v_max3_u32 v{t+2}, v{t+2}, v{t+3}, v{t+4}
        v_max_u32 v{t+2}, v{t+2}, v{t+5}
        v_and_b32 v{t+1}, 0xffff0000, v{t}
        v_lshlrev_b32 v{t}, 16, v{t}
        ''')
        ctl = ['row_shr:1 row_mask:0xf bank_mask:0xf bound_ctrl:1', 'row_shr:2 row_mask:0xf bank_mask:0xf bound_ctrl:1',
               'row_shr:4 row_mask:0xf bank_mask:0xf bound_ctrl:1', 'row_shr:8 row_mask:0xf bank_mask:0xf bound_ctrl:1',
               'row_bcast:15 row_mask:0xa bank_mask:0xf', 'row_bcast:31 row_mask:0xc bank_mask:0xf']
        fill = [[f'v_mul_f32 v{t+3}, v{t+1}, v{t}', f'v_lshlrev_b32 v{t+4}, 16, v{pr+1}'],
                [f'v_mul_f32 v{t+4}, v{t+4}, v{t}', f'v_mul_f32 v{t+3}, {f32(-LOG2E)}, v{t+3}'],
                [f'v_mul_f32 v{t+4}, {f32(1/(2*math.pi))}, v{t+4}', f'v_mul_f32 v{t+5}, {f32(256.0)}, v{t+3}'],
                [f'v_mul_f32 v{t+6}, {f32(256.0)}, v{t+4}', f'v_fract_f32 v{t+7}, v{t+4}'],
                [f'v_fract_f32 v{t+6}, v{t+6}', f'v_exp_f32 v{t+3}, v{t+3}'],
                [f'v_exp_f32 v{t+5}, v{t+5}', f'v_cos_f32 v{z}, v{t+7}']]
        for c, f in zip(ctl, fill):
            p(f'v_max_u32_dpp v{t+2}, v{t+2}, v{t+2} {c}')
            for x in f: p(x)
        p(f'''
        v_sin_f32 v{z+1}, v{t+7}
        v_readlane_b32 s52, v{t+2}, 63
        v_cos_f32 v{Z}, v{t+6}
        v_sin_f32 v{Z+1}, v{t+6}
        s_and_b32 s52, s52, 0x7f80
        s_lshl_b32 s52, s52, 16
        s_sub_u32 s53, 0x7f000000, s52
        v_lshlrev_b32 v{C}, 16, v{pr+2}
        v_lshlrev_b32 v{C+1}, 16, v{pr+3}
        v_mul_f32 v{t}, s52, v{t}
        v_mul_f32 v{C}, s53, v{C}
        v_mul_f32 v{C+1}, s53, v{C+1}
        v_add_f32 v{t}, v{t}, v{t}
        v_mul_f32 v{z}, v{z}, v{t+3}
        v_mul_f32 v{z+1}, v{z+1}, v{t+3}
        v_readfirstlane_b32 {sSIG}, v{t}
        v_mul_f32 v{Z}, v{Z}, v{t+5}
        v_mul_f32 v{Z+1}, v{Z+1}, v{t+5}
        ''')
        V.free('kt', 'par')
    def kgen_values(self):
        p, V = self.p, self.V
        z, Z, C, fa = V['z'], V['Z256'], V['Cn'], V['fa']
        cv = V.alloc('cv', 8); self._cvi = 0
        valu = []; stores = []
        def emit(s):
            with p.capture() as b: p(s)
            valu.extend(b)
        def put(row, r, neg=False):
            c = cv + (self._cvi & 7); self._cvi += 1
            emit(f'v_cvt_pk_f16_f32 v{c}, v{r}, {"-" if neg else ""}v{r+1}')
            with p.capture() as b: p(f'ds_write_b32 v{fa}, v{c} offset:{row*272}')
            stores.append((len(valu), b[0]))
        def cm(items):
            for d, a, b in items: emit(f'v_pk_mul_f32 {vr(d,2)}, {vr(a,2)}, {vr(b,2)} op_sel:[0,0] op_sel_hi:[0,1]')
            for d, a, b in items: emit(f'v_pk_fma_f32 {vr(d,2)}, {vr(a,2)}, {vr(b,2)}, {vr(d,2)} op_sel:[1,1,0] op_sel_hi:[1,0,1] neg_lo:[1,0,0]')
        z2 = V.alloc('z2', 2); z4 = V.alloc('z4', 2); w = V.alloc('w', 2); w2 = V.alloc('w2', 2); w4 = V.alloc('w4', 2)
        ch = V.alloc('chains', 16, align=2)
        put(0, C)
        cm([(z2, z, z)])
        La, Lb, Ma, Mb = ch, ch + 2, ch + 4, ch + 6
        cm([(La, C, z), (Ma, C, Z), (z4, z2, z2)])
        put(1, La); put(8, Ma)
        cm([(Lb, La, z), (Mb, Ma, Z), (w, z4, z4), (ch + 8, Ma, z2)])
        put(2, Lb); put(12, Mb); put(9, ch + 8)
        cm([(La, Lb, z), (Ma, Mb, Z), (w2, w, w), (ch + 10, ch + 8, z2), (ch + 12, Mb, z4)])
        put(3, La); put(14, Ma); put(10, ch + 10); put(13, ch + 12)
        cm([(Lb, La, z), (Mb, Ma, Z), (w4, w2, w2), (ch + 8, ch + 10, z2), (ch + 12, Ma, z4), (ch + 14, w2, w)])
        put(4, Lb); put(16, Mb); put(11, ch + 8); put(15, ch + 12)
        c = cv + (self._cvi & 7); self._cvi += 1
        emit(f'v_mov_b32 v{c}, 0x3c00')
        with p.capture() as b: p(f'ds_write_b32 v{fa}, v{c} offset:{21*272}')
        stores.append((len(valu), b[0]))
        put(22, w, True); put(23, w2, True); put(24, ch + 14, True)
        cm([(La, Lb, z), (Ma, Mb, Z)]); put(5, La); put(17, Ma)
        cm([(Lb, La, z), (Mb, Ma, Z)]); put(6, Lb); put(18, Mb)
        cm([(La, Lb, z), (Ma, Mb, Z)]); put(7, La); put(19, Ma)
        cm([(Mb, Ma, Z)]); put(20, Mb)
        A_ = [ch, ch + 2, ch + 4, ch + 6]; B_ = [ch + 8, ch + 10, ch + 12, z]
        r3 = ch + 14
        cm([(A_[1], w, w4), (A_[2], w2, w4), (A_[3], r3, w4)])
        put(25, w4, True); put(26, A_[1], True); put(27, A_[2], True); put(28, A_[3], True)
        cur = [w4, A_[1], A_[2], A_[3]]
        nxt = [B_, A_]
        for step in range(2, 8):
            nx = nxt[step & 1]
            cm([(nx[k], cur[k], w4) for k in range(4)])
            for k in range(4): put(21 + 4 * step + k, nx[k], True)
            cur = nx
        out = []; si = 0; last = -10
        for idx, ins in enumerate(valu):
            pend = [k for k in range(si, len(stores)) if stores[k][0] <= idx and (stores[k][1].uses & ins.defs)]
            if pend:
                while si <= pend[-1]: out.append(stores[si][1]); si += 1
                last = idx
            elif si < len(stores) and stores[si][0] <= idx and idx - last >= 3:
                out.append(stores[si][1]); si += 1; last = idx
            out.append(ins)
        while si < len(stores): out.append(stores[si][1]); si += 1
        return out
    def kgen_mfma(self):
        p, V = self.p, self.V
        acc = V.alloc('kacc', 8, align=2); fr = V.alloc('kfr', 36, align=2)
        kr, kt = V['kr'], V['ktb']
        def rd(s):
            b = fr + 12 * (s % 3); o = F_WAVE * (s >> 2) + 64 * (s & 3)
            p(f'ds_read_b128 {vr(b,4)}, v{kr} offset:{o}')
            p(f'ds_read_b128 {vr(b+8,4)}, v{kr+1} offset:{o}')
            p(f'ds_read_b128 {vr(b+4,4)}, v{kr} offset:{o+16*272}')
        for s_ in range(2): rd(s_)
        for s_ in range(8):
            if s_ + 2 < 8: rd(s_ + 2)
            b = fr + 12 * (s_ % 3)
            p(f'v_mfma_f32_16x16x32_f16 {vr(acc,4)}, {vr(b,4)}, {vr(b+8,4)}, {"0" if s_ == 0 else vr(acc,4)}')
            p(f'v_mfma_f32_16x16x32_f16 {vr(acc+4,4)}, {vr(b+4,4)}, {vr(b+8,4)}, {"0" if s_ == 0 else vr(acc+4,4)}')
        for r in range(2): p(f'ds_write_b32 v{kt}, v{acc+r} offset:{4*r}')
        for r in range(2): p(f'ds_write_b32 v{kt+1}, v{acc+2+r} offset:{4*r}')
        p('s_mov_b32 exec_hi, 0')
        for r in range(4): p(f'ds_write_b32 v{kt+2}, v{acc+4+r} offset:{128*r}')
        p('s_mov_b32 exec_hi, -1')
        V.free('kacc', 'kfr', 'kr', 'ktb')
    def expand(self):
        p, V = self.p, self.V
        ea = V['expad']
        val = V.alloc('ev', 22); o = V.alloc('eo', 16, align=2); ad = V.alloc('ead')
        for c in range(2):
            for d in range(11):
                p(f'ds_read_b32 v{val+11*c+d}, v{ea+d} offset:{c*T_CH}')
        p(f'v_lshlrev_b32 v{ad}, 4, v0\nv_add_u32 v{ad}, {L_KC+80}, v{ad}')
        for c in range(2):
            for rho in range(4):
                b = o + 4 * rho
                for k in range(4):
                    p(f'v_cvt_pk_f16_f32 v{b+k}, v{val+11*c+7+rho-2*k}, v{val+11*c+6+rho-2*k}')
                p(f'ds_write_b128 v{ad}, {vr(b,4)} offset:{c*4*KC_STR+rho*KC_STR}')
        V.free('ev', 'eo', 'expad', 'ead')
        t = V.alloc('ext', 8, align=2)
        l1 = self.lab('x1'); l2 = self.lab('x2'); l3 = self.lab('x3')
        p(f's_cmp_eq_u32 {sWAVE}, 0\ns_cbranch_scc0 {l1}')
        with p.cond(lambda c: c['w'] == 0):
            p(f'''
            v_bfe_u32 v{t}, v1, 3, 2
            v_and_b32 v{t+1}, 7, v1
            v_sub_u32 v{t+2}, v{t+1}, v{t}
            v_cmp_lt_i32 s[54:55], 4, v{t+2}
            v_mov_b32 v{t+3}, {L_T+640*4}
            v_mov_b32 v{t+4}, {L_T+639*4}
            v_cndmask_b32 v{t+3}, v{t+3}, v{t+4}, s[54:55]
            v_mul_u32_u24 v{t+5}, {T_CH}, v{V['hh']}
            v_add_u32 v{t+3}, v{t+3}, v{t+5}
            ds_read_b32 v{t+3}, v{t+3}
            v_mul_u32_u24 v{t+4}, {4*KC_STR}, v{V['hh']}
            v_mul_u32_u24 v{t}, {KC_STR}, v{t}
            v_add_u32 v{t}, v{t}, v{t+4}
            v_lshlrev_b32 v{t+1}, 1, v{t+1}
            v_add_u32 v{t}, v{t}, v{t+1}
            v_add_u32 v{t}, {L_KC+64}, v{t}
            v_cvt_f16_f32 v{t+3}, v{t+3}
            ds_write_b16 v{t}, v{t+3}
            ''')
        p(f's_branch {l3}\n{l1}:')
        p(f's_cmp_eq_u32 {sWAVE}, 1\ns_cbranch_scc0 {l2}')
        with p.cond(lambda c: c['w'] == 1):
            p(f'''
            v_lshrrev_b32 v{t}, 3, v1
            v_mul_u32_u24 v{t}, {KC_STR}, v{t}
            v_and_b32 v{t+1}, 7, v1
            v_lshlrev_b32 v{t+2}, 4, v{t+1}
            v_lshrrev_b32 v{t+1}, 2, v{t+1}
            v_mul_u32_u24 v{t+1}, {4176-64}, v{t+1}
            v_add_u32 v{t}, v{t}, v{t+2}
            v_add_u32 v{t}, v{t}, v{t+1}
            v_add_u32 v{t}, {L_KC}, v{t}
            v_mov_b32 v{t+4}, 0
            v_mov_b32 v{t+5}, 0
            v_mov_b32 v{t+6}, 0
            v_mov_b32 v{t+7}, 0
            ds_write_b128 v{t}, {vr(t+4,4)}
            ''')
        p(f's_branch {l3}\n{l2}:')
        with p.cond(lambda c: c['w'] >= 2):
            p(f'''
            s_sub_u32 s52, {sWAVE}, 2
            s_mul_i32 s52, s52, {U_CH}
            s_add_u32 s52, s52, {L_U}
            v_add_u32 v{t}, s52, v{V['l16']}
            v_mov_b32 v{t+4}, 0
            v_mov_b32 v{t+5}, 0
            v_mov_b32 v{t+6}, 0
            v_mov_b32 v{t+7}, 0
            ds_write_b128 v{t}, {vr(t+4,4)}
            ds_write_b128 v{t}, {vr(t+4,4)} offset:1024
            s_mov_b32 exec_hi, 0
            ds_write_b128 v{t}, {vr(t+4,4)} offset:2048
            s_mov_b32 exec_hi, -1
            ''')
        p(f'{l3}:')
        V.free('ext')
    def xn_loads(self):
        p, V, A = self.p, self.V, self.A
        xf = A.alloc('xnf', 128, align=4, at=0)
        p(f'''
        s_lshl_b32 s56, {sTT}, 2
        s_add_u32 s56, s56, {sWAVE}
        s_lshl_b32 s57, s56, 15
        s_add_u32 s57, s57, {WS_XNF}
        ''')
        for ks in range(32):
            if ks % 4 == 0 and ks: p(f's_add_u32 s57, s57, 4096')
            p(f'buffer_load_dwordx4 {vr(xf+4*ks,4,"a")}, v{V["l16"]}, {SWS}, s57 offen offset:{1024*(ks%4)} sc1')
    def bias_init(self, acc, blk):
        p, bias = self.p, self.V['bias']
        for q in range(4):
            for e in range(2):
                b = bias + 8 * blk + 2 * q + e
                p(f'v_lshlrev_b32 v{acc+4*q+2*e}, 16, v{b}')
                p(f'v_and_b32 v{acc+4*q+2*e+1}, 0xffff0000, v{b}')
    def mish(self, acc, tm, pk, packed):
        p = self.p
        if packed:
            for r in range(0, 16, 2): p(f'v_pk_mul_f32 {vr(tm+r,2)}, {vr(acc+r,2)}, s[34:35] op_sel_hi:[1,0]')
            for r in range(16): p(f'v_exp_f32 v{tm+r}, v{tm+r}')
            for r in range(0, 16, 2):
                p(f'v_pk_add_f32 {vr(pk+(r&2),2)}, {vr(tm+r,2)}, 2.0 op_sel_hi:[1,0]')
                p(f'v_pk_fma_f32 {vr(tm+r,2)}, {vr(tm+r,2)}, {vr(pk+(r&2),2)}, 2.0 op_sel_hi:[1,1,0]')
            for r in range(16): p(f'v_rcp_f32 v{tm+r}, v{tm+r}')
            for r in range(0, 16, 2): p(f'v_pk_fma_f32 {vr(tm+r,2)}, {vr(tm+r,2)}, -2.0, 1.0 op_sel_hi:[1,0,0]')
            for r in range(0, 16, 2): p(f'v_pk_mul_f32 {vr(tm+r,2)}, {vr(tm+r,2)}, {vr(acc+r,2)}')
            for r in range(0, 16, 2): p(f'v_cvt_pk_bf16_f32 v{pk+r//2}, v{tm+r}, v{tm+r+1}')
        else:
            for r0 in range(0, 16, 4):
                R = range(r0, r0 + 4)
                for r in R: p(f'v_mul_f32 v{tm+r}, s34, v{acc+r}')
                for r in R: p(f'v_exp_f32 v{tm+r}, v{tm+r}')
                for r in R: p(f'v_add_f32 v{pk+(r&3)+4}, 2.0, v{tm+r}')
                for r in R: p(f'v_fma_f32 v{tm+r}, v{tm+r}, v{pk+(r&3)+4}, 2.0')
                for r in R: p(f'v_rcp_f32 v{tm+r}, v{tm+r}')
                for r in R: p(f'v_fma_f32 v{tm+r}, v{tm+r}, -2.0, 1.0')
                for r in R: p(f'v_mul_f32 v{tm+r}, v{tm+r}, v{acc+r}')
            for r in range(0, 16, 2): p(f'v_cvt_pk_bf16_f32 v{pk+r//2}, v{tm+r}, v{tm+r+1}')
    def act_store(self, pk, blk):
        p = self.p
        p(f's_add_u32 s39, s35, {2048*blk}')
        p(f'buffer_store_dwordx4 {vr(pk,4)}, v{self.V["l16"]}, {SWS}, s39 offen sc1', tag='actst')
        p(f'buffer_store_dwordx4 {vr(pk+4,4)}, v{self.V["l16"]}, {SWS}, s39 offen offset:1024 sc1', tag='actst')
    def gemm1(self):
        p, V, A = self.p, self.V, self.A
        xf = A['xnf']; wa = V['w1a']
        acc = V.alloc('g1acc', 48, align=2); fr = V.alloc('g1fr', 32, align=2); tm = V.alloc('g1tm', 16, align=2); pk = V.alloc('g1pk', 16, align=2)
        p(f'''
        s_mov_b32 s34, {f32(LOG2E)}
        s_lshl_b32 s56, {sTT}, 2
        s_add_u32 s56, s56, {sWAVE}
        s_mul_i32 s35, s56, {86*1024}
        s_lshl_b32 s59, {sFB0}, 11
        s_add_u32 s35, s35, s59
        s_add_u32 s35, s35, {WS_ACT}
        ''')
        self.bias_init(acc, 0); self.bias_init(acc + 16, 1)
        def rd(ks, blk, slot):
            b = fr + 4 * slot; base = wa + (ks >> 4); o = (ks & 15) * 3072 + 64 * blk
            p(f'ds_read_b64_tr_b16 {vr(b,2)}, v{base} offset:{o}')
            p(f'ds_read_b64_tr_b16 {vr(b+2,2)}, v{base} offset:{o+768}')
        with p.capture() as main:
            for ks in range(2): rd(ks, 0, 2 * (ks % 4)); rd(ks, 1, 2 * (ks % 4) + 1)
            for ks in range(32):
                if ks + 2 < 32: rd(ks + 2, 0, 2 * ((ks + 2) % 4)); rd(ks + 2, 1, 2 * ((ks + 2) % 4) + 1)
                p(f'v_mfma_f32_32x32x16_bf16 {vr(acc,16)}, {vr(fr+8*(ks%4),4)}, {vr(xf+4*ks,4,"a")}, {vr(acc,16)}')
                p(f'v_mfma_f32_32x32x16_bf16 {vr(acc+16,16)}, {vr(fr+8*(ks%4)+4,4)}, {vr(xf+4*ks,4,"a")}, {vr(acc+16,16)}')
        fill = self.cap(self.gemm_addr_setup)
        fill += self.cap(self.bias_init, acc + 32, 2)
        fill += self.cap(self.poll_issue, 'A2', V['us'] + 2, 64, 4)
        self.weave(main, fill, start=4)
        self.stamp('g1p1')
        self.poll_check('A2', V['us'] + 2, 64, 4)
        ud = V.alloc('ud', 8, align=2)
        p(f'''
        s_lshl_b32 s56, {sWAVE}, 19
        s_lshl_b32 s57, {sBETA}, 5
        s_add_u32 s56, s56, s57
        s_add_u32 s56, s56, {WS_UBLK}
        buffer_load_dwordx4 {vr(ud,4)}, v{V['us']}, {SWS}, s56 offen sc1
        buffer_load_dwordx4 {vr(ud+4,4)}, v{V['us']}, {SWS}, s56 offen offset:16 sc1
        ''')
        l2 = self.lab('g1n2'); l3 = self.lab('g1j')
        p(f's_cmp_eq_u32 {sNBLK}, 2\ns_cbranch_scc1 {l2}')
        with p.cond(lambda c: c['nblk'] == 3):
            with p.capture() as main:
                for ks in range(3): rd(ks, 2, ks % 4)
                for ks in range(32):
                    if ks + 3 < 32: rd(ks + 3, 2, (ks + 3) % 4)
                    p(f'v_mfma_f32_32x32x16_bf16 {vr(acc+32,16)}, {vr(fr+4*(ks%4),4)}, {vr(xf+4*ks,4,"a")}, {vr(acc+32,16)}')
            with p.capture() as fill:
                self.mish(acc, tm, pk, False); self.act_store(pk, 0)
                self.mish(acc + 16, tm, pk + 8, False); self.act_store(pk + 8, 1)
            self.weave(main, fill)
            p('s_barrier')
            self.w2_dma(0)
            self.mish(acc + 32, tm, pk, True); self.act_store(pk, 2)
        p(f's_branch {l3}\n{l2}:')
        with p.cond(lambda c: c['nblk'] == 2):
            p('s_barrier')
            self.w2_dma(0)
            self.mish(acc, tm, pk, True); self.act_store(pk, 0)
            self.mish(acc + 16, tm, pk + 8, True); self.act_store(pk + 8, 1)
        p(f'{l3}:')
        us = V['us']
        p(f'ds_write_b128 v{us+1}, {vr(ud,4)}')
        p(f'ds_write_b128 v{us+1}, {vr(ud+4,4)} offset:{U_CH}')
        p('s_waitcnt lgkmcnt(0)\ns_barrier')
        V.free('g1acc', 'g1fr', 'g1tm', 'g1pk', 'bias', 'w1a', 'ud', 'us')
        A.free('xnf')
        lab = self.lab('nw')
        p(f's_or_b32 s52, {sBETA}, {sWAVE}\ns_cmp_lg_u32 s52, 0\ns_cbranch_scc1 {lab}')
        with p.cond(lambda c: c['w'] == 0):
            p('s_mov_b32 s101, 0')
            self.flag_store('s101', WS_FLG)
        p(f'{lab}:')
    def act_flag(self):
        p = self.p
        p.wait_tag('actst')
        p(f'''
        s_lshl_b32 s101, {sTT}, 2
        s_add_u32 s101, s101, {sWAVE}
        s_lshl_b32 s101, s101, 4
        s_and_b32 s100, {sBETA}, 15
        s_add_u32 s101, s101, s100
        s_lshl_b32 s101, s101, 3
        ''')
        self.flag_store('s101', FL_B)
    def w2_dma(self, rnd):
        p, V = self.p, self.V
        ns = 22 if rnd == 0 else 21
        p(f'''
        s_mul_i32 s98, {sCH}, {43*16*1024}
        s_lshl_b32 s99, {sROLE}, 13
        s_add_u32 s98, s98, s99
        s_lshl_b32 s99, {sCG}, 7
        s_add_u32 s98, s98, s99
        s_add_u32 s98, s98, {22*rnd*16*1024}
        s_mul_i32 s99, {sCH}, {22*2048}
        s_lshl_b32 s97, {sROLE}, 10
        s_add_u32 s99, s99, s97
        s_add_u32 m0, s99, {L_W}
        ''')
        for s_ in range(ns):
            p(f'buffer_load_dwordx4 v{V["w2a"]}, {SW2}, s98 offen lds', tag=f'w2dma{rnd}')
            if s_ + 1 < ns: p(f's_add_u32 m0, m0, 2048\ns_add_u32 s98, s98, {16*1024}')
    def w2_read(self, rnd):
        p, V, A = self.p, self.V, self.A
        ns = 22 if rnd == 0 else 21
        t = V['w2a'] + 1
        for s_ in range(ns):
            b = self.w2reg(22 * rnd + s_)
            p(f'ds_read_b64_tr_b16 {vr(b,2,"a")}, v{t} offset:{2048*s_}')
            p(f'ds_read_b64_tr_b16 {vr(b+2,2,"a")}, v{t} offset:{2048*s_+1024}')
    def w2reg(self, sl): return 4 * sl
    def conv(self):
        p, V, A = self.p, self.V, self.A
        A.alloc('w2f', 172, align=4, at=0)
        aA, aB, ce = V['cA'], V['cB'], V['ce']
        acc = V.alloc('cacc', 32, align=2); fr = V.alloc('cfr', 32, align=2)
        a0, a1 = acc, acc + 16
        def rd(i):
            b = fr + 16 * (i & 1)
            oa = 32 * (31 - i); ob = 80 * (15 - i // 2) + (32 if i % 2 == 0 else 0)
            p(f'ds_read_b64 {vr(b,2)}, v{aA} offset:{oa}')
            p(f'ds_read_b64 {vr(b+2,2)}, v{aA} offset:{oa+8}')
            p(f'ds_read_b128 {vr(b+8,4)}, v{aB} offset:{ob}')
            p(f'ds_read_b128 {vr(b+12,4)}, v{aB} offset:{ob+2560}')
            p(f'ds_read_b64 {vr(b+4,2)}, v{aA+1} offset:{oa}')
            p(f'ds_read_b64 {vr(b+6,2)}, v{aA+1} offset:{oa+8}')
        def group(i):
            if i + 1 < 32: rd(i + 1)
            b = fr + 16 * (i & 1)
            p(f'v_mfma_f32_32x32x16_f16 {vr(a0,16)}, {vr(b,4)}, {vr(b+8,4)}, {vr(a0,16)}')
            p(f'v_mfma_f32_32x32x16_f16 {vr(a1,16)}, {vr(b,4)}, {vr(b+12,4)}, {vr(a1,16)}')
            p(f'v_mfma_f32_32x32x16_f16 {vr(a1,16)}, {vr(b+4,4)}, {vr(b+8,4)}, {vr(a1,16)}')
        b = fr + 16
        p(f'ds_read_b64 {vr(b,2)}, v{aA+2}')
        p(f'ds_read_b64 {vr(b+2,2)}, v{aA+2} offset:8')
        p(f'ds_read_b128 {vr(b+8,4)}, v{aB+1}')
        p(f'ds_read_b128 {vr(b+12,4)}, v{aB+1} offset:2560')
        rd(0)
        p(f'v_mfma_f32_32x32x16_f16 {vr(a0,16)}, {vr(b,4)}, {vr(b+8,4)}, 0')
        p(f'v_mfma_f32_32x32x16_f16 {vr(a1,16)}, {vr(b,4)}, {vr(b+12,4)}, 0')
        G1, G2, G3 = 12, 13, 21
        for i in range(G1): group(i)
        self.act_flag()
        for i in range(G1, G2): group(i)
        p.wait_tag('w2dma0'); p('s_barrier')
        main = self.cap(lambda: [group(i) for i in range(G2, G3)])
        self.weave(main, self.cap(self.w2_read, 0))
        p('s_waitcnt lgkmcnt(0)\ns_barrier')
        self.w2_dma(1)
        for i in range(G3, 32): group(i)
        V.free('cfr', 'cA', 'cB')
        self.stamp('convmm')
        self.poll_issue('B', V['g2a'] + 2, 32, 1)
        p.wait_tag('w2dma1'); p('s_barrier')
        ex = V.alloc('cex', 16, align=2); uu = V.alloc('cuu', 8, align=2); t = V.alloc('cvt', 2)
        l0 = self.lab('cr0'); l1 = self.lab('cr1')
        p(f's_cmp_eq_u32 {sROLE}, 0\ns_cbranch_scc0 {l0}')
        with p.cond(lambda c: c['w'] % 2 == 0):
            for q in range(4): p(f'ds_write_b128 v{ce}, {vr(a1+4*q,4)} offset:{1024*q}')
        p(f's_branch {l1}\n{l0}:')
        with p.cond(lambda c: c['w'] % 2 == 1):
            for q in range(4):
                p(f'ds_write_b128 v{ce}, {vr(a0+4*q,4)} offset:{1024*q}')
                if q:
                    for r in range(4 * (q - 1), 4 * q): p(f'v_mov_b32 v{a0+r}, v{a1+r}')
            for r in range(12, 16): p(f'v_mov_b32 v{a0+r}, v{a1+r}')
        p(f'{l1}:')
        for q in range(4): p(f'ds_read_b64 {vr(uu+2*q,2)}, v{ce+2} offset:{16*q}')
        self.w2_read(1)
        p('s_waitcnt lgkmcnt(0)\ns_barrier')
        for q in range(4): p(f'ds_read_b128 {vr(ex+4*q,4)}, v{ce+1} offset:{1024*q}')
        self.poll_check('B', V['g2a'] + 2, 32, 1)
        self.stamp('pollB')
        self.act_dma_setup()
        dm = [self.cap(self.act_dma, sl, sl) for sl in range(self.o['lead'])]
        with p.capture() as epi:
            for r in range(16): p(f'v_add_f32 v{a0+r}, v{a0+r}, v{ex+r}')
            for r in range(16): p(f'v_mul_f32 v{a0+r}, {sSIG}, v{a0+r}')
            for r in range(16):
                p(f'v_fma_mix_f32 v{a0+r}, v{uu+r//2}, {sDV}, v{a0+r} op_sel:[{r&1},0,0] op_sel_hi:[1,0,0]')
            for r in range(8): p(f'v_cvt_pk_bf16_f32 v{ex+r}, v{a0+2*r}, v{a0+2*r+1}')
            for q in range(4):
                p(f'v_xor_b32 v{t}, {16*q}, v{ce+4}')
                p(f'v_add_u32 v{t}, v{t}, v{ce+3}')
                p(f'ds_write_b64 v{t}, {vr(ex+2*q,2)}')
            p(f'ds_read_b128 {vr(ex+8,4)}, v{ce+5}')
            p(f'ds_read_b128 {vr(ex+12,4)}, v{ce+5} offset:1024')
            p(f'''
            s_lshl_b32 s58, {sBETA}, 1
            s_add_u32 s58, s58, {sCH}
            s_lshl_b32 s58, s58, 12
            s_lshl_b32 s59, {sROLE}, 11
            s_add_u32 s58, s58, s59
            s_add_u32 s58, s58, {WS_ST}
            ''')
            p(f'buffer_store_dwordx4 {vr(ex+8,4)}, v{V["l16"]}, {SWS}, s58 offen sc1', tag='stst')
            p(f'buffer_store_dwordx4 {vr(ex+12,4)}, v{V["l16"]}, {SWS}, s58 offen offset:1024 sc1', tag='stst')
        p.merge(epi, dm, 0, len(epi) - 10)
        V.free('cvt', 'cacc', 'cex', 'cuu', 'ce', 'w2a')
    def st_flag(self):
        p = self.p
        p.wait_tag('stst')
        p(f'''
        s_lshl_b32 s101, {sROLE}, 9
        s_lshl_b32 s100, {sBETA}, 1
        s_add_u32 s101, s101, s100
        s_add_u32 s101, s101, {sCH}
        s_lshl_b32 s101, s101, 3
        ''')
        self.flag_store('s101', FL_C)
    def act_dma_setup(self):
        p = self.p
        p(f'''
        s_lshl_b32 s96, {sTG}, 1
        s_add_u32 s96, s96, {sROLE}
        s_mul_i32 s96, s96, {86*1024}
        s_mul_i32 s97, {sCH}, {43*1024}
        s_add_u32 s96, s96, s97
        s_add_u32 s96, s96, {WS_ACT}
        s_lshl_b32 s97, {sCH}, 11
        s_lshl_b32 s98, {sROLE}, 10
        s_add_u32 s97, s97, s98
        ''')
    def act_dma(self, sl, slot):
        p = self.p
        p(f's_add_u32 m0, s97, {slot*4096}')
        p(f's_add_u32 s98, s96, {sl*1024}')
        p(f'buffer_load_dwordx4 v{self.V["l16"]}, {SWS}, s98 offen sc1 lds', tag=f'act{sl}')
    def gemm2(self):
        p, V, A = self.p, self.V, self.A
        g2 = V['g2a']
        p('s_barrier')
        lead = self.o['lead']
        acc = V.alloc('g2acc', 32, align=2); fr = V.alloc('g2fr', 24, align=2)
        xd = V.alloc('g2xd', 8, align=2); sd = V.alloc('g2sd', 8, align=2)
        def rd(sl):
            slot = sl if sl < R1 else sl - R1
            o = slot * 4096; base = g2
            if o >= 0x20000: o -= 0x20000; base = g2 + 10
            elif o >= 0x10000: o -= 0x10000; base = g2 + 1
            b = fr + 8 * (sl % 3)
            p(f'ds_read_b128 {vr(b,4)}, v{base} offset:{o}')
            p(f'ds_read_b128 {vr(b+4,4)}, v{base} offset:{o+1024}')
        def mm(lo, hi):
            for sl in range(lo, min(lo + 2, hi)): rd(sl)
            for sl in range(lo, hi):
                if sl + 2 < hi: rd(sl + 2)
                if sl + lead < 43: self.act_dma(sl + lead, (sl + lead) % R1)
                b = fr + 8 * (sl % 3); wf = self.w2reg(sl)
                c0 = '0' if sl == 0 else vr(acc, 16); c1 = '0' if sl == 0 else vr(acc + 16, 16)
                p(f'v_mfma_f32_32x32x16_bf16 {vr(acc,16)}, {vr(wf,4,"a")}, {vr(b,4)}, {c0}')
                p(f'v_mfma_f32_32x32x16_bf16 {vr(acc+16,16)}, {vr(wf,4,"a")}, {vr(b+4,4)}, {c1}')
        stages = [0, 6, 12, 18, 24, 30, 36, 43]
        for si in range(len(stages) - 1):
            lo, hi = stages[si], stages[si + 1]
            p.wait_tag(f'act{hi-1}')
            p('s_barrier')
            if si == 2:
                self.st_flag()
                p(f'''
                s_lshl_b32 s56, {sTG}, 16
                s_lshl_b32 s57, {sCH}, 15
                s_add_u32 s56, s56, s57
                s_lshl_b32 s57, {sCG}, 7
                s_add_u32 s56, s56, s57
                s_lshl_b32 s57, {sROLE}, 6
                s_add_u32 s39, s56, s57
                ''')
                for q in range(4): p(f'buffer_load_dwordx2 {vr(xd+2*q,2)}, v{g2+9}, {SX}, s39 offen offset:{16*q}')
            if si == 5: self.poll_issue('C', g2 + 3, 64, 1)
            if si == 6:
                self.poll_check('C', g2 + 3, 64, 1)
                p(f'''
                s_lshl_b32 s56, {sCG}, 18
                s_lshl_b32 s57, {sTG}, 7
                s_add_u32 s56, s56, s57
                s_add_u32 s56, s56, {WS_ST}
                s_add_u32 s57, s56, {32*4096}
                buffer_load_dwordx4 {vr(sd,4)}, v{g2+6}, {SWS}, s56 offen sc1
                buffer_load_dwordx4 {vr(sd+4,4)}, v{g2+6}, {SWS}, s57 offen sc1
                ''')
            mm(lo, hi)
        V.free('g2fr'); A.free('w2f')
        self.stamp('g2mm')
        p(f'ds_write_b128 v{g2+7}, {vr(sd,4)}')
        p(f'ds_write_b128 v{g2+7}, {vr(sd+4,4)} offset:{32*ST_STR}')
        p('s_barrier')
        ex = V.alloc('g2ex', 16, align=2)
        l0 = self.lab('g20'); l1 = self.lab('g21')
        p(f's_cmp_eq_u32 {sCH}, 0\ns_cbranch_scc0 {l0}')
        with p.cond(lambda c: c['w'] < 2):
            for q in range(4): p(f'ds_write_b128 v{g2+4}, {vr(acc+16+4*q,4)} offset:{1024*q}')
        p(f's_branch {l1}\n{l0}:')
        with p.cond(lambda c: c['w'] >= 2):
            for q in range(4):
                p(f'ds_write_b128 v{g2+4}, {vr(acc+4*q,4)} offset:{1024*q}')
                if q:
                    for r in range(4 * (q - 1), 4 * q): p(f'v_mov_b32 v{acc+r}, v{acc+16+r}')
            for r in range(12, 16): p(f'v_mov_b32 v{acc+r}, v{acc+16+r}')
        p(f'{l1}:')
        p('s_waitcnt lgkmcnt(0)\ns_barrier')
        for q in range(4): p(f'ds_read_b128 {vr(ex+4*q,4)}, v{g2+5} offset:{1024*q}')
        for q in range(4): p(f'ds_read_b64_tr_b16 {vr(sd+2*q,2)}, v{g2+8} offset:{8*q*ST_STR}')
        p(f's_mov_b32 s34, {f32(-LOG2E)}')
        for r in range(0, 16, 2): p(f'v_pk_add_f32 {vr(acc+r,2)}, {vr(acc+r,2)}, {vr(ex+r,2)}')
        for r in range(0, 16, 2): p(f'v_pk_mul_f32 {vr(ex+r,2)}, {vr(acc+r,2)}, s[34:35] op_sel_hi:[1,0]')
        for r in range(16): p(f'v_exp_f32 v{ex+r}, v{ex+r}')
        for r in range(0, 16, 2): p(f'v_pk_add_f32 {vr(ex+r,2)}, {vr(ex+r,2)}, 1.0 op_sel_hi:[1,0]')
        for r in range(16): p(f'v_rcp_f32 v{ex+r}, v{ex+r}')
        for r in range(0, 16, 2): p(f'v_pk_mul_f32 {vr(acc+r,2)}, {vr(acc+r,2)}, {vr(ex+r,2)}')
        for r in range(16):
            if r % 2 == 0: p(f'v_lshlrev_b32 v{ex+r}, 16, v{sd+r//2}')
            else: p(f'v_and_b32 v{ex+r}, 0xffff0000, v{sd+r//2}')
        for r in range(0, 16, 2): p(f'v_pk_mul_f32 {vr(acc+r,2)}, {vr(acc+r,2)}, {vr(ex+r,2)}')
        for r in range(8): p(f'v_cvt_pk_bf16_f32 v{sd+r}, v{acc+2*r}, v{acc+2*r+1}')
        for r in range(8):
            p(f'v_lshlrev_b32 v{ex}, 16, v{sd+r}')
            p(f'v_and_b32 v{ex+1}, 0xffff0000, v{sd+r}')
            p(f'v_lshlrev_b32 v{ex+2}, 16, v{xd+r}')
            p(f'v_and_b32 v{ex+3}, 0xffff0000, v{xd+r}')
            p(f'v_pk_add_f32 {vr(ex,2)}, {vr(ex,2)}, {vr(ex+2,2)}')
            p(f'v_cvt_pk_bf16_f32 v{xd+r}, v{ex}, v{ex+1}')
            if r % 2 == 1:
                q = r // 2
                p(f'buffer_store_dwordx2 {vr(xd+2*q,2)}, v{g2+9}, {SOUT}, s39 offen offset:{16*q}')
        V.free('g2acc', 'g2ex', 'g2sd', 'g2xd', 'g2a')
    def dump_lds(self, lds_off, nbytes, ws_off):
        p, V = self.p, self.V
        t = V.alloc('dmp', 6, align=2)
        p('s_waitcnt lgkmcnt(0)\ns_barrier')
        stride = (nbytes + 4095) // 4096 * 4096
        p(f's_mul_i32 s52, {sBETA}, {stride}\ns_add_u32 s52, s52, {ws_off}')
        p(f'v_lshlrev_b32 v{t}, 4, v0')
        for k in range(stride // 4096):
            p(f'v_add_u32 v{t+1}, {lds_off + 4096*k}, v{t}')
            p(f'ds_read_b128 {vr(t+2,4)}, v{t+1}')
            p(f'buffer_store_dwordx4 {vr(t+2,4)}, v{t}, {SWS}, s52 offen')
            p(f's_add_u32 s52, s52, 4096')
            p('s_waitcnt vmcnt(0)')
        p('s_barrier')
        V.free('dmp')
    def finish(self):
        p = self.p
        if self.stamps:
            V = self.V
            t = V.alloc('stt'); t2 = V.alloc('stt2')
            if getattr(self, 'only', None) is not None:
                p('s_waitcnt lgkmcnt(0)')
                for k in range(len(self.stamp_names)): p(f'v_writelane_b32 v255, s{64+2*k}, {k}')
            p(f'''
            s_waitcnt vmcnt(0) lgkmcnt(0)
            s_memrealtime s[94:95]
            s_waitcnt lgkmcnt(0)
            v_writelane_b32 v255, s94, 63
            s_lshl_b32 s52, s2, 2
            s_add_u32 s52, s52, {sWAVE}
            s_lshl_b32 s52, s52, 8
            s_add_u32 s52, s52, {WS_DBG}
            v_lshlrev_b32 v{t}, 2, v1
            buffer_store_dword v255, v{t}, {SWS}, s52 offen
            ''')
            if self.dbgstamps:
                lab = self.lab('dbgst')
                p(f's_or_b32 s52, s2, {sWAVE}\ns_cmp_lg_u32 s52, 0\ns_cbranch_scc1 {lab}')
                p('v_readlane_b32 s53, v255, 0')
                for k, nm in enumerate(self.dbgstamps):
                    idx = self.stamp_names.index(nm)
                    p(f'v_readlane_b32 s54, v255, {idx}')
                    p(f's_sub_u32 s54, s54, s53')
                    p(f'v_mov_b32 v{t}, {4*k}')
                    p(f'v_mov_b32 v{t2}, s54')
                    p(f'global_store_dword v{t}, v{t2}, {pDBG}')
                p('v_readlane_b32 s53, v255, 62\nv_readlane_b32 s54, v255, 63\ns_sub_u32 s54, s54, s53')
                p(f'v_mov_b32 v{t}, 60\nv_mov_b32 v{t2}, s54\nglobal_store_dword v{t}, v{t2}, {pDBG}')
                p(f'{lab}:')
        p('L_end:\ns_endpgm')
    def build(self):
        p, V = self.p, self.V
        self.entry()
        p('s_mov_b32 s34, 128')
        self.idle_setup()
        self.gemm1_addr_setup()
        self.stamp('idle')
        self.ln()
        self.stamp('lnst')
        groups = self.w1_dma_groups()
        self.kgen_setup()
        p('s_barrier')
        self.stamp('ksetup')
        main = self.kgen_values()
        n1 = len(main) * 11 // 20
        if self.o.get('nodmak'):
            p.ins.extend(main[:n1]); self.stamp('khalf'); self.ln_flag(); self.stamp('flagA'); p.ins.extend(main[n1:]); self.stamp('kpure')
            for g_ in groups + [self.w2_touch()]: p.ins.extend(g_)
        else:
            p.merge(main[:n1], groups[:13])
            self.ln_flag()
            p.merge(main[n1:], groups[13:] + [self.w2_touch()])
        V.free('w1off', 'z', 'Z256', 'Cn', 'z2', 'z4', 'w', 'w2', 'w4', 'chains', 'cv', 'fa')
        self.stamp('kvals')
        self.poll_issue('A1', V['pA1'], 8, 1)
        p('s_waitcnt lgkmcnt(0)\ns_barrier')
        self.kgen_mfma()
        self.poll_check('A1', V['pA1'], 8, 1)
        V.free('pA1')
        self.stamp('pollA1')
        xl = self.cap(self.xn_loads)
        p('s_waitcnt lgkmcnt(0)\ns_barrier')
        if 'table' in self.dump: self.dump_lds(L_T, 2 * T_CH, WS_DBG + 0x100000)
        ex = self.cap(self.expand)
        grp = []; cur = []
        for i in xl:
            cur.append(i)
            if i.kind == 'vm_load': grp.append(cur); cur = []
        ncommon = next(k for k, i in enumerate(ex) if i.kind == 'branch')
        p.merge(ex[:ncommon - 1], grp)
        p.ins.extend(ex[ncommon - 1:])
        p('s_waitcnt lgkmcnt(0)\ns_barrier')
        self.stamp('expand')
        if 'kc' in self.dump: self.dump_lds(L_KC, 8 * KC_STR, WS_DBG + 0x400000)
        self.gemm1()
        self.stamp('gemm1')
        self.conv()
        self.stamp('conv')
        self.gemm2()
        self.stamp('end')
        self.finish()
        body = p.render().rstrip('\n').split('\n')
        if self.o['pads']:
            wi = [l.strip() for l in body].index(';WARM')
            tmp = body[:wi] + body[wi + 1:]
            tmp, padl = PADS.add_page_pads(tmp, 'L_main', 'L_warm_ret')
            wi = tmp.index('L_warm_ret:')
            warm = []
            for w in range(min(4, len(padl))):
                warm += [f'    s_cmp_eq_u32 {sWAVE}, {w}', f'    s_cbranch_scc1 {padl[w]}']
            body = tmp[:wi] + warm + tmp[wi:]
            self.npads = len(padl)
        names = ''.join(f'; stamp {n}\n' for n in self.stamp_names)
        hdr = f'''; S4D conv + mish MLP gated block, single persistent launch (generated by gen/kern2.py)
; @launch grid=(256,1,1) block=(256,1,1) lds={LDS_BYTES}
{names}.amdgcn_target "amdgcn-amd-amdhsa--gfx950"
.text
.globl {NAME}
.p2align 8
.type {NAME},@function
{NAME}:
'''
        tail = f'''
.section .rodata,"a"
.p2align 6
.amdhsa_kernel {NAME}
  .amdhsa_next_free_vgpr 512
  .amdhsa_next_free_sgpr 102
  .amdhsa_accum_offset 256
  .amdhsa_group_segment_fixed_size 0
  .amdhsa_kernarg_size 112
  .amdhsa_user_sgpr_count 2
  .amdhsa_user_sgpr_kernarg_segment_ptr 1
  .amdhsa_system_sgpr_workgroup_id_x 1
  .amdhsa_ieee_mode 0
  .amdhsa_dx10_clamp 0
.end_amdhsa_kernel
'''
        return hdr + '\n'.join(body) + '\n' + tail

if __name__ == '__main__':
    import argparse
    ap = argparse.ArgumentParser()
    ap.add_argument('-o', default='k.s')
    ap.add_argument('--stamps', action='store_true')
    ap.add_argument('--dump', default=None)
    ap.add_argument('--dbg', default=None)
    ap.add_argument('--opt', default='')
    a = ap.parse_args()
    opts = {}
    for kv in a.opt.split(','):
        if kv:
            k, v = kv.split('='); opts[k] = int(v)
    g = Gen(stamps=a.stamps, dump=set(a.dump.split(',')) if a.dump else None, dbgstamps=a.dbg.split(',') if a.dbg else None, opts=opts)
    s = g.build()
    open(a.o, 'w').write(s)
    print('vgpr hi', g.V.hi, 'agpr hi', g.A.hi, 'lines', s.count('\n'), 'pads', getattr(g, 'npads', 0))
```

```python
import sys, math
from regs import vr
import kern2
from kern2 import *
import pads as PADS

L_BIAS = L_MISC + 64
L_X = L_F + 50688
W1B = 32768
ROUNDS = [(0, 8), (8, 16), (16, 24), (24, 32), (32, 40), (40, 43)]
RREG = [L_W, L_W + W1B, L_W + 2 * W1B, L_W, L_W + W1B, L_X]
NRING = 12
ST3_L = L_U

class Gen3(kern2.Gen):
    def __init__(self, **kw):
        super().__init__(**kw)
        self.o.setdefault('xlead', 10); self.o.setdefault('alead', 10)
    def fstamp(self, name):
        if self.o.get('fine') or getattr(self, 'only', None) is not None: self.stamp(name)
    def entry(self):
        p, V = self.p, self.V
        x0 = V.alloc('x0', 4); x1 = V.alloc('x1', 4)
        l16 = V.alloc('l16'); t = V.alloc('t0'); t2 = V.alloc('t1')
        if self.stamps: p('s_memrealtime s[98:99]')
        p(f'''
        s_load_dwordx16 s[64:79], s[0:1], 0
        s_load_dwordx8 s[80:87], s[0:1], 64
        s_load_dwordx4 s[88:91], s[0:1], 96
        s_cmp_ge_u32 s2, 256
        s_cbranch_scc1 L_end
        v_and_b32 v1, 63, v0
        v_lshrrev_b32 v2, 6, v0
        s_and_b32 s52, s2, 7
        s_lshr_b32 s53, s2, 3
        v_readfirstlane_b32 {sWAVE}, v2
        s_lshl_b32 {sBETA}, s52, 5
        s_add_u32 {sBETA}, {sBETA}, s53
        v_lshlrev_b32 v{l16}, 4, v1
        s_lshl_b32 s52, {sBETA}, 3
        s_lshl_b32 s53, {sWAVE}, 1
        s_add_u32 s52, s52, s53
        s_lshl_b32 s52, s52, 10
        s_mov_b32 s10, 0x200000
        s_mov_b32 s11, 0x20000
        s_lshr_b32 {sCH}, {sWAVE}, 1
        s_and_b32 {sROLE}, {sWAVE}, 1
        s_lshl_b32 s54, {sBETA}, 1
        s_add_u32 s54, s54, {sCH}
        s_lshl_b32 s54, s54, 8
        v_lshlrev_b32 v{t2}, 2, v1
        v_add_u32 v{t}, s54, v{t2}
        s_lshl_b32 s58, {sBETA}, 2
        s_and_b32 s54, {sBETA}, 15
        s_mul_i32 {sFB0}, s54, 3
        s_lshl_b32 s55, s54, 1
        s_add_u32 s55, s55, 11
        s_cmp_lt_u32 s54, 11
        s_cselect_b32 {sFB0}, {sFB0}, s55
        s_cselect_b32 {sNBLK}, 3, 2
        s_waitcnt lgkmcnt(0)
        s_mov_b32 s8, s64
        s_mov_b32 s9, s65
        ''')
        if self.stamps: p('s_mov_b32 s36, s98')
        p(f'buffer_load_dwordx4 {vr(x0,4)}, v{l16}, {SX}, s52 offen')
        p(f'buffer_load_dwordx4 {vr(x1,4)}, v{l16}, {SX}, s52 offen offset:1024')
        pr = V.alloc('par', 4)
        p(f'''
        global_load_dword v{pr}, v{t}, {pLOGA}
        global_load_dword v{pr+1}, v{t}, {pAIM}
        global_load_dword v{pr+2}, v{t}, {pCRE}
        global_load_dword v{pr+3}, v{t}, {pCIM}
        s_load_dword {sLDT}, {pLOGDT}, s58
        s_load_dword {sDSK}, {pDSK}, s58
        s_mov_b32 s20, s90
        s_mov_b32 s21, s91
        s_mov_b32 s22, {WS_BYTES}
        s_mov_b32 s23, 0x20000
        s_mov_b32 s12, s80
        s_mov_b32 s13, s81
        s_mov_b32 s14, {512*1376*2}
        s_mov_b32 s15, 0x20000
        s_mov_b32 s28, s82
        s_mov_b32 s29, s83
        s_mov_b32 s30, {1376*2}
        s_mov_b32 s31, 0x20000
        ''')
        nv = V.alloc('nonce'); vo = V.alloc('w1off', 4)
        p(f'''
        v_lshrrev_b32 v{t}, 2, v1
        v_mul_u32_u24 v{t}, 2752, v{t}
        v_and_b32 v{vo}, 3, v1
        v_lshlrev_b32 v{vo}, 4, v{vo}
        v_add_u32 v{vo}, v{vo}, v{t}
        v_add_u32 v{vo+1}, {16*2752-1024}, v{vo}
        v_add_u32 v{vo+2}, {2*(16*2752-1024)}, v{vo}
        v_add_u32 v{vo+3}, {3*(16*2752-1024)}, v{vo}
        ''')
        l0 = self.lab('e0'); l1 = self.lab('e1'); l2 = self.lab('e2')
        p(f's_cmp_ge_u32 {sWAVE}, 2\ns_cbranch_scc1 {l1}')
        p(f's_cmp_eq_u32 {sWAVE}, 0\ns_cbranch_scc0 {l0}')
        with p.cond(lambda c: c['w'] == 0):
            p(f'v_mov_b32 v{t}, {WS_FLG}')
            p(f'buffer_load_dword v{nv}, v{t}, {SWS}, 0 offen sc1')
        p(f's_branch {l2}\n{l0}:')
        with p.cond(lambda c: c['w'] == 1):
            p(f's_lshl_b32 s52, {sFB0}, 6')
            p(f'buffer_load_dword v{nv}, v{t2}, {SB1}, s52 offen')
        p(f's_branch {l2}\n{l1}:')
        with p.cond(lambda c: c['w'] >= 2):
            p(f'''
            s_sub_u32 s52, {sWAVE}, 2
            s_mul_i32 s53, s52, {12*16*2752}
            s_lshl_b32 s54, {sFB0}, 6
            s_add_u32 s96, s53, s54
            s_mul_i32 s53, s52, {12*1024}
            s_add_u32 m0, s53, {L_W}
            ''')
            for g in range(3):
                for k in range(4):
                    p(f'buffer_load_dwordx4 v{vo+k}, {SW1}, s96 offen offset:{1024*k} lds', tag='w1dma')
                if g < 2: p(f's_add_u32 s96, s96, {4*16*2752}\ns_add_u32 m0, m0, 4096')
        p(f'{l2}:')
        p(f'''
        s_mov_b32 s16, s84
        s_mov_b32 s17, s85
        s_mov_b32 s18, {512*1376*2}
        s_mov_b32 s19, 0x20000
        s_mov_b32 s24, s86
        s_mov_b32 s25, s87
        s_mov_b32 s26, 0x200000
        s_mov_b32 s27, 0x20000
        s_mov_b64 {pDBG}, s[88:89]
        s_lshr_b32 {sTT}, {sBETA}, 4
        s_lshr_b32 {sTG}, {sBETA}, 3
        s_and_b32 {sCG}, {sBETA}, 7
        ''')
        V.free('t0', 't1')
        self.stamp('start')
        if self.stamps:
            p('v_writelane_b32 v255, s36, 62')
        if self.o['pads']:
            p('s_mov_b64 exec, 0\n;WARM\nL_warm_ret:\ns_mov_b64 exec, -1')
        p('s_branch L_main\n.p2align 12\nL_main:')
    def idle_setup(self):
        p, V = self.p, self.V
        t = V.alloc('ist', 8, align=2)
        n31 = V.alloc('n31'); hh = V.alloc('hh')
        p(f'v_and_b32 v{n31}, 31, v1\nv_lshrrev_b32 v{hh}, 5, v1')
        z = t + 4
        for k in range(4): p(f'v_mov_b32 v{z+k}, 0')
        p(f'v_lshlrev_b32 v{t}, 4, v0\nv_add_u32 v{t}, {L_T}, v{t}')
        p(f'ds_write_b128 v{t}, {vr(z,4)}')
        p(f'''
        v_cmp_gt_u32 vcc, {(2*T_CH-4096)//16}, v0
        s_and_saveexec_b64 s[62:63], vcc
        ds_write_b128 v{t}, {vr(z,4)} offset:4096
        s_mov_b64 exec, s[62:63]
        ''')
        fa = V.alloc('fa', 14); kr = V.alloc('kr', 2); kt = V.alloc('ktb', 3)
        p(f'''
        s_mul_i32 s52, {sWAVE}, {F_WAVE}
        s_add_u32 s52, s52, {L_F}
        v_lshlrev_b32 v{fa}, 2, v1
        v_add_u32 v{fa}, s52, v{fa}
        ''')
        for k in range(1, 6): p(f'v_add_u32 v{fa+k}, {4*272*k}, v{fa}')
        for k in range(8): p(f'v_add_u32 v{fa+6+k}, {(21+4*k)*272}, v{fa}')
        p(f'''
        v_and_b32 v{t}, 15, v1
        v_lshrrev_b32 v{t+1}, 4, v1
        v_lshlrev_b32 v{kr}, 4, v{t+1}
        v_mul_u32_u24 v{t+2}, 272, v{t}
        v_add_u32 v{kr}, v{kr}, v{t+2}
        s_mul_i32 s52, {sCH}, {2*F_WAVE}
        s_add_u32 s52, s52, {L_F}
        v_add_u32 v{kr}, s52, v{kr}
        s_mul_i32 s53, {sROLE}, {16*272}
        s_add_u32 s53, s53, {21*272}
        v_add_u32 v{kr+1}, s53, v{kr}
        s_lshl_b32 s53, {sROLE}, 4
        v_add_u32 v{t}, s53, v{t}
        s_mul_i32 s52, {sCH}, {T_CH}
        s_add_u32 s52, s52, {L_T}
        v_lshlrev_b32 v{kt}, 5, v{t}
        v_lshlrev_b32 v{t+2}, 4, v{t+1}
        v_add_u32 v{kt}, v{kt}, v{t+2}
        v_lshlrev_b32 v{t+2}, 4, v{t}
        v_add_u32 v{t+2}, 1024, v{t+2}
        v_cmp_eq_u32 s[54:55], 2, v{t+1}
        v_cndmask_b32 v{kt}, v{kt}, v{t+2}, s[54:55]
        v_lshlrev_b32 v{t+2}, 3, v{t}
        v_add_u32 v{t+2}, 1536, v{t+2}
        v_cmp_eq_u32 s[54:55], 3, v{t+1}
        v_cndmask_b32 v{kt}, v{kt}, v{t+2}, s[54:55]
        v_mov_b32 v{kt+1}, 8
        v_mov_b32 v{t+2}, 256
        v_cndmask_b32 v{kt+1}, v{kt+1}, v{t+2}, s[54:55]
        v_add_u32 v{kt}, s52, v{kt}
        v_add_u32 v{kt+1}, v{kt+1}, v{kt}
        v_min_u32 v{kt+2}, 1, v{t+1}
        v_lshlrev_b32 v{kt+2}, 9, v{kt+2}
        v_lshlrev_b32 v{t+2}, 2, v{t}
        v_add_u32 v{kt+2}, v{kt+2}, v{t+2}
        v_add_u32 v{kt+2}, s52, v{kt+2}
        v_add_u32 v{kt+2}, 2048, v{kt+2}
        ''')
        ea = V.alloc('expad', 11)
        p(f'v_lshlrev_b32 v{t}, 3, v0\nv_sub_u32 v{t}, 2033, v{t}')
        p(f'v_mov_b32 v{t+3}, {T_ZERO//4}')
        p('s_mov_b32 s34, 128')
        for d in range(11):
            J = t + 1; fJ = t + 2; c = ea + d
            p(f'''
            v_add_u32 v{J}, {d}, v{t}
            v_cvt_f32_i32 v{fJ}, v{J}
            v_cmp_gt_i32 s[56:57], 0, v{J}
            v_cvt_pk_bf16_f32 v{fJ}, v{fJ}, v{fJ}
            v_cmp_gt_i32 s[58:59], s34, v{J}
            v_and_b32 v{fJ}, 0xffff, v{fJ}
            v_subrev_u32 v{c}, 17024, v{fJ}
            v_cndmask_b32 v{c}, v{c}, v{J}, s[58:59]
            v_cndmask_b32 v{c}, v{c}, v{t+3}, s[56:57]
            v_lshlrev_b32 v{c}, 2, v{c}
            v_add_u32 v{c}, {L_T}, v{c}
            ''')
        V.free('ist')
    def gemm1_addr_setup(self):
        p, V = self.p, self.V
        t = V.alloc('g1st', 2); wa = V.alloc('w1a', 2); pa = V.alloc('pA1'); bi = V.alloc('bia')
        hh = V['hh']
        p(f'''
        v_lshlrev_b32 v{t}, 3, v{hh}
        v_bfe_u32 v{t+1}, v1, 2, 2
        v_add_u32 v{t}, v{t}, v{t+1}
        v_lshlrev_b32 v{t}, 6, v{t}
        v_bfe_u32 v{t+1}, v1, 4, 1
        v_lshlrev_b32 v{t+1}, 5, v{t+1}
        v_add_u32 v{t}, v{t}, v{t+1}
        v_and_b32 v{t+1}, 3, v1
        v_lshlrev_b32 v{t+1}, 3, v{t+1}
        v_add_u32 v{wa}, v{t}, v{t+1}
        v_add_u32 v{wa}, {L_W}, v{wa}
        v_add_u32 v{wa+1}, {2*W1B}, v{wa}
        s_lshl_b32 s56, {sTT}, 2
        s_add_u32 s56, s56, {sWAVE}
        s_lshl_b32 s57, s56, 6
        s_add_u32 s57, s57, {FL_A}
        v_lshlrev_b32 v{t}, 3, v1
        v_add_u32 v{pa}, s57, v{t}
        v_lshlrev_b32 v{bi}, 4, v{hh}
        v_add_u32 v{bi}, {L_BIAS}, v{bi}
        ''')
        V.free('g1st')
    def bias_to_lds(self):
        p, V = self.p, self.V
        nv = V['nonce']; t = V.alloc('btl', 4, align=2)
        p(f'''
        v_lshlrev_b32 v{t}, 16, v{nv}
        v_and_b32 v{t+1}, 0xffff0000, v{nv}
        v_lshlrev_b32 v{t+2}, 3, v1
        v_add_u32 v{t+2}, {L_BIAS}, v{t+2}
        s_mov_b32 exec_lo, -1
        s_mov_b32 exec_hi, 0xffff
        ds_write_b64 v{t+2}, {vr(t,2)}
        s_mov_b64 exec, -1
        ''')
        V.free('btl')
    def bias_init(self, acc, blk):
        p = self.p
        for q in range(4): p(f'ds_read_b128 {vr(acc+4*q,4)}, v{self.V["bia"]} offset:{128*blk+32*q}')
    def w1_late_groups(self):
        p, V = self.p, self.V
        vo = V['w1off']
        def run(blk, rg0_expr, n):
            gs = []
            with p.capture() as b:
                p(rg0_expr)
                p(f'''
                s_mul_i32 s96, s98, {16*2752}
                s_lshl_b32 s97, {sFB0}, 6
                s_add_u32 s96, s96, s97
                s_add_u32 s96, s96, {64*blk}
                s_lshl_b32 s97, s98, 10
                s_add_u32 m0, s97, {L_W + W1B*blk}
                ''')
                p(f'buffer_load_dwordx4 v{vo}, {SW1}, s96 offen lds', tag='w1dma')
            gs.append(b)
            for k in range(1, n):
                with p.capture() as b:
                    if k % 4 == 0: p(f's_add_u32 s96, s96, {4*16*2752}\ns_add_u32 m0, m0, 4096')
                    p(f'buffer_load_dwordx4 v{vo+k%4}, {SW1}, s96 offen offset:{1024*(k%4)} lds', tag='w1dma')
                gs.append(b)
            return gs
        a = run(0, f's_lshl_b32 s98, {sWAVE}, 1\ns_add_u32 s98, s98, 24', 2)
        a += run(1, f's_lshl_b32 s98, {sWAVE}, 3', 8)
        with p.cond(lambda c: c['nblk'] == 3):
            b = run(2, f's_lshl_b32 s98, {sWAVE}, 3', 8)
        return a, b
    def kgen_setup(self):
        p, V = self.p, self.V
        pr = V['par']
        t = V.alloc('kt', 8, align=2)
        z = V.alloc('z', 2); Z = V.alloc('Z256', 2); C = V.alloc('Cn', 2)
        p(f'''
        s_lshl_b32 s53, {sLDT}, 16
        s_and_b32 s54, {sLDT}, 0xffff0000
        s_lshl_b32 s56, {sDSK}, 16
        s_and_b32 s55, {sDSK}, 0xffff0000
        s_cmp_eq_u32 {sCH}, 0
        s_cselect_b32 s53, s53, s54
        s_cselect_b32 {sDV}, s56, s55
        s_cmp_eq_u32 {sROLE}, 0
        s_cselect_b32 s57, 16, 0
        v_mov_b32 v{t}, s53
        v_mul_f32 v{t}, {f32(LOG2E)}, v{t}
        v_lshlrev_b32 v{t+1}, s57, v{pr}
        v_and_b32 v{t+1}, 0xffff0000, v{t+1}
        v_mul_f32 v{t+1}, {f32(LOG2E)}, v{t+1}
        v_exp_f32 v{t}, v{t}
        v_exp_f32 v{t+1}, v{t+1}
        v_and_b32 v{t+2}, 0x7fff7fff, v{pr+2}
        v_and_b32 v{t+3}, 0x7fff7fff, v{pr+3}
        v_pk_max_u16 v{t+2}, v{t+2}, v{t+3}
        v_cvt_pk_bf16_f32 v{t}, v{t}, v{t+1}
        v_lshrrev_b32 v{t+3}, 16, v{t+2}
        v_and_b32 v{t+2}, 0xffff, v{t+2}
        v_max_u32 v{t+2}, v{t+2}, v{t+3}
        v_and_b32 v{t+1}, 0xffff0000, v{t}
        v_lshlrev_b32 v{t}, 16, v{t}
        v_lshlrev_b32 v{pr+1}, s57, v{pr+1}
        v_lshlrev_b32 v{pr+2}, s57, v{pr+2}
        v_lshlrev_b32 v{pr+3}, s57, v{pr+3}
        ''')
        ctl = ['row_shr:1 row_mask:0xf bank_mask:0xf bound_ctrl:1', 'row_shr:2 row_mask:0xf bank_mask:0xf bound_ctrl:1',
               'row_shr:4 row_mask:0xf bank_mask:0xf bound_ctrl:1', 'row_shr:8 row_mask:0xf bank_mask:0xf bound_ctrl:1',
               'row_bcast:15 row_mask:0xa bank_mask:0xf', 'row_bcast:31 row_mask:0xc bank_mask:0xf']
        fill = [[f'v_mul_f32 v{t+3}, v{t+1}, v{t}', f'v_and_b32 v{t+4}, 0xffff0000, v{pr+1}'],
                [f'v_mul_f32 v{t+4}, v{t+4}, v{t}', f'v_mul_f32 v{t+3}, {f32(-LOG2E)}, v{t+3}'],
                [f'v_mul_f32 v{t+4}, {f32(1/(2*math.pi))}, v{t+4}', f'v_mul_f32 v{t+5}, {f32(256.0)}, v{t+3}'],
                [f'v_mul_f32 v{t+6}, {f32(256.0)}, v{t+4}', f'v_fract_f32 v{t+7}, v{t+4}'],
                [f'v_fract_f32 v{t+6}, v{t+6}', f'v_exp_f32 v{t+3}, v{t+3}'],
                [f'v_exp_f32 v{t+5}, v{t+5}', f'v_cos_f32 v{z}, v{t+7}']]
        for c, f in zip(ctl, fill):
            p(f'v_max_u32_dpp v{t+2}, v{t+2}, v{t+2} {c}')
            for x in f: p(x)
        p(f'''
        v_sin_f32 v{z+1}, v{t+7}
        v_readlane_b32 s52, v{t+2}, 63
        v_cos_f32 v{Z}, v{t+6}
        v_sin_f32 v{Z+1}, v{t+6}
        s_and_b32 s52, s52, 0x7f80
        s_lshl_b32 s52, s52, 16
        s_sub_u32 s53, 0x7f000000, s52
        v_and_b32 v{C}, 0xffff0000, v{pr+2}
        v_and_b32 v{C+1}, 0xffff0000, v{pr+3}
        v_mul_f32 v{t}, s52, v{t}
        v_mul_f32 v{C}, s53, v{C}
        v_mul_f32 v{C+1}, s53, v{C+1}
        v_add_f32 v{t}, v{t}, v{t}
        v_mul_f32 v{z}, v{z}, v{t+3}
        v_mul_f32 v{z+1}, v{z+1}, v{t+3}
        v_readfirstlane_b32 {sSIG}, v{t}
        v_mul_f32 v{Z}, v{Z}, v{t+5}
        v_mul_f32 v{Z+1}, v{Z+1}, v{t+5}
        ''')
        V.free('kt', 'par')
    def kgen_values(self):
        p, V = self.p, self.V
        z, Z, C, fa = V['z'], V['Z256'], V['Cn'], V['fa']
        cv = V.alloc('cv', 24)
        valu = []; stores = []; have = {}
        self._cvi = 0
        def emit(s):
            with p.capture() as b: p(s)
            valu.extend(b)
        def win(row):
            if row < 21: return fa + row // 4, (row % 4) * 68
            return fa + 6 + (row - 21) // 4, ((row - 21) % 4) * 68
        def partner(row):
            if row == 20: return None
            if row < 21: return row ^ 1
            return 21 + ((row - 21) ^ 1)
        def done(row, c):
            have[row] = c
            q = partner(row)
            if q is None:
                b_, o = win(row)
                with p.capture() as b: p(f'ds_write_b32 v{b_}, v{c} offset:{4*o}')
                stores.append((len(valu), b[0]))
            elif q in have:
                lo, hi = min(row, q), max(row, q)
                b_, o0 = win(lo); _, o1 = win(hi)
                with p.capture() as b: p(f'ds_write2_b32 v{b_}, v{have[lo]}, v{have[hi]} offset0:{o0} offset1:{o1}')
                stores.append((len(valu), b[0]))
        def put(row, r, neg=False):
            c = cv + (self._cvi % 24); self._cvi += 1
            emit(f'v_cvt_pk_f16_f32 v{c}, v{r}, {"-" if neg else ""}v{r+1}')
            done(row, c)
        def cm(items):
            for d, a, b in items: emit(f'v_pk_mul_f32 {vr(d,2)}, {vr(a,2)}, {vr(b,2)} op_sel:[0,0] op_sel_hi:[0,1]')
            for d, a, b in items: emit(f'v_pk_fma_f32 {vr(d,2)}, {vr(a,2)}, {vr(b,2)}, {vr(d,2)} op_sel:[1,1,0] op_sel_hi:[1,0,1] neg_lo:[1,0,0]')
        z2 = V.alloc('z2', 2); z4 = V.alloc('z4', 2); w = V.alloc('w', 2); w2 = V.alloc('w2', 2); w4 = V.alloc('w4', 2)
        ch = V.alloc('chains', 16, align=2)
        put(0, C)
        cm([(z2, z, z)])
        La, Lb, Ma, Mb = ch, ch + 2, ch + 4, ch + 6
        cm([(La, C, z), (Ma, C, Z), (z4, z2, z2)])
        put(1, La); put(8, Ma)
        cm([(Lb, La, z), (Mb, Ma, Z), (w, z4, z4), (ch + 8, Ma, z2)])
        put(2, Lb); put(12, Mb); put(9, ch + 8)
        cm([(La, Lb, z), (Ma, Mb, Z), (w2, w, w), (ch + 10, ch + 8, z2), (ch + 12, Mb, z4)])
        put(3, La); put(14, Ma); put(10, ch + 10); put(13, ch + 12)
        cm([(Lb, La, z), (Mb, Ma, Z), (w4, w2, w2), (ch + 8, ch + 10, z2), (ch + 12, Ma, z4), (ch + 14, w2, w)])
        put(4, Lb); put(16, Mb); put(11, ch + 8); put(15, ch + 12)
        c = cv + (self._cvi % 24); self._cvi += 1
        emit(f'v_mov_b32 v{c}, 0x3c00'); done(21, c)
        put(22, w, True); put(23, w2, True); put(24, ch + 14, True)
        cm([(La, Lb, z), (Ma, Mb, Z)]); put(5, La); put(17, Ma)
        cm([(Lb, La, z), (Mb, Ma, Z)]); put(6, Lb); put(18, Mb)
        cm([(La, Lb, z), (Ma, Mb, Z)]); put(7, La); put(19, Ma)
        cm([(Mb, Ma, Z)]); put(20, Mb)
        A_ = [ch, ch + 2, ch + 4, ch + 6]; B_ = [ch + 8, ch + 10, ch + 12, z]
        r3 = ch + 14
        cm([(A_[1], w, w4), (A_[2], w2, w4), (A_[3], r3, w4)])
        put(25, w4, True); put(26, A_[1], True); put(27, A_[2], True); put(28, A_[3], True)
        cur = [w4, A_[1], A_[2], A_[3]]; nxt = [B_, A_]
        for step in range(2, 8):
            nx = nxt[step & 1]
            cm([(nx[k], cur[k], w4) for k in range(4)])
            for k in range(4): put(21 + 4 * step + k, nx[k], True)
            cur = nx
        out = []; si = 0; last = -10
        gap = self.o.get('kgap', 5)
        for idx, ins in enumerate(valu):
            pend = [k for k in range(si, len(stores)) if stores[k][0] <= idx and (stores[k][1].uses & ins.defs)]
            if pend:
                while si <= pend[-1]: out.append(stores[si][1]); si += 1
                last = idx
            elif si < len(stores) and stores[si][0] <= idx and idx - last >= gap:
                out.append(stores[si][1]); si += 1; last = idx
            out.append(ins)
        while si < len(stores): out.append(stores[si][1]); si += 1
        return out
    def act_store(self, pk, blk):
        p = self.p
        p(f's_add_u32 s39, s35, {2048*blk}')
        p(f'buffer_store_dwordx4 {vr(pk,4)}, v{self.V["l16"]}, {SWS}, s39 offen sc1', tag='actst')
        p(f'buffer_store_dwordx4 {vr(pk+4,4)}, v{self.V["l16"]}, {SWS}, s39 offen offset:1024 sc1', tag='actst')
        if self.o.get('dbl'):
            p(f'buffer_store_dwordx4 {vr(pk,4)}, v{self.V["l16"]}, {SWS}, s39 offen', tag='actst2')
            p(f'buffer_store_dwordx4 {vr(pk+4,4)}, v{self.V["l16"]}, {SWS}, s39 offen offset:1024', tag='actst2')
    def xn_setup(self):
        p, A = self.p, self.A
        A.alloc('xnf', 128, align=4, at=0)
        p(f'''
        s_lshl_b32 s40, {sTT}, 2
        s_add_u32 s40, s40, {sWAVE}
        s_lshl_b32 s40, s40, 15
        s_add_u32 s40, s40, {WS_XNF}
        ''')
    def xn_load(self, ks):
        p = self.p
        xf = self.A['xnf']
        if ks % 4 == 0 and ks: p('s_add_u32 s40, s40, 4096')
        p(f'buffer_load_dwordx4 {vr(xf+4*ks,4,"a")}, v{self.V["l16"]}, {SWS}, s40 offen offset:{1024*(ks%4)} sc1')
    def gemm1(self):
        p, V, A = self.p, self.V, self.A
        xf = A['xnf']; wa = V['w1a']; xlead = self.o['xlead']
        acc = V.alloc('g1acc', 48, align=2); fr = V.alloc('g1fr', 32, align=2); tm = V.alloc('g1tm', 16, align=2); pk = V.alloc('g1pk', 16, align=2)
        p(f'''
        s_mov_b32 s34, {f32(LOG2E)}
        s_lshl_b32 s56, {sTT}, 2
        s_add_u32 s56, s56, {sWAVE}
        s_mul_i32 s35, s56, {86*1024}
        s_lshl_b32 s59, {sFB0}, 11
        s_add_u32 s35, s35, s59
        s_add_u32 s35, s35, {WS_ACT}
        ''')
        self.bias_init(acc, 0); self.bias_init(acc + 16, 1); self.bias_init(acc + 32, 2)
        def rd(ks, blk, slot):
            b = fr + 4 * slot; base = wa + (blk >> 1); o = ks * 1024 + W1B * (blk & 1)
            p(f'ds_read_b64_tr_b16 {vr(b,2)}, v{base} offset:{o}')
            p(f'ds_read_b64_tr_b16 {vr(b+2,2)}, v{base} offset:{o+256}')
        with p.capture() as main:
            for ks in range(2): rd(ks, 0, 2 * (ks % 4)); rd(ks, 1, 2 * (ks % 4) + 1)
            for ks in range(32):
                if ks + 2 < 32: rd(ks + 2, 0, 2 * ((ks + 2) % 4)); rd(ks + 2, 1, 2 * ((ks + 2) % 4) + 1)
                if ks + xlead < 32: self.xn_load(ks + xlead)
                p(f'v_mfma_f32_32x32x16_bf16 {vr(acc,16)}, {vr(fr+8*(ks%4),4)}, {vr(xf+4*ks,4,"a")}, {vr(acc,16)}')
                p(f'v_mfma_f32_32x32x16_bf16 {vr(acc+16,16)}, {vr(fr+8*(ks%4)+4,4)}, {vr(xf+4*ks,4,"a")}, {vr(acc+16,16)}')
        fill = self.cap(self.gemm_addr_setup)
        fill += self.cap(self.poll_issue, 'A2', V['us'] + 2, 64, 4)
        self.weave(main, fill, start=2)
        self.stamp('g1p1')
        self.poll_check('A2', V['us'] + 2, 64, 4)
        ud = V.alloc('ud', 8, align=2)
        p(f'''
        s_lshl_b32 s56, {sWAVE}, 19
        s_lshl_b32 s57, {sBETA}, 5
        s_add_u32 s56, s56, s57
        s_add_u32 s56, s56, {WS_UBLK}
        buffer_load_dwordx4 {vr(ud,4)}, v{V['us']}, {SWS}, s56 offen sc1
        buffer_load_dwordx4 {vr(ud+4,4)}, v{V['us']}, {SWS}, s56 offen offset:16 sc1
        s_barrier
        ''')
        self.fstamp('g1bar')
        self.w2_dma_setup()
        l2 = self.lab('g1n2'); l3 = self.lab('g1j')
        p(f's_cmp_eq_u32 {sNBLK}, 2\ns_cbranch_scc1 {l2}')
        import copy
        with p.cond(lambda c: c['nblk'] == 3):
            with p.capture() as main:
                for ks in range(3): rd(ks, 2, ks % 4)
                for ks in range(32):
                    if ks + 3 < 32: rd(ks + 3, 2, (ks + 3) % 4)
                    if ks % 2 == 0:
                        for i in self.cap(self.w2_dma, ks // 16, (ks // 2) % 8): p.ins.append(i)
                    p(f'v_mfma_f32_32x32x16_bf16 {vr(acc+32,16)}, {vr(fr+4*(ks%4),4)}, {vr(xf+4*ks,4,"a")}, {vr(acc+32,16)}')
            with p.capture() as fill:
                self.mish(acc, tm, pk, False); self.act_store(pk, 0)
                self.mish(acc + 16, tm, pk + 8, False); self.act_store(pk + 8, 1)
            self.weave(main, fill)
            self.fstamp('g1p2')
            p('s_barrier')
            m2 = self.cap(self.mish, acc + 32, tm, pk, True)
            p.merge(m2, [self.cap(self.w2_dma, 2, k) for k in range(8)])
            self.act_store(pk, 2)
        p(f's_branch {l3}\n{l2}:')
        with p.cond(lambda c: c['nblk'] == 2):
            m0_ = self.cap(self.mish, acc, tm, pk, True)
            p.merge(m0_, [self.cap(self.w2_dma, 0, k) for k in range(8)])
            self.act_store(pk, 0)
            p('s_barrier')
            m1_ = self.cap(self.mish, acc + 16, tm, pk + 8, True)
            p.merge(m1_, [self.cap(self.w2_dma, 1, k) for k in range(8)])
            self.act_store(pk + 8, 1)
            for k in range(8): self.w2_dma(2, k)
        p(f'{l3}:')
        self.fstamp('g1mish')
        us = V['us']
        p(f'ds_write_b128 v{us+1}, {vr(ud,4)}')
        p(f'ds_write_b128 v{us+1}, {vr(ud+4,4)} offset:{U_CH}')
        p.wait_tag('w2dma1')
        p('s_waitcnt lgkmcnt(0)\ns_barrier')
        V.free('g1acc', 'g1fr', 'g1tm', 'g1pk', 'bia', 'w1a', 'ud', 'us')
        A.free('xnf')
        lab = self.lab('nw')
        p(f's_or_b32 s52, {sBETA}, {sWAVE}\ns_cmp_lg_u32 s52, 0\ns_cbranch_scc1 {lab}')
        with p.cond(lambda c: c['w'] == 0):
            p('s_mov_b32 s101, 0')
            self.flag_store('s101', WS_FLG)
        p(f'{lab}:')
    def w2_dma_setup(self):
        p = self.p
        p(f'''
        s_mul_i32 s41, {sCH}, {43*16*1024}
        s_lshl_b32 s98, {sROLE}, 13
        s_add_u32 s41, s41, s98
        s_lshl_b32 s98, {sCG}, 7
        s_add_u32 s41, s41, s98
        s_lshl_b32 s42, {sCH}, 11
        s_lshl_b32 s98, {sROLE}, 10
        s_add_u32 s42, s42, s98
        ''')
    def w2_dma(self, r, k):
        p = self.p
        lo, hi = ROUNDS[r]
        sl = lo + k
        if sl >= hi: return
        p(f's_add_u32 m0, s42, {RREG[r] + 4096*k}')
        p(f's_add_u32 s97, s41, {sl*16*1024}')
        p(f'buffer_load_dwordx4 v{self.V["w2a"]}, {SW2}, s97 offen lds', tag=f'w2dma{r}')
    def w2reg(self, sl, c):
        if sl < 32: return vr(8 * sl + 4 * c, 4, 'a'), 8 * sl + 4 * c, 'a'
        b = self.V['w2v'] + 8 * (sl - 32) + 4 * c
        return vr(b, 4), b, 'v'
    def w2_read_list(self, r):
        p, V = self.p, self.V
        lo, hi = ROUNDS[r]
        out = []
        for sl in range(lo, hi):
            for c in range(2):
                _, b, k = self.w2reg(sl, c)
                base = V['w2a'] + 1 + c + (2 if RREG[r] >= 65536 else 0)
                o = RREG[r] - (65536 if RREG[r] >= 65536 else 0) + 4096 * (sl - lo)
                if RREG[r] == L_X: base = V['w2a'] + 5 + c; o = 4096 * (sl - lo)
                with p.capture() as bb:
                    p(f'ds_read_b64_tr_b16 {vr(b,2,k)}, v{base} offset:{o}')
                    p(f'ds_read_b64_tr_b16 {vr(b+2,2,k)}, v{base} offset:{o+1024}')
                out += bb
        return out
    def gemm_addr_setup(self):
        p, V = self.p, self.V
        n31, hh, l16 = V['n31'], V['hh'], V['l16']
        t = V.alloc('gst', 4, align=2)
        aA = V.alloc('cA', 3); aB = V.alloc('cB', 2)
        p(f'''
        v_and_b32 v{t}, 3, v1
        v_mul_u32_u24 v{t}, {KC_STR}, v{t}
        v_bfe_u32 v{t+1}, v1, 2, 3
        v_lshlrev_b32 v{t+1}, 3, v{t+1}
        v_sub_u32 v{t}, v{t}, v{t+1}
        v_lshlrev_b32 v{t+3}, 4, v{hh}
        v_add_u32 v{t}, v{t}, v{t+3}
        s_mul_i32 s58, {sCH}, {4*KC_STR}
        s_add_u32 s58, s58, {L_KC + 2*X0}
        s_lshl_b32 s59, {sROLE}, 10
        s_sub_u32 s59, s58, s59
        s_sub_u32 s59, s59, 1024
        v_add_u32 v{aA}, s59, v{t}
        v_subrev_u32 v{aA+1}, 2048, v{aA}
        s_lshl_b32 s59, {sROLE}, 5
        s_sub_u32 s59, s58, s59
        s_add_u32 s59, s59, 32
        v_add_u32 v{aA+2}, s59, v{t}
        v_mul_u32_u24 v{t}, 80, v{n31}
        v_add_u32 v{t+1}, v{t}, v{t+3}
        s_mul_i32 s58, {sCH}, {U_CH}
        s_add_u32 s58, s58, {L_U}
        s_mul_i32 s59, {sROLE}, {80*16}
        s_sub_u32 s59, s58, s59
        s_add_u32 s59, s59, {80*16}
        v_add_u32 v{aB}, s59, v{t+1}
        s_lshl_b32 s59, {sROLE}, 5
        s_sub_u32 s59, s58, s59
        s_add_u32 s59, s59, {80*32+32}
        v_add_u32 v{aB+1}, s59, v{t+1}
        ''')
        ce = V.alloc('ce', 6)
        p(f'''
        s_lshl_b32 s59, {sWAVE}, 12
        s_add_u32 s59, s59, {L_KC}
        v_add_u32 v{ce}, s59, v{l16}
        s_xor_b32 s59, {sWAVE}, 1
        s_lshl_b32 s59, s59, 12
        s_add_u32 s59, s59, {L_KC}
        v_add_u32 v{ce+1}, s59, v{l16}
        v_lshlrev_b32 v{t+3}, 3, v{hh}
        v_add_u32 v{t}, v{t}, v{t+3}
        s_mul_i32 s59, {sROLE}, 2560
        s_add_u32 s59, s59, s58
        s_add_u32 s59, s59, 2560
        v_add_u32 v{ce+2}, s59, v{t}
        v_lshlrev_b32 v{t}, 6, v{n31}
        v_add_u32 v{t}, v{t}, v{t+3}
        s_lshl_b32 s59, {sWAVE}, 11
        s_add_u32 s59, s59, {L_KC + 16384}
        v_add_u32 v{ce+3}, s59, v{t}
        v_bfe_u32 v{ce+4}, v1, 1, 2
        v_lshlrev_b32 v{ce+4}, 4, v{ce+4}
        v_lshrrev_b32 v{t}, 2, v1
        v_bfe_u32 v{t+1}, v1, 3, 2
        v_and_b32 v{t+3}, 3, v1
        v_xor_b32 v{t+1}, v{t+1}, v{t+3}
        v_lshlrev_b32 v{t+1}, 4, v{t+1}
        v_lshlrev_b32 v{t}, 6, v{t}
        v_add_u32 v{t}, v{t}, v{t+1}
        v_add_u32 v{ce+5}, s59, v{t}
        ''')
        us = V.alloc('us', 3)
        p(f'''
        v_lshlrev_b32 v{us}, 13, v1
        s_lshl_b32 s59, {sWAVE}, 6
        s_add_u32 s59, s59, 128
        v_add_u32 v{t}, s59, v1
        v_lshrrev_b32 v{t+1}, 2, v{t}
        v_mul_u32_u24 v{t+1}, 80, v{t+1}
        v_and_b32 v{t}, 3, v{t}
        v_lshlrev_b32 v{t}, 4, v{t}
        v_add_u32 v{t}, v{t}, v{t+1}
        v_add_u32 v{us+1}, {L_U}, v{t}
        s_lshl_b32 s59, {sWAVE}, 10
        s_add_u32 s59, s59, {FL_A}
        v_add_u32 v{us+2}, s59, v{l16}
        ''')
        w2 = V.alloc('w2a', 7)
        p('; MARK_W2')
        p(f'''
        v_lshrrev_b32 v{t}, 3, v1
        v_bfe_u32 v{t+1}, v1, 4, 1
        v_lshlrev_b32 v{t+1}, 2, v{t+1}
        v_and_b32 v{t+2}, 7, v1
        v_xor_b32 v{t+1}, v{t+1}, v{t+2}
        v_lshlrev_b32 v{t+1}, 4, v{t+1}
        v_lshlrev_b32 v{t}, 10, v{t}
        v_add_u32 v{w2}, v{t}, v{t+1}
        v_lshlrev_b32 v{t}, 2, v{hh}
        v_bfe_u32 v{t+1}, v1, 2, 2
        v_add_u32 v{t}, v{t}, v{t+1}
        v_lshlrev_b32 v{t}, 7, v{t}
        v_bfe_u32 v{t+1}, v1, 4, 1
        v_lshlrev_b32 v{t+1}, 5, v{t+1}
        v_add_u32 v{t}, v{t}, v{t+1}
        v_and_b32 v{t+1}, 3, v1
        v_lshlrev_b32 v{t+1}, 3, v{t+1}
        v_add_u32 v{t}, v{t}, v{t+1}
        s_lshl_b32 s59, {sCH}, 11
        v_add_u32 v{t}, s59, v{t}
        v_bfe_u32 v{t+1}, v1, 3, 1
        v_lshlrev_b32 v{t+1}, 6, v{t+1}
        v_add_u32 v{w2+1}, v{t}, v{t+1}
        v_xor_b32 v{t+1}, 64, v{t+1}
        v_add_u32 v{w2+2}, v{t}, v{t+1}
        v_add_u32 v{w2+3}, 0x10000, v{w2+1}
        v_add_u32 v{w2+4}, 0x10000, v{w2+2}
        v_add_u32 v{w2+5}, {L_X}, v{w2+1}
        v_add_u32 v{w2+6}, {L_X}, v{w2+2}
        ''')
        g2 = V.alloc('g2a', 8)
        p('; MARK_G2')
        p(f'''
        s_lshr_b32 s58, {sTG}, 1
        s_lshl_b32 s58, s58, 2
        s_and_b32 s59, {sTG}, 1
        s_lshl_b32 s59, s59, 1
        s_add_u32 s58, s58, s59
        s_add_u32 s58, s58, {sROLE}
        s_lshl_b32 s58, s58, 7
        s_add_u32 s58, s58, {FL_B}
        v_lshlrev_b32 v{t}, 3, v1
        v_add_u32 v{g2}, s58, v{t}
        s_lshr_b32 s58, {sTG}, 4
        s_lshl_b32 s58, s58, 9
        s_lshl_b32 s59, {sCG}, 6
        s_add_u32 s58, s58, s59
        s_lshl_b32 s58, s58, 3
        s_add_u32 s58, s58, {FL_C}
        v_add_u32 v{g2+1}, s58, v{t}
        s_lshl_b32 s58, {sWAVE}, 12
        v_add_u32 v{g2+2}, s58, v{l16}
        s_xor_b32 s58, {sWAVE}, 2
        s_lshl_b32 s58, s58, 12
        v_add_u32 v{g2+3}, s58, v{l16}
        v_lshrrev_b32 v{t}, 3, v0
        v_and_b32 v{t+1}, 7, v0
        v_lshlrev_b32 v{t+1}, 4, v{t+1}
        v_lshlrev_b32 v{g2+4}, 12, v{t}
        v_add_u32 v{g2+4}, v{g2+4}, v{t+1}
        v_mul_u32_u24 v{g2+5}, {ST_STR}, v{t}
        v_add_u32 v{g2+5}, v{g2+5}, v{t+1}
        v_add_u32 v{g2+5}, {ST3_L}, v{g2+5}
        v_lshlrev_b32 v{t}, 2, v{hh}
        v_bfe_u32 v{t+1}, v1, 2, 2
        v_add_u32 v{t}, v{t}, v{t+1}
        s_lshl_b32 s58, {sCH}, 5
        v_add_u32 v{t}, s58, v{t}
        v_mul_u32_u24 v{t}, {ST_STR}, v{t}
        v_bfe_u32 v{t+1}, v1, 4, 1
        v_lshlrev_b32 v{t+1}, 5, v{t+1}
        v_add_u32 v{t}, v{t}, v{t+1}
        v_and_b32 v{t+1}, 3, v1
        v_lshlrev_b32 v{t+1}, 3, v{t+1}
        v_add_u32 v{t}, v{t}, v{t+1}
        s_lshl_b32 s58, {sROLE}, 6
        s_add_u32 s58, s58, {ST3_L}
        v_add_u32 v{g2+6}, s58, v{t}
        v_lshlrev_b32 v{t}, 10, v{n31}
        v_lshlrev_b32 v{t+1}, 3, v{hh}
        v_add_u32 v{g2+7}, v{t}, v{t+1}
        ''')
        V.free('gst')
    def conv(self):
        p, V, A = self.p, self.V, self.A
        A.alloc('w2f', 256, align=4, at=0)
        V.alloc('w2v', 88, align=2)
        aA, aB, ce = V['cA'], V['cB'], V['ce']
        acc = V.alloc('cacc', 32, align=2); fr = V.alloc('cfr', 32, align=2)
        a0, a1 = acc, acc + 16
        def rd(i):
            b = fr + 16 * (i & 1)
            oa = 32 * (31 - i); ob = 80 * (15 - i // 2) + (32 if i % 2 == 0 else 0)
            p(f'ds_read_b64 {vr(b,2)}, v{aA} offset:{oa}')
            p(f'ds_read_b64 {vr(b+2,2)}, v{aA} offset:{oa+8}')
            p(f'ds_read_b128 {vr(b+8,4)}, v{aB} offset:{ob}')
            p(f'ds_read_b128 {vr(b+12,4)}, v{aB} offset:{ob+2560}')
            p(f'ds_read_b64 {vr(b+4,2)}, v{aA+1} offset:{oa}')
            p(f'ds_read_b64 {vr(b+6,2)}, v{aA+1} offset:{oa+8}')
        def group(i, dma=None):
            if i + 1 < 32: rd(i + 1)
            if dma: self.w2_dma(*dma)
            b = fr + 16 * (i & 1)
            p(f'v_mfma_f32_32x32x16_f16 {vr(a0,16)}, {vr(b,4)}, {vr(b+8,4)}, {vr(a0,16)}')
            p(f'v_mfma_f32_32x32x16_f16 {vr(a1,16)}, {vr(b,4)}, {vr(b+12,4)}, {vr(a1,16)}')
            p(f'v_mfma_f32_32x32x16_f16 {vr(a1,16)}, {vr(b+4,4)}, {vr(b+8,4)}, {vr(a1,16)}')
        b = fr + 16
        p(f'ds_read_b64 {vr(b,2)}, v{aA+2}')
        p(f'ds_read_b64 {vr(b+2,2)}, v{aA+2} offset:8')
        p(f'ds_read_b128 {vr(b+8,4)}, v{aB+1}')
        p(f'ds_read_b128 {vr(b+12,4)}, v{aB+1} offset:2560')
        rd(0)
        p(f'v_mfma_f32_32x32x16_f16 {vr(a0,16)}, {vr(b,4)}, {vr(b+8,4)}, 0')
        p(f'v_mfma_f32_32x32x16_f16 {vr(a1,16)}, {vr(b,4)}, {vr(b+12,4)}, 0')
        G1, G2 = self.o.get('G1', 10), 14
        rl = self.w2_read_list(0) + self.w2_read_list(1)
        main = self.cap(lambda: [group(i, (5, i) if i < 3 else None) for i in range(G1)])
        n1 = len(rl) * G1 // G2
        self.weave(main, rl[:n1])
        self.fstamp('cG1')
        self.act_flag()
        self.fstamp('cflag')
        main = self.cap(lambda: [group(i) for i in range(G1, G2)])
        self.weave(main, rl[n1:])
        p('s_waitcnt lgkmcnt(0)\ns_barrier')
        self.fstamp('cG2')
        dq = [(3, k) for k in range(8)] + [(4, k) for k in range(8)]
        for i in range(G2, 32): group(i, dq[i - G2] if i - G2 < len(dq) else None)
        V.free('cfr', 'cA', 'cB')
        self.stamp('convmm')
        self.poll_issue('B', V['g2a'], 16, 1)
        p.wait_tag('w2dma4'); p('s_barrier')
        ex = V.alloc('cex', 16, align=2); uu = V.alloc('cuu', 8, align=2); t = V.alloc('cvt', 2)
        l0 = self.lab('cr0'); l1 = self.lab('cr1')
        p(f's_cmp_eq_u32 {sROLE}, 0\ns_cbranch_scc0 {l0}')
        with p.cond(lambda c: c['w'] % 2 == 0):
            for q in range(4): p(f'ds_write_b128 v{ce}, {vr(a1+4*q,4)} offset:{1024*q}')
        p(f's_branch {l1}\n{l0}:')
        with p.cond(lambda c: c['w'] % 2 == 1):
            for q in range(4):
                p(f'ds_write_b128 v{ce}, {vr(a0+4*q,4)} offset:{1024*q}')
                if q:
                    for r in range(4 * (q - 1), 4 * q): p(f'v_mov_b32 v{a0+r}, v{a1+r}')
            for r in range(12, 16): p(f'v_mov_b32 v{a0+r}, v{a1+r}')
        p(f'{l1}:')
        for q in range(4): p(f'ds_read_b64 {vr(uu+2*q,2)}, v{ce+2} offset:{16*q}')
        self.poll_check('B', V['g2a'], 16, 1)
        self.stamp('pollB')
        self.act_setup()
        for sl in range(4): self.act_load(sl)
        p('s_waitcnt lgkmcnt(0)\ns_barrier')
        for q in range(4): p(f'ds_read_b128 {vr(ex+4*q,4)}, v{ce+1} offset:{1024*q}')
        al = [self.cap(self.act_load, sl) for sl in range(4, self.o['alead'])]
        with p.capture() as epi:
            for r in range(16): p(f'v_add_f32 v{a0+r}, v{a0+r}, v{ex+r}')
            for r in range(16): p(f'v_mul_f32 v{a0+r}, {sSIG}, v{a0+r}')
            for r in range(16):
                p(f'v_fma_mix_f32 v{a0+r}, v{uu+r//2}, {sDV}, v{a0+r} op_sel:[{r&1},0,0] op_sel_hi:[1,0,0]')
            for r in range(8): p(f'v_cvt_pk_bf16_f32 v{ex+r}, v{a0+2*r}, v{a0+2*r+1}')
            for q in range(4):
                p(f'v_xor_b32 v{t}, {16*q}, v{ce+4}')
                p(f'v_add_u32 v{t}, v{t}, v{ce+3}')
                p(f'ds_write_b64 v{t}, {vr(ex+2*q,2)}')
            p(f'ds_read_b128 {vr(ex+8,4)}, v{ce+5}')
            p(f'ds_read_b128 {vr(ex+12,4)}, v{ce+5} offset:1024')
            p(f'''
            s_lshl_b32 s58, {sBETA}, 1
            s_add_u32 s58, s58, {sCH}
            s_lshl_b32 s58, s58, 12
            s_lshl_b32 s59, {sROLE}, 11
            s_add_u32 s58, s58, s59
            s_add_u32 s58, s58, {WS_ST}
            ''')
            p(f'buffer_store_dwordx4 {vr(ex+8,4)}, v{V["l16"]}, {SWS}, s58 offen sc1', tag='stst')
            p(f'buffer_store_dwordx4 {vr(ex+12,4)}, v{V["l16"]}, {SWS}, s58 offen offset:1024 sc1', tag='stst')
        p.merge(epi, al, 0, len(epi) - 12)
        V.free('cvt', 'cacc', 'cex', 'cuu', 'ce')
    def act_setup(self):
        p, V = self.p, self.V
        V.alloc('ring', 4 * NRING, align=2)
        p(f'''
        s_lshl_b32 s43, {sTG}, 1
        s_add_u32 s43, s43, {sROLE}
        s_mul_i32 s43, s43, {86*1024}
        s_mul_i32 s98, {sCH}, {43*1024}
        s_add_u32 s43, s43, s98
        s_add_u32 s43, s43, {WS_ACT}
        ''')
    def act_load(self, sl):
        p, V = self.p, self.V
        if sl % 4 == 0 and sl: p('s_add_u32 s43, s43, 4096')
        b = V['ring'] + 4 * (sl % NRING)
        p(f'buffer_load_dwordx4 {vr(b,4)}, v{V["l16"]}, {SWS}, s43 offen offset:{1024*(sl%4)} sc1')
    def gemm2(self):
        p, V, A = self.p, self.V, self.A
        g2 = V['g2a']; lead = self.o['alead']; ring = V['ring']
        acc = V.alloc('g2acc', 32, align=2)
        xd = V.alloc('g2xd', 8, align=2); sd = V.alloc('g2sd', 8, align=2)
        rl = []
        for r in (2, 3, 4, 5): rl += self.w2_read_list(r)
        def extra(sl):
            if sl in (8, 16, 24, 32, 38): self.fstamp(f'g2s{sl}')
            if sl == 8: self.st_flag()
            if sl == 12:
                p(f'''
                s_lshl_b32 s56, {sTG}, 16
                s_lshl_b32 s57, {sROLE}, 15
                s_add_u32 s56, s56, s57
                s_lshl_b32 s57, {sCG}, 7
                s_add_u32 s56, s56, s57
                s_lshl_b32 s57, {sCH}, 6
                s_add_u32 s39, s56, s57
                ''')
                for q in range(4): p(f'buffer_load_dwordx2 {vr(xd+2*q,2)}, v{g2+7}, {SX}, s39 offen offset:{16*q}')
            if sl == 33: self.poll_issue('C', g2 + 1, 64, 1)
            if sl == 38:
                self.poll_check('C', g2 + 1, 64, 1)
                p(f'''
                s_lshl_b32 s56, {sCG}, 18
                s_lshl_b32 s57, {sTG}, 7
                s_add_u32 s56, s56, s57
                s_add_u32 s56, s56, {WS_ST}
                s_add_u32 s57, s56, {32*4096}
                buffer_load_dwordx4 {vr(sd,4)}, v{g2+4}, {SWS}, s56 offen sc1
                buffer_load_dwordx4 {vr(sd+4,4)}, v{g2+4}, {SWS}, s57 offen sc1
                ''')
        k = 0
        per = 6
        for sl in range(43):
            extra(sl)
            if sl + lead < 43: self.act_load(sl + lead)
            b = ring + 4 * (sl % NRING)
            c0 = '0' if sl == 0 else vr(acc, 16); c1 = '0' if sl == 0 else vr(acc + 16, 16)
            p(f'v_mfma_f32_32x32x16_bf16 {vr(acc,16)}, {self.w2reg(sl,0)[0]}, {vr(b,4)}, {c0}')
            for _ in range(per // 2):
                if k < len(rl): p.ins.append(rl[k]); k += 1
            p(f'v_mfma_f32_32x32x16_bf16 {vr(acc+16,16)}, {self.w2reg(sl,1)[0]}, {vr(b,4)}, {c1}')
            for _ in range(per // 2):
                if k < len(rl): p.ins.append(rl[k]); k += 1
        assert k == len(rl)
        V.free('ring', 'w2v', 'w2a'); A.free('w2f')
        self.stamp('g2mm')
        p(f'ds_write_b128 v{g2+5}, {vr(sd,4)}')
        p(f'ds_write_b128 v{g2+5}, {vr(sd+4,4)} offset:{32*ST_STR}')
        ex = V.alloc('g2ex', 16, align=2)
        l0 = self.lab('g20'); l1 = self.lab('g21')
        p('s_barrier')
        p(f's_cmp_eq_u32 {sCH}, 0\ns_cbranch_scc0 {l0}')
        with p.cond(lambda c: c['w'] < 2):
            for q in range(4): p(f'ds_write_b128 v{g2+2}, {vr(acc+16+4*q,4)} offset:{1024*q}')
        p(f's_branch {l1}\n{l0}:')
        with p.cond(lambda c: c['w'] >= 2):
            for q in range(4):
                p(f'ds_write_b128 v{g2+2}, {vr(acc+4*q,4)} offset:{1024*q}')
                if q:
                    for r in range(4 * (q - 1), 4 * q): p(f'v_mov_b32 v{acc+r}, v{acc+16+r}')
            for r in range(12, 16): p(f'v_mov_b32 v{acc+r}, v{acc+16+r}')
        p(f'{l1}:')
        p('s_waitcnt lgkmcnt(0)\ns_barrier')
        for q in range(4): p(f'ds_read_b128 {vr(ex+4*q,4)}, v{g2+3} offset:{1024*q}')
        for q in range(4): p(f'ds_read_b64_tr_b16 {vr(sd+2*q,2)}, v{g2+6} offset:{8*q*ST_STR}')
        p(f's_mov_b32 s34, {f32(-LOG2E)}')
        for r in range(0, 16, 2): p(f'v_pk_add_f32 {vr(acc+r,2)}, {vr(acc+r,2)}, {vr(ex+r,2)}')
        for r in range(0, 16, 2): p(f'v_pk_mul_f32 {vr(ex+r,2)}, {vr(acc+r,2)}, s[34:35] op_sel_hi:[1,0]')
        for r in range(16): p(f'v_exp_f32 v{ex+r}, v{ex+r}')
        for r in range(0, 16, 2): p(f'v_pk_add_f32 {vr(ex+r,2)}, {vr(ex+r,2)}, 1.0 op_sel_hi:[1,0]')
        for r in range(16): p(f'v_rcp_f32 v{ex+r}, v{ex+r}')
        for r in range(0, 16, 2): p(f'v_pk_mul_f32 {vr(acc+r,2)}, {vr(acc+r,2)}, {vr(ex+r,2)}')
        for r in range(16):
            if r % 2 == 0: p(f'v_lshlrev_b32 v{ex+r}, 16, v{sd+r//2}')
            else: p(f'v_and_b32 v{ex+r}, 0xffff0000, v{sd+r//2}')
        for r in range(0, 16, 2): p(f'v_pk_mul_f32 {vr(acc+r,2)}, {vr(acc+r,2)}, {vr(ex+r,2)}')
        for r in range(8): p(f'v_cvt_pk_bf16_f32 v{sd+r}, v{acc+2*r}, v{acc+2*r+1}')
        for r in range(8):
            p(f'v_lshlrev_b32 v{ex}, 16, v{sd+r}')
            p(f'v_and_b32 v{ex+1}, 0xffff0000, v{sd+r}')
            p(f'v_lshlrev_b32 v{ex+2}, 16, v{xd+r}')
            p(f'v_and_b32 v{ex+3}, 0xffff0000, v{xd+r}')
            p(f'v_pk_add_f32 {vr(ex,2)}, {vr(ex,2)}, {vr(ex+2,2)}')
            p(f'v_cvt_pk_bf16_f32 v{xd+r}, v{ex}, v{ex+1}')
            if r % 2 == 1:
                q = r // 2
                p(f'buffer_store_dwordx2 {vr(xd+2*q,2)}, v{g2+7}, {SOUT}, s39 offen offset:{16*q}')
        V.free('g2acc', 'g2ex', 'g2sd', 'g2xd', 'g2a')
    def ln_hook(self):
        p = self.p
        lab = self.lab('bl')
        p(f's_cmp_lg_u32 {sWAVE}, 1\ns_cbranch_scc1 {lab}')
        with p.cond(lambda c: c['w'] == 1): self.bias_to_lds()
        p(f'{lab}:')
    def build(self):
        p, V = self.p, self.V
        self.entry()
        self.idle_setup()
        self.gemm1_addr_setup()
        self.stamp('idle')
        self.ln()
        self.stamp('lnst')
        ga, gb = self.w1_late_groups()
        ks = self.cap(self.kgen_setup)
        p.merge(ks, ga[:3])
        p('s_barrier')
        self.stamp('ksetup')
        main = self.kgen_values()
        n1 = len(main) // 2
        p.merge(main[:n1], ga[3:7])
        self.ln_flag()
        p.merge(main[n1:], ga[7:])
        V.free('z', 'Z256', 'Cn', 'z2', 'z4', 'w', 'w2', 'w4', 'chains', 'cv', 'fa')
        self.stamp('kvals')
        lab = self.lab('w1b2')
        self.poll_issue('A1', V['pA1'], 8, 1)
        p('s_waitcnt lgkmcnt(0)\ns_barrier')
        km = self.cap(self.kgen_mfma)
        p.ins.extend(km)
        self.poll_check('A1', V['pA1'], 8, 1)
        V.free('pA1')
        self.stamp('pollA1')
        self.xn_setup()
        p(f's_cmp_eq_u32 {sNBLK}, 2\ns_cbranch_scc1 {lab}')
        for g_ in gb[:4]: p.ins.extend(g_)
        p(f'{lab}:')
        p('s_waitcnt lgkmcnt(0)\ns_barrier')
        if 'table' in self.dump: self.dump_lds(L_T, 2 * T_CH, WS_DBG + 0x100000)
        ex = self.cap(self.expand)
        grp = [self.cap(self.xn_load, k) for k in range(self.o['xlead'])]
        ncommon = next(k for k, i in enumerate(ex) if i.kind == 'branch')
        p.merge(ex[:ncommon - 1], grp)
        p.ins.extend(ex[ncommon - 1:])
        lab = self.lab('w1b2b')
        p(f's_cmp_eq_u32 {sNBLK}, 2\ns_cbranch_scc1 {lab}')
        for g_ in gb[4:]: p.ins.extend(g_)
        p(f'{lab}:')
        V.free('w1off')
        p('s_waitcnt lgkmcnt(0)\ns_barrier')
        self.stamp('expand')
        if 'kc' in self.dump: self.dump_lds(L_KC, 8 * KC_STR, WS_DBG + 0x400000)
        self.gemm1()
        self.stamp('gemm1')
        self.conv()
        self.stamp('conv')
        self.gemm2()
        self.stamp('end')
        self.finish()
        return self.finalize()
    def finalize(self):
        p = self.p
        drop = self.o.get('drop', 0)
        if drop:
            def keep(i):
                t = i.tag or ''
                if i.kind == 'dma' and ((drop & 1 and t.startswith('w1dma')) or (drop & 2 and t.startswith('xdma')) or (drop & 4 and t.startswith('w2dma'))): return False
                return True
            p.ins = [i for i in p.ins if keep(i)]
        body = p.render().rstrip('\n').split('\n')
        if self.o['pads']:
            wi = [l.strip() for l in body].index(';WARM')
            tmp = body[:wi] + body[wi + 1:]
            tmp, padl = PADS.add_page_pads(tmp, 'L_main', 'L_warm_ret')
            wi = tmp.index('L_warm_ret:')
            warm = []
            for w in range(min(4, len(padl))):
                warm += [f'    s_cmp_eq_u32 {sWAVE}, {w}', f'    s_cbranch_scc1 {padl[w]}']
            body = tmp[:wi] + warm + tmp[wi:]
            self.npads = len(padl)
        names = ''.join(f'; stamp {n}\n' for n in self.stamp_names)
        hdr = f'''; S4D conv + mish MLP gated block, single persistent launch (generated by gen/kern3.py)
; @launch grid=(256,1,1) block=(256,1,1) lds={LDS_BYTES}
{names}.amdgcn_target "amdgcn-amd-amdhsa--gfx950"
.text
.globl {NAME}
.p2align 8
.type {NAME},@function
{NAME}:
'''
        tail = f'''
.section .rodata,"a"
.p2align 6
.amdhsa_kernel {NAME}
  .amdhsa_next_free_vgpr 512
  .amdhsa_next_free_sgpr 102
  .amdhsa_accum_offset 256
  .amdhsa_group_segment_fixed_size 0
  .amdhsa_kernarg_size 112
  .amdhsa_user_sgpr_count 2
  .amdhsa_user_sgpr_kernarg_segment_ptr 1
  .amdhsa_system_sgpr_workgroup_id_x 1
  .amdhsa_ieee_mode 0
  .amdhsa_dx10_clamp 0
.end_amdhsa_kernel
'''
        return hdr + '\n'.join(body) + '\n' + tail


def main(cls=Gen3):
    import argparse
    ap = argparse.ArgumentParser()
    ap.add_argument('-o', default='k.s')
    ap.add_argument('--stamps', action='store_true')
    ap.add_argument('--dump', default=None)
    ap.add_argument('--dbg', default=None)
    ap.add_argument('--opt', default='')
    ap.add_argument('--only', default=None)
    a = ap.parse_args()
    opts = {}
    for kv in a.opt.split(','):
        if kv:
            k, v = kv.split('='); opts[k] = int(v)
    g = cls(stamps=a.stamps, dump=set(a.dump.split(',')) if a.dump else None, dbgstamps=a.dbg.split(',') if a.dbg else None, opts=opts)
    if a.only: g.only = a.only.split(',')
    s = g.build()
    open(a.o, 'w').write(s)
    print('vgpr hi', g.V.hi, 'agpr hi', g.A.hi, 'lines', s.count('\n'), 'pads', getattr(g, 'npads', 0))
if __name__ == '__main__':
    main()
```

```python
import sys, math
from regs import vr
import kern2, kern3
from kern2 import *
from kern3 import *
import pads as PADS

WS_STAT = WS_FLG + 0x8000
L_XS = L_W + 2 * W1B
L_SP = L_X
L_BIAS16 = L_MISC + 64

class Gen4(kern3.Gen3):
    def entry(self):
        p, V = self.p, self.V
        for nm, cnt in (('l16', 1), ('n31', 1), ('hh', 1), ('cA', 3), ('cB', 2), ('ce', 6), ('us', 3), ('w2a', 7), ('g2a', 8)): V.prealloc(nm, cnt, align=1)
        x0 = V.alloc('x0', 4); x1 = V.alloc('x1', 4)
        l16 = V.alloc('l16'); t = V.alloc('t0'); t2 = V.alloc('t1')
        if self.stamps: p('s_memrealtime s[98:99]')
        p(f'''
        s_load_dwordx16 s[64:79], s[0:1], 0
        s_load_dwordx8 s[80:87], s[0:1], 64
        s_load_dwordx4 s[88:91], s[0:1], 96
        s_cmp_ge_u32 s2, 256
        s_cbranch_scc1 L_end
        v_and_b32 v1, 63, v0
        v_lshrrev_b32 v2, 6, v0
        s_and_b32 s52, s2, 7
        s_lshr_b32 s53, s2, 3
        v_readfirstlane_b32 {sWAVE}, v2
        s_lshl_b32 {sBETA}, s52, 5
        s_add_u32 {sBETA}, {sBETA}, s53
        v_lshlrev_b32 v{l16}, 4, v1
        s_lshl_b32 s52, {sBETA}, 3
        s_lshl_b32 s53, {sWAVE}, 1
        s_add_u32 s52, s52, s53
        s_lshl_b32 s52, s52, 10
        s_mov_b32 s10, 0x200000
        s_mov_b32 s11, 0x20000
        s_lshr_b32 {sCH}, {sWAVE}, 1
        s_and_b32 {sROLE}, {sWAVE}, 1
        s_lshl_b32 s54, {sBETA}, 1
        s_add_u32 s54, s54, {sCH}
        s_lshl_b32 s54, s54, 8
        v_lshlrev_b32 v{t2}, 2, v1
        v_add_u32 v{t}, s54, v{t2}
        s_lshl_b32 s58, {sBETA}, 2
        s_and_b32 s54, {sBETA}, 15
        s_mul_i32 {sFB0}, s54, 3
        s_lshl_b32 s55, s54, 1
        s_add_u32 s55, s55, 11
        s_cmp_lt_u32 s54, 11
        s_cselect_b32 {sFB0}, {sFB0}, s55
        s_cselect_b32 {sNBLK}, 3, 2
        s_lshr_b32 {sTT}, {sBETA}, 4
        s_waitcnt lgkmcnt(0)
        s_mov_b32 s8, s64
        s_mov_b32 s9, s65
        ''')
        if self.stamps: p('s_mov_b32 s36, s98')
        p(f'buffer_load_dwordx4 {vr(x0,4)}, v{l16}, {SX}, s52 offen')
        p(f'buffer_load_dwordx4 {vr(x1,4)}, v{l16}, {SX}, s52 offen offset:1024')
        pr = V.alloc('par', 4); nv = V.alloc('nonce'); bv = V.alloc('biasv', 2, align=1)
        p(f'''
        global_load_dword v{pr}, v{t}, {pLOGA}
        global_load_dword v{pr+1}, v{t}, {pAIM}
        global_load_dword v{pr+2}, v{t}, {pCRE}
        global_load_dword v{pr+3}, v{t}, {pCIM}
        s_load_dword {sLDT}, {pLOGDT}, s58
        s_load_dword {sDSK}, {pDSK}, s58
        s_mov_b32 s20, s90
        s_mov_b32 s21, s91
        s_mov_b32 s22, {WS_BYTES}
        s_mov_b32 s23, 0x20000
        v_mov_b32 v{t}, {WS_FLG}
        buffer_load_dword v{nv}, v{t}, {SWS}, 0 offen sc1
        s_mov_b32 s28, s82
        s_mov_b32 s29, s83
        s_mov_b32 s30, {1376*2}
        s_mov_b32 s31, 0x20000
        ''')
        xv = V.alloc('xv', 4)
        p(f'''
        v_lshrrev_b32 v{t}, 3, v1
        v_lshlrev_b32 v{t}, 10, v{t}
        v_lshrrev_b32 v{xv}, 4, v1
        v_and_b32 v{xv+1}, 7, v1
        v_xor_b32 v{xv}, v{xv}, v{xv+1}
        v_lshlrev_b32 v{xv}, 4, v{xv}
        v_add_u32 v{xv}, v{xv}, v{t}
        v_xor_b32 v{xv+1}, 64, v{xv}
        v_add_u32 v{xv+1}, {8192-1024}, v{xv+1}
        v_add_u32 v{xv+2}, {2*(8192-1024)}, v{xv}
        v_add_u32 v{xv+3}, {2*(8192-1024)}, v{xv+1}
        s_lshl_b32 s40, {sTT}, 2
        s_add_u32 s40, s40, {sWAVE}
        s_lshl_b32 s40, s40, 15
        s_lshl_b32 s41, {sWAVE}, 13
        s_add_u32 s41, s41, {L_XS}
        ''')
        vo = V.alloc('w1off', 4)
        p(f'''
        s_mov_b32 s12, s80
        s_mov_b32 s13, s81
        s_mov_b32 s14, {512*1376*2}
        s_mov_b32 s15, 0x20000
        s_mov_b32 s16, s84
        s_mov_b32 s17, s85
        s_mov_b32 s18, {512*1376*2}
        s_mov_b32 s19, 0x20000
        s_mov_b32 s24, s86
        s_mov_b32 s25, s87
        s_mov_b32 s26, 0x200000
        s_mov_b32 s27, 0x20000
        s_lshr_b32 {sTG}, {sBETA}, 3
        s_and_b32 {sCG}, {sBETA}, 7
        ''')
        tv = V.alloc('touch', 2)
        l1 = self.lab('e1'); l2 = self.lab('e2'); l3 = self.lab('e3'); le = self.lab('ee')
        p(f's_cmp_eq_u32 {sWAVE}, 1\ns_cbranch_scc0 {l1}')
        with p.cond(lambda c: c['w'] == 1):
            p(f's_lshl_b32 s52, {sFB0}, 6\nv_lshlrev_b32 v{t}, 1, v1')
            p(f'buffer_load_ushort v{bv}, v{t}, {SB1}, s52 offen')
            p(f'buffer_load_ushort v{bv+1}, v{t}, {SB1}, s52 offen offset:128')
        p(f's_branch {le}\n{l1}:')
        if True:
            p(f's_cmp_eq_u32 {sWAVE}, 3\ns_cbranch_scc1 {l3}')
            p(f's_mul_i32 s52, s2, 5504\nv_lshlrev_b32 v{t}, 7, v1\ns_mov_b32 exec_hi, 0x7ff')
            p(f's_cmp_eq_u32 {sWAVE}, 0\ns_cbranch_scc0 {l2}')
            with p.cond(lambda c: c['w'] == 0):
                if self.o.get('mtouch', 4) & 1: p(f'buffer_load_dword v{tv}, v{t}, {SW1}, s52 offen')
            p(f's_mov_b32 exec_hi, -1\ns_branch {le}\n{l2}:')
            with p.cond(lambda c: c['w'] == 2):
                if self.o.get('mtouch', 4) & 4: p(f'buffer_load_dword v{tv}, v{t}, {SW2}, s52 offen')
            p(f's_mov_b32 exec_hi, -1\ns_branch {le}\n{l3}:')
            with p.cond(lambda c: c['w'] == 3):
                if self.o.get('mtouch', 4) & 2:
                    p(f'v_lshlrev_b32 v{t}, 21, v1\ns_mov_b64 exec, 0x3f')
                    p(f'buffer_load_dword v{tv}, v{t}, {SWS}, 0 offen')
                    p(f's_mov_b64 exec, 1')
                    p(f'buffer_load_dword v{tv+1}, v{t}, {SOUT}, 0 offen')
                    p(f's_mov_b64 exec, -1')
        p(f'{le}:')
        p(f'''
        v_lshrrev_b32 v{t}, 2, v1
        v_mul_u32_u24 v{t}, 2752, v{t}
        v_and_b32 v{vo}, 3, v1
        v_lshlrev_b32 v{vo}, 4, v{vo}
        v_add_u32 v{vo}, v{vo}, v{t}
        v_add_u32 v{vo+1}, {16*2752-1024}, v{vo}
        v_add_u32 v{vo+2}, {2*(16*2752-1024)}, v{vo}
        v_add_u32 v{vo+3}, {3*(16*2752-1024)}, v{vo}
        s_mov_b64 {pDBG}, s[88:89]
        ''')
        self.w1first = self.w1_run(0, swap=True); self.w1second = self.w1_run(1, swap=True)
        for g_ in self.w1first: p.ins.extend(g_)
        V.free('t0', 't1')
        self.stamp('start')
        if self.stamps: p('v_writelane_b32 v255, s36, 62')
        if self.o['pads']:
            p('s_mov_b64 exec, 0\n;WARM\nL_warm_ret:\ns_mov_b64 exec, -1')
        p('s_branch L_main\n.p2align 12\nL_main:')
    def x_dma(self, r):
        p, xv = self.p, self.V['xv']
        for k in range(2):
            c = 2 * r + k
            p(f's_add_u32 m0, s41, {4096*k}')
            p(f's_add_u32 s42, s40, {128*c}')
            for j in range(4):
                p(f'buffer_load_dwordx4 v{xv+j}, {SX}, s42 offen offset:{1024*j} lds', tag=f'xdma{r}')
    def x_dma_groups(self, r):
        ins = self.cap(self.x_dma, r)
        gs = []; cur = []
        for i in ins:
            cur.append(i)
            if i.kind == 'dma': gs.append(cur); cur = []
        return gs
    def x_read(self, r):
        p, V, A = self.p, self.V, self.A
        xf, xr = A['xnf'], V['xr']
        p.wait_tag(f'xdma{r}')
        for k in range(2):
            for j in range(4):
                ks = 8 * r + 4 * k + j
                p(f'ds_read_b128 {vr(xf+4*ks,4,"a")}, v{xr+j} offset:{4096*k}', tag=f'xrd{r}')
    def x_next(self, r):
        self.p.wait_lgkm_tag(f'xrd{r-1}')
        self.x_dma(r)
    def gemm1_addr_setup(self):
        p, V, A = self.p, self.V, self.A
        A.alloc('xnf', 128, align=4, at=0)
        t = V.alloc('g1st', 3); wa = V.alloc('w1a', 2); xr = V.alloc('xr', 4); sa = V.alloc('stat_a'); sp = V.alloc('spa', 2); ba = V.alloc('bia')
        hh, n31 = V['hh'], V['n31']
        p(f'''
        v_lshlrev_b32 v{t}, 3, v{hh}
        v_bfe_u32 v{t+1}, v1, 2, 2
        v_add_u32 v{t}, v{t}, v{t+1}
        v_lshlrev_b32 v{t}, 6, v{t}
        v_bfe_u32 v{t+1}, v1, 4, 1
        v_lshlrev_b32 v{t+1}, 5, v{t+1}
        v_add_u32 v{t}, v{t}, v{t+1}
        v_and_b32 v{t+1}, 3, v1
        v_lshlrev_b32 v{t+1}, 3, v{t+1}
        v_add_u32 v{wa}, v{t}, v{t+1}
        v_add_u32 v{wa}, {L_W}, v{wa}
        v_add_u32 v{wa+1}, {2*W1B}, v{wa}
        v_bfe_u32 v{t}, v1, 1, 3
        v_xor_b32 v{t}, v{t}, v{hh}
        v_lshlrev_b32 v{t+1}, 7, v{n31}
        v_add_u32 v{t+1}, s41, v{t+1}
        ''')
        for j in range(4):
            p(f'v_xor_b32 v{t+2}, {2*j}, v{t}\nv_lshlrev_b32 v{t+2}, 4, v{t+2}\nv_add_u32 v{xr+j}, v{t+1}, v{t+2}')
        p(f'''
        s_lshl_b32 s56, {sTT}, 2
        s_add_u32 s56, s56, {sWAVE}
        s_lshl_b32 s56, s56, 8
        s_add_u32 s56, s56, {WS_STAT}
        v_lshlrev_b32 v{t}, 3, v{n31}
        v_add_u32 v{sa}, s56, v{t}
        v_lshlrev_b32 v{t}, 4, v{n31}
        v_add_u32 v{sp}, {L_SP}, v{t}
        s_lshl_b32 s56, {sWAVE}, 2
        v_add_u32 v{sp+1}, s56, v{sp}
        v_lshlrev_b32 v{t}, 2, v{n31}
        v_add_u32 v{ba}, {L_BIAS16}, v{t}
        ''')
        V.free('g1st')
    def ln_hook(self):
        p, V = self.p, self.V
        lab = self.lab('bl')
        bv = V['biasv']; t = V.alloc('btl', 3)
        p(f's_cmp_lg_u32 {sWAVE}, 1\ns_cbranch_scc1 {lab}')
        with p.cond(lambda c: c['w'] == 1):
            p(f'''
            v_lshlrev_b32 v{t+2}, 2, v1
            v_add_u32 v{t+2}, {L_BIAS16}, v{t+2}
            ds_write_b32 v{t+2}, v{bv}
            s_mov_b32 exec_hi, 0
            ds_write_b32 v{t+2}, v{bv+1} offset:256
            s_mov_b32 exec_hi, -1
            ''')
        p(f'{lab}:')
        V.free('btl', 'biasv')
    def ln(self):
        p, V = self.p, self.V
        x = [V['x0'], V['x1']]
        d = [V.alloc('d0', 8), V.alloc('d1', 8)]
        s1 = V.alloc('s1', 2); s2 = V.alloc('s2', 2); tp = V.alloc('lnt', 8); ad = V.alloc('lnad', 2); sg = V.alloc('lnsg', 4, align=2)
        l16 = V['l16']; nv = V['nonce']
        p(f'''
        s_lshl_b32 s52, {sWAVE}, 1
        s_mul_i32 s54, s52, {TH_STR}
        s_add_u32 s54, s54, {L_TH}
        v_add_u32 v{ad+1}, s54, v{l16}
        s_lshl_b32 s53, {sBETA}, 3
        s_add_u32 s53, s53, s52
        s_lshl_b32 s53, s53, 3
        s_add_u32 s53, s53, {WS_STAT}
        v_lshlrev_b32 v{ad}, 3, v1
        v_add_u32 v{ad}, s53, v{ad}
        v_lshlrev_b32 v{sg+2}, 4, v1
        ''')
        for k in range(2):
            for j in range(4):
                p(f'v_lshlrev_b32 v{d[k]+2*j}, 16, v{x[k]+j}')
                p(f'v_and_b32 v{d[k]+2*j+1}, 0xffff0000, v{x[k]+j}')
        p(f'v_readlane_b32 s52, v{d[0]}, 0')
        p(f'v_readlane_b32 s54, v{d[1]}, 0')
        p(f's_mov_b32 s53, s52\ns_mov_b32 s55, s54')
        for k in range(2):
            sp = 's[52:53]' if k == 0 else 's[54:55]'
            for j in range(4):
                p(f'v_pk_add_f32 {vr(d[k]+2*j,2)}, {vr(d[k]+2*j,2)}, {sp} neg_lo:[0,1] neg_hi:[0,1]')
        for k in range(2):
            a = tp + 4 * k
            p(f'v_pk_add_f32 {vr(a,2)}, {vr(d[k],2)}, {vr(d[k]+2,2)}')
            p(f'v_pk_add_f32 {vr(a+2,2)}, {vr(d[k]+4,2)}, {vr(d[k]+6,2)}')
        for k in range(2):
            a = tp + 4 * k
            p(f'v_pk_add_f32 {vr(a,2)}, {vr(a,2)}, {vr(a+2,2)}')
        for k in range(2):
            a = tp + 4 * k
            p(f'v_add_f32 v{s1+k}, v{a}, v{a+1}')
        for k in range(2):
            a = tp + 4 * k
            p(f'v_pk_mul_f32 {vr(a,2)}, {vr(d[k],2)}, {vr(d[k],2)}')
        for j in range(1, 4):
            for k in range(2):
                a = tp + 4 * k
                p(f'v_pk_fma_f32 {vr(a,2)}, {vr(d[k]+2*j,2)}, {vr(d[k]+2*j,2)}, {vr(a,2)}')
        for k in range(2):
            a = tp + 4 * k
            p(f'v_add_f32 v{s2+k}, v{a}, v{a+1}')
        regs = [s1, s1 + 1, s2, s2 + 1]
        for ctl in ('row_shr:1 row_mask:0xf bank_mask:0xf bound_ctrl:1', 'row_shr:2 row_mask:0xf bank_mask:0xf bound_ctrl:1',
                    'row_shr:4 row_mask:0xf bank_mask:0xf bound_ctrl:1', 'row_shr:8 row_mask:0xf bank_mask:0xf bound_ctrl:1',
                    'row_bcast:15 row_mask:0xa bank_mask:0xf', 'row_bcast:31 row_mask:0xc bank_mask:0xf'):
            for r in regs:
                p(f'v_add_f32_dpp v{r}, v{r}, v{r} {ctl}')
        for n, r in enumerate(regs):
            p(f'v_readlane_b32 s{56+n}, v{r}, 63')
        m = [tp, tp + 1]; va = [tp + 2, tp + 3]; t4 = tp + 4; t5 = tp + 5
        p(f's_mov_b32 s60, {f32(1.0 / 512)}')
        for k in range(2):
            p(f'v_mov_b32 v{m[k]}, s{56+k}')
            p(f'v_mov_b32 v{va[k]}, s{58+k}')
        p(f'v_pk_mul_f32 {vr(m[0],2)}, {vr(m[0],2)}, s[60:61] op_sel_hi:[1,0]')
        p(f'v_pk_mul_f32 {vr(va[0],2)}, {vr(va[0],2)}, s[60:61] op_sel_hi:[1,0]')
        p(f'v_pk_fma_f32 {vr(va[0],2)}, {vr(m[0],2)}, {vr(m[0],2)}, {vr(va[0],2)} neg_lo:[1,0,0] neg_hi:[1,0,0]')
        p(f'v_add_f32 v{t4}, s52, v{m[0]}')
        p(f'v_add_f32 v{t5}, s54, v{m[1]}')
        for k in range(2): p(f'v_max_f32 v{va[k]}, 0, v{va[k]}')
        p(f'v_cvt_pk_bf16_f32 v{t4}, v{t4}, v{t5}')
        p(f'v_cvt_pk_bf16_f32 v{t5}, v{va[0]}, v{va[1]}')
        p(f's_mov_b32 s60, {f32(1e-5)}')
        p(f'v_lshlrev_b32 v{va[0]}, 16, v{t5}')
        p(f'v_and_b32 v{va[1]}, 0xffff0000, v{t5}')
        p(f'v_lshlrev_b32 v{m[0]}, 16, v{t4}')
        p(f'v_pk_add_f32 {vr(va[0],2)}, {vr(va[0],2)}, s[60:61] op_sel_hi:[1,0]')
        p(f'v_and_b32 v{m[1]}, 0xffff0000, v{t4}')
        p(f'v_cvt_pk_bf16_f32 v{t5}, v{va[0]}, v{va[1]}')
        p(f'v_sub_f32 v{m[0]}, s52, v{m[0]}')
        p(f'v_lshlrev_b32 v{va[0]}, 16, v{t5}')
        p(f'v_and_b32 v{va[1]}, 0xffff0000, v{t5}')
        for k in range(2): p(f'v_sqrt_f32 v{va[k]}, v{va[k]}')
        p(f'v_sub_f32 v{m[1]}, s54, v{m[1]}')
        p(f'v_lshrrev_b32 v{sg}, v{sg+2}, v{t4}')
        p(f'v_cvt_pk_bf16_f32 v{t5}, v{va[0]}, v{va[1]}')
        p(f'v_and_b32 v{sg}, 0xffff, v{sg}')
        p(f'v_xor_b32 v{sg}, 0x8000, v{sg}')
        p(f'v_lshrrev_b32 v{sg+3}, v{sg+2}, v{t5}')
        p(f'v_lshlrev_b32 v{va[0]}, 16, v{t5}')
        p(f'v_and_b32 v{va[1]}, 0xffff0000, v{t5}')
        p(f'v_lshl_or_b32 v{sg}, v{sg+3}, 16, v{sg}')
        for k in range(2): p(f'v_rcp_f32 v{va[k]}, v{va[k]}')
        if not self.o.get('defer_stat', 1): self.stat_store(sg, ad, nv)
        p(f'v_pk_mul_f32 {vr(m[0],2)}, {vr(m[0],2)}, {vr(va[0],2)}')
        for k in range(2):
            for j in range(4):
                p(f'v_pk_fma_f32 {vr(d[k]+2*j,2)}, {vr(d[k]+2*j,2)}, {vr(va[0],2)}, {vr(m[0],2)} '
                  f'op_sel:[0,{k},{k}] op_sel_hi:[1,{k},{k}]')
        for k in range(2):
            for j in range(4):
                p(f'v_cvt_pk_f16_f32 v{x[k]+j}, v{d[k]+2*j}, v{d[k]+2*j+1}')
            p(f'ds_write_b128 v{ad+1}, {vr(x[k],4)} offset:{k*TH_STR}')
        self.ln_hook()
        p('s_waitcnt lgkmcnt(0)\ns_barrier')
        V.free('d0', 'd1', 's1', 's2', 'lnt', 'x0', 'x1')
        if not self.o.get('defer_stat', 1): V.free('lnad', 'lnsg', 'nonce')
        self.stamp('ln')
        lab = self.lab('lnst')
        p(f's_cmp_ge_u32 {sWAVE}, 2\ns_cbranch_scc1 {lab}')
        with p.cond(lambda c: c['w'] < 2):
            a = V.alloc('lsa', 2); u = V.alloc('lsu', 16, align=2)
            p(f'''
            v_bfe_u32 v{a}, v1, 2, 2
            v_mul_u32_u24 v{a}, {TH_STR}, v{a}
            v_lshrrev_b32 v{a+1}, 4, v1
            v_lshlrev_b32 v{a+1}, 5, v{a+1}
            v_add_u32 v{a}, v{a}, v{a+1}
            v_and_b32 v{a+1}, 3, v1
            v_lshlrev_b32 v{a+1}, 3, v{a+1}
            v_add_u32 v{a}, v{a}, v{a+1}
            s_lshl_b32 s52, {sWAVE}, 9
            s_add_u32 s52, s52, {L_TH}
            v_add_u32 v{a}, s52, v{a}
            ''')
            for it in range(4):
                p(f'ds_read_b64_tr_b16 {vr(u+4*it,2)}, v{a} offset:{128*it}')
                p(f'ds_read_b64_tr_b16 {vr(u+4*it+2,2)}, v{a} offset:{128*it+4*TH_STR}')
            p(f'''
            s_lshl_b32 s52, {sBETA}, 13
            s_lshl_b32 s53, {sWAVE}, 12
            s_add_u32 s52, s52, s53
            s_add_u32 s52, s52, {WS_UBLK}
            ''')
            for it in range(4):
                p(f'buffer_store_dwordx4 {vr(u+4*it,4)}, v{l16}, {SWS}, s52 offen offset:{1024*it} sc1', tag='lnst')
            V.free('lsa', 'lsu')
        p(f'{lab}:')
    def stat_store(self, sg, ad, nv):
        p = self.p
        p(f'v_add_u32 v{sg+1}, 1, v{nv}')
        p(f's_mov_b64 exec, 3')
        p(f'buffer_store_dwordx2 {vr(sg,2)}, v{ad}, {SWS}, 0 offen sc1')
        p(f's_mov_b64 exec, -1')
        p(f'v_readfirstlane_b32 {sNONCE}, v{sg+1}')
    def stat_store_deferred(self):
        V = self.V
        if self.o.get('defer_stat', 1):
            self.stat_store(V['lnsg'], V['lnad'], V['nonce'])
            V.free('lnad', 'lnsg', 'nonce')
    def w1_run(self, blk, swap=False):
        p, V = self.p, self.V
        vo = V['w1off']; gs = []
        for k in range(8):
            with p.capture() as b:
                if k == 0:
                    p(f'''
                    s_lshl_b32 s98, {sWAVE}, 3
                    s_mul_i32 s96, s98, {16*2752}
                    s_lshl_b32 s97, {sFB0}, 6
                    s_add_u32 s96, s96, s97
                    s_lshl_b32 s97, s98, 10
                    ''')
                    if swap:
                        p(f'''
                        s_and_b32 s98, {sTT}, 1
                        s_xor_b32 s98, s98, {blk}
                        s_lshl_b32 s99, s98, 6
                        s_add_u32 s96, s96, s99
                        s_lshl_b32 s99, s98, 15
                        s_add_u32 s97, s97, s99
                        s_add_u32 s97, s97, {L_W}
                        ''')
                    else:
                        p(f's_add_u32 s96, s96, {64*blk}\ns_add_u32 s97, s97, {L_W + W1B*blk}')
                if k == 4: p(f's_add_u32 s96, s96, {4*16*2752}\ns_add_u32 s97, s97, 4096')
                p('s_mov_b32 m0, s97')
                p(f'buffer_load_dwordx4 v{vo+k%4}, {SW1}, s96 offen offset:{1024*(k%4)} lds', tag=f'w1dma{blk}')
            gs.append(b)
        return gs
    def colsum(self, blk, accS, fr, ones):
        p, V = self.p, self.V
        wa = V['w1a']; cs = V['csa']
        def rd(j):
            b = fr + 4 * (j % 3); base = cs + (blk >> 1); o = j * 1024 + W1B * (blk & 1)
            p(f'ds_read_b64_tr_b16 {vr(b,2)}, v{base} offset:{o}')
            p(f'ds_read_b64_tr_b16 {vr(b+2,2)}, v{base} offset:{o+256}')
        for j in range(2): rd(j)
        for j in range(8):
            if j + 2 < 8: rd(j + 2)
            p(f'v_mfma_f32_32x32x16_bf16 {vr(accS,16)}, {vr(ones,4)}, {vr(fr+4*(j%3),4)}, {"0" if j == 0 else vr(accS,16)}')
    def colsum_write(self, blk, accS):
        p, V = self.p, self.V
        p('s_mov_b32 exec_hi, 0')
        p(f'ds_write_b32 v{V["spa"]+1}, v{accS} offset:{512*blk}')
        p('s_mov_b32 exec_hi, -1')
    def ax_build(self, blk, ax, tq):
        p, V = self.p, self.V
        msk = V['hmask']
        p(f'ds_read_b128 {vr(tq,4)}, v{V["spa"]} offset:{512*blk}')
        p(f'ds_read_b32 v{ax+1}, v{V["bia"]} offset:{128*blk}')
        p(f'''
        v_add_f32 v{tq}, v{tq}, v{tq+1}
        v_add_f32 v{tq+2}, v{tq+2}, v{tq+3}
        v_add_f32 v{tq}, v{tq}, v{tq+2}
        v_cvt_pk_bf16_f32 v{tq+1}, v{tq}, v{tq}
        v_lshlrev_b32 v{tq+1}, 16, v{tq+1}
        v_sub_f32 v{tq+1}, v{tq}, v{tq+1}
        v_cvt_pk_bf16_f32 v{ax}, v{tq}, v{tq+1}
        v_and_b32 v{ax}, v{ax}, v{msk}
        v_and_b32 v{ax+1}, v{ax+1}, v{msk}
        v_mov_b32 v{ax+2}, 0
        v_mov_b32 v{ax+3}, 0
        ''')
    def stat_build(self):
        p, V = self.p, self.V
        st = V['pl_S']; bx = V['bx']; sc = V['scl']; msk = V['hmask']
        p(f'''
        v_and_b32 v{bx}, 0xffff, v{st}
        v_lshrrev_b32 v{bx+1}, 16, v{st}
        v_and_b32 v{sc+4}, 0xffff0000, v{st}
        v_lshl_or_b32 v{bx}, v{bx}, 16, v{bx}
        v_rcp_f32 v{sc+4}, v{sc+4}
        v_and_b32 v{bx+1}, v{bx+1}, v{msk}
        v_and_b32 v{bx}, v{bx}, v{msk}
        v_mov_b32 v{bx+2}, 0
        v_mov_b32 v{bx+3}, 0
        v_mul_f32 v{sc}, {f32(LOG2E)}, v{sc+4}
        v_mul_f32 v{sc+2}, -2.0, v{sc+4}
        ''')
    def mish(self, acc, tm, pk, packed):
        p = self.p
        sc = self.V['scl']; rl, m2r, rr = sc, sc + 2, sc + 4
        if packed:
            for r in range(0, 16, 2): p(f'v_pk_mul_f32 {vr(tm+r,2)}, {vr(acc+r,2)}, {vr(rl,2)} op_sel_hi:[1,0]')
            for r in range(16): p(f'v_exp_f32 v{tm+r}, v{tm+r}')
            for r in range(0, 16, 2):
                p(f'v_pk_add_f32 {vr(pk+(r&2),2)}, {vr(tm+r,2)}, 2.0 op_sel_hi:[1,0]')
                p(f'v_pk_fma_f32 {vr(tm+r,2)}, {vr(tm+r,2)}, {vr(pk+(r&2),2)}, 2.0 op_sel_hi:[1,1,0]')
            for r in range(16): p(f'v_rcp_f32 v{tm+r}, v{tm+r}')
            for r in range(0, 16, 2): p(f'v_pk_fma_f32 {vr(tm+r,2)}, {vr(tm+r,2)}, {vr(m2r,2)}, {vr(rr,2)} op_sel_hi:[1,0,0]')
            for r in range(0, 16, 2): p(f'v_pk_mul_f32 {vr(tm+r,2)}, {vr(tm+r,2)}, {vr(acc+r,2)}')
            for r in range(0, 16, 2): p(f'v_cvt_pk_bf16_f32 v{pk+r//2}, v{tm+r}, v{tm+r+1}')
        else:
            for r0 in range(0, 16, 4):
                R = range(r0, r0 + 4)
                for r in R: p(f'v_mul_f32 v{tm+r}, v{rl}, v{acc+r}')
                for r in R: p(f'v_exp_f32 v{tm+r}, v{tm+r}')
                for r in R: p(f'v_add_f32 v{pk+(r&3)+4}, 2.0, v{tm+r}')
                for r in R: p(f'v_fma_f32 v{tm+r}, v{tm+r}, v{pk+(r&3)+4}, 2.0')
                for r in R: p(f'v_rcp_f32 v{tm+r}, v{tm+r}')
                for r in R: p(f'v_fma_f32 v{tm+r}, v{tm+r}, v{m2r}, v{rr}')
                for r in R: p(f'v_mul_f32 v{tm+r}, v{tm+r}, v{acc+r}')
            for r in range(0, 16, 2): p(f'v_cvt_pk_bf16_f32 v{pk+r//2}, v{tm+r}, v{tm+r+1}')
    def stat_issue(self):
        p, V = self.p, self.V
        t = V.alloc('pl_S', 2)
        p(f'buffer_load_dwordx2 {vr(t,2)}, v{V["stat_a"]}, {SWS}, 0 offen sc1')
    def stat_check(self):
        p, V = self.p, self.V
        t = V['pl_S']
        lp = self.lab('S'); ck = self.lab('Sc'); dn = self.lab('Sd')
        p(f's_mov_b32 s38, 0\n{ck}:')
        p(f'v_cmp_ne_u32 vcc, {sNONCE}, v{t+1}')
        p(f's_cmp_eq_u64 vcc, 0\ns_cbranch_scc1 {dn}')
        with p.cond(lambda c: False):
            p(f's_add_u32 s38, s38, 1\ns_cmp_lt_u32 s38, 0x40000\ns_cbranch_scc0 {lp}')
            p(f'buffer_load_dwordx2 {vr(t,2)}, v{V["stat_a"]}, {SWS}, 0 offen sc1')
            p(f's_waitcnt vmcnt(0)\ns_branch {ck}')
            p(f'{lp}:')
            tz = V.alloc('plz', 2)
            p(f'v_mov_b32 v{tz}, 0\nv_mov_b32 v{tz+1}, 0xdead\nglobal_store_dword v{tz}, v{tz+1}, {pDBG}')
            V.free('plz')
        p(f'{dn}:')
    def gemm1(self):
        p, V, A = self.p, self.V, self.A
        xf = A['xnf']; wa = V['w1a']
        acc = V.alloc('g1acc', 48, align=2); fr = V.alloc('g1fr', 32, align=2); tm = V.alloc('g1tm', 16, align=2); pk = V.alloc('g1pk', 16, align=2)
        ax = V.alloc('ax', 12, align=2); bx = V.alloc('bx', 4, align=2); sc = V.alloc('scl', 6, align=2); tq = V.alloc('axt', 4, align=2)
        p(f'''
        s_lshl_b32 s56, {sTT}, 2
        s_add_u32 s56, s56, {sWAVE}
        s_mul_i32 s35, s56, {86*1024}
        s_lshl_b32 s59, {sFB0}, 11
        s_add_u32 s35, s35, s59
        s_add_u32 s35, s35, {WS_ACT}
        ''')
        self.stat_issue()
        def rd(ks, blk, slot):
            b = fr + 4 * slot; base = wa + (blk >> 1); o = ks * 1024 + W1B * (blk & 1)
            p(f'ds_read_b64_tr_b16 {vr(b,2)}, v{base} offset:{o}')
            p(f'ds_read_b64_tr_b16 {vr(b+2,2)}, v{base} offset:{o+256}')
        w1b2 = self.w1b2
        with p.capture() as main:
            for ks in range(2): rd(ks, 0, 2 * (ks % 4)); rd(ks, 1, 2 * (ks % 4) + 1)
            for ks in range(32):
                if ks + 2 < 32: rd(ks + 2, 0, 2 * ((ks + 2) % 4)); rd(ks + 2, 1, 2 * ((ks + 2) % 4) + 1)
                c0 = '0' if ks == 0 else vr(acc, 16); c1 = '0' if ks == 0 else vr(acc + 16, 16)
                p(f'v_mfma_f32_32x32x16_bf16 {vr(acc,16)}, {vr(fr+8*(ks%4),4)}, {vr(xf+4*ks,4,"a")}, {c0}')
                p(f'v_mfma_f32_32x32x16_bf16 {vr(acc+16,16)}, {vr(fr+8*(ks%4)+4,4)}, {vr(xf+4*ks,4,"a")}, {c1}')
        fill = self.cap(self.ax_build, 0, ax, tq) + self.cap(self.ax_build, 1, ax + 4, tq)
        fill += self.cap(self.gemm_addr_setup)
        fill += self.cap(self.poll_issue, 'A2', V['us'] + 2, 64, 4)
        half = len(main) // 2
        lab = self.lab('b2a')
        p(f's_cmp_eq_u32 {sNBLK}, 2\ns_cbranch_scc1 {lab}')
        for g_ in w1b2[:4]: p.ins.extend(g_)
        p(f'{lab}:')
        nf = len(fill) // 2
        self.weave(main[:half], fill[:nf], start=2)
        lab = self.lab('b2b')
        p(f's_cmp_eq_u32 {sNBLK}, 2\ns_cbranch_scc1 {lab}')
        for g_ in w1b2[4:]: p.ins.extend(g_)
        p(f'{lab}:')
        self.weave(main[half:], fill[nf:])
        V.free('w1off')
        self.stat_check()
        self.stat_build()
        V.free('pl_S')
        p(f'v_mfma_f32_32x32x16_bf16 {vr(acc,16)}, {vr(ax,4)}, {vr(bx,4)}, {vr(acc,16)}')
        p(f'v_mfma_f32_32x32x16_bf16 {vr(acc+16,16)}, {vr(ax+4,4)}, {vr(bx,4)}, {vr(acc+16,16)}')
        self.stamp('g1p1')
        self.poll_check('A2', V['us'] + 2, 64, 4)
        ud = V.alloc('ud', 8, align=2)
        p(f'''
        s_lshl_b32 s56, {sWAVE}, 19
        s_lshl_b32 s57, {sBETA}, 5
        s_add_u32 s56, s56, s57
        s_add_u32 s56, s56, {WS_UBLK}
        buffer_load_dwordx4 {vr(ud,4)}, v{V['us']}, {SWS}, s56 offen sc1
        buffer_load_dwordx4 {vr(ud+4,4)}, v{V['us']}, {SWS}, s56 offen offset:16 sc1
        ''')
        p.wait_tag('w1dma2')
        p('s_barrier')
        self.fstamp('g1bar')
        self.w2_dma_setup()
        l2 = self.lab('g1n2'); l3 = self.lab('g1j')
        p(f's_cmp_eq_u32 {sNBLK}, 2\ns_cbranch_scc1 {l2}')
        with p.cond(lambda c: c['nblk'] == 3):
            accS = V.alloc('accS', 16, align=2); ones = V['ones']
            self.colsum(2, accS, fr + 16, ones)
            with p.capture() as main:
                for ks in range(3): rd(ks, 2, ks % 4)
                for ks in range(32):
                    if ks + 3 < 32: rd(ks + 3, 2, (ks + 3) % 4)
                    if ks % 2 == 0:
                        for i in self.cap(self.w2_dma, ks // 16, (ks // 2) % 8): p.ins.append(i)
                    c0 = '0' if ks == 0 else vr(acc + 32, 16)
                    p(f'v_mfma_f32_32x32x16_bf16 {vr(acc+32,16)}, {vr(fr+4*(ks%4),4)}, {vr(xf+4*ks,4,"a")}, {c0}')
            with p.capture() as fill:
                self.mish(acc, tm, pk, False); self.act_store(pk, 0)
                self.mish(acc + 16, tm, pk + 8, False); self.act_store(pk + 8, 1)
            self.colsum_write(2, accS)
            self.weave(main, fill)
            V.free('accS')
            self.fstamp('g1p2')
            p('s_waitcnt lgkmcnt(0)\ns_barrier')
            self.ax_build(2, ax + 8, tq)
            d2 = [self.cap(self.w2_dma, 2, k) for k in range(8)]
            for g_ in d2[:2]: p.ins.extend(g_)
            p(f'v_mfma_f32_32x32x16_bf16 {vr(acc+32,16)}, {vr(ax+8,4)}, {vr(bx,4)}, {vr(acc+32,16)}')
            m2 = self.cap(self.mish, acc + 32, tm, pk, True)
            p.merge(m2, d2[2:])
            self.act_store(pk, 2)
        p(f's_branch {l3}\n{l2}:')
        with p.cond(lambda c: c['nblk'] == 2):
            m0_ = self.cap(self.mish, acc, tm, pk, True)
            p.merge(m0_, [self.cap(self.w2_dma, 0, k) for k in range(8)])
            self.act_store(pk, 0)
            p('s_barrier')
            m1_ = self.cap(self.mish, acc + 16, tm, pk + 8, True)
            p.merge(m1_, [self.cap(self.w2_dma, 1, k) for k in range(8)])
            self.act_store(pk + 8, 1)
            for k in range(8): self.w2_dma(2, k)
        p(f'{l3}:')
        self.fstamp('g1mish')
        us = V['us']
        p(f'ds_write_b128 v{us+1}, {vr(ud,4)}')
        p(f'ds_write_b128 v{us+1}, {vr(ud+4,4)} offset:{U_CH}')
        p.wait_tag('w2dma1')
        p('s_waitcnt lgkmcnt(0)\ns_barrier')
        V.free('g1acc', 'g1fr', 'g1tm', 'g1pk', 'bia', 'w1a', 'ud', 'us', 'ax', 'bx', 'scl', 'axt', 'spa', 'stat_a', 'hmask', 'ones', 'csa')
        A.free('xnf')
        lab = self.lab('nw')
        p(f's_or_b32 s52, {sBETA}, {sWAVE}\ns_cmp_lg_u32 s52, 0\ns_cbranch_scc1 {lab}')
        with p.cond(lambda c: c['w'] == 0):
            p('s_mov_b32 s101, 0')
            self.flag_store('s101', WS_FLG)
        p(f'{lab}:')
    def w2_dma_setup(self):
        super().w2_dma_setup()
    def build(self):
        p, V, A = self.p, self.V, self.A
        self.entry()
        self.idle_setup()
        self.gemm1_addr_setup()
        hm = V.alloc('hmask'); ones = V.alloc('ones', 4, align=2); cs = V.alloc('csa', 2)
        p(f'v_add_u32 v{hm}, -1, v{V["hh"]}')
        for k in range(4): p(f'v_mov_b32 v{ones+k}, 0x3f803f80')
        p(f's_lshl_b32 s52, {sWAVE}, 13')
        p(f'v_add_u32 v{cs}, s52, v{V["w1a"]}\nv_add_u32 v{cs+1}, s52, v{V["w1a"]+1}')
        self.stamp('idle')
        self.ln()
        self.stamp('lnst')
        ks = self.cap(self.kgen_setup)
        p.merge(ks, self.w1second)
        with p.cond(lambda c: c['nblk'] == 3): self.w1b2 = self.w1_run(2)
        p('s_barrier')
        self.stamp('ksetup')
        main = self.kgen_values()
        n1 = len(main) * self.o.get('kx1', 5) // 10; n2 = len(main) * 8 // 10
        p.merge(main[:n1 // 2], self.x_dma_groups(0))
        p.ins.extend(main[n1 // 2:n1])
        self.x_read(0)
        p.ins.extend(main[n1:n1 + 12])
        p.wait_lgkm_tag('xrd0')
        p.merge(main[n1 + 12:n2], self.x_dma_groups(1))
        self.ln_flag()
        p.ins.extend(main[n2:])
        V.free('z', 'Z256', 'Cn', 'z2', 'z4', 'w', 'w2', 'w4', 'chains', 'cv', 'fa')
        self.x_read(1)
        self.x_next(2)
        self.stamp('kvals')
        p('s_waitcnt lgkmcnt(0)\ns_barrier')
        km = self.cap(self.kgen_mfma)
        p.ins.extend(km)
        self.x_read(2)
        self.x_next(3)
        self.stamp('kmfma')
        p('s_waitcnt lgkmcnt(0)\ns_barrier')
        if 'table' in self.dump: self.dump_lds(L_T, 2 * T_CH, WS_DBG + 0x100000)
        accS = V.alloc('accS', 32, align=2); sfr = V.alloc('sfr', 24, align=2)
        cs0 = self.cap(self.colsum, 0, accS, sfr, ones); cs1 = self.cap(self.colsum, 1, accS + 16, sfr + 12, ones)
        ex = self.cap(self.expand)
        ncommon = next(k for k, i in enumerate(ex) if i.kind == 'branch')
        grp = []
        for a_, b_ in zip(self.split_mfma(cs0), self.split_mfma(cs1)): grp += [a_, b_]
        p.merge(ex[:ncommon - 1], grp)
        p.ins.extend(ex[ncommon - 1:])
        self.colsum_write(0, accS); self.colsum_write(1, accS + 16)
        V.free('accS', 'sfr')
        self.x_read(3)
        V.free('xv', 'xr')
        p('s_waitcnt lgkmcnt(0)\ns_barrier')
        self.stamp('expand')
        if 'kc' in self.dump: self.dump_lds(L_KC, 8 * KC_STR, WS_DBG + 0x400000)
        self.gemm1()
        self.stamp('gemm1')
        self.conv()
        self.stamp('conv')
        self.gemm2()
        self.stamp('end')
        self.finish()
        return self.finalize()
    def split_mfma(self, ins):
        gs = []; cur = []
        for i in ins:
            cur.append(i)
            if i.kind == 'mfma': gs.append(cur); cur = []
        if cur: gs[-1] += cur
        return gs

if __name__ == '__main__':
    kern3.main(Gen4)
```

```python
import sys, math
from regs import vr
import kern2, kern3, kern4
from kern2 import *
from kern3 import *
from kern4 import *

class Gen5(kern4.Gen4):
    def entry(self):
        self._early = self.o.get('early', 3)
        super().entry()
    def w1_run(self, blk, swap=False):
        gs = super().w1_run(blk, swap)
        if swap and blk == 0 and not getattr(self, '_w1rest', None):
            self._w1rest = gs[self._early:]
            return gs[:self._early]
        return gs
    def gemm1(self):
        p, V, A = self.p, self.V, self.A
        xf = A['xnf']; wa = V['w1a']
        acc = V.alloc('g1acc', 48, align=2); fr = V.alloc('g1fr', 32, align=2); tm = V.alloc('g1tm', 16, align=2); pk = V.alloc('g1pk', 16, align=2)
        ax = V.alloc('ax', 12, align=2); bx = V.alloc('bx', 4, align=2); sc = V.alloc('scl', 6, align=2); tq = V.alloc('axt', 4, align=2)
        p(f'''
        s_lshl_b32 s56, {sTT}, 2
        s_add_u32 s56, s56, {sWAVE}
        s_mul_i32 s35, s56, {86*1024}
        s_lshl_b32 s59, {sFB0}, 11
        s_add_u32 s35, s35, s59
        s_add_u32 s35, s35, {WS_ACT}
        ''')
        self.stat_issue()
        def rd(ks, blk, slot):
            b = fr + 4 * slot; base = wa + (blk >> 1); o = ks * 1024 + W1B * (blk & 1)
            p(f'ds_read_b64_tr_b16 {vr(b,2)}, v{base} offset:{o}')
            p(f'ds_read_b64_tr_b16 {vr(b+2,2)}, v{base} offset:{o+256}')
        w1b2 = self.w1b2
        with p.capture() as main:
            for ks in range(2): rd(ks, 0, 2 * (ks % 4)); rd(ks, 1, 2 * (ks % 4) + 1)
            for ks in range(32):
                c0 = '0' if ks == 0 else vr(acc, 16); c1 = '0' if ks == 0 else vr(acc + 16, 16)
                p(f'v_mfma_f32_32x32x16_bf16 {vr(acc,16)}, {vr(fr+8*(ks%4),4)}, {vr(xf+4*ks,4,"a")}, {c0}')
                if ks + 2 < 32: rd(ks + 2, 0, 2 * ((ks + 2) % 4))
                if ks % 4 == 1 and ks < 32:
                    for i in w1b2[ks // 4]: p.ins.append(i)
                p(f'v_mfma_f32_32x32x16_bf16 {vr(acc+16,16)}, {vr(fr+8*(ks%4)+4,4)}, {vr(xf+4*ks,4,"a")}, {c1}')
                if ks + 2 < 32: rd(ks + 2, 1, 2 * ((ks + 2) % 4) + 1)
        fill = self.cap(self.ax_build, 0, ax, tq) + self.cap(self.ax_build, 1, ax + 4, tq)
        fill += self.late_setup
        fill += self.cap(self.poll_issue, 'A2', V['us'] + 2, 64, 4)
        self.weave(main, fill, start=2)
        V.free('w1off')
        self.stat_check()
        self.stat_build()
        V.free('pl_S')
        p(f'v_mfma_f32_32x32x16_bf16 {vr(acc,16)}, {vr(ax,4)}, {vr(bx,4)}, {vr(acc,16)}')
        p(f'v_mfma_f32_32x32x16_bf16 {vr(acc+16,16)}, {vr(ax+4,4)}, {vr(bx,4)}, {vr(acc+16,16)}')
        self.stamp('g1p1')
        self.poll_check('A2', V['us'] + 2, 64, 4)
        ud = V.alloc('ud', 8, align=2)
        p(f'''
        s_lshl_b32 s56, {sWAVE}, 19
        s_lshl_b32 s57, {sBETA}, 5
        s_add_u32 s56, s56, s57
        s_add_u32 s56, s56, {WS_UBLK}
        buffer_load_dwordx4 {vr(ud,4)}, v{V['us']}, {SWS}, s56 offen sc1
        buffer_load_dwordx4 {vr(ud+4,4)}, v{V['us']}, {SWS}, s56 offen offset:16 sc1
        ''')
        p.wait_tag('w1dma2')
        p('s_barrier')
        self.fstamp('g1bar')
        self.w2_dma_setup()
        d01 = [self.cap(self.w2_dma, r, k) for r in (0, 1) for k in range(8)]
        m0_ = self.cap(self.mish, acc, tm, pk, True)
        p.merge(m0_, d01[:4]); self.act_store(pk, 0)
        m1_ = self.cap(self.mish, acc + 16, tm, pk + 8, True)
        p.merge(m1_, d01[4:8]); self.act_store(pk + 8, 1)
        self.fstamp('g1m01')
        l2 = self.lab('g1n2'); l3 = self.lab('g1j')
        p(f's_cmp_eq_u32 {sNBLK}, 2\ns_cbranch_scc1 {l2}')
        with p.cond(lambda c: c['nblk'] == 3):
            accS = V.alloc('accS', 16, align=2); ones = V['ones']
            self.colsum(2, accS, fr + 16, ones)
            for ks in range(3): rd(ks, 2, ks % 4)
            for ks in range(32):
                c0 = '0' if ks == 0 else vr(acc + 32, 16)
                p(f'v_mfma_f32_32x32x16_bf16 {vr(acc+32,16)}, {vr(fr+4*(ks%4),4)}, {vr(xf+4*ks,4,"a")}, {c0}')
                if ks + 3 < 32: rd(ks + 3, 2, (ks + 3) % 4)
                if ks == 1: self.colsum_write(2, accS)
                if ks % 4 == 2: p.ins.extend(d01[8 + ks // 4])
            V.free('accS')
            self.fstamp('g1p2')
            p('s_waitcnt lgkmcnt(0)\ns_barrier')
            self.ax_build(2, ax + 8, tq)
            d2 = [self.cap(self.w2_dma, 2, k) for k in range(8)]
            for g_ in d2[:2]: p.ins.extend(g_)
            p(f'v_mfma_f32_32x32x16_bf16 {vr(acc+32,16)}, {vr(ax+8,4)}, {vr(bx,4)}, {vr(acc+32,16)}')
            m2 = self.cap(self.mish, acc + 32, tm, pk, True)
            p.merge(m2, d2[2:])
            self.act_store(pk, 2)
        p(f's_branch {l3}\n{l2}:')
        with p.cond(lambda c: c['nblk'] == 2):
            for k in range(8): self.w2_dma(1, k)
            p('s_barrier')
            for k in range(8): self.w2_dma(2, k)
        p(f'{l3}:')
        self.fstamp('g1mish')
        us = V['us']
        p(f'ds_write_b128 v{us+1}, {vr(ud,4)}')
        p(f'ds_write_b128 v{us+1}, {vr(ud+4,4)} offset:{U_CH}')
        p.wait_tag('w2dma1')
        p('s_waitcnt lgkmcnt(0)\ns_barrier')
        V.free('g1acc', 'g1fr', 'g1tm', 'g1pk', 'bia', 'w1a', 'ud', 'us', 'ax', 'bx', 'scl', 'axt', 'spa', 'stat_a', 'hmask', 'ones', 'csa')
        A.free('xnf')
        lab = self.lab('nw')
        p(f's_or_b32 s52, {sBETA}, {sWAVE}\ns_cmp_lg_u32 s52, 0\ns_cbranch_scc1 {lab}')
        with p.cond(lambda c: c['w'] == 0):
            p('s_mov_b32 s101, 0')
            self.flag_store('s101', WS_FLG)
        p(f'{lab}:')
    def conv(self):
        p, V, A = self.p, self.V, self.A
        A.alloc('w2f', 256, align=4, at=0)
        V.alloc('w2v', 88, align=2)
        aA, aB, ce = V['cA'], V['cB'], V['ce']
        acc = V.alloc('cacc', 32, align=2); fr = V.alloc('cfr', 48, align=2)
        a0, a1 = acc, acc + 16
        def rdlist(i):
            b = fr + 16 * (i % 3)
            oa = 32 * (31 - i); ob = 80 * (15 - i // 2) + (32 if i % 2 == 0 else 0)
            return [f'ds_read_b64 {vr(b,2)}, v{aA} offset:{oa}', f'ds_read_b64 {vr(b+2,2)}, v{aA} offset:{oa+8}',
                    f'ds_read_b128 {vr(b+8,4)}, v{aB} offset:{ob}', f'ds_read_b128 {vr(b+12,4)}, v{aB} offset:{ob+2560}',
                    f'ds_read_b64 {vr(b+4,2)}, v{aA+1} offset:{oa}', f'ds_read_b64 {vr(b+6,2)}, v{aA+1} offset:{oa+8}']
        def group(i, dma=None, extra=()):
            b = fr + 16 * (i % 3)
            r = rdlist(i + 2) if i + 2 < 32 else []
            ex_ = list(extra)
            p(f'v_mfma_f32_32x32x16_f16 {vr(a0,16)}, {vr(b,4)}, {vr(b+8,4)}, {vr(a0,16)}')
            for x in r[:3]: p(x)
            p(f'v_mfma_f32_32x32x16_f16 {vr(a1,16)}, {vr(b,4)}, {vr(b+12,4)}, {vr(a1,16)}')
            for x in r[3:]: p(x)
            p(f'v_mfma_f32_32x32x16_f16 {vr(a1,16)}, {vr(b+4,4)}, {vr(b+8,4)}, {vr(a1,16)}')
            if dma: self.w2_dma(*dma)
            for x in ex_: p.ins.append(x)
        b = fr + 32
        p(f'ds_read_b64 {vr(b,2)}, v{aA+2}')
        p(f'ds_read_b64 {vr(b+2,2)}, v{aA+2} offset:8')
        p(f'ds_read_b128 {vr(b+8,4)}, v{aB+1}')
        p(f'ds_read_b128 {vr(b+12,4)}, v{aB+1} offset:2560')
        for x in rdlist(0) + rdlist(1): p(x)
        p(f'v_mfma_f32_32x32x16_f16 {vr(a0,16)}, {vr(b,4)}, {vr(b+8,4)}, 0')
        p(f'v_mfma_f32_32x32x16_f16 {vr(a1,16)}, {vr(b,4)}, {vr(b+12,4)}, 0')
        G1, G2 = self.o.get('G1', 10), 16
        rl = self.w2_read_list(0) + self.w2_read_list(1)
        per = len(rl) // G2
        xl = self.x_epi_loads() if hasattr(self, 'x_epi_loads') else []
        for i in range(G2):
            group(i, (5, i) if i < 3 else None, rl[per * i: per * (i + 1)] + (xl[(i - 4) // 2] if xl and i in (4, 6, 8, 10) else []))
            if i == G1 - 1:
                self.fstamp('cG1'); self.act_flag()
        p('s_waitcnt lgkmcnt(0)\ns_barrier')
        self.fstamp('cG2')
        dq = [(3, k) for k in range(8)] + [(4, k) for k in range(8)]
        nq = self.o.get('dqn', 12)
        kq = 0
        for i in range(G2, 32):
            tgt = min(16, (16 * (i - G2 + 1) + nq - 1) // nq)
            ex_ = []
            while kq < tgt: ex_ += self.cap(self.w2_dma, *dq[kq]); kq += 1
            group(i, None, ex_)
        V.free('cfr', 'cA', 'cB')
        self.stamp('convmm')
        self.conv_epilogue(acc)
    def conv_epilogue(self, acc):
        p, V, A = self.p, self.V, self.A
        ce = V['ce']; a0, a1 = acc, acc + 16
        self.poll_issue('B', V['g2a'], 16, 1)
        p.wait_tag('w2dma4'); p('s_barrier')
        ex = V.alloc('cex', 16, align=2); uu = V.alloc('cuu', 8, align=2); t = V.alloc('cvt', 2)
        l0 = self.lab('cr0'); l1 = self.lab('cr1')
        p(f's_cmp_eq_u32 {sROLE}, 0\ns_cbranch_scc0 {l0}')
        with p.cond(lambda c: c['w'] % 2 == 0):
            for q in range(4): p(f'ds_write_b128 v{ce}, {vr(a1+4*q,4)} offset:{1024*q}')
        p(f's_branch {l1}\n{l0}:')
        with p.cond(lambda c: c['w'] % 2 == 1):
            for q in range(4): p(f'ds_write_b128 v{ce}, {vr(a0+4*q,4)} offset:{1024*q}')
            for r in range(0, 16, 2): p(f'v_pk_mul_f32 {vr(a0+r,2)}, {vr(a1+r,2)}, 1.0 op_sel_hi:[1,0]')
        p(f'{l1}:')
        for q in range(4): p(f'ds_read_b64 {vr(uu+2*q,2)}, v{ce+2} offset:{16*q}')
        self.poll_check('B', V['g2a'], 16, 1)
        self.stamp('pollB')
        self.act_setup()
        for sl in range(4): self.act_load(sl)
        p('s_waitcnt lgkmcnt(0)\ns_barrier')
        for q in range(4): p(f'ds_read_b128 {vr(ex+4*q,4)}, v{ce+1} offset:{1024*q}')
        al = [self.cap(self.act_load, sl) for sl in range(4, self.o['alead'])]
        p(f's_mov_b32 s34, {sSIG}')
        with p.capture() as epi:
            for r in range(0, 16, 2): p(f'v_pk_add_f32 {vr(a0+r,2)}, {vr(a0+r,2)}, {vr(ex+r,2)}')
            for r in range(0, 16, 2): p(f'v_pk_mul_f32 {vr(a0+r,2)}, {vr(a0+r,2)}, s[34:35] op_sel_hi:[1,0]')
            for r in range(16):
                p(f'v_fma_mix_f32 v{a0+r}, v{uu+r//2}, {sDV}, v{a0+r} op_sel:[{r&1},0,0] op_sel_hi:[1,0,0]')
            for r in range(8): p(f'v_cvt_pk_bf16_f32 v{ex+r}, v{a0+2*r}, v{a0+2*r+1}')
            for q in range(4):
                p(f'v_xor_b32 v{t}, {16*q}, v{ce+4}')
                p(f'v_add_u32 v{t}, v{t}, v{ce+3}')
                p(f'ds_write_b64 v{t}, {vr(ex+2*q,2)}')
            p(f'ds_read_b128 {vr(ex+8,4)}, v{ce+5}')
            p(f'ds_read_b128 {vr(ex+12,4)}, v{ce+5} offset:1024')
            p(f'''
            s_lshl_b32 s58, {sBETA}, 1
            s_add_u32 s58, s58, {sCH}
            s_lshl_b32 s58, s58, 12
            s_lshl_b32 s59, {sROLE}, 11
            s_add_u32 s58, s58, s59
            s_add_u32 s58, s58, {WS_ST}
            ''')
            p(f'buffer_store_dwordx4 {vr(ex+8,4)}, v{V["l16"]}, {SWS}, s58 offen sc1', tag='stst')
            p(f'buffer_store_dwordx4 {vr(ex+12,4)}, v{V["l16"]}, {SWS}, s58 offen offset:1024 sc1', tag='stst')
        p.merge(epi, al, 0, len(epi) - 12)
        V.free('cvt', 'cacc', 'cex', 'cuu', 'ce')
    def build(self):
        p, V, A = self.p, self.V, self.A
        self.entry()
        self.idle_setup()
        self.gemm1_addr_setup()
        hm = V.alloc('hmask'); ones = V.alloc('ones', 4, align=2); cs = V.alloc('csa', 2)
        p(f'v_add_u32 v{hm}, -1, v{V["hh"]}')
        for k in range(4): p(f'v_mov_b32 v{ones+k}, 0x3f803f80')
        p(f's_lshl_b32 s52, {sWAVE}, 13')
        p(f'v_add_u32 v{cs}, s52, v{V["w1a"]}\nv_add_u32 v{cs+1}, s52, v{V["w1a"]+1}')
        late = self.cap(self.gemm_addr_setup)
        mark = {0: None, 1: '; MARK_W2', 2: '; MARK_G2'}[self.o.get('nearly', 2)]
        ne = next(k for k, i in enumerate(late) if i.text == mark) if mark else 0
        p.ins.extend(late[:ne]); self.late_setup = late[ne:]
        gst = V.alloc('gst_hold', 4, align=2, at=self._gst_at)
        self.stamp('idle')
        self.ln()
        self.stamp('lnst')
        ks = self.cap(self.kgen_setup)
        p.merge(ks, self._w1rest + self.w1second[:2])
        self.w1b2 = self.w1_run(2)
        p('s_barrier')
        self.stamp('ksetup')
        main = self.kgen_values()
        n1 = len(main) * 5 // 10; n2 = len(main) * 8 // 10
        p.merge(main[:n1], self.w1second[2:] + self.x_dma_groups(0))
        p.ins.extend(main[n1:n2])
        self.ln_flag()
        self.x_read(0)
        p.ins.extend(main[n2:n2 + 10])
        p.wait_lgkm_tag('xrd0')
        p.merge(main[n2 + 10:], self.x_dma_groups(1))
        V.free('z', 'Z256', 'Cn', 'z2', 'z4', 'w', 'w2', 'w4', 'chains', 'cv', 'fa')
        self.stamp('kvals')
        p('s_waitcnt lgkmcnt(0)\ns_barrier')
        km = self.cap(self.kgen_mfma)
        p.ins.extend(km)
        self.x_read(1)
        self.x_next(2)
        self.stamp('kmfma')
        p('s_waitcnt lgkmcnt(0)\ns_barrier')
        accS = V.alloc('accS', 32, align=2); sfr = V.alloc('sfr', 24, align=2)
        cs0 = self.cap(self.colsum, 0, accS, sfr, ones); cs1 = self.cap(self.colsum, 1, accS + 16, sfr + 12, ones)
        ex = self.cap(self.expand)
        ncommon = next(k for k, i in enumerate(ex) if i.kind == 'branch')
        grp = []
        for a_, b_ in zip(self.split_mfma(cs0), self.split_mfma(cs1)): grp += [a_, b_]
        half = (ncommon - 1) // 2
        p.merge(ex[:half], grp[:len(grp) // 2])
        self.x_read(2)
        p.merge(ex[half:half + 6], [])
        p.wait_lgkm_tag('xrd2')
        p.merge(ex[half + 6:ncommon - 1], self.x_dma_groups(3)[:4] + grp[len(grp) // 2:] + self.x_dma_groups_rest)
        p.ins.extend(ex[ncommon - 1:])
        self.colsum_write(0, accS); self.colsum_write(1, accS + 16)
        V.free('accS', 'sfr')
        self.x_read(3)
        V.free('xv', 'xr')
        p('s_waitcnt lgkmcnt(0)\ns_barrier')
        self.stamp('expand')
        self.gemm1()
        V.free('gst_hold')
        self.stamp('gemm1')
        self.conv()
        self.stamp('conv')
        self.gemm2()
        self.stamp('end')
        self.finish()
        return self.finalize()
    def x_dma_groups(self, r):
        gs = super().x_dma_groups(r)
        self.x_dma_groups_rest = gs[4:]
        return gs
    def gemm_addr_setup(self):
        V = self.V
        t = V.alloc('gst_probe', 4, align=2); self._gst_at = t; V.free('gst_probe')
        super().gemm_addr_setup()

if __name__ == '__main__':
    kern3.main(Gen5)
```

```python
import sys, math
from regs import vr
import kern2, kern3, kern4, kern5
from kern2 import *
from kern3 import *
from kern4 import *

class Gen6(kern5.Gen5):
    def entry(self):
        self._early = 0
        super().entry()
    def w1_run(self, blk, swap=False):
        gs = kern4.Gen4.w1_run(self, blk, False)
        if swap:
            if blk == 0:
                self._w1b0 = gs
                return self.x_dma_groups(0)[:4]
            self._w1b1 = gs
        return gs
    def gemm1(self):
        p, V, A = self.p, self.V, self.A
        xf = A['xnf']; wa = V['w1a']
        acc = V.alloc('g1acc', 16, align=2); accS = V.alloc('accS', 16, align=2)
        fr = V.alloc('g1fr', 28, align=2); tm = V.alloc('g1tm', 16, align=2); pk = V.alloc('g1pk', 16, align=2)
        ax = V.alloc('ax', 4, align=2); bx = V.alloc('bx', 4, align=2); sc = V.alloc('scl', 6, align=2); tq = V.alloc('axt', 4, align=2)
        ones = V['ones']
        p(f'''
        s_lshl_b32 s56, {sTT}, 2
        s_add_u32 s56, s56, {sWAVE}
        s_mul_i32 s35, s56, {86*1024}
        s_lshl_b32 s59, {sFB0}, 11
        s_add_u32 s35, s35, s59
        s_add_u32 s35, s35, {WS_ACT}
        ''')
        self.stat_issue()
        def rd(ks, blk):
            b = fr + 4 * (ks % 4); base = wa + (blk >> 1); o = ks * 1024 + W1B * (blk & 1)
            p(f'ds_read_b64_tr_b16 {vr(b,2)}, v{base} offset:{o}')
            p(f'ds_read_b64_tr_b16 {vr(b+2,2)}, v{base} offset:{o+256}')
        def block(blk, side):
            self.colsum(blk, accS, fr + 16, ones)
            for ks in range(3): rd(ks, blk)
            k = 0
            for ks in range(32):
                c0 = '0' if ks == 0 else vr(acc, 16)
                p(f'v_mfma_f32_32x32x16_bf16 {vr(acc,16)}, {vr(fr+4*(ks%4),4)}, {vr(xf+4*ks,4,"a")}, {c0}')
                if ks + 3 < 32: rd(ks + 3, blk)
                if ks == 1: self.colsum_write(blk, accS)
                tgt = len(side) * (ks + 1) // 30 if ks >= 1 else 0
                while k < min(tgt, len(side)): p.ins.extend(side[k]); k += 1
            while k < len(side): p.ins.extend(side[k]); k += 1
        def finish(blk, side):
            self.ax_build(blk, ax, tq)
            p(f'v_mfma_f32_32x32x16_bf16 {vr(acc,16)}, {vr(ax,4)}, {vr(bx,4)}, {vr(acc,16)}')
            m = self.cap(self.mish, acc, tm, pk + 8 * (blk & 1), True)
            p.merge(m, side)
            self.act_store(pk + 8 * (blk & 1), blk)
        def one(i): return [[x] for x in i]
        late = self.late_setup
        side = self.w1b2 + [late[k:k + 2] for k in range(0, len(late), 2)]
        a_, b_ = list(self._w1b1), [late[k:k + 3] for k in range(0, len(late), 3)]
        side = []
        while a_ or b_:
            if b_: side.append(b_.pop(0))
            if b_: side.append(b_.pop(0))
            if a_: side.append(a_.pop(0))
        side.append(self.cap(self.poll_issue, 'A2', V['us'] + 2, 64, 4))
        block(0, side)
        self.stat_check(); self.stat_build(); V.free('pl_S')
        p.wait_tag('w1dma1')
        p('s_waitcnt lgkmcnt(0)\ns_barrier')
        self.stamp('g1b0')
        self.w2_dma_setup()
        d = [[self.cap(self.w2_dma, r, k) for k in range(8)] for r in range(3)]
        finish(0, self.w1b2[:4])
        self.poll_check('A2', V['us'] + 2, 64, 4)
        ud = V.alloc('ud', 8, align=2)
        p(f'''
        s_lshl_b32 s56, {sWAVE}, 19
        s_lshl_b32 s57, {sBETA}, 5
        s_add_u32 s56, s56, s57
        s_add_u32 s56, s56, {WS_UBLK}
        buffer_load_dwordx4 {vr(ud,4)}, v{V['us']}, {SWS}, s56 offen sc1
        buffer_load_dwordx4 {vr(ud+4,4)}, v{V['us']}, {SWS}, s56 offen offset:16 sc1
        ''')
        self.fstamp('g1f0')
        block(1, self.w1b2[4:] + d[0][:4])
        V.free('w1off')
        p.wait_tag('w1dma2')
        p('s_waitcnt lgkmcnt(0)\ns_barrier')
        self.fstamp('g1b1')
        us = V['us']
        finish(1, d[0][4:])
        p(f'ds_write_b128 v{us+1}, {vr(ud,4)}')
        p(f'ds_write_b128 v{us+1}, {vr(ud+4,4)} offset:{U_CH}')
        l2 = self.lab('g1n2'); l3 = self.lab('g1j')
        p(f's_cmp_eq_u32 {sNBLK}, 2\ns_cbranch_scc1 {l2}')
        with p.cond(lambda c: c['nblk'] == 3):
            block(2, [self.cap(self.w2_dma, 1, k) for k in range(8)])
            p('s_waitcnt lgkmcnt(0)\ns_barrier')
            self.fstamp('g1b2')
            finish(2, [self.cap(self.w2_dma, 2, k) for k in range(8)])
        p(f's_branch {l3}\n{l2}:')
        with p.cond(lambda c: c['nblk'] == 2):
            for k in range(8): self.w2_dma(1, k)
            p('s_barrier')
            for k in range(8): self.w2_dma(2, k)
        p(f'{l3}:')
        self.fstamp('g1mish')
        p.wait_tag('w2dma1')
        p('s_waitcnt lgkmcnt(0)\ns_barrier')
        V.free('g1acc', 'accS', 'g1fr', 'g1tm', 'g1pk', 'bia', 'w1a', 'ud', 'us', 'ax', 'bx', 'scl', 'axt', 'spa', 'stat_a', 'hmask', 'ones', 'csa')
        A.free('xnf')
        lab = self.lab('nw')
        p(f's_or_b32 s52, {sBETA}, {sWAVE}\ns_cmp_lg_u32 s52, 0\ns_cbranch_scc1 {lab}')
        with p.cond(lambda c: c['w'] == 0):
            p('s_mov_b32 s101, 0')
            self.flag_store('s101', WS_FLG)
        p(f'{lab}:')
    def build(self):
        p, V, A = self.p, self.V, self.A
        self.entry()
        xg0 = self.x_dma_groups(0)[4:]
        self.idle_setup()
        self.gemm1_addr_setup()
        hm = V.alloc('hmask'); ones = V.alloc('ones', 4, align=2); cs = V.alloc('csa', 2)
        p(f'v_add_u32 v{hm}, -1, v{V["hh"]}')
        for k in range(4): p(f'v_mov_b32 v{ones+k}, 0x3f803f80')
        p(f's_lshl_b32 s52, {sWAVE}, 13')
        p(f'v_add_u32 v{cs}, s52, v{V["w1a"]}\nv_add_u32 v{cs+1}, s52, v{V["w1a"]+1}')
        late = self.cap(self.gemm_addr_setup)
        mark = {0: None, 1: '; MARK_W2', 2: '; MARK_G2', 3: 'ALL'}[self.o.get('nearly', 3)]
        ne = len(late) if mark == 'ALL' else next(k for k, i in enumerate(late) if i.text == mark) if mark else 0
        p.ins.extend(late[:ne]); self.late_setup = late[ne:]
        V.alloc('gst_hold', 4, align=2, at=self._gst_at)
        self.stamp('idle')
        self.ln_parts(xg0)
        self.stamp('lnst')
        ks = self.cap(self.kgen_setup)
        p.merge(ks, self._w1b0[:2])
        self.stat_store_deferred()
        self.w1b2 = self.w1_run(2)
        p('s_barrier')
        self.stamp('ksetup')
        main = self.kgen_values()
        n = len(main)
        p.merge(main[:n * 25 // 100], self._w1b0[2:3])
        self.fstamp('kA')
        self.x_read(0)
        self.fstamp('kB')
        p.ins.extend(main[n * 25 // 100:n * 30 // 100])
        p.wait_lgkm_tag('xrd0')
        p.merge(main[n * 30 // 100:n * 75 // 100], self.x_dma_groups(1))
        self.fstamp('kC')
        self.ln_flag()
        self.fstamp('kD')
        p.merge(main[n * 75 // 100:], self._w1b0[3:5])
        V.free('z', 'Z256', 'Cn', 'z2', 'z4', 'w', 'w2', 'w4', 'chains', 'cv', 'fa')
        self.fstamp('kE')
        self.x_read(1)
        self.stamp('kvals')
        p('s_waitcnt lgkmcnt(0)\ns_barrier')
        km = self.cap(self.kgen_mfma)
        p.merge(km, self.x_dma_groups(2) + self._w1b0[5:6], 2, len(km) - 12)
        self.stamp('kmfma')
        p('s_waitcnt lgkmcnt(0)\ns_barrier')
        ex = self.cap(self.expand)
        ncommon = next(k for k, i in enumerate(ex) if i.kind == 'branch')
        h1 = 24; h2 = h1 + 6
        p.ins.extend(ex[:h1])
        self.x_read(2)
        p.ins.extend(ex[h1:h2])
        p.wait_lgkm_tag('xrd2')
        p.merge(ex[:0], [])
        p.merge(ex[h2:ncommon - 1], self._w1b0[6:] + self.x_dma_groups(3))
        p.ins.extend(ex[ncommon - 1:])
        for g_ in self._w1b1[:self.o.get('b1early', 0)]: p.ins.extend(g_)
        self.x_read(3)
        V.free('xv', 'xr')
        p.wait_tag('w1dma0')
        p('s_waitcnt lgkmcnt(0)\ns_barrier')
        self.stamp('expand')
        self.gemm1()
        V.free('gst_hold')
        self.stamp('gemm1')
        self.conv()
        self.stamp('conv')
        self.gemm2()
        self.stamp('end')
        self.finish()
        return self.finalize()
    def ln_parts(self, xg0):
        p = self.p
        with p.capture() as b: self.ln()
        k = next(i for i, x in enumerate(b) if x.kind == 'barrier') + 1
        p.ins.extend(b[:k])
        for g_ in xg0: p.ins.extend(g_)
        p.ins.extend(b[k:])

if __name__ == '__main__':
    kern3.main(Gen6)
```

```python
import sys, math
from regs import vr
import kern2, kern3, kern4, kern5, kern6
from kern2 import *
from kern3 import *
from kern4 import *

class Gen7(kern6.Gen6):
    def __init__(self, **kw):
        super().__init__(**kw)
        self.o.setdefault('b1early', 4); self.o.setdefault('mtouch', 5)
    def w2_dma(self, r, k):
        p = self.p
        lo, hi = ROUNDS[r]
        sl = lo + k
        if sl >= hi: return
        p(f's_add_u32 m0, s42, {RREG[r] + 4096*k}')
        if sl < 40 and self.o.get('xor', 0):
            if k == 0: p(f's_add_u32 s50, s41, {lo << 14}')
            p(f's_xor_b32 s97, s51, {(sl & 7) << 14}')
            p(f's_add_u32 s97, s97, s50')
            p(f'buffer_load_dwordx4 v{self.V["w2a"]}, {SW2}, s97 offen lds', tag=f'w2dma{r}')
        else:
            p(f's_add_u32 s97, s41, {sl*16*1024}')
            p(f'buffer_load_dwordx4 v{self.V["w2a"]}, {SW2}, s97 offen lds', tag=f'w2dma{r}')
    def w2_dma_setup(self):
        super().w2_dma_setup()
        self.p(f's_lshl_b32 s51, {self.xor_src()}, 14')
    def xor_src(self): return sCG
    def act_setup(self):
        super().act_setup()
        if self.o.get('xor', 0):
            p, V = self.p, self.V
            av = V.alloc('actv', 8)
            for q in range(8):
                p(f's_xor_b32 s98, {self.xor_src()}, {q}\ns_lshl_b32 s98, s98, 10\nv_add_u32 v{av+q}, s98, v{V["l16"]}')
    def act_load(self, sl):
        if not self.o.get('xor', 0): return super().act_load(sl)
        p, V = self.p, self.V
        b = V['ring'] + 4 * (sl % NRING)
        if sl % 8 == 0 and sl: p('s_add_u32 s43, s43, 8192')
        if sl < 40: p(f'buffer_load_dwordx4 {vr(b,4)}, v{V["actv"]+(sl&7)}, {SWS}, s43 offen sc1')
        else: p(f'buffer_load_dwordx4 {vr(b,4)}, v{V["l16"]}, {SWS}, s43 offen offset:{1024*(sl-40)} sc1')
    def gemm1(self):
        p, V, A = self.p, self.V, self.A
        xf = A['xnf']; wa = V['w1a']
        acc = V.alloc('g1acc', 16, align=2); accS = V.alloc('accS', 16, align=2)
        fr = V.alloc('g1fr', 28, align=2); tm = V.alloc('g1tm', 16, align=2); pk = V.alloc('g1pk', 16, align=2)
        ax = V.alloc('ax', 4, align=2); bx = V.alloc('bx', 4, align=2); sc = V.alloc('scl', 6, align=2); tq = V.alloc('axt', 4, align=2)
        ones = V['ones']
        p(f'''
        s_lshl_b32 s56, {sTT}, 2
        s_add_u32 s56, s56, {sWAVE}
        s_mul_i32 s35, s56, {86*1024}
        s_lshl_b32 s59, {sFB0}, 11
        s_add_u32 s35, s35, s59
        s_add_u32 s35, s35, {WS_ACT}
        ''')
        self.stat_issue()
        def rd(ks, blk):
            b = fr + 4 * (ks % 4); base = wa + (blk >> 1); o = ks * 1024 + W1B * (blk & 1)
            p(f'ds_read_b64_tr_b16 {vr(b,2)}, v{base} offset:{o}')
            p(f'ds_read_b64_tr_b16 {vr(b+2,2)}, v{base} offset:{o+256}')
        def main(blk, side):
            k = 0
            for ks in range(32):
                c0 = '0' if ks == 0 else vr(acc, 16)
                p(f'v_mfma_f32_32x32x16_bf16 {vr(acc,16)}, {vr(fr+4*(ks%4),4)}, {vr(xf+4*ks,4,"a")}, {c0}')
                if ks + 3 < 32: rd(ks + 3, blk)
                tgt = len(side) * (ks + 1) // 30 if ks >= 1 else 0
                while k < min(tgt, len(side)): p.ins.extend(side[k]); k += 1
            while k < len(side): p.ins.extend(side[k]); k += 1
        def ax_reads(blk):
            p(f'ds_read_b128 {vr(tq,4)}, v{V["spa"]} offset:{512*blk}')
            p(f'ds_read_b32 v{ax+1}, v{V["bia"]} offset:{128*blk}')
        def ax_valu(blk):
            msk = V['hmask']
            p(f'''
            v_add_f32 v{tq}, v{tq}, v{tq+1}
            v_add_f32 v{tq+2}, v{tq+2}, v{tq+3}
            v_add_f32 v{tq}, v{tq}, v{tq+2}
            v_cvt_pk_bf16_f32 v{tq+1}, v{tq}, v{tq}
            v_lshlrev_b32 v{tq+1}, 16, v{tq+1}
            v_sub_f32 v{tq+1}, v{tq}, v{tq+1}
            v_cvt_pk_bf16_f32 v{ax}, v{tq}, v{tq+1}
            v_and_b32 v{ax}, v{ax}, v{msk}
            v_and_b32 v{ax+1}, v{ax+1}, v{msk}
            ''')
        def finish(blk, nxt, side):
            ax_reads(blk)
            if nxt is not None: self.colsum(nxt, accS, fr + 16, ones)
            ax_valu(blk)
            p(f'v_mfma_f32_32x32x16_bf16 {vr(acc,16)}, {vr(ax,4)}, {vr(bx,4)}, {vr(acc,16)}')
            if nxt is not None:
                for ks in range(3): rd(ks, nxt)
                self.colsum_write(nxt, accS)
            m = self.cap(self.mish, acc, tm, pk + 8 * (blk & 1), True)
            p.merge(m, side)
            self.act_store(pk + 8 * (blk & 1), blk, guard=(blk == 2))
        p(f'v_mov_b32 v{ax+2}, 0\nv_mov_b32 v{ax+3}, 0')
        self.colsum(0, accS, fr + 16, ones)
        for ks in range(3): rd(ks, 0)
        self.colsum_write(0, accS)
        late = self.late_setup
        a_, b_ = list(self._w1b1[self.o['b1early']:]) + self.w1b2[:4], [late[k:k + 3] for k in range(0, len(late), 3)]
        side = []
        while a_ or b_:
            if b_: side.append(b_.pop(0))
            if a_: side.append(a_.pop(0))
        side.append(self.cap(self.poll_issue, 'A2', V['us'] + 2, 64, 4))
        main(0, side)
        self.stat_check(); self.stat_build(); V.free('pl_S')
        p.wait_tag('w1dma1')
        p('s_waitcnt lgkmcnt(0)\ns_barrier')
        self.stamp('g1b0')
        self.w2_dma_setup()
        d = [[self.cap(self.w2_dma, r, k) for k in range(8)] for r in range(3)]
        finish(0, 1, self.w1b2[4:])
        self.poll_check('A2', V['us'] + 2, 64, 4)
        ud = V.alloc('ud', 8, align=2)
        p(f'''
        s_lshl_b32 s56, {sWAVE}, 19
        s_lshl_b32 s57, {sBETA}, 5
        s_add_u32 s56, s56, s57
        s_add_u32 s56, s56, {WS_UBLK}
        buffer_load_dwordx4 {vr(ud,4)}, v{V['us']}, {SWS}, s56 offen sc1
        buffer_load_dwordx4 {vr(ud+4,4)}, v{V['us']}, {SWS}, s56 offen offset:16 sc1
        ''')
        self.fstamp('g1f0')
        main(1, d[0])
        V.free('w1off')
        p.wait_tag('w1dma2')
        p('s_waitcnt lgkmcnt(0)\ns_barrier')
        self.fstamp('g1b1')
        us = V['us']
        finish(1, 2, [])
        p(f'ds_write_b128 v{us+1}, {vr(ud,4)}')
        p(f'ds_write_b128 v{us+1}, {vr(ud+4,4)} offset:{U_CH}')
        main(2, d[1])
        p('s_waitcnt lgkmcnt(0)\ns_barrier')
        self.fstamp('g1b2')
        finish(2, None, d[2])
        self.fstamp('g1mish')
        p.wait_tag('w2dma1')
        p('s_waitcnt lgkmcnt(0)\ns_barrier')
        V.free('g1acc', 'accS', 'g1fr', 'g1tm', 'g1pk', 'bia', 'w1a', 'ud', 'us', 'ax', 'bx', 'scl', 'axt', 'spa', 'stat_a', 'hmask', 'ones', 'csa')
        A.free('xnf')
        lab = self.lab('nw')
        p(f's_or_b32 s52, {sBETA}, {sWAVE}\ns_cmp_lg_u32 s52, 0\ns_cbranch_scc1 {lab}')
        with p.cond(lambda c: c['w'] == 0):
            p('s_mov_b32 s101, 0')
            self.flag_store('s101', WS_FLG)
        p(f'{lab}:')
    def act_store(self, pk, blk, guard=False):
        p = self.p
        lab = None
        if guard:
            lab = self.lab('ast')
            p(f's_cmp_eq_u32 {sNBLK}, 2\ns_cbranch_scc1 {lab}')
        with p.cond((lambda c: c['nblk'] == 3) if guard else (lambda c: True)):
            p(f's_add_u32 s39, s35, {2048*blk}')
            p(f'buffer_store_dwordx4 {vr(pk,4)}, v{self.V["l16"]}, {SWS}, s39 offen sc1', tag='actst')
            p(f'buffer_store_dwordx4 {vr(pk+4,4)}, v{self.V["l16"]}, {SWS}, s39 offen offset:1024 sc1', tag='actst')
        if lab: p(f'{lab}:')
    def conv_epilogue(self, acc):
        p, V, A = self.p, self.V, self.A
        ce = V['ce']; a0, a1 = acc, acc + 16
        xd = V.alloc('g2xd', 8, align=2); g2 = V['g2a']
        p(f'''
        s_lshl_b32 s56, {sTG}, 16
        s_lshl_b32 s57, {sROLE}, 15
        s_add_u32 s56, s56, s57
        s_lshl_b32 s57, {sCG}, 7
        s_add_u32 s56, s56, s57
        s_lshl_b32 s57, {sCH}, 6
        s_add_u32 s37, s56, s57
        ''')
        for q in range(4): p(f'buffer_load_dwordx2 {vr(xd+2*q,2)}, v{g2+7}, {SX}, s37 offen offset:{16*q}')
        p('s_mov_b32 s39, s37')
        self.poll_issue('B', V['g2a'], 16, 1)
        p.wait_tag('w2dma4'); p('s_barrier')
        ex = V.alloc('cex', 16, align=2); uu = V.alloc('cuu', 8, align=2); t = V.alloc('cvt', 2)
        l0 = self.lab('cr0'); l1 = self.lab('cr1')
        p(f's_cmp_eq_u32 {sROLE}, 0\ns_cbranch_scc0 {l0}')
        with p.cond(lambda c: c['w'] % 2 == 0):
            for q in range(4): p(f'ds_write_b128 v{ce}, {vr(a1+4*q,4)} offset:{1024*q}')
        p(f's_branch {l1}\n{l0}:')
        with p.cond(lambda c: c['w'] % 2 == 1):
            for q in range(4): p(f'ds_write_b128 v{ce}, {vr(a0+4*q,4)} offset:{1024*q}')
            for r in range(0, 16, 2): p(f'v_pk_mul_f32 {vr(a0+r,2)}, {vr(a1+r,2)}, 1.0 op_sel_hi:[1,0]')
        p(f'{l1}:')
        for q in range(4): p(f'ds_read_b64 {vr(uu+2*q,2)}, v{ce+2} offset:{16*q}')
        npre = self.o.get('npre', 2)
        self._rl_done = 2 + npre
        self.poll_check('B', V['g2a'], 16, 1)
        self.stamp('pollB')
        self.act_setup()
        if self.o.get('atouch', 0):
            tv = V['touch']; tt = V.alloc('att')
            p(f'''
            s_mul_i32 s98, {sCG}, {43*128}
            s_add_u32 s98, s98, s43
            v_lshlrev_b32 v{tt}, 7, v1
            s_mov_b32 exec_hi, 0x7ff
            buffer_load_dword v{tv}, v{tt}, {SWS}, s98 offen sc1
            s_mov_b32 exec_hi, -1
            ''')
            V.free('att')
        for sl in range(self.o['alead']): self.act_load(sl)
        p('s_waitcnt lgkmcnt(0)\ns_barrier')
        for q in range(4): p(f'ds_read_b128 {vr(ex+4*q,4)}, v{ce+1} offset:{1024*q}')
        rl = []
        for r in range(2, 2 + npre): rl += self.w2_read_list(r)
        p(f's_mov_b32 s34, {sSIG}')
        with p.capture() as epi:
            for r in range(0, 16, 2): p(f'v_pk_add_f32 {vr(a0+r,2)}, {vr(a0+r,2)}, {vr(ex+r,2)}')
            for r in range(0, 16, 2): p(f'v_pk_mul_f32 {vr(a0+r,2)}, {vr(a0+r,2)}, s[34:35] op_sel_hi:[1,0]')
            for r in range(16):
                p(f'v_fma_mix_f32 v{a0+r}, v{uu+r//2}, {sDV}, v{a0+r} op_sel:[{r&1},0,0] op_sel_hi:[1,0,0]')
            for r in range(8): p(f'v_cvt_pk_bf16_f32 v{ex+r}, v{a0+2*r}, v{a0+2*r+1}')
            for q in range(4):
                p(f'v_xor_b32 v{t}, {16*q}, v{ce+4}')
                p(f'v_add_u32 v{t}, v{t}, v{ce+3}')
                p(f'ds_write_b64 v{t}, {vr(ex+2*q,2)}')
            p(f'ds_read_b128 {vr(ex+8,4)}, v{ce+5}')
            p(f'ds_read_b128 {vr(ex+12,4)}, v{ce+5} offset:1024')
            p(f'''
            s_lshl_b32 s58, {sBETA}, 1
            s_add_u32 s58, s58, {sCH}
            s_lshl_b32 s58, s58, 12
            s_lshl_b32 s59, {sROLE}, 11
            s_add_u32 s58, s58, s59
            s_add_u32 s58, s58, {WS_ST}
            ''')
            p(f'buffer_store_dwordx4 {vr(ex+8,4)}, v{V["l16"]}, {SWS}, s58 offen sc1', tag='stst')
            p(f'buffer_store_dwordx4 {vr(ex+12,4)}, v{V["l16"]}, {SWS}, s58 offen offset:1024 sc1', tag='stst')
        p.ins.extend(epi)
        for i in rl: p.ins.append(i)
        V.free('cvt', 'cacc', 'cex', 'cuu', 'ce')
    def gemm2(self):
        p, V, A = self.p, self.V, self.A
        g2 = V['g2a']; lead = self.o['alead']; ring = V['ring']
        acc = V.alloc('g2acc', 32, align=2)
        xd = V['g2xd']; sd = V.alloc('g2sd', 8, align=2)
        rl = []
        for r in range(self._rl_done, 6): rl += self.w2_read_list(r)
        sC1, sC2 = self.o.get('sC1', 34), self.o.get('sC2', 39)
        def extra(sl):
            if sl in (8, 16, 24, 32, 38): self.fstamp(f'g2s{sl}')
            if sl == self.o.get('sF', 9): self.st_flag()
            if sl == sC1: self.poll_issue('C', g2 + 1, 64, 1)
            if sl == sC2:
                self.poll_check('C', g2 + 1, 64, 1)
                p(f'''
                s_lshl_b32 s56, {sCG}, 18
                s_lshl_b32 s57, {sTG}, 7
                s_add_u32 s56, s56, s57
                s_add_u32 s56, s56, {WS_ST}
                s_add_u32 s57, s56, {32*4096}
                buffer_load_dwordx4 {vr(sd,4)}, v{g2+4}, {SWS}, s56 offen sc1
                buffer_load_dwordx4 {vr(sd+4,4)}, v{g2+4}, {SWS}, s57 offen sc1
                ''')
        k = 0; per = 2
        for sl in range(43):
            extra(sl)
            if sl + lead < 43: self.act_load(sl + lead)
            b = ring + 4 * (sl % NRING)
            c0 = '0' if sl == 0 else vr(acc, 16); c1 = '0' if sl == 0 else vr(acc + 16, 16)
            p(f'v_mfma_f32_32x32x16_bf16 {vr(acc,16)}, {self.w2reg(sl,0)[0]}, {vr(b,4)}, {c0}')
            if k < len(rl): p.ins.append(rl[k]); k += 1
            p(f'v_mfma_f32_32x32x16_bf16 {vr(acc+16,16)}, {self.w2reg(sl,1)[0]}, {vr(b,4)}, {c1}')
            for _ in range(1 if self._rl_done >= 4 else 3):
                if k < len(rl): p.ins.append(rl[k]); k += 1
        assert k == len(rl), (k, len(rl))
        V.free('ring', 'w2v', 'w2a'); A.free('w2f')
        if self.o.get('xor', 0): V.free('actv')
        self.stamp('g2mm')
        self.gemm2_final(acc, xd, sd)
    def gemm2_final(self, acc, xd, sd):
        p, V, A = self.p, self.V, self.A
        g2 = V['g2a']
        ex = V.alloc('g2ex', 16, align=2)
        l0 = self.lab('g20'); l1 = self.lab('g21')
        p('s_barrier')
        p(f's_cmp_eq_u32 {sCH}, 0\ns_cbranch_scc0 {l0}')
        with p.cond(lambda c: c['w'] < 2):
            for q in range(4): p(f'ds_write_b128 v{g2+2}, {vr(acc+16+4*q,4)} offset:{1024*q}')
        p(f's_branch {l1}\n{l0}:')
        with p.cond(lambda c: c['w'] >= 2):
            for q in range(4): p(f'ds_write_b128 v{g2+2}, {vr(acc+4*q,4)} offset:{1024*q}')
            for r in range(0, 16, 2): p(f'v_pk_mul_f32 {vr(acc+r,2)}, {vr(acc+16+r,2)}, 1.0 op_sel_hi:[1,0]')
        p(f'{l1}:')
        p(f'ds_write_b128 v{g2+5}, {vr(sd,4)}')
        p(f'ds_write_b128 v{g2+5}, {vr(sd+4,4)} offset:{32*ST_STR}')
        p('s_waitcnt lgkmcnt(0)\ns_barrier')
        for q in range(4): p(f'ds_read_b128 {vr(ex+4*q,4)}, v{g2+3} offset:{1024*q}')
        for q in range(4): p(f'ds_read_b64_tr_b16 {vr(sd+2*q,2)}, v{g2+6} offset:{8*q*ST_STR}')
        p(f's_mov_b32 s34, {f32(-LOG2E)}')
        for r in range(0, 16, 2): p(f'v_pk_add_f32 {vr(acc+r,2)}, {vr(acc+r,2)}, {vr(ex+r,2)}')
        for r in range(0, 16, 2): p(f'v_pk_mul_f32 {vr(ex+r,2)}, {vr(acc+r,2)}, s[34:35] op_sel_hi:[1,0]')
        for r in range(16): p(f'v_exp_f32 v{ex+r}, v{ex+r}')
        for r in range(0, 16, 2): p(f'v_pk_add_f32 {vr(ex+r,2)}, {vr(ex+r,2)}, 1.0 op_sel_hi:[1,0]')
        for r in range(16): p(f'v_rcp_f32 v{ex+r}, v{ex+r}')
        for r in range(0, 16, 2): p(f'v_pk_mul_f32 {vr(acc+r,2)}, {vr(acc+r,2)}, {vr(ex+r,2)}')
        for r in range(16):
            if r % 2 == 0: p(f'v_lshlrev_b32 v{ex+r}, 16, v{sd+r//2}')
            else: p(f'v_and_b32 v{ex+r}, 0xffff0000, v{sd+r//2}')
        for r in range(0, 16, 2): p(f'v_pk_mul_f32 {vr(acc+r,2)}, {vr(acc+r,2)}, {vr(ex+r,2)}')
        for r in range(16):
            if r % 2 == 0: p(f'v_lshlrev_b32 v{ex+r}, 16, v{xd+r//2}')
            else: p(f'v_and_b32 v{ex+r}, 0xffff0000, v{xd+r//2}')
        for r in range(0, 16, 2): p(f'v_pk_add_f32 {vr(acc+r,2)}, {vr(acc+r,2)}, {vr(ex+r,2)}')
        for r in range(8):
            p(f'v_cvt_pk_bf16_f32 v{xd+r}, v{acc+2*r}, v{acc+2*r+1}')
            if r % 2 == 1:
                q = r // 2
                p(f'buffer_store_dwordx2 {vr(xd+2*q,2)}, v{g2+7}, {SOUT}, s39 offen offset:{16*q}')
        V.free('g2acc', 'g2ex', 'g2sd', 'g2xd', 'g2a')

if __name__ == '__main__':
    kern3.main(Gen7)
```

```python
import sys, math, struct
from asmgen import Prog
from regs import Regs, vr
from kern import (NAME, WS_XNF, WS_UBLK, WS_ACT, WS_ST, WS_FLG, FL_A, FL_B, FL_C, WS_DBG, WS_BYTES,
                  L_W, L_F, F_WAVE, L_T, T_CH, T_ZERO, L_MISC, LDS_BYTES, TBF_STR, TH_STR, L_TBF, L_TH,
                  KC_STR, L_KC, L_U, U_CH, X0, LOG2E, f32)
import pads as PADS

sBETA, sWAVE, sTT, sFB0, sNBLK = 's3', 's4', 's5', 's6', 's7'
SX, SW1, SW2, SWS, SOUT, SB1 = 's[8:11]', 's[12:15]', 's[16:19]', 's[20:23]', 's[24:27]', 's[28:31]'
pLOGA, pAIM, pCRE, pCIM, pLOGDT, pDSK = 's[66:67]', 's[68:69]', 's[70:71]', 's[72:73]', 's[74:75]', 's[76:77]'
sSIG, sDV, sNONCE, sTG, sCG, sLDT, sDSK = 's44', 's45', 's46', 's47', 's48', 's49', 's50'
sCH, sROLE = 's32', 's33'
pDBG = 's[92:93]'
ST_L = 147456; ST_STR = 144
R1 = 36

class Gen:
    def __init__(self, stamps=False, dump=None, dbgstamps=None, opts=None):
        self.stamps = stamps; self.dump = dump or set(); self.dbgstamps = dbgstamps
        self.o = dict(pads=True, touch=True, touch64=False, lead=10)
        self.o.update(opts or {})
        cfgs = [dict(w=w, nblk=n) for w in range(4) for n in (2, 3)]
        self.p = Prog(cfgs)
        self.V = Regs('v', 255 if stamps else 256, reserved=2)
        self.A = Regs('a', 256)
        self.nstamp = 0; self.uid = 0; self.stamp_names = []
    def lab(self, s):
        self.uid += 1
        return f'L_{s}_{self.uid}'
    def stamp(self, name):
        if not self.stamps: return
        p = self.p
        only = getattr(self, 'only', None)
        if only is not None:
            if name not in only: return
            k = len(self.stamp_names)
            assert k < 14
            i = p(f's_memtime s[{64+2*k}:{65+2*k}]')
            i.kind = 'salu'; i.defs = set(); i.uses = set()
            self.stamp_names.append(name); self.nstamp += 1
            if self.o.get('rt'):
                k += 1
                i = p(f's_memrealtime s[{64+2*k}:{65+2*k}]')
                i.kind = 'salu'; i.defs = set(); i.uses = set()
                self.stamp_names.append(name + '_rt'); self.nstamp += 1
            return
        p('s_memtime s[94:95]')
        p('s_waitcnt lgkmcnt(0)')
        p(f'v_writelane_b32 v255, s94, {self.nstamp}')
        self.nstamp += 1; self.stamp_names.append(name)
    def exec_lanes(self, n):
        if n >= 64: return
        if n > 32: raise ValueError
        self.p(f's_mov_b32 exec_lo, {hex((1 << n) - 1) if n < 32 else -1}\ns_mov_b32 exec_hi, 0')
    def exec_all(self): self.p('s_mov_b64 exec, -1')
    def cap(self, fn, *a):
        with self.p.capture() as b: fn(*a)
        return b
    def weave(self, main, fill, per=None, start=0):
        p = self.p
        nm = sum(1 for i in main if i.kind == 'mfma') - start
        k = 0; seen = 0
        for i in main:
            p.ins.append(i)
            if i.kind == 'mfma':
                seen += 1
                if seen > start:
                    tgt = min(len(fill), (seen - start) * per) if per else (len(fill) * (seen - start) + nm - 1) // nm
                    while k < tgt: p.ins.append(fill[k]); k += 1
        while k < len(fill): p.ins.append(fill[k]); k += 1
    def entry(self):
        p, V = self.p, self.V
        x0 = V.alloc('x0', 4); x1 = V.alloc('x1', 4)
        l16 = V.alloc('l16'); t = V.alloc('t0'); t2 = V.alloc('t1')
        p(f'''
        s_load_dwordx16 s[64:79], s[0:1], 0
        s_load_dwordx8 s[80:87], s[0:1], 64
        s_load_dwordx4 s[88:91], s[0:1], 96
        s_cmp_ge_u32 s2, 256
        s_cbranch_scc1 L_end
        v_and_b32 v1, 63, v0
        v_lshrrev_b32 v2, 6, v0
        s_and_b32 s52, s2, 7
        s_lshr_b32 s53, s2, 3
        v_readfirstlane_b32 {sWAVE}, v2
        s_lshl_b32 {sBETA}, s52, 5
        s_add_u32 {sBETA}, {sBETA}, s53
        v_lshlrev_b32 v{l16}, 4, v1
        s_lshl_b32 s52, {sBETA}, 3
        s_lshl_b32 s53, {sWAVE}, 1
        s_add_u32 s52, s52, s53
        s_lshl_b32 s52, s52, 10
        s_mov_b32 s10, 0x200000
        s_mov_b32 s11, 0x20000
        s_lshr_b32 {sCH}, {sWAVE}, 1
        s_and_b32 {sROLE}, {sWAVE}, 1
        s_lshl_b32 s54, {sBETA}, 1
        s_add_u32 s54, s54, {sCH}
        s_lshl_b32 s54, s54, 8
        s_lshl_b32 s55, {sROLE}, 7
        s_add_u32 s56, s54, s55
        s_xor_b32 s55, s55, 128
        s_add_u32 s57, s54, s55
        v_lshlrev_b32 v{t2}, 1, v1
        v_add_u32 v{t}, s57, v{t2}
        v_add_u32 v{t2}, s56, v{t2}
        s_lshl_b32 s58, {sBETA}, 2
        s_waitcnt lgkmcnt(0)
        s_mov_b32 s8, s64
        s_mov_b32 s9, s65
        ''')
        if self.o.get('fine'): self.stamp('e0')
        p(f'buffer_load_dwordx4 {vr(x0,4)}, v{l16}, {SX}, s52 offen')
        p(f'buffer_load_dwordx4 {vr(x1,4)}, v{l16}, {SX}, s52 offen offset:1024')
        pr = V.alloc('par', 6)
        if self.o.get('fine'): self.stamp('e1')
        p(f'''
        global_load_ushort v{pr}, v{t2}, {pLOGA}
        global_load_ushort v{pr+1}, v{t2}, {pAIM}
        global_load_ushort v{pr+2}, v{t2}, {pCRE}
        global_load_ushort v{pr+3}, v{t2}, {pCIM}
        global_load_ushort v{pr+4}, v{t}, {pCRE}
        global_load_ushort v{pr+5}, v{t}, {pCIM}
        s_load_dword {sLDT}, {pLOGDT}, s58
        s_load_dword {sDSK}, {pDSK}, s58
        s_mov_b32 s20, s90
        s_mov_b32 s21, s91
        s_mov_b32 s22, {WS_BYTES}
        s_mov_b32 s23, 0x20000
        ''')
        nv = V.alloc('nonce')
        if self.o.get('fine'): self.stamp('e2')
        p(f'''
        v_mov_b32 v{t}, {WS_FLG}
        buffer_load_dword v{nv}, v{t}, {SWS}, 0 offen sc1
        s_mov_b32 s12, s80
        s_mov_b32 s13, s81
        s_mov_b32 s14, {512*1376*2}
        s_mov_b32 s15, 0x20000
        s_mov_b32 s16, s84
        s_mov_b32 s17, s85
        s_mov_b32 s18, {512*1376*2}
        s_mov_b32 s19, 0x20000
        s_mov_b32 s24, s86
        s_mov_b32 s25, s87
        s_mov_b32 s26, 0x200000
        s_mov_b32 s27, 0x20000
        s_mov_b32 s28, s82
        s_mov_b32 s29, s83
        s_mov_b32 s30, {1376*2}
        s_mov_b32 s31, 0x20000
        s_mov_b64 {pDBG}, s[88:89]
        s_lshr_b32 {sTT}, {sBETA}, 4
        s_and_b32 s54, {sBETA}, 15
        s_mul_i32 {sFB0}, s54, 3
        s_lshl_b32 s55, s54, 1
        s_add_u32 s55, s55, 11
        s_cmp_lt_u32 s54, 11
        s_cselect_b32 {sFB0}, {sFB0}, s55
        s_cselect_b32 {sNBLK}, 3, 2
        s_lshr_b32 {sTG}, {sBETA}, 3
        s_and_b32 {sCG}, {sBETA}, 7
        ''')
        if self.o.get('fine'): self.stamp('e3')
        if self.o['touch']:
            lab = self.lab('tch')
            tv = V.alloc('touch', 6)
            p(f's_cmp_lt_u32 {sWAVE}, 2\ns_cbranch_scc1 {lab}')
            with p.cond(lambda c: c['w'] >= 2):
                step = 64 if self.o['touch64'] else 128
                n = 6 if self.o['touch64'] else 3
                p(f'''
                s_lshr_b32 s52, s2, 3
                s_mul_i32 s52, s52, 44032
                s_sub_u32 s53, {sWAVE}, 2
                s_mul_i32 s53, s53, 22016
                s_add_u32 s52, s52, s53
                v_mul_u32_u24 v{t}, {step}, v1
                ''')
                for k in range(n):
                    p(f'buffer_load_dword v{tv+k}, v{t}, {SW1}, s52 offen')
                    if k + 1 < n: p(f's_add_u32 s52, s52, {64*step}')
            p(f'{lab}:')
        b = V.alloc('bias', 24)
        if self.o.get('fine'): self.stamp('e4')
        p(f'''
        v_lshrrev_b32 v{t}, 5, v1
        v_lshlrev_b32 v{t}, 3, v{t}
        s_lshl_b32 s52, {sFB0}, 6
        ''')
        for blk in range(3):
            for q in range(4):
                p(f'buffer_load_dwordx2 {vr(b+8*blk+2*q,2)}, v{t}, {SB1}, s52 offen offset:{64*blk+16*q}')
        V.free('t0', 't1')
        self.stamp('start')
        if self.stamps:
            p('s_memrealtime s[94:95]\ns_waitcnt lgkmcnt(0)\nv_writelane_b32 v255, s94, 62')
        if self.o['pads']:
            p('s_mov_b64 s[62:63], exec\ns_mov_b64 exec, 0\n;WARM\nL_warm_ret:\ns_mov_b64 exec, s[62:63]')
        p('s_branch L_main\n.p2align 12\nL_main:')
    def idle_setup(self):
        p, V = self.p, self.V
        l16 = V['l16']
        t = V.alloc('ist', 8, align=2)
        n31 = V.alloc('n31'); hh = V.alloc('hh')
        p(f'v_and_b32 v{n31}, 31, v1\nv_lshrrev_b32 v{hh}, 5, v1')
        z = t + 4
        for k in range(4): p(f'v_mov_b32 v{z+k}, 0')
        p(f'v_lshlrev_b32 v{t}, 4, v0\nv_add_u32 v{t}, {L_T}, v{t}')
        p(f'ds_write_b128 v{t}, {vr(z,4)}')
        p(f'''
        v_cmp_gt_u32 vcc, {(2*T_CH-4096)//16}, v0
        s_and_saveexec_b64 s[62:63], vcc
        ds_write_b128 v{t}, {vr(z,4)} offset:4096
        s_mov_b64 exec, s[62:63]
        ''')
        vo = V.alloc('w1off', 3)
        for k in range(3):
            p(f'''
            v_add_u32 v{t}, {64*k}, v1
            v_mul_u32_u24 v{t+1}, 171, v{t}
            v_lshrrev_b32 v{t+1}, 11, v{t+1}
            v_mul_u32_u24 v{vo+k}, 12, v{t+1}
            v_sub_u32 v{vo+k}, v{t}, v{vo+k}
            v_lshlrev_b32 v{vo+k}, 4, v{vo+k}
            v_mul_u32_u24 v{t+1}, 2752, v{t+1}
            v_add_u32 v{vo+k}, v{vo+k}, v{t+1}
            ''')
            if k: p(f'v_subrev_u32 v{vo+k}, {1024*k}, v{vo+k}')
        fa = V.alloc('fa'); kr = V.alloc('kr', 2); kt = V.alloc('ktb', 3)
        p(f'''
        s_mul_i32 s52, {sWAVE}, {F_WAVE}
        s_add_u32 s52, s52, {L_F}
        v_lshlrev_b32 v{fa}, 2, v1
        v_add_u32 v{fa}, s52, v{fa}
        v_and_b32 v{t}, 15, v1
        v_lshrrev_b32 v{t+1}, 4, v1
        v_lshlrev_b32 v{kr}, 4, v{t+1}
        v_mul_u32_u24 v{t+2}, 272, v{t}
        v_add_u32 v{kr}, v{kr}, v{t+2}
        s_mul_i32 s52, {sCH}, {2*F_WAVE}
        s_add_u32 s52, s52, {L_F}
        v_add_u32 v{kr}, s52, v{kr}
        s_mul_i32 s53, {sROLE}, {16*272}
        s_add_u32 s53, s53, {21*272}
        v_add_u32 v{kr+1}, s53, v{kr}
        s_lshl_b32 s53, {sROLE}, 4
        v_add_u32 v{t}, s53, v{t}
        s_mul_i32 s52, {sCH}, {T_CH}
        s_add_u32 s52, s52, {L_T}
        v_lshlrev_b32 v{kt}, 5, v{t}
        v_lshlrev_b32 v{t+2}, 4, v{t+1}
        v_add_u32 v{kt}, v{kt}, v{t+2}
        v_lshlrev_b32 v{t+2}, 4, v{t}
        v_add_u32 v{t+2}, 1024, v{t+2}
        v_cmp_eq_u32 s[54:55], 2, v{t+1}
        v_cndmask_b32 v{kt}, v{kt}, v{t+2}, s[54:55]
        v_lshlrev_b32 v{t+2}, 3, v{t}
        v_add_u32 v{t+2}, 1536, v{t+2}
        v_cmp_eq_u32 s[54:55], 3, v{t+1}
        v_cndmask_b32 v{kt}, v{kt}, v{t+2}, s[54:55]
        v_mov_b32 v{kt+1}, 8
        v_mov_b32 v{t+2}, 256
        v_cndmask_b32 v{kt+1}, v{kt+1}, v{t+2}, s[54:55]
        v_add_u32 v{kt}, s52, v{kt}
        v_add_u32 v{kt+1}, v{kt+1}, v{kt}
        v_min_u32 v{kt+2}, 1, v{t+1}
        v_lshlrev_b32 v{kt+2}, 9, v{kt+2}
        v_lshlrev_b32 v{t+2}, 2, v{t}
        v_add_u32 v{kt+2}, v{kt+2}, v{t+2}
        v_add_u32 v{kt+2}, s52, v{kt+2}
        v_add_u32 v{kt+2}, 2048, v{kt+2}
        ''')
        ea = V.alloc('expad', 11)
        p(f'v_lshlrev_b32 v{t}, 3, v0\nv_sub_u32 v{t}, 2033, v{t}')
        p(f'v_mov_b32 v{t+3}, {T_ZERO//4}')
        for d in range(11):
            J = t + 1; fJ = t + 2; c = ea + d
            p(f'''
            v_add_u32 v{J}, {d}, v{t}
            v_cvt_f32_i32 v{fJ}, v{J}
            v_cvt_pk_bf16_f32 v{fJ}, v{fJ}, v{fJ}
            v_cmp_gt_i32 s[54:55], 64, v{J}
            v_cmp_gt_i32 s[56:57], 0, v{J}
            v_and_b32 v{fJ}, 0xffff, v{fJ}
            v_subrev_u32 v{c}, 17024, v{fJ}
            v_cmp_gt_i32 s[58:59], s34, v{J}
            v_cndmask_b32 v{c}, v{c}, v{J}, s[58:59]
            v_cndmask_b32 v{c}, v{c}, v{t+3}, s[56:57]
            v_lshlrev_b32 v{c}, 2, v{c}
            v_add_u32 v{c}, {L_T}, v{c}
            '''.replace('v_cmp_gt_i32 s[54:55], 64, v{J}\n'.format(J=J), ''))
        V.free('ist')
    def gemm_addr_setup(self):
        p, V = self.p, self.V
        n31, hh, l16 = V['n31'], V['hh'], V['l16']
        t = V.alloc('gst', 4, align=2)
        aA = V.alloc('cA', 3); aB = V.alloc('cB', 2)
        p(f'''
        v_and_b32 v{t}, 3, v1
        v_mul_u32_u24 v{t}, {KC_STR}, v{t}
        v_bfe_u32 v{t+1}, v1, 2, 3
        v_lshlrev_b32 v{t+1}, 3, v{t+1}
        v_sub_u32 v{t}, v{t}, v{t+1}
        v_lshlrev_b32 v{t+3}, 4, v{hh}
        v_add_u32 v{t}, v{t}, v{t+3}
        s_mul_i32 s58, {sCH}, {4*KC_STR}
        s_add_u32 s58, s58, {L_KC + 2*X0}
        s_lshl_b32 s59, {sROLE}, 10
        s_sub_u32 s59, s58, s59
        s_sub_u32 s59, s59, 1024
        v_add_u32 v{aA}, s59, v{t}
        v_subrev_u32 v{aA+1}, 2048, v{aA}
        s_lshl_b32 s59, {sROLE}, 5
        s_sub_u32 s59, s58, s59
        s_add_u32 s59, s59, 32
        v_add_u32 v{aA+2}, s59, v{t}
        v_mul_u32_u24 v{t}, 80, v{n31}
        v_add_u32 v{t+1}, v{t}, v{t+3}
        s_mul_i32 s58, {sCH}, {U_CH}
        s_add_u32 s58, s58, {L_U}
        s_mul_i32 s59, {sROLE}, {80*16}
        s_sub_u32 s59, s58, s59
        s_add_u32 s59, s59, {80*16}
        v_add_u32 v{aB}, s59, v{t+1}
        s_lshl_b32 s59, {sROLE}, 5
        s_sub_u32 s59, s58, s59
        s_add_u32 s59, s59, {80*32+32}
        v_add_u32 v{aB+1}, s59, v{t+1}
        ''')
        ce = V.alloc('ce', 6)
        p(f'''
        s_lshl_b32 s59, {sWAVE}, 12
        s_add_u32 s59, s59, {L_KC}
        v_add_u32 v{ce}, s59, v{l16}
        s_xor_b32 s59, {sWAVE}, 1
        s_lshl_b32 s59, s59, 12
        s_add_u32 s59, s59, {L_KC}
        v_add_u32 v{ce+1}, s59, v{l16}
        v_lshlrev_b32 v{t+3}, 3, v{hh}
        v_add_u32 v{t}, v{t}, v{t+3}
        s_mul_i32 s59, {sROLE}, 2560
        s_add_u32 s59, s59, s58
        s_add_u32 s59, s59, 2560
        v_add_u32 v{ce+2}, s59, v{t}
        v_lshlrev_b32 v{t}, 6, v{n31}
        v_add_u32 v{t}, v{t}, v{t+3}
        s_lshl_b32 s59, {sWAVE}, 11
        s_add_u32 s59, s59, {L_KC + 16384}
        v_add_u32 v{ce+3}, s59, v{t}
        v_bfe_u32 v{ce+4}, v1, 1, 2
        v_lshlrev_b32 v{ce+4}, 4, v{ce+4}
        v_lshrrev_b32 v{t}, 2, v1
        v_bfe_u32 v{t+1}, v1, 3, 2
        v_and_b32 v{t+3}, 3, v1
        v_xor_b32 v{t+1}, v{t+1}, v{t+3}
        v_lshlrev_b32 v{t+1}, 4, v{t+1}
        v_lshlrev_b32 v{t}, 6, v{t}
        v_add_u32 v{t}, v{t}, v{t+1}
        v_add_u32 v{ce+5}, s59, v{t}
        ''')
        us = V.alloc('us', 3)
        p(f'''
        v_lshlrev_b32 v{us}, 13, v1
        s_lshl_b32 s59, {sWAVE}, 6
        s_add_u32 s59, s59, 128
        v_add_u32 v{t}, s59, v1
        v_lshrrev_b32 v{t+1}, 2, v{t}
        v_mul_u32_u24 v{t+1}, 80, v{t+1}
        v_and_b32 v{t}, 3, v{t}
        v_lshlrev_b32 v{t}, 4, v{t}
        v_add_u32 v{t}, v{t}, v{t+1}
        v_add_u32 v{us+1}, {L_U}, v{t}
        s_lshl_b32 s59, {sWAVE}, 10
        s_add_u32 s59, s59, {FL_A}
        v_add_u32 v{us+2}, s59, v{l16}
        ''')
        w2 = V.alloc('w2a', 2)
        p(f'''
        v_lshrrev_b32 v{t}, 3, v1
        v_bfe_u32 v{t+1}, v1, 4, 1
        v_lshlrev_b32 v{t+1}, 2, v{t+1}
        v_and_b32 v{t+2}, 7, v1
        v_xor_b32 v{t+1}, v{t+1}, v{t+2}
        v_lshlrev_b32 v{t+1}, 4, v{t+1}
        v_lshlrev_b32 v{t}, 10, v{t}
        v_add_u32 v{w2}, v{t}, v{t+1}
        v_lshlrev_b32 v{t}, 2, v{hh}
        v_bfe_u32 v{t+1}, v1, 2, 2
        v_add_u32 v{t}, v{t}, v{t+1}
        v_lshlrev_b32 v{t}, 7, v{t}
        v_bfe_u32 v{t+1}, v1, 3, 1
        v_xor_b32 v{t+1}, {sROLE}, v{t+1}
        v_lshlrev_b32 v{t+1}, 6, v{t+1}
        v_add_u32 v{t}, v{t}, v{t+1}
        v_bfe_u32 v{t+1}, v1, 4, 1
        v_lshlrev_b32 v{t+1}, 5, v{t+1}
        v_add_u32 v{t}, v{t}, v{t+1}
        v_and_b32 v{t+1}, 3, v1
        v_lshlrev_b32 v{t+1}, 3, v{t+1}
        v_add_u32 v{t}, v{t}, v{t+1}
        s_mul_i32 s59, {sCH}, {22*2048}
        s_add_u32 s59, s59, {L_W}
        v_add_u32 v{w2+1}, s59, v{t}
        ''')
        g2 = V.alloc('g2a', 11)
        p(f'''
        s_lshl_b32 s59, {sCH}, 11
        v_add_u32 v{g2}, s59, v{l16}
        v_add_u32 v{g2+1}, 0x10000, v{g2}
        v_add_u32 v{g2+10}, 0x20000, v{g2}
        s_lshr_b32 s58, {sTG}, 1
        s_lshl_b32 s58, s58, 2
        s_and_b32 s59, {sTG}, 1
        s_lshl_b32 s59, s59, 1
        s_add_u32 s58, s58, s59
        s_lshl_b32 s58, s58, 7
        s_add_u32 s58, s58, {FL_B}
        v_lshlrev_b32 v{t}, 3, v1
        v_add_u32 v{g2+2}, s58, v{t}
        s_lshr_b32 s58, {sTG}, 4
        s_lshl_b32 s58, s58, 9
        s_lshl_b32 s59, {sCG}, 6
        s_add_u32 s58, s58, s59
        s_lshl_b32 s58, s58, 3
        s_add_u32 s58, s58, {FL_C}
        v_add_u32 v{g2+3}, s58, v{t}
        s_lshl_b32 s58, {sWAVE}, 12
        v_add_u32 v{g2+4}, s58, v{l16}
        s_xor_b32 s58, {sWAVE}, 2
        s_lshl_b32 s58, s58, 12
        v_add_u32 v{g2+5}, s58, v{l16}
        v_lshrrev_b32 v{t}, 3, v0
        v_and_b32 v{t+1}, 7, v0
        v_lshlrev_b32 v{t+1}, 4, v{t+1}
        v_lshlrev_b32 v{g2+6}, 12, v{t}
        v_add_u32 v{g2+6}, v{g2+6}, v{t+1}
        v_mul_u32_u24 v{g2+7}, {ST_STR}, v{t}
        v_add_u32 v{g2+7}, v{g2+7}, v{t+1}
        v_add_u32 v{g2+7}, {ST_L}, v{g2+7}
        v_lshlrev_b32 v{t}, 2, v{hh}
        v_bfe_u32 v{t+1}, v1, 2, 2
        v_add_u32 v{t}, v{t}, v{t+1}
        s_lshl_b32 s58, {sROLE}, 5
        v_add_u32 v{t}, s58, v{t}
        v_mul_u32_u24 v{t}, {ST_STR}, v{t}
        v_bfe_u32 v{t+1}, v1, 4, 1
        v_lshlrev_b32 v{t+1}, 5, v{t+1}
        v_add_u32 v{t}, v{t}, v{t+1}
        v_and_b32 v{t+1}, 3, v1
        v_lshlrev_b32 v{t+1}, 3, v{t+1}
        v_add_u32 v{t}, v{t}, v{t+1}
        s_lshl_b32 s58, {sCH}, 6
        s_add_u32 s58, s58, {ST_L}
        v_add_u32 v{g2+8}, s58, v{t}
        v_lshlrev_b32 v{t}, 10, v{n31}
        v_lshlrev_b32 v{t+1}, 3, v{hh}
        v_add_u32 v{g2+9}, v{t}, v{t+1}
        ''')
        V.free('gst')
    def gemm1_addr_setup(self):
        p, V = self.p, self.V
        t = V.alloc('g1st', 2); wa = V.alloc('w1a', 2); pa = V.alloc('pA1')
        hh = V['hh']
        p(f'''
        v_lshlrev_b32 v{t}, 3, v{hh}
        v_bfe_u32 v{t+1}, v1, 2, 2
        v_add_u32 v{t}, v{t}, v{t+1}
        v_mul_u32_u24 v{t}, 192, v{t}
        v_bfe_u32 v{t+1}, v1, 4, 1
        v_lshlrev_b32 v{t+1}, 5, v{t+1}
        v_add_u32 v{t}, v{t}, v{t+1}
        v_and_b32 v{t+1}, 3, v1
        v_lshlrev_b32 v{t+1}, 3, v{t+1}
        v_add_u32 v{wa}, v{t}, v{t+1}
        v_add_u32 v{wa}, {L_W}, v{wa}
        v_add_u32 v{wa+1}, {16*3072}, v{wa}
        s_lshl_b32 s56, {sTT}, 2
        s_add_u32 s56, s56, {sWAVE}
        s_lshl_b32 s57, s56, 6
        s_add_u32 s57, s57, {FL_A}
        v_lshlrev_b32 v{t}, 3, v1
        v_add_u32 v{pa}, s57, v{t}
        ''')
        V.free('g1st')
    def ln(self):
        p, V = self.p, self.V
        x = [V['x0'], V['x1']]
        d = [V.alloc('d0', 8), V.alloc('d1', 8)]
        s1 = V.alloc('s1', 2); s2 = V.alloc('s2', 2); tp = V.alloc('lnt', 8); ad = V.alloc('lnad', 2)
        l16 = V['l16']
        p(f'''
        s_lshl_b32 s52, {sWAVE}, 1
        s_mul_i32 s53, s52, {TBF_STR}
        s_add_u32 s53, s53, {L_TBF}
        s_mul_i32 s54, s52, {TH_STR}
        s_add_u32 s54, s54, {L_TH}
        v_add_u32 v{ad}, s53, v{l16}
        v_add_u32 v{ad+1}, s54, v{l16}
        ''')
        for k in range(2):
            for j in range(4):
                p(f'v_lshlrev_b32 v{d[k]+2*j}, 16, v{x[k]+j}')
                p(f'v_and_b32 v{d[k]+2*j+1}, 0xffff0000, v{x[k]+j}')
        p(f'v_readlane_b32 s52, v{d[0]}, 0')
        p(f'v_readlane_b32 s54, v{d[1]}, 0')
        p(f's_mov_b32 s53, s52\ns_mov_b32 s55, s54')
        for k in range(2):
            sp = 's[52:53]' if k == 0 else 's[54:55]'
            for j in range(4):
                p(f'v_pk_add_f32 {vr(d[k]+2*j,2)}, {vr(d[k]+2*j,2)}, {sp} neg_lo:[0,1] neg_hi:[0,1]')
        for k in range(2):
            a = tp + 4 * k
            p(f'v_pk_add_f32 {vr(a,2)}, {vr(d[k],2)}, {vr(d[k]+2,2)}')
            p(f'v_pk_add_f32 {vr(a+2,2)}, {vr(d[k]+4,2)}, {vr(d[k]+6,2)}')
        for k in range(2):
            a = tp + 4 * k
            p(f'v_pk_add_f32 {vr(a,2)}, {vr(a,2)}, {vr(a+2,2)}')
        for k in range(2):
            a = tp + 4 * k
            p(f'v_add_f32 v{s1+k}, v{a}, v{a+1}')
        for k in range(2):
            a = tp + 4 * k
            p(f'v_pk_mul_f32 {vr(a,2)}, {vr(d[k],2)}, {vr(d[k],2)}')
        for j in range(1, 4):
            for k in range(2):
                a = tp + 4 * k
                p(f'v_pk_fma_f32 {vr(a,2)}, {vr(d[k]+2*j,2)}, {vr(d[k]+2*j,2)}, {vr(a,2)}')
        for k in range(2):
            a = tp + 4 * k
            p(f'v_add_f32 v{s2+k}, v{a}, v{a+1}')
        regs = [s1, s1 + 1, s2, s2 + 1]
        for ctl in ('row_shr:1 row_mask:0xf bank_mask:0xf bound_ctrl:1', 'row_shr:2 row_mask:0xf bank_mask:0xf bound_ctrl:1',
                    'row_shr:4 row_mask:0xf bank_mask:0xf bound_ctrl:1', 'row_shr:8 row_mask:0xf bank_mask:0xf bound_ctrl:1',
                    'row_bcast:15 row_mask:0xa bank_mask:0xf', 'row_bcast:31 row_mask:0xc bank_mask:0xf'):
            for r in regs:
                p(f'v_add_f32_dpp v{r}, v{r}, v{r} {ctl}')
        for n, r in enumerate(regs):
            p(f'v_readlane_b32 s{56+n}, v{r}, 63')
        m = [tp, tp + 1]; va = [tp + 2, tp + 3]; t4 = tp + 4; t5 = tp + 5
        inv = f32(1.0 / 512)
        p(f's_mov_b32 s60, {inv}')
        for k in range(2):
            p(f'v_mov_b32 v{m[k]}, s{56+k}')
            p(f'v_mov_b32 v{va[k]}, s{58+k}')
        p(f'v_pk_mul_f32 {vr(m[0],2)}, {vr(m[0],2)}, s[60:61] op_sel_hi:[1,0]')
        p(f'v_pk_mul_f32 {vr(va[0],2)}, {vr(va[0],2)}, s[60:61] op_sel_hi:[1,0]')
        p(f'v_pk_fma_f32 {vr(va[0],2)}, {vr(m[0],2)}, {vr(m[0],2)}, {vr(va[0],2)} neg_lo:[1,0,0] neg_hi:[1,0,0]')
        p(f'v_add_f32 v{t4}, s52, v{m[0]}')
        p(f'v_add_f32 v{t5}, s54, v{m[1]}')
        for k in range(2): p(f'v_max_f32 v{va[k]}, 0, v{va[k]}')
        p(f'v_cvt_pk_bf16_f32 v{t4}, v{t4}, v{t5}')
        p(f'v_cvt_pk_bf16_f32 v{t5}, v{va[0]}, v{va[1]}')
        p(f's_mov_b32 s60, {f32(1e-5)}')
        p(f'v_lshlrev_b32 v{va[0]}, 16, v{t5}')
        p(f'v_and_b32 v{va[1]}, 0xffff0000, v{t5}')
        p(f'v_lshlrev_b32 v{m[0]}, 16, v{t4}')
        p(f'v_pk_add_f32 {vr(va[0],2)}, {vr(va[0],2)}, s[60:61] op_sel_hi:[1,0]')
        p(f'v_and_b32 v{m[1]}, 0xffff0000, v{t4}')
        p(f'v_cvt_pk_bf16_f32 v{t5}, v{va[0]}, v{va[1]}')
        p(f'v_sub_f32 v{m[0]}, s52, v{m[0]}')
        p(f'v_lshlrev_b32 v{va[0]}, 16, v{t5}')
        p(f'v_and_b32 v{va[1]}, 0xffff0000, v{t5}')
        for k in range(2): p(f'v_sqrt_f32 v{va[k]}, v{va[k]}')
        p(f'v_sub_f32 v{m[1]}, s54, v{m[1]}')
        p(f'v_cvt_pk_bf16_f32 v{t5}, v{va[0]}, v{va[1]}')
        p(f'v_lshlrev_b32 v{va[0]}, 16, v{t5}')
        p(f'v_and_b32 v{va[1]}, 0xffff0000, v{t5}')
        for k in range(2): p(f'v_rcp_f32 v{va[k]}, v{va[k]}')
        p(f'v_pk_mul_f32 {vr(m[0],2)}, {vr(m[0],2)}, {vr(va[0],2)}')
        for k in range(2):
            for j in range(4):
                p(f'v_pk_fma_f32 {vr(d[k]+2*j,2)}, {vr(d[k]+2*j,2)}, {vr(va[0],2)}, {vr(m[0],2)} '
                  f'op_sel:[0,{k},{k}] op_sel_hi:[1,{k},{k}]')
        for k in range(2):
            for j in range(4):
                p(f'v_cvt_pk_bf16_f32 v{x[k]+j}, v{d[k]+2*j}, v{d[k]+2*j+1}')
            p(f'ds_write_b128 v{ad}, {vr(x[k],4)} offset:{k*TBF_STR}')
        for k in range(2):
            for j in range(4):
                p(f'v_cvt_pk_f16_f32 v{tp+4*k+j}, v{d[k]+2*j}, v{d[k]+2*j+1}')
            p(f'ds_write_b128 v{ad+1}, {vr(tp+4*k,4)} offset:{k*TH_STR}')
        lab = self.lab('nn')
        p(f's_cmp_lg_u32 {sWAVE}, 0\ns_cbranch_scc1 {lab}')
        with p.cond(lambda c: c['w'] == 0):
            p(f'v_add_u32 v{V["nonce"]}, 1, v{V["nonce"]}')
            p(f'v_mov_b32 v{ad}, {L_MISC}')
            p(f'ds_write_b32 v{ad}, v{V["nonce"]}')
        p(f'{lab}:')
        self.ln_hook()
        p('s_waitcnt lgkmcnt(0)\ns_barrier')
        V.free('d0', 'd1', 's1', 's2', 'lnt', 'lnad', 'x0', 'x1')
        nv = V['nonce']
        p(f'v_mov_b32 v{nv}, {L_MISC}')
        p(f'ds_read_b32 v{nv}, v{nv}')
        self.stamp('ln')
        lab = self.lab('lnst')
        p(f's_cmp_ge_u32 {sWAVE}, 2\ns_cbranch_scc1 {lab}')
        with p.cond(lambda c: c['w'] < 2):
            a = V.alloc('lsa', 4); dt = V.alloc('lsd', 16, align=2); u = V.alloc('lsu', 16, align=2)
            p(f'''
            v_and_b32 v{a}, 7, v0
            v_lshrrev_b32 v{a+1}, 3, v0
            v_mul_u32_u24 v{a+2}, {TBF_STR}, v{a}
            v_lshlrev_b32 v{a+3}, 4, v{a+1}
            v_add_u32 v{a+2}, v{a+2}, v{a+3}
            v_add_u32 v{a+2}, {L_TBF}, v{a+2}
            ''')
            for k in range(4):
                p(f'ds_read_b128 {vr(dt+4*k,4)}, v{a+2} offset:{256*k}')
            p(f'''
            v_bfe_u32 v{a+3}, v1, 2, 2
            v_mul_u32_u24 v{a+3}, {TH_STR}, v{a+3}
            v_lshrrev_b32 v{u}, 4, v1
            v_lshlrev_b32 v{u}, 5, v{u}
            v_add_u32 v{a+3}, v{a+3}, v{u}
            v_and_b32 v{u}, 3, v1
            v_lshlrev_b32 v{u}, 3, v{u}
            v_add_u32 v{a+3}, v{a+3}, v{u}
            s_lshl_b32 s52, {sWAVE}, 9
            s_add_u32 s52, s52, {L_TH}
            v_add_u32 v{a+3}, s52, v{a+3}
            ''')
            for it in range(4):
                p(f'ds_read_b64_tr_b16 {vr(u+4*it,2)}, v{a+3} offset:{128*it}')
                p(f'ds_read_b64_tr_b16 {vr(u+4*it+2,2)}, v{a+3} offset:{128*it+4*TH_STR}')
            p(f'''
            v_lshrrev_b32 v{a+2}, 1, v{a+1}
            v_lshlrev_b32 v{a+2}, 10, v{a+2}
            v_and_b32 v{a+1}, 1, v{a+1}
            v_lshlrev_b32 v{a+1}, 9, v{a+1}
            v_add_u32 v{a+2}, v{a+2}, v{a+1}
            v_lshlrev_b32 v{a}, 4, v{a}
            v_add_u32 v{a+2}, v{a+2}, v{a}
            s_lshr_b32 s52, {sBETA}, 2
            s_lshl_b32 s52, s52, 15
            s_and_b32 s53, {sBETA}, 3
            s_lshl_b32 s53, s53, 7
            s_add_u32 s52, s52, s53
            s_add_u32 s52, s52, {WS_XNF}
            ''')
            for k in range(4):
                p(f's_add_u32 s53, s52, {8192*k}')
                p(f'buffer_store_dwordx4 {vr(dt+4*k,4)}, v{a+2}, {SWS}, s53 offen sc1', tag='lnst')
                if self.o.get('dblx'): p(f'buffer_store_dwordx4 {vr(dt+4*k,4)}, v{a+2}, {SWS}, s53 offen', tag='lnst2')
            p(f'''
            s_lshl_b32 s52, {sBETA}, 13
            s_lshl_b32 s53, {sWAVE}, 12
            s_add_u32 s52, s52, s53
            s_add_u32 s52, s52, {WS_UBLK}
            ''')
            for it in range(4):
                p(f'buffer_store_dwordx4 {vr(u+4*it,4)}, v{V["l16"]}, {SWS}, s52 offen offset:{1024*it} sc1', tag='lnst')
            V.free('lsa', 'lsd', 'lsu')
        p(f'{lab}:')
        p(f'v_readfirstlane_b32 {sNONCE}, v{nv}')
        V.free('nonce')
    def ln_hook(self): pass
    def flag_store(self, off_sgpr, base):
        p, V = self.p, self.V
        t = V.alloc('fl', 2)
        p(f'''
        s_add_u32 s100, {off_sgpr}, {base}
        v_mov_b32 v{t}, s100
        v_mov_b32 v{t+1}, {sNONCE}
        s_mov_b64 exec, 1
        buffer_store_dword v{t+1}, v{t}, {SWS}, 0 offen sc1
        s_mov_b64 exec, -1
        ''')
        V.free('fl')
    def ln_flag(self):
        p = self.p
        lab = self.lab('lnfl')
        p(f's_cmp_ge_u32 {sWAVE}, 2\ns_cbranch_scc1 {lab}')
        with p.cond(lambda c: c['w'] < 2):
            p.wait_tag('lnst')
            p(f's_lshl_b32 s101, {sBETA}, 4\ns_lshl_b32 s100, {sWAVE}, 3\ns_add_u32 s101, s101, s100')
            self.flag_store('s101', FL_A)
        p(f'{lab}:')
    def poll_issue(self, name, vaddr, nlanes, width):
        p, V = self.p, self.V
        t = V.alloc('pl_' + name, 4 if width == 4 else 1, align=2 if width == 4 else 1)
        self.exec_lanes(nlanes)
        if width == 1: p(f'buffer_load_dword v{t}, v{vaddr}, {SWS}, 0 offen sc1')
        else: p(f'buffer_load_dwordx4 {vr(t,4)}, v{vaddr}, {SWS}, 0 offen sc1')
        if nlanes < 64: self.exec_all()
    def poll_check(self, name, vaddr, nlanes, width):
        p, V = self.p, self.V
        t = V['pl_' + name]
        lp = self.lab(name); ck = self.lab(name + 'c'); dn = self.lab(name + 'd')
        p('s_mov_b32 s38, 0')
        self.exec_lanes(nlanes)
        p(f'{ck}:')
        p(f'v_cmp_ne_u32 vcc, {sNONCE}, v{t}')
        if width == 4:
            p(f'v_cmp_ne_u32 s[36:37], {sNONCE}, v{t+2}')
            p(f's_or_b64 vcc, vcc, s[36:37]')
        p(f's_cmp_eq_u64 vcc, 0\ns_cbranch_scc1 {dn}')
        with p.cond(lambda c: False):
            p(f's_add_u32 s38, s38, 1\ns_cmp_lt_u32 s38, 0x40000\ns_cbranch_scc0 {lp}')
            if width == 1: p(f'buffer_load_dword v{t}, v{vaddr}, {SWS}, 0 offen sc1')
            else: p(f'buffer_load_dwordx4 {vr(t,4)}, v{vaddr}, {SWS}, 0 offen sc1')
            p(f's_waitcnt vmcnt(0)\ns_branch {ck}')
            p(f'{lp}:')
            tz = V.alloc('plz', 2)
            p(f'v_mov_b32 v{tz}, 0\nv_mov_b32 v{tz+1}, 0xdead\nglobal_store_dword v{tz}, v{tz+1}, {pDBG}')
            V.free('plz')
        p(f'{dn}:')
        if nlanes < 64: self.exec_all()
        V.free('pl_' + name)
    def w1_dma_groups(self):
        p, V = self.p, self.V
        vo = V['w1off']
        p(f'''
        s_mul_i32 s96, {sWAVE}, {128*2752}
        s_lshl_b32 s97, {sFB0}, 6
        s_add_u32 s96, s96, s97
        s_mul_i32 s97, {sWAVE}, {24*1024}
        s_add_u32 s97, s97, {L_W}
        ''')
        groups = []
        for g in range(8):
            for k in range(3):
                with p.capture() as b:
                    if k == 0: p('s_mov_b32 m0, s97')
                    p(f'buffer_load_dwordx4 v{vo+k}, {SW1}, s96 offen offset:{1024*k} lds', tag='w1dma')
                    if k == 2: p(f's_add_u32 s96, s96, {16*2752}\ns_add_u32 s97, s97, 3072')
                groups.append(b)
        return groups
    def w2_touch(self):
        p, V = self.p, self.V
        if not self.o['touch']: return []
        step = 64 if self.o['touch64'] else 128
        n = 3 if self.o['touch64'] else 2
        tv = V['touch']; t = V.alloc('w2tv')
        with p.capture() as b:
            p(f'''
            s_lshr_b32 s98, s2, 3
            s_mul_i32 s98, s98, 44032
            s_mul_i32 s99, {sWAVE}, 11008
            s_add_u32 s98, s98, s99
            v_mul_u32_u24 v{t}, {step}, v1
            ''')
            for k in range(n):
                p(f'buffer_load_dword v{tv+k}, v{t}, {SW2}, s98 offen')
                if k + 1 < n: p(f's_add_u32 s98, s98, {64*step}')
        V.free('w2tv')
        return b
    def kgen_setup(self):
        p, V = self.p, self.V
        pr = V['par']
        t = V.alloc('kt', 8, align=2)
        z = V.alloc('z', 2); Z = V.alloc('Z256', 2); C = V.alloc('Cn', 2)
        p(f'''
        s_lshl_b32 s53, {sLDT}, 16
        s_and_b32 s54, {sLDT}, 0xffff0000
        s_lshl_b32 s56, {sDSK}, 16
        s_and_b32 s55, {sDSK}, 0xffff0000
        s_cmp_eq_u32 {sCH}, 0
        s_cselect_b32 s53, s53, s54
        s_cselect_b32 {sDV}, s56, s55
        v_mov_b32 v{t}, s53
        v_mul_f32 v{t}, {f32(LOG2E)}, v{t}
        v_lshlrev_b32 v{t+1}, 16, v{pr}
        v_mul_f32 v{t+1}, {f32(LOG2E)}, v{t+1}
        v_exp_f32 v{t}, v{t}
        v_exp_f32 v{t+1}, v{t+1}
        v_and_b32 v{t+2}, 0x7fff, v{pr+2}
        v_and_b32 v{t+3}, 0x7fff, v{pr+3}
        v_and_b32 v{t+4}, 0x7fff, v{pr+4}
        v_and_b32 v{t+5}, 0x7fff, v{pr+5}
        v_cvt_pk_bf16_f32 v{t}, v{t}, v{t+1}
        v_max3_u32 v{t+2}, v{t+2}, v{t+3}, v{t+4}
        v_max_u32 v{t+2}, v{t+2}, v{t+5}
        v_and_b32 v{t+1}, 0xffff0000, v{t}
        v_lshlrev_b32 v{t}, 16, v{t}
        ''')
        ctl = ['row_shr:1 row_mask:0xf bank_mask:0xf bound_ctrl:1', 'row_shr:2 row_mask:0xf bank_mask:0xf bound_ctrl:1',
               'row_shr:4 row_mask:0xf bank_mask:0xf bound_ctrl:1', 'row_shr:8 row_mask:0xf bank_mask:0xf bound_ctrl:1',
               'row_bcast:15 row_mask:0xa bank_mask:0xf', 'row_bcast:31 row_mask:0xc bank_mask:0xf']
        fill = [[f'v_mul_f32 v{t+3}, v{t+1}, v{t}', f'v_lshlrev_b32 v{t+4}, 16, v{pr+1}'],
                [f'v_mul_f32 v{t+4}, v{t+4}, v{t}', f'v_mul_f32 v{t+3}, {f32(-LOG2E)}, v{t+3}'],
                [f'v_mul_f32 v{t+4}, {f32(1/(2*math.pi))}, v{t+4}', f'v_mul_f32 v{t+5}, {f32(256.0)}, v{t+3}'],
                [f'v_mul_f32 v{t+6}, {f32(256.0)}, v{t+4}', f'v_fract_f32 v{t+7}, v{t+4}'],
                [f'v_fract_f32 v{t+6}, v{t+6}', f'v_exp_f32 v{t+3}, v{t+3}'],
                [f'v_exp_f32 v{t+5}, v{t+5}', f'v_cos_f32 v{z}, v{t+7}']]
        for c, f in zip(ctl, fill):
            p(f'v_max_u32_dpp v{t+2}, v{t+2}, v{t+2} {c}')
            for x in f: p(x)
        p(f'''
        v_sin_f32 v{z+1}, v{t+7}
        v_readlane_b32 s52, v{t+2}, 63
        v_cos_f32 v{Z}, v{t+6}
        v_sin_f32 v{Z+1}, v{t+6}
        s_and_b32 s52, s52, 0x7f80
        s_lshl_b32 s52, s52, 16
        s_sub_u32 s53, 0x7f000000, s52
        v_lshlrev_b32 v{C}, 16, v{pr+2}
        v_lshlrev_b32 v{C+1}, 16, v{pr+3}
        v_mul_f32 v{t}, s52, v{t}
        v_mul_f32 v{C}, s53, v{C}
        v_mul_f32 v{C+1}, s53, v{C+1}
        v_add_f32 v{t}, v{t}, v{t}
        v_mul_f32 v{z}, v{z}, v{t+3}
        v_mul_f32 v{z+1}, v{z+1}, v{t+3}
        v_readfirstlane_b32 {sSIG}, v{t}
        v_mul_f32 v{Z}, v{Z}, v{t+5}
        v_mul_f32 v{Z+1}, v{Z+1}, v{t+5}
        ''')
        V.free('kt', 'par')
    def kgen_values(self):
        p, V = self.p, self.V
        z, Z, C, fa = V['z'], V['Z256'], V['Cn'], V['fa']
        cv = V.alloc('cv', 8); self._cvi = 0
        valu = []; stores = []
        def emit(s):
            with p.capture() as b: p(s)
            valu.extend(b)
        def put(row, r, neg=False):
            c = cv + (self._cvi & 7); self._cvi += 1
            emit(f'v_cvt_pk_f16_f32 v{c}, v{r}, {"-" if neg else ""}v{r+1}')
            with p.capture() as b: p(f'ds_write_b32 v{fa}, v{c} offset:{row*272}')
            stores.append((len(valu), b[0]))
        def cm(items):
            for d, a, b in items: emit(f'v_pk_mul_f32 {vr(d,2)}, {vr(a,2)}, {vr(b,2)} op_sel:[0,0] op_sel_hi:[0,1]')
            for d, a, b in items: emit(f'v_pk_fma_f32 {vr(d,2)}, {vr(a,2)}, {vr(b,2)}, {vr(d,2)} op_sel:[1,1,0] op_sel_hi:[1,0,1] neg_lo:[1,0,0]')
        z2 = V.alloc('z2', 2); z4 = V.alloc('z4', 2); w = V.alloc('w', 2); w2 = V.alloc('w2', 2); w4 = V.alloc('w4', 2)
        ch = V.alloc('chains', 16, align=2)
        put(0, C)
        cm([(z2, z, z)])
        La, Lb, Ma, Mb = ch, ch + 2, ch + 4, ch + 6
        cm([(La, C, z), (Ma, C, Z), (z4, z2, z2)])
        put(1, La); put(8, Ma)
        cm([(Lb, La, z), (Mb, Ma, Z), (w, z4, z4), (ch + 8, Ma, z2)])
        put(2, Lb); put(12, Mb); put(9, ch + 8)
        cm([(La, Lb, z), (Ma, Mb, Z), (w2, w, w), (ch + 10, ch + 8, z2), (ch + 12, Mb, z4)])
        put(3, La); put(14, Ma); put(10, ch + 10); put(13, ch + 12)
        cm([(Lb, La, z), (Mb, Ma, Z), (w4, w2, w2), (ch + 8, ch + 10, z2), (ch + 12, Ma, z4), (ch + 14, w2, w)])
        put(4, Lb); put(16, Mb); put(11, ch + 8); put(15, ch + 12)
        c = cv + (self._cvi & 7); self._cvi += 1
        emit(f'v_mov_b32 v{c}, 0x3c00')
        with p.capture() as b: p(f'ds_write_b32 v{fa}, v{c} offset:{21*272}')
        stores.append((len(valu), b[0]))
        put(22, w, True); put(23, w2, True); put(24, ch + 14, True)
        cm([(La, Lb, z), (Ma, Mb, Z)]); put(5, La); put(17, Ma)
        cm([(Lb, La, z), (Mb, Ma, Z)]); put(6, Lb); put(18, Mb)
        cm([(La, Lb, z), (Ma, Mb, Z)]); put(7, La); put(19, Ma)
        cm([(Mb, Ma, Z)]); put(20, Mb)
        A_ = [ch, ch + 2, ch + 4, ch + 6]; B_ = [ch + 8, ch + 10, ch + 12, z]
        r3 = ch + 14
        cm([(A_[1], w, w4), (A_[2], w2, w4), (A_[3], r3, w4)])
        put(25, w4, True); put(26, A_[1], True); put(27, A_[2], True); put(28, A_[3], True)
        cur = [w4, A_[1], A_[2], A_[3]]
        nxt = [B_, A_]
        for step in range(2, 8):
            nx = nxt[step & 1]
            cm([(nx[k], cur[k], w4) for k in range(4)])
            for k in range(4): put(21 + 4 * step + k, nx[k], True)
            cur = nx
        out = []; si = 0; last = -10
        for idx, ins in enumerate(valu):
            pend = [k for k in range(si, len(stores)) if stores[k][0] <= idx and (stores[k][1].uses & ins.defs)]
            if pend:
                while si <= pend[-1]: out.append(stores[si][1]); si += 1
                last = idx
            elif si < len(stores) and stores[si][0] <= idx and idx - last >= 3:
                out.append(stores[si][1]); si += 1; last = idx
            out.append(ins)
        while si < len(stores): out.append(stores[si][1]); si += 1
        return out
    def kgen_mfma(self):
        p, V = self.p, self.V
        acc = V.alloc('kacc', 8, align=2); fr = V.alloc('kfr', 36, align=2)
        kr, kt = V['kr'], V['ktb']
        def rd(s):
            b = fr + 12 * (s % 3); o = F_WAVE * (s >> 2) + 64 * (s & 3)
            p(f'ds_read_b128 {vr(b,4)}, v{kr} offset:{o}')
            p(f'ds_read_b128 {vr(b+8,4)}, v{kr+1} offset:{o}')
            p(f'ds_read_b128 {vr(b+4,4)}, v{kr} offset:{o+16*272}')
        for s_ in range(2): rd(s_)
        for s_ in range(8):
            if s_ + 2 < 8: rd(s_ + 2)
            b = fr + 12 * (s_ % 3)
            p(f'v_mfma_f32_16x16x32_f16 {vr(acc,4)}, {vr(b,4)}, {vr(b+8,4)}, {"0" if s_ == 0 else vr(acc,4)}')
            p(f'v_mfma_f32_16x16x32_f16 {vr(acc+4,4)}, {vr(b+4,4)}, {vr(b+8,4)}, {"0" if s_ == 0 else vr(acc+4,4)}')
        for r in range(2): p(f'ds_write_b32 v{kt}, v{acc+r} offset:{4*r}')
        for r in range(2): p(f'ds_write_b32 v{kt+1}, v{acc+2+r} offset:{4*r}')
        p('s_mov_b32 exec_hi, 0')
        for r in range(4): p(f'ds_write_b32 v{kt+2}, v{acc+4+r} offset:{128*r}')
        p('s_mov_b32 exec_hi, -1')
        V.free('kacc', 'kfr', 'kr', 'ktb')
    def expand(self):
        p, V = self.p, self.V
        ea = V['expad']
        val = V.alloc('ev', 22); o = V.alloc('eo', 16, align=2); ad = V.alloc('ead')
        for c in range(2):
            for d in range(11):
                p(f'ds_read_b32 v{val+11*c+d}, v{ea+d} offset:{c*T_CH}')
        p(f'v_lshlrev_b32 v{ad}, 4, v0\nv_add_u32 v{ad}, {L_KC+80}, v{ad}')
        for c in range(2):
            for rho in range(4):
                b = o + 4 * rho
                for k in range(4):
                    p(f'v_cvt_pk_f16_f32 v{b+k}, v{val+11*c+7+rho-2*k}, v{val+11*c+6+rho-2*k}')
                p(f'ds_write_b128 v{ad}, {vr(b,4)} offset:{c*4*KC_STR+rho*KC_STR}')
        V.free('ev', 'eo', 'expad', 'ead')
        t = V.alloc('ext', 8, align=2)
        l1 = self.lab('x1'); l2 = self.lab('x2'); l3 = self.lab('x3')
        p(f's_cmp_eq_u32 {sWAVE}, 0\ns_cbranch_scc0 {l1}')
        with p.cond(lambda c: c['w'] == 0):
            p(f'''
            v_bfe_u32 v{t}, v1, 3, 2
            v_and_b32 v{t+1}, 7, v1
            v_sub_u32 v{t+2}, v{t+1}, v{t}
            v_cmp_lt_i32 s[54:55], 4, v{t+2}
            v_mov_b32 v{t+3}, {L_T+640*4}
            v_mov_b32 v{t+4}, {L_T+639*4}
            v_cndmask_b32 v{t+3}, v{t+3}, v{t+4}, s[54:55]
            v_mul_u32_u24 v{t+5}, {T_CH}, v{V['hh']}
            v_add_u32 v{t+3}, v{t+3}, v{t+5}
            ds_read_b32 v{t+3}, v{t+3}
            v_mul_u32_u24 v{t+4}, {4*KC_STR}, v{V['hh']}
            v_mul_u32_u24 v{t}, {KC_STR}, v{t}
            v_add_u32 v{t}, v{t}, v{t+4}
            v_lshlrev_b32 v{t+1}, 1, v{t+1}
            v_add_u32 v{t}, v{t}, v{t+1}
            v_add_u32 v{t}, {L_KC+64}, v{t}
            v_cvt_f16_f32 v{t+3}, v{t+3}
            ds_write_b16 v{t}, v{t+3}
            ''')
        p(f's_branch {l3}\n{l1}:')
        p(f's_cmp_eq_u32 {sWAVE}, 1\ns_cbranch_scc0 {l2}')
        with p.cond(lambda c: c['w'] == 1):
            p(f'''
            v_lshrrev_b32 v{t}, 3, v1
            v_mul_u32_u24 v{t}, {KC_STR}, v{t}
            v_and_b32 v{t+1}, 7, v1
            v_lshlrev_b32 v{t+2}, 4, v{t+1}
            v_lshrrev_b32 v{t+1}, 2, v{t+1}
            v_mul_u32_u24 v{t+1}, {4176-64}, v{t+1}
            v_add_u32 v{t}, v{t}, v{t+2}
            v_add_u32 v{t}, v{t}, v{t+1}
            v_add_u32 v{t}, {L_KC}, v{t}
            v_mov_b32 v{t+4}, 0
            v_mov_b32 v{t+5}, 0
            v_mov_b32 v{t+6}, 0
            v_mov_b32 v{t+7}, 0
            ds_write_b128 v{t}, {vr(t+4,4)}
            ''')
        p(f's_branch {l3}\n{l2}:')
        with p.cond(lambda c: c['w'] >= 2):
            p(f'''
            s_sub_u32 s52, {sWAVE}, 2
            s_mul_i32 s52, s52, {U_CH}
            s_add_u32 s52, s52, {L_U}
            v_add_u32 v{t}, s52, v{V['l16']}
            v_mov_b32 v{t+4}, 0
            v_mov_b32 v{t+5}, 0
            v_mov_b32 v{t+6}, 0
            v_mov_b32 v{t+7}, 0
            ds_write_b128 v{t}, {vr(t+4,4)}
            ds_write_b128 v{t}, {vr(t+4,4)} offset:1024
            s_mov_b32 exec_hi, 0
            ds_write_b128 v{t}, {vr(t+4,4)} offset:2048
            s_mov_b32 exec_hi, -1
            ''')
        p(f'{l3}:')
        V.free('ext')
    def xn_loads(self):
        p, V, A = self.p, self.V, self.A
        xf = A.alloc('xnf', 128, align=4, at=0)
        p(f'''
        s_lshl_b32 s56, {sTT}, 2
        s_add_u32 s56, s56, {sWAVE}
        s_lshl_b32 s57, s56, 15
        s_add_u32 s57, s57, {WS_XNF}
        ''')
        for ks in range(32):
            if ks % 4 == 0 and ks: p(f's_add_u32 s57, s57, 4096')
            p(f'buffer_load_dwordx4 {vr(xf+4*ks,4,"a")}, v{V["l16"]}, {SWS}, s57 offen offset:{1024*(ks%4)} sc1')
    def bias_init(self, acc, blk):
        p, bias = self.p, self.V['bias']
        for q in range(4):
            for e in range(2):
                b = bias + 8 * blk + 2 * q + e
                p(f'v_lshlrev_b32 v{acc+4*q+2*e}, 16, v{b}')
                p(f'v_and_b32 v{acc+4*q+2*e+1}, 0xffff0000, v{b}')
    def mish(self, acc, tm, pk, packed):
        p = self.p
        if packed:
            for r in range(0, 16, 2): p(f'v_pk_mul_f32 {vr(tm+r,2)}, {vr(acc+r,2)}, s[34:35] op_sel_hi:[1,0]')
            for r in range(16): p(f'v_exp_f32 v{tm+r}, v{tm+r}')
            for r in range(0, 16, 2):
                p(f'v_pk_add_f32 {vr(pk+(r&2),2)}, {vr(tm+r,2)}, 2.0 op_sel_hi:[1,0]')
                p(f'v_pk_fma_f32 {vr(tm+r,2)}, {vr(tm+r,2)}, {vr(pk+(r&2),2)}, 2.0 op_sel_hi:[1,1,0]')
            for r in range(16): p(f'v_rcp_f32 v{tm+r}, v{tm+r}')
            for r in range(0, 16, 2): p(f'v_pk_fma_f32 {vr(tm+r,2)}, {vr(tm+r,2)}, -2.0, 1.0 op_sel_hi:[1,0,0]')
            for r in range(0, 16, 2): p(f'v_pk_mul_f32 {vr(tm+r,2)}, {vr(tm+r,2)}, {vr(acc+r,2)}')
            for r in range(0, 16, 2): p(f'v_cvt_pk_bf16_f32 v{pk+r//2}, v{tm+r}, v{tm+r+1}')
        else:
            for r0 in range(0, 16, 4):
                R = range(r0, r0 + 4)
                for r in R: p(f'v_mul_f32 v{tm+r}, s34, v{acc+r}')
                for r in R: p(f'v_exp_f32 v{tm+r}, v{tm+r}')
                for r in R: p(f'v_add_f32 v{pk+(r&3)+4}, 2.0, v{tm+r}')
                for r in R: p(f'v_fma_f32 v{tm+r}, v{tm+r}, v{pk+(r&3)+4}, 2.0')
                for r in R: p(f'v_rcp_f32 v{tm+r}, v{tm+r}')
                for r in R: p(f'v_fma_f32 v{tm+r}, v{tm+r}, -2.0, 1.0')
                for r in R: p(f'v_mul_f32 v{tm+r}, v{tm+r}, v{acc+r}')
            for r in range(0, 16, 2): p(f'v_cvt_pk_bf16_f32 v{pk+r//2}, v{tm+r}, v{tm+r+1}')
    def act_store(self, pk, blk):
        p = self.p
        p(f's_add_u32 s39, s35, {2048*blk}')
        p(f'buffer_store_dwordx4 {vr(pk,4)}, v{self.V["l16"]}, {SWS}, s39 offen sc1', tag='actst')
        p(f'buffer_store_dwordx4 {vr(pk+4,4)}, v{self.V["l16"]}, {SWS}, s39 offen offset:1024 sc1', tag='actst')
    def gemm1(self):
        p, V, A = self.p, self.V, self.A
        xf = A['xnf']; wa = V['w1a']
        acc = V.alloc('g1acc', 48, align=2); fr = V.alloc('g1fr', 32, align=2); tm = V.alloc('g1tm', 16, align=2); pk = V.alloc('g1pk', 16, align=2)
        p(f'''
        s_mov_b32 s34, {f32(LOG2E)}
        s_lshl_b32 s56, {sTT}, 2
        s_add_u32 s56, s56, {sWAVE}
        s_mul_i32 s35, s56, {86*1024}
        s_lshl_b32 s59, {sFB0}, 11
        s_add_u32 s35, s35, s59
        s_add_u32 s35, s35, {WS_ACT}
        ''')
        self.bias_init(acc, 0); self.bias_init(acc + 16, 1)
        def rd(ks, blk, slot):
            b = fr + 4 * slot; base = wa + (ks >> 4); o = (ks & 15) * 3072 + 64 * blk
            p(f'ds_read_b64_tr_b16 {vr(b,2)}, v{base} offset:{o}')
            p(f'ds_read_b64_tr_b16 {vr(b+2,2)}, v{base} offset:{o+768}')
        with p.capture() as main:
            for ks in range(2): rd(ks, 0, 2 * (ks % 4)); rd(ks, 1, 2 * (ks % 4) + 1)
            for ks in range(32):
                if ks + 2 < 32: rd(ks + 2, 0, 2 * ((ks + 2) % 4)); rd(ks + 2, 1, 2 * ((ks + 2) % 4) + 1)
                p(f'v_mfma_f32_32x32x16_bf16 {vr(acc,16)}, {vr(fr+8*(ks%4),4)}, {vr(xf+4*ks,4,"a")}, {vr(acc,16)}')
                p(f'v_mfma_f32_32x32x16_bf16 {vr(acc+16,16)}, {vr(fr+8*(ks%4)+4,4)}, {vr(xf+4*ks,4,"a")}, {vr(acc+16,16)}')
        fill = self.cap(self.gemm_addr_setup)
        fill += self.cap(self.bias_init, acc + 32, 2)
        fill += self.cap(self.poll_issue, 'A2', V['us'] + 2, 64, 4)
        self.weave(main, fill, start=4)
        self.stamp('g1p1')
        self.poll_check('A2', V['us'] + 2, 64, 4)
        ud = V.alloc('ud', 8, align=2)
        p(f'''
        s_lshl_b32 s56, {sWAVE}, 19
        s_lshl_b32 s57, {sBETA}, 5
        s_add_u32 s56, s56, s57
        s_add_u32 s56, s56, {WS_UBLK}
        buffer_load_dwordx4 {vr(ud,4)}, v{V['us']}, {SWS}, s56 offen sc1
        buffer_load_dwordx4 {vr(ud+4,4)}, v{V['us']}, {SWS}, s56 offen offset:16 sc1
        ''')
        l2 = self.lab('g1n2'); l3 = self.lab('g1j')
        p(f's_cmp_eq_u32 {sNBLK}, 2\ns_cbranch_scc1 {l2}')
        with p.cond(lambda c: c['nblk'] == 3):
            with p.capture() as main:
                for ks in range(3): rd(ks, 2, ks % 4)
                for ks in range(32):
                    if ks + 3 < 32: rd(ks + 3, 2, (ks + 3) % 4)
                    p(f'v_mfma_f32_32x32x16_bf16 {vr(acc+32,16)}, {vr(fr+4*(ks%4),4)}, {vr(xf+4*ks,4,"a")}, {vr(acc+32,16)}')
            with p.capture() as fill:
                self.mish(acc, tm, pk, False); self.act_store(pk, 0)
                self.mish(acc + 16, tm, pk + 8, False); self.act_store(pk + 8, 1)
            self.weave(main, fill)
            p('s_barrier')
            self.w2_dma(0)
            self.mish(acc + 32, tm, pk, True); self.act_store(pk, 2)
        p(f's_branch {l3}\n{l2}:')
        with p.cond(lambda c: c['nblk'] == 2):
            p('s_barrier')
            self.w2_dma(0)
            self.mish(acc, tm, pk, True); self.act_store(pk, 0)
            self.mish(acc + 16, tm, pk + 8, True); self.act_store(pk + 8, 1)
        p(f'{l3}:')
        us = V['us']
        p(f'ds_write_b128 v{us+1}, {vr(ud,4)}')
        p(f'ds_write_b128 v{us+1}, {vr(ud+4,4)} offset:{U_CH}')
        p('s_waitcnt lgkmcnt(0)\ns_barrier')
        V.free('g1acc', 'g1fr', 'g1tm', 'g1pk', 'bias', 'w1a', 'ud', 'us')
        A.free('xnf')
        lab = self.lab('nw')
        p(f's_or_b32 s52, {sBETA}, {sWAVE}\ns_cmp_lg_u32 s52, 0\ns_cbranch_scc1 {lab}')
        with p.cond(lambda c: c['w'] == 0):
            p('s_mov_b32 s101, 0')
            self.flag_store('s101', WS_FLG)
        p(f'{lab}:')
    def act_flag(self):
        p = self.p
        p.wait_tag('actst')
        p(f'''
        s_lshl_b32 s101, {sTT}, 2
        s_add_u32 s101, s101, {sWAVE}
        s_lshl_b32 s101, s101, 4
        s_and_b32 s100, {sBETA}, 15
        s_add_u32 s101, s101, s100
        s_lshl_b32 s101, s101, 3
        ''')
        self.flag_store('s101', FL_B)
    def w2_dma(self, rnd):
        p, V = self.p, self.V
        ns = 22 if rnd == 0 else 21
        p(f'''
        s_mul_i32 s98, {sCH}, {43*16*1024}
        s_lshl_b32 s99, {sROLE}, 13
        s_add_u32 s98, s98, s99
        s_lshl_b32 s99, {sCG}, 7
        s_add_u32 s98, s98, s99
        s_add_u32 s98, s98, {22*rnd*16*1024}
        s_mul_i32 s99, {sCH}, {22*2048}
        s_lshl_b32 s97, {sROLE}, 10
        s_add_u32 s99, s99, s97
        s_add_u32 m0, s99, {L_W}
        ''')
        for s_ in range(ns):
            p(f'buffer_load_dwordx4 v{V["w2a"]}, {SW2}, s98 offen lds', tag=f'w2dma{rnd}')
            if s_ + 1 < ns: p(f's_add_u32 m0, m0, 2048\ns_add_u32 s98, s98, {16*1024}')
    def w2_read(self, rnd):
        p, V, A = self.p, self.V, self.A
        ns = 22 if rnd == 0 else 21
        t = V['w2a'] + 1
        for s_ in range(ns):
            b = self.w2reg(22 * rnd + s_)
            p(f'ds_read_b64_tr_b16 {vr(b,2,"a")}, v{t} offset:{2048*s_}')
            p(f'ds_read_b64_tr_b16 {vr(b+2,2,"a")}, v{t} offset:{2048*s_+1024}')
    def w2reg(self, sl): return 4 * sl
    def conv(self):
        p, V, A = self.p, self.V, self.A
        A.alloc('w2f', 172, align=4, at=0)
        aA, aB, ce = V['cA'], V['cB'], V['ce']
        acc = V.alloc('cacc', 32, align=2); fr = V.alloc('cfr', 32, align=2)
        a0, a1 = acc, acc + 16
        def rd(i):
            b = fr + 16 * (i & 1)
            oa = 32 * (31 - i); ob = 80 * (15 - i // 2) + (32 if i % 2 == 0 else 0)
            p(f'ds_read_b64 {vr(b,2)}, v{aA} offset:{oa}')
            p(f'ds_read_b64 {vr(b+2,2)}, v{aA} offset:{oa+8}')
            p(f'ds_read_b128 {vr(b+8,4)}, v{aB} offset:{ob}')
            p(f'ds_read_b128 {vr(b+12,4)}, v{aB} offset:{ob+2560}')
            p(f'ds_read_b64 {vr(b+4,2)}, v{aA+1} offset:{oa}')
            p(f'ds_read_b64 {vr(b+6,2)}, v{aA+1} offset:{oa+8}')
        def group(i):
            if i + 1 < 32: rd(i + 1)
            b = fr + 16 * (i & 1)
            p(f'v_mfma_f32_32x32x16_f16 {vr(a0,16)}, {vr(b,4)}, {vr(b+8,4)}, {vr(a0,16)}')
            p(f'v_mfma_f32_32x32x16_f16 {vr(a1,16)}, {vr(b,4)}, {vr(b+12,4)}, {vr(a1,16)}')
            p(f'v_mfma_f32_32x32x16_f16 {vr(a1,16)}, {vr(b+4,4)}, {vr(b+8,4)}, {vr(a1,16)}')
        b = fr + 16
        p(f'ds_read_b64 {vr(b,2)}, v{aA+2}')
        p(f'ds_read_b64 {vr(b+2,2)}, v{aA+2} offset:8')
        p(f'ds_read_b128 {vr(b+8,4)}, v{aB+1}')
        p(f'ds_read_b128 {vr(b+12,4)}, v{aB+1} offset:2560')
        rd(0)
        p(f'v_mfma_f32_32x32x16_f16 {vr(a0,16)}, {vr(b,4)}, {vr(b+8,4)}, 0')
        p(f'v_mfma_f32_32x32x16_f16 {vr(a1,16)}, {vr(b,4)}, {vr(b+12,4)}, 0')
        G1, G2, G3 = 12, 13, 21
        for i in range(G1): group(i)
        self.act_flag()
        for i in range(G1, G2): group(i)
        p.wait_tag('w2dma0'); p('s_barrier')
        main = self.cap(lambda: [group(i) for i in range(G2, G3)])
        self.weave(main, self.cap(self.w2_read, 0))
        p('s_waitcnt lgkmcnt(0)\ns_barrier')
        self.w2_dma(1)
        for i in range(G3, 32): group(i)
        V.free('cfr', 'cA', 'cB')
        self.stamp('convmm')
        self.poll_issue('B', V['g2a'] + 2, 32, 1)
        p.wait_tag('w2dma1'); p('s_barrier')
        ex = V.alloc('cex', 16, align=2); uu = V.alloc('cuu', 8, align=2); t = V.alloc('cvt', 2)
        l0 = self.lab('cr0'); l1 = self.lab('cr1')
        p(f's_cmp_eq_u32 {sROLE}, 0\ns_cbranch_scc0 {l0}')
        with p.cond(lambda c: c['w'] % 2 == 0):
            for q in range(4): p(f'ds_write_b128 v{ce}, {vr(a1+4*q,4)} offset:{1024*q}')
        p(f's_branch {l1}\n{l0}:')
        with p.cond(lambda c: c['w'] % 2 == 1):
            for q in range(4):
                p(f'ds_write_b128 v{ce}, {vr(a0+4*q,4)} offset:{1024*q}')
                if q:
                    for r in range(4 * (q - 1), 4 * q): p(f'v_mov_b32 v{a0+r}, v{a1+r}')
            for r in range(12, 16): p(f'v_mov_b32 v{a0+r}, v{a1+r}')
        p(f'{l1}:')
        for q in range(4): p(f'ds_read_b64 {vr(uu+2*q,2)}, v{ce+2} offset:{16*q}')
        self.w2_read(1)
        p('s_waitcnt lgkmcnt(0)\ns_barrier')
        for q in range(4): p(f'ds_read_b128 {vr(ex+4*q,4)}, v{ce+1} offset:{1024*q}')
        self.poll_check('B', V['g2a'] + 2, 32, 1)
        self.stamp('pollB')
        self.act_dma_setup()
        dm = [self.cap(self.act_dma, sl, sl) for sl in range(self.o['lead'])]
        with p.capture() as epi:
            for r in range(16): p(f'v_add_f32 v{a0+r}, v{a0+r}, v{ex+r}')
            for r in range(16): p(f'v_mul_f32 v{a0+r}, {sSIG}, v{a0+r}')
            for r in range(16):
                p(f'v_fma_mix_f32 v{a0+r}, v{uu+r//2}, {sDV}, v{a0+r} op_sel:[{r&1},0,0] op_sel_hi:[1,0,0]')
            for r in range(8): p(f'v_cvt_pk_bf16_f32 v{ex+r}, v{a0+2*r}, v{a0+2*r+1}')
            for q in range(4):
                p(f'v_xor_b32 v{t}, {16*q}, v{ce+4}')
                p(f'v_add_u32 v{t}, v{t}, v{ce+3}')
                p(f'ds_write_b64 v{t}, {vr(ex+2*q,2)}')
            p(f'ds_read_b128 {vr(ex+8,4)}, v{ce+5}')
            p(f'ds_read_b128 {vr(ex+12,4)}, v{ce+5} offset:1024')
            p(f'''
            s_lshl_b32 s58, {sBETA}, 1
            s_add_u32 s58, s58, {sCH}
            s_lshl_b32 s58, s58, 12
            s_lshl_b32 s59, {sROLE}, 11
            s_add_u32 s58, s58, s59
            s_add_u32 s58, s58, {WS_ST}
            ''')
            p(f'buffer_store_dwordx4 {vr(ex+8,4)}, v{V["l16"]}, {SWS}, s58 offen sc1', tag='stst')
            p(f'buffer_store_dwordx4 {vr(ex+12,4)}, v{V["l16"]}, {SWS}, s58 offen offset:1024 sc1', tag='stst')
        p.merge(epi, dm, 0, len(epi) - 10)
        V.free('cvt', 'cacc', 'cex', 'cuu', 'ce', 'w2a')
    def st_flag(self):
        p = self.p
        p.wait_tag('stst')
        p(f'''
        s_lshl_b32 s101, {sROLE}, 9
        s_lshl_b32 s100, {sBETA}, 1
        s_add_u32 s101, s101, s100
        s_add_u32 s101, s101, {sCH}
        s_lshl_b32 s101, s101, 3
        ''')
        self.flag_store('s101', FL_C)
    def act_dma_setup(self):
        p = self.p
        p(f'''
        s_lshl_b32 s96, {sTG}, 1
        s_add_u32 s96, s96, {sROLE}
        s_mul_i32 s96, s96, {86*1024}
        s_mul_i32 s97, {sCH}, {43*1024}
        s_add_u32 s96, s96, s97
        s_add_u32 s96, s96, {WS_ACT}
        s_lshl_b32 s97, {sCH}, 11
        s_lshl_b32 s98, {sROLE}, 10
        s_add_u32 s97, s97, s98
        ''')
    def act_dma(self, sl, slot):
        p = self.p
        p(f's_add_u32 m0, s97, {slot*4096}')
        p(f's_add_u32 s98, s96, {sl*1024}')
        p(f'buffer_load_dwordx4 v{self.V["l16"]}, {SWS}, s98 offen sc1 lds', tag=f'act{sl}')
    def gemm2(self):
        p, V, A = self.p, self.V, self.A
        g2 = V['g2a']
        p('s_barrier')
        lead = self.o['lead']
        acc = V.alloc('g2acc', 32, align=2); fr = V.alloc('g2fr', 24, align=2)
        xd = V.alloc('g2xd', 8, align=2); sd = V.alloc('g2sd', 8, align=2)
        def rd(sl):
            slot = sl if sl < R1 else sl - R1
            o = slot * 4096; base = g2
            if o >= 0x20000: o -= 0x20000; base = g2 + 10
            elif o >= 0x10000: o -= 0x10000; base = g2 + 1
            b = fr + 8 * (sl % 3)
            p(f'ds_read_b128 {vr(b,4)}, v{base} offset:{o}')
            p(f'ds_read_b128 {vr(b+4,4)}, v{base} offset:{o+1024}')
        def mm(lo, hi):
            for sl in range(lo, min(lo + 2, hi)): rd(sl)
            for sl in range(lo, hi):
                if sl + 2 < hi: rd(sl + 2)
                if sl + lead < 43: self.act_dma(sl + lead, (sl + lead) % R1)
                b = fr + 8 * (sl % 3); wf = self.w2reg(sl)
                c0 = '0' if sl == 0 else vr(acc, 16); c1 = '0' if sl == 0 else vr(acc + 16, 16)
                p(f'v_mfma_f32_32x32x16_bf16 {vr(acc,16)}, {vr(wf,4,"a")}, {vr(b,4)}, {c0}')
                p(f'v_mfma_f32_32x32x16_bf16 {vr(acc+16,16)}, {vr(wf,4,"a")}, {vr(b+4,4)}, {c1}')
        stages = [0, 6, 12, 18, 24, 30, 36, 43]
        for si in range(len(stages) - 1):
            lo, hi = stages[si], stages[si + 1]
            p.wait_tag(f'act{hi-1}')
            p('s_barrier')
            if si == 2:
                self.st_flag()
                p(f'''
                s_lshl_b32 s56, {sTG}, 16
                s_lshl_b32 s57, {sCH}, 15
                s_add_u32 s56, s56, s57
                s_lshl_b32 s57, {sCG}, 7
                s_add_u32 s56, s56, s57
                s_lshl_b32 s57, {sROLE}, 6
                s_add_u32 s39, s56, s57
                ''')
                for q in range(4): p(f'buffer_load_dwordx2 {vr(xd+2*q,2)}, v{g2+9}, {SX}, s39 offen offset:{16*q}')
            if si == 5: self.poll_issue('C', g2 + 3, 64, 1)
            if si == 6:
                self.poll_check('C', g2 + 3, 64, 1)
                p(f'''
                s_lshl_b32 s56, {sCG}, 18
                s_lshl_b32 s57, {sTG}, 7
                s_add_u32 s56, s56, s57
                s_add_u32 s56, s56, {WS_ST}
                s_add_u32 s57, s56, {32*4096}
                buffer_load_dwordx4 {vr(sd,4)}, v{g2+6}, {SWS}, s56 offen sc1
                buffer_load_dwordx4 {vr(sd+4,4)}, v{g2+6}, {SWS}, s57 offen sc1
                ''')
            mm(lo, hi)
        V.free('g2fr'); A.free('w2f')
        self.stamp('g2mm')
        p(f'ds_write_b128 v{g2+7}, {vr(sd,4)}')
        p(f'ds_write_b128 v{g2+7}, {vr(sd+4,4)} offset:{32*ST_STR}')
        p('s_barrier')
        ex = V.alloc('g2ex', 16, align=2)
        l0 = self.lab('g20'); l1 = self.lab('g21')
        p(f's_cmp_eq_u32 {sCH}, 0\ns_cbranch_scc0 {l0}')
        with p.cond(lambda c: c['w'] < 2):
            for q in range(4): p(f'ds_write_b128 v{g2+4}, {vr(acc+16+4*q,4)} offset:{1024*q}')
        p(f's_branch {l1}\n{l0}:')
        with p.cond(lambda c: c['w'] >= 2):
            for q in range(4):
                p(f'ds_write_b128 v{g2+4}, {vr(acc+4*q,4)} offset:{1024*q}')
                if q:
                    for r in range(4 * (q - 1), 4 * q): p(f'v_mov_b32 v{acc+r}, v{acc+16+r}')
            for r in range(12, 16): p(f'v_mov_b32 v{acc+r}, v{acc+16+r}')
        p(f'{l1}:')
        p('s_waitcnt lgkmcnt(0)\ns_barrier')
        for q in range(4): p(f'ds_read_b128 {vr(ex+4*q,4)}, v{g2+5} offset:{1024*q}')
        for q in range(4): p(f'ds_read_b64_tr_b16 {vr(sd+2*q,2)}, v{g2+8} offset:{8*q*ST_STR}')
        p(f's_mov_b32 s34, {f32(-LOG2E)}')
        for r in range(0, 16, 2): p(f'v_pk_add_f32 {vr(acc+r,2)}, {vr(acc+r,2)}, {vr(ex+r,2)}')
        for r in range(0, 16, 2): p(f'v_pk_mul_f32 {vr(ex+r,2)}, {vr(acc+r,2)}, s[34:35] op_sel_hi:[1,0]')
        for r in range(16): p(f'v_exp_f32 v{ex+r}, v{ex+r}')
        for r in range(0, 16, 2): p(f'v_pk_add_f32 {vr(ex+r,2)}, {vr(ex+r,2)}, 1.0 op_sel_hi:[1,0]')
        for r in range(16): p(f'v_rcp_f32 v{ex+r}, v{ex+r}')
        for r in range(0, 16, 2): p(f'v_pk_mul_f32 {vr(acc+r,2)}, {vr(acc+r,2)}, {vr(ex+r,2)}')
        for r in range(16):
            if r % 2 == 0: p(f'v_lshlrev_b32 v{ex+r}, 16, v{sd+r//2}')
            else: p(f'v_and_b32 v{ex+r}, 0xffff0000, v{sd+r//2}')
        for r in range(0, 16, 2): p(f'v_pk_mul_f32 {vr(acc+r,2)}, {vr(acc+r,2)}, {vr(ex+r,2)}')
        for r in range(8): p(f'v_cvt_pk_bf16_f32 v{sd+r}, v{acc+2*r}, v{acc+2*r+1}')
        for r in range(8):
            p(f'v_lshlrev_b32 v{ex}, 16, v{sd+r}')
            p(f'v_and_b32 v{ex+1}, 0xffff0000, v{sd+r}')
            p(f'v_lshlrev_b32 v{ex+2}, 16, v{xd+r}')
            p(f'v_and_b32 v{ex+3}, 0xffff0000, v{xd+r}')
            p(f'v_pk_add_f32 {vr(ex,2)}, {vr(ex,2)}, {vr(ex+2,2)}')
            p(f'v_cvt_pk_bf16_f32 v{xd+r}, v{ex}, v{ex+1}')
            if r % 2 == 1:
                q = r // 2
                p(f'buffer_store_dwordx2 {vr(xd+2*q,2)}, v{g2+9}, {SOUT}, s39 offen offset:{16*q}')
        V.free('g2acc', 'g2ex', 'g2sd', 'g2xd', 'g2a')
    def dump_lds(self, lds_off, nbytes, ws_off):
        p, V = self.p, self.V
        t = V.alloc('dmp', 6, align=2)
        p('s_waitcnt lgkmcnt(0)\ns_barrier')
        stride = (nbytes + 4095) // 4096 * 4096
        p(f's_mul_i32 s52, {sBETA}, {stride}\ns_add_u32 s52, s52, {ws_off}')
        p(f'v_lshlrev_b32 v{t}, 4, v0')
        for k in range(stride // 4096):
            p(f'v_add_u32 v{t+1}, {lds_off + 4096*k}, v{t}')
            p(f'ds_read_b128 {vr(t+2,4)}, v{t+1}')
            p(f'buffer_store_dwordx4 {vr(t+2,4)}, v{t}, {SWS}, s52 offen')
            p(f's_add_u32 s52, s52, 4096')
            p('s_waitcnt vmcnt(0)')
        p('s_barrier')
        V.free('dmp')
    def finish(self):
        p = self.p
        if self.stamps:
            V = self.V
            t = V.alloc('stt'); t2 = V.alloc('stt2')
            if getattr(self, 'only', None) is not None:
                p('s_waitcnt lgkmcnt(0)')
                for k in range(len(self.stamp_names)): p(f'v_writelane_b32 v255, s{64+2*k}, {k}')
            p(f'''
            s_waitcnt vmcnt(0) lgkmcnt(0)
            s_memrealtime s[94:95]
            s_waitcnt lgkmcnt(0)
            v_writelane_b32 v255, s94, 63
            s_lshl_b32 s52, s2, 2
            s_add_u32 s52, s52, {sWAVE}
            s_lshl_b32 s52, s52, 8
            s_add_u32 s52, s52, {WS_DBG}
            v_lshlrev_b32 v{t}, 2, v1
            buffer_store_dword v255, v{t}, {SWS}, s52 offen
            ''')
            if self.dbgstamps:
                lab = self.lab('dbgst')
                p(f's_or_b32 s52, s2, {sWAVE}\ns_cmp_lg_u32 s52, 0\ns_cbranch_scc1 {lab}')
                p('v_readlane_b32 s53, v255, 0')
                for k, nm in enumerate(self.dbgstamps):
                    idx = self.stamp_names.index(nm)
                    p(f'v_readlane_b32 s54, v255, {idx}')
                    p(f's_sub_u32 s54, s54, s53')
                    p(f'v_mov_b32 v{t}, {4*k}')
                    p(f'v_mov_b32 v{t2}, s54')
                    p(f'global_store_dword v{t}, v{t2}, {pDBG}')
                p('v_readlane_b32 s53, v255, 62\nv_readlane_b32 s54, v255, 63\ns_sub_u32 s54, s54, s53')
                p(f'v_mov_b32 v{t}, 60\nv_mov_b32 v{t2}, s54\nglobal_store_dword v{t}, v{t2}, {pDBG}')
                p(f'{lab}:')
        p('L_end:\ns_endpgm')
    def build(self):
        p, V = self.p, self.V
        self.entry()
        p('s_mov_b32 s34, 128')
        self.idle_setup()
        self.gemm1_addr_setup()
        self.stamp('idle')
        self.ln()
        self.stamp('lnst')
        groups = self.w1_dma_groups()
        self.kgen_setup()
        p('s_barrier')
        self.stamp('ksetup')
        main = self.kgen_values()
        n1 = len(main) * 11 // 20
        if self.o.get('nodmak'):
            p.ins.extend(main[:n1]); self.stamp('khalf'); self.ln_flag(); self.stamp('flagA'); p.ins.extend(main[n1:]); self.stamp('kpure')
            for g_ in groups + [self.w2_touch()]: p.ins.extend(g_)
        else:
            p.merge(main[:n1], groups[:13])
            self.ln_flag()
            p.merge(main[n1:], groups[13:] + [self.w2_touch()])
        V.free('w1off', 'z', 'Z256', 'Cn', 'z2', 'z4', 'w', 'w2', 'w4', 'chains', 'cv', 'fa')
        self.stamp('kvals')
        self.poll_issue('A1', V['pA1'], 8, 1)
        p('s_waitcnt lgkmcnt(0)\ns_barrier')
        self.kgen_mfma()
        self.poll_check('A1', V['pA1'], 8, 1)
        V.free('pA1')
        self.stamp('pollA1')
        xl = self.cap(self.xn_loads)
        p('s_waitcnt lgkmcnt(0)\ns_barrier')
        if 'table' in self.dump: self.dump_lds(L_T, 2 * T_CH, WS_DBG + 0x100000)
        ex = self.cap(self.expand)
        grp = []; cur = []
        for i in xl:
            cur.append(i)
            if i.kind == 'vm_load': grp.append(cur); cur = []
        ncommon = next(k for k, i in enumerate(ex) if i.kind == 'branch')
        p.merge(ex[:ncommon - 1], grp)
        p.ins.extend(ex[ncommon - 1:])
        p('s_waitcnt lgkmcnt(0)\ns_barrier')
        self.stamp('expand')
        if 'kc' in self.dump: self.dump_lds(L_KC, 8 * KC_STR, WS_DBG + 0x400000)
        self.gemm1()
        self.stamp('gemm1')
        self.conv()
        self.stamp('conv')
        self.gemm2()
        self.stamp('end')
        self.finish()
        body = p.render().rstrip('\n').split('\n')
        if self.o['pads']:
            wi = [l.strip() for l in body].index(';WARM')
            tmp = body[:wi] + body[wi + 1:]
            tmp, padl = PADS.add_page_pads(tmp, 'L_main', 'L_warm_ret')
            wi = tmp.index('L_warm_ret:')
            warm = []
            for w in range(min(4, len(padl))):
                warm += [f'    s_cmp_eq_u32 {sWAVE}, {w}', f'    s_cbranch_scc1 {padl[w]}']
            body = tmp[:wi] + warm + tmp[wi:]
            self.npads = len(padl)
        names = ''.join(f'; stamp {n}\n' for n in self.stamp_names)
        hdr = f'''; S4D conv + mish MLP gated block, single persistent launch (generated by gen/kern2.py)
; @launch grid=(256,1,1) block=(256,1,1) lds={LDS_BYTES}
{names}.amdgcn_target "amdgcn-amd-amdhsa--gfx950"
.text
.globl {NAME}
.p2align 8
.type {NAME},@function
{NAME}:
'''
        tail = f'''
.section .rodata,"a"
.p2align 6
.amdhsa_kernel {NAME}
  .amdhsa_next_free_vgpr 512
  .amdhsa_next_free_sgpr 102
  .amdhsa_accum_offset 256
  .amdhsa_group_segment_fixed_size 0
  .amdhsa_kernarg_size 112
  .amdhsa_user_sgpr_count 2
  .amdhsa_user_sgpr_kernarg_segment_ptr 1
  .amdhsa_system_sgpr_workgroup_id_x 1
  .amdhsa_ieee_mode 0
  .amdhsa_dx10_clamp 0
.end_amdhsa_kernel
'''
        return hdr + '\n'.join(body) + '\n' + tail

if __name__ == '__main__':
    import argparse
    ap = argparse.ArgumentParser()
    ap.add_argument('-o', default='k.s')
    ap.add_argument('--stamps', action='store_true')
    ap.add_argument('--dump', default=None)
    ap.add_argument('--dbg', default=None)
    ap.add_argument('--opt', default='')
    a = ap.parse_args()
    opts = {}
    for kv in a.opt.split(','):
        if kv:
            k, v = kv.split('='); opts[k] = int(v)
    g = Gen(stamps=a.stamps, dump=set(a.dump.split(',')) if a.dump else None, dbgstamps=a.dbg.split(',') if a.dbg else None, opts=opts)
    s = g.build()
    open(a.o, 'w').write(s)
    print('vgpr hi', g.V.hi, 'agpr hi', g.A.hi, 'lines', s.count('\n'), 'pads', getattr(g, 'npads', 0))
```

```python
import sys, math
from regs import vr
import kern2, kern3
from kern2 import *
from kern3 import *
import pads as PADS

WS_STAT = WS_FLG + 0x8000
L_XS = L_W + 2 * W1B
L_SP = L_X
L_BIAS16 = L_MISC + 64

class Gen4(kern3.Gen3):
    def entry(self):
        p, V = self.p, self.V
        for nm, cnt in (('l16', 1), ('n31', 1), ('hh', 1), ('cA', 3), ('cB', 2), ('ce', 6), ('us', 3), ('w2a', 7), ('g2a', 8)): V.prealloc(nm, cnt, align=1)
        x0 = V.alloc('x0', 4); x1 = V.alloc('x1', 4)
        l16 = V.alloc('l16'); t = V.alloc('t0'); t2 = V.alloc('t1')
        if self.stamps: p('s_memrealtime s[98:99]')
        p(f'''
        s_load_dwordx16 s[64:79], s[0:1], 0
        s_load_dwordx8 s[80:87], s[0:1], 64
        s_load_dwordx4 s[88:91], s[0:1], 96
        s_cmp_ge_u32 s2, 256
        s_cbranch_scc1 L_end
        v_and_b32 v1, 63, v0
        v_lshrrev_b32 v2, 6, v0
        s_and_b32 s52, s2, 7
        s_lshr_b32 s53, s2, 3
        v_readfirstlane_b32 {sWAVE}, v2
        s_lshl_b32 {sBETA}, s52, 5
        s_add_u32 {sBETA}, {sBETA}, s53
        v_lshlrev_b32 v{l16}, 4, v1
        s_lshl_b32 s52, {sBETA}, 3
        s_lshl_b32 s53, {sWAVE}, 1
        s_add_u32 s52, s52, s53
        s_lshl_b32 s52, s52, 10
        s_mov_b32 s10, 0x200000
        s_mov_b32 s11, 0x20000
        s_lshr_b32 {sCH}, {sWAVE}, 1
        s_and_b32 {sROLE}, {sWAVE}, 1
        s_lshl_b32 s54, {sBETA}, 1
        s_add_u32 s54, s54, {sCH}
        s_lshl_b32 s54, s54, 8
        v_lshlrev_b32 v{t2}, 2, v1
        v_add_u32 v{t}, s54, v{t2}
        s_lshl_b32 s58, {sBETA}, 2
        s_and_b32 s54, {sBETA}, 15
        s_mul_i32 {sFB0}, s54, 3
        s_lshl_b32 s55, s54, 1
        s_add_u32 s55, s55, 11
        s_cmp_lt_u32 s54, 11
        s_cselect_b32 {sFB0}, {sFB0}, s55
        s_cselect_b32 {sNBLK}, 3, 2
        s_lshr_b32 {sTT}, {sBETA}, 4
        s_waitcnt lgkmcnt(0)
        s_mov_b32 s8, s64
        s_mov_b32 s9, s65
        ''')
        if self.stamps: p('s_mov_b32 s36, s98')
        p(f'buffer_load_dwordx4 {vr(x0,4)}, v{l16}, {SX}, s52 offen')
        p(f'buffer_load_dwordx4 {vr(x1,4)}, v{l16}, {SX}, s52 offen offset:1024')
        pr = V.alloc('par', 4); nv = V.alloc('nonce'); bv = V.alloc('biasv', 2, align=1)
        p(f'''
        global_load_dword v{pr}, v{t}, {pLOGA}
        global_load_dword v{pr+1}, v{t}, {pAIM}
        global_load_dword v{pr+2}, v{t}, {pCRE}
        global_load_dword v{pr+3}, v{t}, {pCIM}
        s_load_dword {sLDT}, {pLOGDT}, s58
        s_load_dword {sDSK}, {pDSK}, s58
        s_mov_b32 s20, s90
        s_mov_b32 s21, s91
        s_mov_b32 s22, {WS_BYTES}
        s_mov_b32 s23, 0x20000
        v_mov_b32 v{t}, {WS_FLG}
        buffer_load_dword v{nv}, v{t}, {SWS}, 0 offen sc1
        s_mov_b32 s28, s82
        s_mov_b32 s29, s83
        s_mov_b32 s30, {1376*2}
        s_mov_b32 s31, 0x20000
        ''')
        xv = V.alloc('xv', 4)
        p(f'''
        v_lshrrev_b32 v{t}, 3, v1
        v_lshlrev_b32 v{t}, 10, v{t}
        v_lshrrev_b32 v{xv}, 4, v1
        v_and_b32 v{xv+1}, 7, v1
        v_xor_b32 v{xv}, v{xv}, v{xv+1}
        v_lshlrev_b32 v{xv}, 4, v{xv}
        v_add_u32 v{xv}, v{xv}, v{t}
        v_xor_b32 v{xv+1}, 64, v{xv}
        v_add_u32 v{xv+1}, {8192-1024}, v{xv+1}
        v_add_u32 v{xv+2}, {2*(8192-1024)}, v{xv}
        v_add_u32 v{xv+3}, {2*(8192-1024)}, v{xv+1}
        s_lshl_b32 s40, {sTT}, 2
        s_add_u32 s40, s40, {sWAVE}
        s_lshl_b32 s40, s40, 15
        s_lshl_b32 s41, {sWAVE}, 13
        s_add_u32 s41, s41, {L_XS}
        ''')
        vo = V.alloc('w1off', 4)
        p(f'''
        s_mov_b32 s12, s80
        s_mov_b32 s13, s81
        s_mov_b32 s14, {512*1376*2}
        s_mov_b32 s15, 0x20000
        s_mov_b32 s16, s84
        s_mov_b32 s17, s85
        s_mov_b32 s18, {512*1376*2}
        s_mov_b32 s19, 0x20000
        s_mov_b32 s24, s86
        s_mov_b32 s25, s87
        s_mov_b32 s26, 0x200000
        s_mov_b32 s27, 0x20000
        s_lshr_b32 {sTG}, {sBETA}, 3
        s_and_b32 {sCG}, {sBETA}, 7
        ''')
        tv = V.alloc('touch', 2)
        l1 = self.lab('e1'); l2 = self.lab('e2'); l3 = self.lab('e3'); le = self.lab('ee')
        p(f's_cmp_eq_u32 {sWAVE}, 1\ns_cbranch_scc0 {l1}')
        with p.cond(lambda c: c['w'] == 1):
            p(f's_lshl_b32 s52, {sFB0}, 6\nv_lshlrev_b32 v{t}, 1, v1')
            p(f'buffer_load_ushort v{bv}, v{t}, {SB1}, s52 offen')
            p(f'buffer_load_ushort v{bv+1}, v{t}, {SB1}, s52 offen offset:128')
        p(f's_branch {le}\n{l1}:')
        if True:
            p(f's_cmp_eq_u32 {sWAVE}, 3\ns_cbranch_scc1 {l3}')
            p(f's_mul_i32 s52, s2, 5504\nv_lshlrev_b32 v{t}, 7, v1\ns_mov_b32 exec_hi, 0x7ff')
            p(f's_cmp_eq_u32 {sWAVE}, 0\ns_cbranch_scc0 {l2}')
            with p.cond(lambda c: c['w'] == 0):
                if self.o.get('mtouch', 4) & 1: p(f'buffer_load_dword v{tv}, v{t}, {SW1}, s52 offen')
            p(f's_mov_b32 exec_hi, -1\ns_branch {le}\n{l2}:')
            with p.cond(lambda c: c['w'] == 2):
                if self.o.get('mtouch', 4) & 4: p(f'buffer_load_dword v{tv}, v{t}, {SW2}, s52 offen')
            p(f's_mov_b32 exec_hi, -1\ns_branch {le}\n{l3}:')
            with p.cond(lambda c: c['w'] == 3):
                if self.o.get('mtouch', 4) & 2:
                    p(f'v_lshlrev_b32 v{t}, 21, v1\ns_mov_b64 exec, 0x3f')
                    p(f'buffer_load_dword v{tv}, v{t}, {SWS}, 0 offen')
                    p(f's_mov_b64 exec, 1')
                    p(f'buffer_load_dword v{tv+1}, v{t}, {SOUT}, 0 offen')
                    p(f's_mov_b64 exec, -1')
        p(f'{le}:')
        if self.o.get('l2touch', 0):
            tw = V.alloc('touch1', 2)
            p(f'''
            s_lshr_b32 s52, s2, 3
            s_mul_i32 s52, s52, {344*128}
            s_mul_i32 s53, {sWAVE}, {86*128}
            s_add_u32 s52, s52, s53
            v_lshlrev_b32 v{t}, 7, v1
            buffer_load_dword v{tw}, v{t}, {SW1}, s52 offen
            s_add_u32 s52, s52, 8192
            s_mov_b32 exec_lo, 0x3fffff
            s_mov_b32 exec_hi, 0
            buffer_load_dword v{tw+1}, v{t}, {SW1}, s52 offen
            s_mov_b64 exec, -1
            ''')
        p(f'''
        v_lshrrev_b32 v{t}, 2, v1
        v_mul_u32_u24 v{t}, 2752, v{t}
        v_and_b32 v{vo}, 3, v1
        v_lshlrev_b32 v{vo}, 4, v{vo}
        v_add_u32 v{vo}, v{vo}, v{t}
        v_add_u32 v{vo+1}, {16*2752-1024}, v{vo}
        v_add_u32 v{vo+2}, {2*(16*2752-1024)}, v{vo}
        v_add_u32 v{vo+3}, {3*(16*2752-1024)}, v{vo}
        s_mov_b64 {pDBG}, s[88:89]
        ''')
        self.w1first = self.w1_run(0, swap=True); self.w1second = self.w1_run(1, swap=True)
        for g_ in self.w1first: p.ins.extend(g_)
        V.free('t0', 't1')
        self.stamp('start')
        if self.stamps: p('v_writelane_b32 v255, s36, 62')
        if self.o['pads']:
            p('s_mov_b64 exec, 0\n;WARM\nL_warm_ret:\ns_mov_b64 exec, -1')
        p('s_branch L_main\n.p2align 12\nL_main:')
    def x_dma(self, r):
        p, xv = self.p, self.V['xv']
        for k in range(2):
            c = 2 * r + k
            p(f's_add_u32 m0, s41, {4096*k}')
            p(f's_add_u32 s42, s40, {128*c}')
            for j in range(4):
                p(f'buffer_load_dwordx4 v{xv+j}, {SX}, s42 offen offset:{1024*j} lds', tag=f'xdma{r}')
    def x_dma_groups(self, r):
        ins = self.cap(self.x_dma, r)
        gs = []; cur = []
        for i in ins:
            cur.append(i)
            if i.kind == 'dma': gs.append(cur); cur = []
        return gs
    def x_read(self, r):
        p, V, A = self.p, self.V, self.A
        xf, xr = A['xnf'], V['xr']
        p.wait_tag(f'xdma{r}')
        for k in range(2):
            for j in range(4):
                ks = 8 * r + 4 * k + j
                p(f'ds_read_b128 {vr(xf+4*ks,4,"a")}, v{xr+j} offset:{4096*k}', tag=f'xrd{r}')
    def x_next(self, r):
        self.p.wait_lgkm_tag(f'xrd{r-1}')
        self.x_dma(r)
    def gemm1_addr_setup(self):
        p, V, A = self.p, self.V, self.A
        A.alloc('xnf', 128, align=4, at=0)
        t = V.alloc('g1st', 3); wa = V.alloc('w1a', 2); xr = V.alloc('xr', 4); sa = V.alloc('stat_a'); sp = V.alloc('spa', 2); ba = V.alloc('bia')
        hh, n31 = V['hh'], V['n31']
        p(f'''
        v_lshlrev_b32 v{t}, 3, v{hh}
        v_bfe_u32 v{t+1}, v1, 2, 2
        v_add_u32 v{t}, v{t}, v{t+1}
        v_lshlrev_b32 v{t}, 6, v{t}
        v_bfe_u32 v{t+1}, v1, 4, 1
        v_lshlrev_b32 v{t+1}, 5, v{t+1}
        v_add_u32 v{t}, v{t}, v{t+1}
        v_and_b32 v{t+1}, 3, v1
        v_lshlrev_b32 v{t+1}, 3, v{t+1}
        v_add_u32 v{wa}, v{t}, v{t+1}
        v_add_u32 v{wa}, {L_W}, v{wa}
        v_add_u32 v{wa+1}, {2*W1B}, v{wa}
        v_bfe_u32 v{t}, v1, 1, 3
        v_xor_b32 v{t}, v{t}, v{hh}
        v_lshlrev_b32 v{t+1}, 7, v{n31}
        v_add_u32 v{t+1}, s41, v{t+1}
        ''')
        for j in range(4):
            p(f'v_xor_b32 v{t+2}, {2*j}, v{t}\nv_lshlrev_b32 v{t+2}, 4, v{t+2}\nv_add_u32 v{xr+j}, v{t+1}, v{t+2}')
        p(f'''
        s_lshl_b32 s56, {sTT}, 2
        s_add_u32 s56, s56, {sWAVE}
        s_lshl_b32 s56, s56, 8
        s_add_u32 s56, s56, {WS_STAT}
        v_lshlrev_b32 v{t}, 3, v{n31}
        v_add_u32 v{sa}, s56, v{t}
        v_lshlrev_b32 v{t}, 4, v{n31}
        v_add_u32 v{sp}, {L_SP}, v{t}
        s_lshl_b32 s56, {sWAVE}, 2
        v_add_u32 v{sp+1}, s56, v{sp}
        v_lshlrev_b32 v{t}, 2, v{n31}
        v_add_u32 v{ba}, {L_BIAS16}, v{t}
        ''')
        V.free('g1st')
    def ln_hook(self):
        p, V = self.p, self.V
        lab = self.lab('bl')
        bv = V['biasv']; t = V.alloc('btl', 3)
        p(f's_cmp_lg_u32 {sWAVE}, 1\ns_cbranch_scc1 {lab}')
        with p.cond(lambda c: c['w'] == 1):
            p(f'''
            v_lshlrev_b32 v{t+2}, 2, v1
            v_add_u32 v{t+2}, {L_BIAS16}, v{t+2}
            ds_write_b32 v{t+2}, v{bv}
            s_mov_b32 exec_hi, 0
            ds_write_b32 v{t+2}, v{bv+1} offset:256
            s_mov_b32 exec_hi, -1
            ''')
        p(f'{lab}:')
        V.free('btl', 'biasv')
    def ln(self):
        p, V = self.p, self.V
        x = [V['x0'], V['x1']]
        d = [V.alloc('d0', 8), V.alloc('d1', 8)]
        s1 = V.alloc('s1', 2); s2 = V.alloc('s2', 2); tp = V.alloc('lnt', 8); ad = V.alloc('lnad', 2); sg = V.alloc('lnsg', 4, align=2)
        l16 = V['l16']; nv = V['nonce']
        p(f'''
        s_lshl_b32 s52, {sWAVE}, 1
        s_mul_i32 s54, s52, {TH_STR}
        s_add_u32 s54, s54, {L_TH}
        v_add_u32 v{ad+1}, s54, v{l16}
        s_lshl_b32 s53, {sBETA}, 3
        s_add_u32 s53, s53, s52
        s_lshl_b32 s53, s53, 3
        s_add_u32 s53, s53, {WS_STAT}
        v_lshlrev_b32 v{ad}, 3, v1
        v_add_u32 v{ad}, s53, v{ad}
        v_lshlrev_b32 v{sg+2}, 4, v1
        ''')
        for k in range(2):
            for j in range(4):
                p(f'v_lshlrev_b32 v{d[k]+2*j}, 16, v{x[k]+j}')
                p(f'v_and_b32 v{d[k]+2*j+1}, 0xffff0000, v{x[k]+j}')
        p(f'v_readlane_b32 s52, v{d[0]}, 0')
        p(f'v_readlane_b32 s54, v{d[1]}, 0')
        p(f's_mov_b32 s53, s52\ns_mov_b32 s55, s54')
        for k in range(2):
            sp = 's[52:53]' if k == 0 else 's[54:55]'
            for j in range(4):
                p(f'v_pk_add_f32 {vr(d[k]+2*j,2)}, {vr(d[k]+2*j,2)}, {sp} neg_lo:[0,1] neg_hi:[0,1]')
        for k in range(2):
            a = tp + 4 * k
            p(f'v_pk_add_f32 {vr(a,2)}, {vr(d[k],2)}, {vr(d[k]+2,2)}')
            p(f'v_pk_add_f32 {vr(a+2,2)}, {vr(d[k]+4,2)}, {vr(d[k]+6,2)}')
        for k in range(2):
            a = tp + 4 * k
            p(f'v_pk_add_f32 {vr(a,2)}, {vr(a,2)}, {vr(a+2,2)}')
        for k in range(2):
            a = tp + 4 * k
            p(f'v_add_f32 v{s1+k}, v{a}, v{a+1}')
        for k in range(2):
            a = tp + 4 * k
            p(f'v_pk_mul_f32 {vr(a,2)}, {vr(d[k],2)}, {vr(d[k],2)}')
        for j in range(1, 4):
            for k in range(2):
                a = tp + 4 * k
                p(f'v_pk_fma_f32 {vr(a,2)}, {vr(d[k]+2*j,2)}, {vr(d[k]+2*j,2)}, {vr(a,2)}')
        for k in range(2):
            a = tp + 4 * k
            p(f'v_add_f32 v{s2+k}, v{a}, v{a+1}')
        regs = [s1, s1 + 1, s2, s2 + 1]
        for ctl in ('row_shr:1 row_mask:0xf bank_mask:0xf bound_ctrl:1', 'row_shr:2 row_mask:0xf bank_mask:0xf bound_ctrl:1',
                    'row_shr:4 row_mask:0xf bank_mask:0xf bound_ctrl:1', 'row_shr:8 row_mask:0xf bank_mask:0xf bound_ctrl:1',
                    'row_bcast:15 row_mask:0xa bank_mask:0xf', 'row_bcast:31 row_mask:0xc bank_mask:0xf'):
            for r in regs:
                p(f'v_add_f32_dpp v{r}, v{r}, v{r} {ctl}')
        for n, r in enumerate(regs):
            p(f'v_readlane_b32 s{56+n}, v{r}, 63')
        m = [tp, tp + 1]; va = [tp + 2, tp + 3]; t4 = tp + 4; t5 = tp + 5
        p(f's_mov_b32 s60, {f32(1.0 / 512)}')
        for k in range(2):
            p(f'v_mov_b32 v{m[k]}, s{56+k}')
            p(f'v_mov_b32 v{va[k]}, s{58+k}')
        p(f'v_pk_mul_f32 {vr(m[0],2)}, {vr(m[0],2)}, s[60:61] op_sel_hi:[1,0]')
        p(f'v_pk_mul_f32 {vr(va[0],2)}, {vr(va[0],2)}, s[60:61] op_sel_hi:[1,0]')
        p(f'v_pk_fma_f32 {vr(va[0],2)}, {vr(m[0],2)}, {vr(m[0],2)}, {vr(va[0],2)} neg_lo:[1,0,0] neg_hi:[1,0,0]')
        p(f'v_add_f32 v{t4}, s52, v{m[0]}')
        p(f'v_add_f32 v{t5}, s54, v{m[1]}')
        for k in range(2): p(f'v_max_f32 v{va[k]}, 0, v{va[k]}')
        p(f'v_cvt_pk_bf16_f32 v{t4}, v{t4}, v{t5}')
        p(f'v_cvt_pk_bf16_f32 v{t5}, v{va[0]}, v{va[1]}')
        p(f's_mov_b32 s60, {f32(1e-5)}')
        p(f'v_lshlrev_b32 v{va[0]}, 16, v{t5}')
        p(f'v_and_b32 v{va[1]}, 0xffff0000, v{t5}')
        p(f'v_lshlrev_b32 v{m[0]}, 16, v{t4}')
        p(f'v_pk_add_f32 {vr(va[0],2)}, {vr(va[0],2)}, s[60:61] op_sel_hi:[1,0]')
        p(f'v_and_b32 v{m[1]}, 0xffff0000, v{t4}')
        p(f'v_cvt_pk_bf16_f32 v{t5}, v{va[0]}, v{va[1]}')
        p(f'v_sub_f32 v{m[0]}, s52, v{m[0]}')
        p(f'v_lshlrev_b32 v{va[0]}, 16, v{t5}')
        p(f'v_and_b32 v{va[1]}, 0xffff0000, v{t5}')
        for k in range(2): p(f'v_sqrt_f32 v{va[k]}, v{va[k]}')
        p(f'v_sub_f32 v{m[1]}, s54, v{m[1]}')
        p(f'v_lshrrev_b32 v{sg}, v{sg+2}, v{t4}')
        p(f'v_cvt_pk_bf16_f32 v{t5}, v{va[0]}, v{va[1]}')
        p(f'v_and_b32 v{sg}, 0xffff, v{sg}')
        p(f'v_xor_b32 v{sg}, 0x8000, v{sg}')
        p(f'v_lshrrev_b32 v{sg+3}, v{sg+2}, v{t5}')
        p(f'v_lshlrev_b32 v{va[0]}, 16, v{t5}')
        p(f'v_and_b32 v{va[1]}, 0xffff0000, v{t5}')
        p(f'v_lshl_or_b32 v{sg}, v{sg+3}, 16, v{sg}')
        for k in range(2): p(f'v_rcp_f32 v{va[k]}, v{va[k]}')
        if not self.o.get('defer_stat', 1): self.stat_store(sg, ad, nv)
        p(f'v_pk_mul_f32 {vr(m[0],2)}, {vr(m[0],2)}, {vr(va[0],2)}')
        for k in range(2):
            for j in range(4):
                p(f'v_pk_fma_f32 {vr(d[k]+2*j,2)}, {vr(d[k]+2*j,2)}, {vr(va[0],2)}, {vr(m[0],2)} '
                  f'op_sel:[0,{k},{k}] op_sel_hi:[1,{k},{k}]')
        for k in range(2):
            for j in range(4):
                p(f'v_cvt_pk_f16_f32 v{x[k]+j}, v{d[k]+2*j}, v{d[k]+2*j+1}')
            p(f'ds_write_b128 v{ad+1}, {vr(x[k],4)} offset:{k*TH_STR}')
        self.ln_hook()
        p('s_waitcnt lgkmcnt(0)\ns_barrier')
        V.free('d0', 'd1', 's1', 's2', 'lnt', 'x0', 'x1')
        if not self.o.get('defer_stat', 1): V.free('lnad', 'lnsg', 'nonce')
        self.stamp('ln')
        lab = self.lab('lnst')
        p(f's_cmp_ge_u32 {sWAVE}, 2\ns_cbranch_scc1 {lab}')
        with p.cond(lambda c: c['w'] < 2):
            a = V.alloc('lsa', 2); u = V.alloc('lsu', 16, align=2)
            p(f'''
            v_bfe_u32 v{a}, v1, 2, 2
            v_mul_u32_u24 v{a}, {TH_STR}, v{a}
            v_lshrrev_b32 v{a+1}, 4, v1
            v_lshlrev_b32 v{a+1}, 5, v{a+1}
            v_add_u32 v{a}, v{a}, v{a+1}
            v_and_b32 v{a+1}, 3, v1
            v_lshlrev_b32 v{a+1}, 3, v{a+1}
            v_add_u32 v{a}, v{a}, v{a+1}
            s_lshl_b32 s52, {sWAVE}, 9
            s_add_u32 s52, s52, {L_TH}
            v_add_u32 v{a}, s52, v{a}
            ''')
            for it in range(4):
                p(f'ds_read_b64_tr_b16 {vr(u+4*it,2)}, v{a} offset:{128*it}')
                p(f'ds_read_b64_tr_b16 {vr(u+4*it+2,2)}, v{a} offset:{128*it+4*TH_STR}')
            p(f'''
            s_lshl_b32 s52, {sBETA}, 13
            s_lshl_b32 s53, {sWAVE}, 12
            s_add_u32 s52, s52, s53
            s_add_u32 s52, s52, {WS_UBLK}
            ''')
            for it in range(4):
                p(f'buffer_store_dwordx4 {vr(u+4*it,4)}, v{l16}, {SWS}, s52 offen offset:{1024*it} sc1', tag='lnst')
            V.free('lsa', 'lsu')
        p(f'{lab}:')
    def stat_store(self, sg, ad, nv):
        p = self.p
        p(f'v_add_u32 v{sg+1}, 1, v{nv}')
        p(f's_mov_b64 exec, 3')
        p(f'buffer_store_dwordx2 {vr(sg,2)}, v{ad}, {SWS}, 0 offen sc1')
        p(f's_mov_b64 exec, -1')
        p(f'v_readfirstlane_b32 {sNONCE}, v{sg+1}')
    def stat_store_deferred(self):
        V = self.V
        if self.o.get('defer_stat', 1):
            self.stat_store(V['lnsg'], V['lnad'], V['nonce'])
            V.free('lnad', 'lnsg', 'nonce')
    def w1_run(self, blk, swap=False):
        p, V = self.p, self.V
        vo = V['w1off']; gs = []
        for k in range(8):
            with p.capture() as b:
                if k == 0:
                    p(f'''
                    s_lshl_b32 s98, {sWAVE}, 3
                    s_mul_i32 s96, s98, {16*2752}
                    s_lshl_b32 s97, {sFB0}, 6
                    s_add_u32 s96, s96, s97
                    s_lshl_b32 s97, s98, 10
                    ''')
                    if swap:
                        p(f'''
                        s_and_b32 s98, {sTT}, 1
                        s_xor_b32 s98, s98, {blk}
                        s_lshl_b32 s99, s98, 6
                        s_add_u32 s96, s96, s99
                        s_lshl_b32 s99, s98, 15
                        s_add_u32 s97, s97, s99
                        s_add_u32 s97, s97, {L_W}
                        ''')
                    else:
                        p(f's_add_u32 s96, s96, {64*blk}\ns_add_u32 s97, s97, {L_W + W1B*blk}')
                if k == 4: p(f's_add_u32 s96, s96, {4*16*2752}\ns_add_u32 s97, s97, 4096')
                p('s_mov_b32 m0, s97')
                p(f'buffer_load_dwordx4 v{vo+k%4}, {SW1}, s96 offen offset:{1024*(k%4)} lds', tag=f'w1dma{blk}')
            gs.append(b)
        return gs
    def colsum(self, blk, accS, fr, ones):
        p, V = self.p, self.V
        wa = V['w1a']; cs = V['csa']
        def rd(j):
            b = fr + 4 * (j % 3); base = cs + (blk >> 1); o = j * 1024 + W1B * (blk & 1)
            p(f'ds_read_b64_tr_b16 {vr(b,2)}, v{base} offset:{o}')
            p(f'ds_read_b64_tr_b16 {vr(b+2,2)}, v{base} offset:{o+256}')
        for j in range(2): rd(j)
        for j in range(8):
            if j + 2 < 8: rd(j + 2)
            p(f'v_mfma_f32_32x32x16_bf16 {vr(accS,16)}, {vr(ones,4)}, {vr(fr+4*(j%3),4)}, {"0" if j == 0 else vr(accS,16)}')
    def colsum_write(self, blk, accS):
        p, V = self.p, self.V
        p('s_mov_b32 exec_hi, 0')
        p(f'ds_write_b32 v{V["spa"]+1}, v{accS} offset:{512*blk}')
        p('s_mov_b32 exec_hi, -1')
    def ax_build(self, blk, ax, tq):
        p, V = self.p, self.V
        msk = V['hmask']
        p(f'ds_read_b128 {vr(tq,4)}, v{V["spa"]} offset:{512*blk}')
        p(f'ds_read_b32 v{ax+1}, v{V["bia"]} offset:{128*blk}')
        p(f'''
        v_add_f32 v{tq}, v{tq}, v{tq+1}
        v_add_f32 v{tq+2}, v{tq+2}, v{tq+3}
        v_add_f32 v{tq}, v{tq}, v{tq+2}
        v_cvt_pk_bf16_f32 v{tq+1}, v{tq}, v{tq}
        v_lshlrev_b32 v{tq+1}, 16, v{tq+1}
        v_sub_f32 v{tq+1}, v{tq}, v{tq+1}
        v_cvt_pk_bf16_f32 v{ax}, v{tq}, v{tq+1}
        v_and_b32 v{ax}, v{ax}, v{msk}
        v_and_b32 v{ax+1}, v{ax+1}, v{msk}
        v_mov_b32 v{ax+2}, 0
        v_mov_b32 v{ax+3}, 0
        ''')
    def stat_build(self):
        p, V = self.p, self.V
        st = V['pl_S']; bx = V['bx']; sc = V['scl']; msk = V['hmask']
        p(f'''
        v_and_b32 v{bx}, 0xffff, v{st}
        v_lshrrev_b32 v{bx+1}, 16, v{st}
        v_and_b32 v{sc+4}, 0xffff0000, v{st}
        v_lshl_or_b32 v{bx}, v{bx}, 16, v{bx}
        v_rcp_f32 v{sc+4}, v{sc+4}
        v_and_b32 v{bx+1}, v{bx+1}, v{msk}
        v_and_b32 v{bx}, v{bx}, v{msk}
        v_mov_b32 v{bx+2}, 0
        v_mov_b32 v{bx+3}, 0
        v_mul_f32 v{sc}, {f32(LOG2E)}, v{sc+4}
        v_mul_f32 v{sc+2}, -2.0, v{sc+4}
        ''')
    def mish(self, acc, tm, pk, packed):
        p = self.p
        sc = self.V['scl']; rl, m2r, rr = sc, sc + 2, sc + 4
        if packed:
            for r in range(0, 16, 2): p(f'v_pk_mul_f32 {vr(tm+r,2)}, {vr(acc+r,2)}, {vr(rl,2)} op_sel_hi:[1,0]')
            for r in range(16): p(f'v_exp_f32 v{tm+r}, v{tm+r}')
            for r in range(0, 16, 2):
                p(f'v_pk_add_f32 {vr(pk+(r&2),2)}, {vr(tm+r,2)}, 2.0 op_sel_hi:[1,0]')
                p(f'v_pk_fma_f32 {vr(tm+r,2)}, {vr(tm+r,2)}, {vr(pk+(r&2),2)}, 2.0 op_sel_hi:[1,1,0]')
            for r in range(16): p(f'v_rcp_f32 v{tm+r}, v{tm+r}')
            for r in range(0, 16, 2): p(f'v_pk_fma_f32 {vr(tm+r,2)}, {vr(tm+r,2)}, {vr(m2r,2)}, {vr(rr,2)} op_sel_hi:[1,0,0]')
            for r in range(0, 16, 2): p(f'v_pk_mul_f32 {vr(tm+r,2)}, {vr(tm+r,2)}, {vr(acc+r,2)}')
            for r in range(0, 16, 2): p(f'v_cvt_pk_bf16_f32 v{pk+r//2}, v{tm+r}, v{tm+r+1}')
        else:
            for r0 in range(0, 16, 4):
                R = range(r0, r0 + 4)
                for r in R: p(f'v_mul_f32 v{tm+r}, v{rl}, v{acc+r}')
                for r in R: p(f'v_exp_f32 v{tm+r}, v{tm+r}')
                for r in R: p(f'v_add_f32 v{pk+(r&3)+4}, 2.0, v{tm+r}')
                for r in R: p(f'v_fma_f32 v{tm+r}, v{tm+r}, v{pk+(r&3)+4}, 2.0')
                for r in R: p(f'v_rcp_f32 v{tm+r}, v{tm+r}')
                for r in R: p(f'v_fma_f32 v{tm+r}, v{tm+r}, v{m2r}, v{rr}')
                for r in R: p(f'v_mul_f32 v{tm+r}, v{tm+r}, v{acc+r}')
            for r in range(0, 16, 2): p(f'v_cvt_pk_bf16_f32 v{pk+r//2}, v{tm+r}, v{tm+r+1}')
    def stat_issue(self):
        p, V = self.p, self.V
        t = V.alloc('pl_S', 2)
        p(f'buffer_load_dwordx2 {vr(t,2)}, v{V["stat_a"]}, {SWS}, 0 offen sc1')
    def stat_check(self):
        p, V = self.p, self.V
        t = V['pl_S']
        lp = self.lab('S'); ck = self.lab('Sc'); dn = self.lab('Sd')
        p(f's_mov_b32 s38, 0\n{ck}:')
        p(f'v_cmp_ne_u32 vcc, {sNONCE}, v{t+1}')
        p(f's_cmp_eq_u64 vcc, 0\ns_cbranch_scc1 {dn}')
        with p.cond(lambda c: False):
            p(f's_add_u32 s38, s38, 1\ns_cmp_lt_u32 s38, 0x40000\ns_cbranch_scc0 {lp}')
            p(f'buffer_load_dwordx2 {vr(t,2)}, v{V["stat_a"]}, {SWS}, 0 offen sc1')
            p(f's_waitcnt vmcnt(0)\ns_branch {ck}')
            p(f'{lp}:')
            tz = V.alloc('plz', 2)
            p(f'v_mov_b32 v{tz}, 0\nv_mov_b32 v{tz+1}, 0xdead\nglobal_store_dword v{tz}, v{tz+1}, {pDBG}')
            V.free('plz')
        p(f'{dn}:')
    def gemm1(self):
        p, V, A = self.p, self.V, self.A
        xf = A['xnf']; wa = V['w1a']
        acc = V.alloc('g1acc', 48, align=2); fr = V.alloc('g1fr', 32, align=2); tm = V.alloc('g1tm', 16, align=2); pk = V.alloc('g1pk', 16, align=2)
        ax = V.alloc('ax', 12, align=2); bx = V.alloc('bx', 4, align=2); sc = V.alloc('scl', 6, align=2); tq = V.alloc('axt', 4, align=2)
        p(f'''
        s_lshl_b32 s56, {sTT}, 2
        s_add_u32 s56, s56, {sWAVE}
        s_mul_i32 s35, s56, {86*1024}
        s_lshl_b32 s59, {sFB0}, 11
        s_add_u32 s35, s35, s59
        s_add_u32 s35, s35, {WS_ACT}
        ''')
        self.stat_issue()
        def rd(ks, blk, slot):
            b = fr + 4 * slot; base = wa + (blk >> 1); o = ks * 1024 + W1B * (blk & 1)
            p(f'ds_read_b64_tr_b16 {vr(b,2)}, v{base} offset:{o}')
            p(f'ds_read_b64_tr_b16 {vr(b+2,2)}, v{base} offset:{o+256}')
        w1b2 = self.w1b2
        with p.capture() as main:
            for ks in range(2): rd(ks, 0, 2 * (ks % 4)); rd(ks, 1, 2 * (ks % 4) + 1)
            for ks in range(32):
                if ks + 2 < 32: rd(ks + 2, 0, 2 * ((ks + 2) % 4)); rd(ks + 2, 1, 2 * ((ks + 2) % 4) + 1)
                c0 = '0' if ks == 0 else vr(acc, 16); c1 = '0' if ks == 0 else vr(acc + 16, 16)
                p(f'v_mfma_f32_32x32x16_bf16 {vr(acc,16)}, {vr(fr+8*(ks%4),4)}, {vr(xf+4*ks,4,"a")}, {c0}')
                p(f'v_mfma_f32_32x32x16_bf16 {vr(acc+16,16)}, {vr(fr+8*(ks%4)+4,4)}, {vr(xf+4*ks,4,"a")}, {c1}')
        fill = self.cap(self.ax_build, 0, ax, tq) + self.cap(self.ax_build, 1, ax + 4, tq)
        fill += self.cap(self.gemm_addr_setup)
        fill += self.cap(self.poll_issue, 'A2', V['us'] + 2, 64, 4)
        half = len(main) // 2
        lab = self.lab('b2a')
        p(f's_cmp_eq_u32 {sNBLK}, 2\ns_cbranch_scc1 {lab}')
        for g_ in w1b2[:4]: p.ins.extend(g_)
        p(f'{lab}:')
        nf = len(fill) // 2
        self.weave(main[:half], fill[:nf], start=2)
        lab = self.lab('b2b')
        p(f's_cmp_eq_u32 {sNBLK}, 2\ns_cbranch_scc1 {lab}')
        for g_ in w1b2[4:]: p.ins.extend(g_)
        p(f'{lab}:')
        self.weave(main[half:], fill[nf:])
        V.free('w1off')
        self.stat_check()
        self.stat_build()
        V.free('pl_S')
        p(f'v_mfma_f32_32x32x16_bf16 {vr(acc,16)}, {vr(ax,4)}, {vr(bx,4)}, {vr(acc,16)}')
        p(f'v_mfma_f32_32x32x16_bf16 {vr(acc+16,16)}, {vr(ax+4,4)}, {vr(bx,4)}, {vr(acc+16,16)}')
        self.stamp('g1p1')
        self.poll_check('A2', V['us'] + 2, 64, 4)
        ud = V.alloc('ud', 8, align=2)
        p(f'''
        s_lshl_b32 s56, {sWAVE}, 19
        s_lshl_b32 s57, {sBETA}, 5
        s_add_u32 s56, s56, s57
        s_add_u32 s56, s56, {WS_UBLK}
        buffer_load_dwordx4 {vr(ud,4)}, v{V['us']}, {SWS}, s56 offen sc1
        buffer_load_dwordx4 {vr(ud+4,4)}, v{V['us']}, {SWS}, s56 offen offset:16 sc1
        ''')
        p.wait_tag('w1dma2')
        p('s_barrier')
        self.fstamp('g1bar')
        self.w2_dma_setup()
        l2 = self.lab('g1n2'); l3 = self.lab('g1j')
        p(f's_cmp_eq_u32 {sNBLK}, 2\ns_cbranch_scc1 {l2}')
        with p.cond(lambda c: c['nblk'] == 3):
            accS = V.alloc('accS', 16, align=2); ones = V['ones']
            self.colsum(2, accS, fr + 16, ones)
            with p.capture() as main:
                for ks in range(3): rd(ks, 2, ks % 4)
                for ks in range(32):
                    if ks + 3 < 32: rd(ks + 3, 2, (ks + 3) % 4)
                    if ks % 2 == 0:
                        for i in self.cap(self.w2_dma, ks // 16, (ks // 2) % 8): p.ins.append(i)
                    c0 = '0' if ks == 0 else vr(acc + 32, 16)
                    p(f'v_mfma_f32_32x32x16_bf16 {vr(acc+32,16)}, {vr(fr+4*(ks%4),4)}, {vr(xf+4*ks,4,"a")}, {c0}')
            with p.capture() as fill:
                self.mish(acc, tm, pk, False); self.act_store(pk, 0)
                self.mish(acc + 16, tm, pk + 8, False); self.act_store(pk + 8, 1)
            self.colsum_write(2, accS)
            self.weave(main, fill)
            V.free('accS')
            self.fstamp('g1p2')
            p('s_waitcnt lgkmcnt(0)\ns_barrier')
            self.ax_build(2, ax + 8, tq)
            d2 = [self.cap(self.w2_dma, 2, k) for k in range(8)]
            for g_ in d2[:2]: p.ins.extend(g_)
            p(f'v_mfma_f32_32x32x16_bf16 {vr(acc+32,16)}, {vr(ax+8,4)}, {vr(bx,4)}, {vr(acc+32,16)}')
            m2 = self.cap(self.mish, acc + 32, tm, pk, True)
            p.merge(m2, d2[2:])
            self.act_store(pk, 2)
        p(f's_branch {l3}\n{l2}:')
        with p.cond(lambda c: c['nblk'] == 2):
            m0_ = self.cap(self.mish, acc, tm, pk, True)
            p.merge(m0_, [self.cap(self.w2_dma, 0, k) for k in range(8)])
            self.act_store(pk, 0)
            p('s_barrier')
            m1_ = self.cap(self.mish, acc + 16, tm, pk + 8, True)
            p.merge(m1_, [self.cap(self.w2_dma, 1, k) for k in range(8)])
            self.act_store(pk + 8, 1)
            for k in range(8): self.w2_dma(2, k)
        p(f'{l3}:')
        self.fstamp('g1mish')
        us = V['us']
        p(f'ds_write_b128 v{us+1}, {vr(ud,4)}')
        p(f'ds_write_b128 v{us+1}, {vr(ud+4,4)} offset:{U_CH}')
        p.wait_tag('w2dma1')
        p('s_waitcnt lgkmcnt(0)\ns_barrier')
        V.free('g1acc', 'g1fr', 'g1tm', 'g1pk', 'bia', 'w1a', 'ud', 'us', 'ax', 'bx', 'scl', 'axt', 'spa', 'stat_a', 'hmask', 'ones', 'csa')
        A.free('xnf')
        lab = self.lab('nw')
        p(f's_or_b32 s52, {sBETA}, {sWAVE}\ns_cmp_lg_u32 s52, 0\ns_cbranch_scc1 {lab}')
        with p.cond(lambda c: c['w'] == 0):
            p('s_mov_b32 s101, 0')
            self.flag_store('s101', WS_FLG)
        p(f'{lab}:')
    def w2_dma_setup(self):
        super().w2_dma_setup()
    def build(self):
        p, V, A = self.p, self.V, self.A
        self.entry()
        self.idle_setup()
        self.gemm1_addr_setup()
        hm = V.alloc('hmask'); ones = V.alloc('ones', 4, align=2); cs = V.alloc('csa', 2)
        p(f'v_add_u32 v{hm}, -1, v{V["hh"]}')
        for k in range(4): p(f'v_mov_b32 v{ones+k}, 0x3f803f80')
        p(f's_lshl_b32 s52, {sWAVE}, 13')
        p(f'v_add_u32 v{cs}, s52, v{V["w1a"]}\nv_add_u32 v{cs+1}, s52, v{V["w1a"]+1}')
        self.stamp('idle')
        self.ln()
        self.stamp('lnst')
        ks = self.cap(self.kgen_setup)
        p.merge(ks, self.w1second)
        with p.cond(lambda c: c['nblk'] == 3): self.w1b2 = self.w1_run(2)
        p('s_barrier')
        self.stamp('ksetup')
        main = self.kgen_values()
        n1 = len(main) * self.o.get('kx1', 5) // 10; n2 = len(main) * 8 // 10
        p.merge(main[:n1 // 2], self.x_dma_groups(0))
        p.ins.extend(main[n1 // 2:n1])
        self.x_read(0)
        p.ins.extend(main[n1:n1 + 12])
        p.wait_lgkm_tag('xrd0')
        p.merge(main[n1 + 12:n2], self.x_dma_groups(1))
        self.ln_flag()
        p.ins.extend(main[n2:])
        V.free('z', 'Z256', 'Cn', 'z2', 'z4', 'w', 'w2', 'w4', 'chains', 'cv', 'fa')
        self.x_read(1)
        self.x_next(2)
        self.stamp('kvals')
        p('s_waitcnt lgkmcnt(0)\ns_barrier')
        km = self.cap(self.kgen_mfma)
        p.ins.extend(km)
        self.x_read(2)
        self.x_next(3)
        self.stamp('kmfma')
        p('s_waitcnt lgkmcnt(0)\ns_barrier')
        if 'table' in self.dump: self.dump_lds(L_T, 2 * T_CH, WS_DBG + 0x100000)
        accS = V.alloc('accS', 32, align=2); sfr = V.alloc('sfr', 24, align=2)
        cs0 = self.cap(self.colsum, 0, accS, sfr, ones); cs1 = self.cap(self.colsum, 1, accS + 16, sfr + 12, ones)
        ex = self.cap(self.expand)
        ncommon = next(k for k, i in enumerate(ex) if i.kind == 'branch')
        grp = []
        for a_, b_ in zip(self.split_mfma(cs0), self.split_mfma(cs1)): grp += [a_, b_]
        p.merge(ex[:ncommon - 1], grp)
        p.ins.extend(ex[ncommon - 1:])
        self.colsum_write(0, accS); self.colsum_write(1, accS + 16)
        V.free('accS', 'sfr')
        self.x_read(3)
        V.free('xv', 'xr')
        p('s_waitcnt lgkmcnt(0)\ns_barrier')
        self.stamp('expand')
        if 'kc' in self.dump: self.dump_lds(L_KC, 8 * KC_STR, WS_DBG + 0x400000)
        self.gemm1()
        self.stamp('gemm1')
        self.conv()
        self.stamp('conv')
        self.gemm2()
        self.stamp('end')
        self.finish()
        return self.finalize()
    def split_mfma(self, ins):
        gs = []; cur = []
        for i in ins:
            cur.append(i)
            if i.kind == 'mfma': gs.append(cur); cur = []
        if cur: gs[-1] += cur
        return gs

if __name__ == '__main__':
    kern3.main(Gen4)
```

```python
import sys, math
from regs import vr
import kern2, kern3, kern4, kern5, kern6
from kern2 import *
from kern3 import *
from kern4 import *

class Gen7(kern6.Gen6):
    def __init__(self, **kw):
        super().__init__(**kw)
        self.o.setdefault('b1early', 4); self.o.setdefault('mtouch', 5)
    def w2_dma(self, r, k):
        p = self.p
        lo, hi = ROUNDS[r]
        sl = lo + k
        if sl >= hi: return
        p(f's_add_u32 m0, s42, {RREG[r] + 4096*k}')
        if sl < 40 and self.o.get('xor', 0):
            if k == 0: p(f's_add_u32 s50, s41, {lo << 14}')
            p(f's_xor_b32 s97, s51, {(sl & 7) << 14}')
            p(f's_add_u32 s97, s97, s50')
            p(f'buffer_load_dwordx4 v{self.V["w2a"]}, {SW2}, s97 offen lds', tag=f'w2dma{r}')
        else:
            p(f's_add_u32 s97, s41, {sl*16*1024}')
            p(f'buffer_load_dwordx4 v{self.V["w2a"]}, {SW2}, s97 offen lds', tag=f'w2dma{r}')
    def w2_dma_setup(self):
        super().w2_dma_setup()
        self.p(f's_lshl_b32 s51, {self.xor_src()}, 14')
    def xor_src(self): return sCG
    def act_setup(self):
        super().act_setup()
        if self.o.get('xor', 0):
            p, V = self.p, self.V
            av = V.alloc('actv', 8)
            for q in range(8):
                p(f's_xor_b32 s98, {self.xor_src()}, {q}\ns_lshl_b32 s98, s98, 10\nv_add_u32 v{av+q}, s98, v{V["l16"]}')
    def act_load(self, sl):
        if not self.o.get('xor', 0): return super().act_load(sl)
        p, V = self.p, self.V
        b = V['ring'] + 4 * (sl % NRING)
        if sl % 8 == 0 and sl: p('s_add_u32 s43, s43, 8192')
        if sl < 40: p(f'buffer_load_dwordx4 {vr(b,4)}, v{V["actv"]+(sl&7)}, {SWS}, s43 offen sc1')
        else: p(f'buffer_load_dwordx4 {vr(b,4)}, v{V["l16"]}, {SWS}, s43 offen offset:{1024*(sl-40)} sc1')
    def gemm1(self):
        p, V, A = self.p, self.V, self.A
        xf = A['xnf']; wa = V['w1a']
        acc = V.alloc('g1acc', 16, align=2); accS = V.alloc('accS', 16, align=2)
        fr = V.alloc('g1fr', 28, align=2); tm = V.alloc('g1tm', 16, align=2); pk = V.alloc('g1pk', 16, align=2)
        ax = V.alloc('ax', 4, align=2); bx = V.alloc('bx', 4, align=2); sc = V.alloc('scl', 6, align=2); tq = V.alloc('axt', 4, align=2)
        ones = V['ones']
        p(f'''
        s_lshl_b32 s56, {sTT}, 2
        s_add_u32 s56, s56, {sWAVE}
        s_mul_i32 s35, s56, {86*1024}
        s_lshl_b32 s59, {sFB0}, 11
        s_add_u32 s35, s35, s59
        s_add_u32 s35, s35, {WS_ACT}
        ''')
        self.stat_issue()
        def rd(ks, blk):
            b = fr + 4 * (ks % 4); base = wa + (blk >> 1); o = ks * 1024 + W1B * (blk & 1)
            p(f'ds_read_b64_tr_b16 {vr(b,2)}, v{base} offset:{o}')
            p(f'ds_read_b64_tr_b16 {vr(b+2,2)}, v{base} offset:{o+256}')
        def main(blk, side):
            k = 0
            for ks in range(32):
                c0 = '0' if ks == 0 else vr(acc, 16)
                p(f'v_mfma_f32_32x32x16_bf16 {vr(acc,16)}, {vr(fr+4*(ks%4),4)}, {vr(xf+4*ks,4,"a")}, {c0}')
                if ks + 3 < 32: rd(ks + 3, blk)
                tgt = len(side) * (ks + 1) // 30 if ks >= 1 else 0
                while k < min(tgt, len(side)): p.ins.extend(side[k]); k += 1
            while k < len(side): p.ins.extend(side[k]); k += 1
        def ax_reads(blk):
            p(f'ds_read_b128 {vr(tq,4)}, v{V["spa"]} offset:{512*blk}')
            p(f'ds_read_b32 v{ax+1}, v{V["bia"]} offset:{128*blk}')
        def ax_valu(blk):
            msk = V['hmask']
            p(f'''
            v_add_f32 v{tq}, v{tq}, v{tq+1}
            v_add_f32 v{tq+2}, v{tq+2}, v{tq+3}
            v_add_f32 v{tq}, v{tq}, v{tq+2}
            v_cvt_pk_bf16_f32 v{tq+1}, v{tq}, v{tq}
            v_lshlrev_b32 v{tq+1}, 16, v{tq+1}
            v_sub_f32 v{tq+1}, v{tq}, v{tq+1}
            v_cvt_pk_bf16_f32 v{ax}, v{tq}, v{tq+1}
            v_and_b32 v{ax}, v{ax}, v{msk}
            v_and_b32 v{ax+1}, v{ax+1}, v{msk}
            ''')
        def finish(blk, nxt, side):
            ax_reads(blk)
            if nxt is not None: self.colsum(nxt, accS, fr + 16, ones)
            ax_valu(blk)
            p(f'v_mfma_f32_32x32x16_bf16 {vr(acc,16)}, {vr(ax,4)}, {vr(bx,4)}, {vr(acc,16)}')
            if nxt is not None:
                for ks in range(3): rd(ks, nxt)
                self.colsum_write(nxt, accS)
            m = self.cap(self.mish, acc, tm, pk + 8 * (blk & 1), True)
            p.merge(m, side)
            self.act_store(pk + 8 * (blk & 1), blk, guard=(blk == 2))
        p(f'v_mov_b32 v{ax+2}, 0\nv_mov_b32 v{ax+3}, 0')
        self.colsum(0, accS, fr + 16, ones)
        for ks in range(3): rd(ks, 0)
        self.colsum_write(0, accS)
        late = self.late_setup
        a_, b_ = list(self._w1b1[self.o['b1early']:]) + self.w1b2[:4], [late[k:k + 3] for k in range(0, len(late), 3)]
        side = []
        while a_ or b_:
            if b_: side.append(b_.pop(0))
            if a_: side.append(a_.pop(0))
        side.append(self.cap(self.poll_issue, 'A2', V['us'] + 2, 64, 4))
        main(0, side)
        self.stat_check(); self.stat_build(); V.free('pl_S')
        p.wait_tag('w1dma1')
        p('s_waitcnt lgkmcnt(0)\ns_barrier')
        self.stamp('g1b0')
        self.w2_dma_setup()
        d = [[self.cap(self.w2_dma, r, k) for k in range(8)] for r in range(3)]
        finish(0, 1, self.w1b2[4:])
        self.poll_check('A2', V['us'] + 2, 64, 4)
        ud = V.alloc('ud', 8, align=2)
        p(f'''
        s_lshl_b32 s56, {sWAVE}, 19
        s_lshl_b32 s57, {sBETA}, 5
        s_add_u32 s56, s56, s57
        s_add_u32 s56, s56, {WS_UBLK}
        buffer_load_dwordx4 {vr(ud,4)}, v{V['us']}, {SWS}, s56 offen sc1
        buffer_load_dwordx4 {vr(ud+4,4)}, v{V['us']}, {SWS}, s56 offen offset:16 sc1
        ''')
        self.fstamp('g1f0')
        main(1, d[0])
        V.free('w1off')
        p.wait_tag('w1dma2')
        p('s_waitcnt lgkmcnt(0)\ns_barrier')
        self.fstamp('g1b1')
        us = V['us']
        finish(1, 2, [])
        p(f'ds_write_b128 v{us+1}, {vr(ud,4)}')
        p(f'ds_write_b128 v{us+1}, {vr(ud+4,4)} offset:{U_CH}')
        main(2, d[1])
        p('s_waitcnt lgkmcnt(0)\ns_barrier')
        self.fstamp('g1b2')
        finish(2, None, d[2])
        self.fstamp('g1mish')
        p.wait_tag('w2dma1')
        p('s_waitcnt lgkmcnt(0)\ns_barrier')
        V.free('g1acc', 'accS', 'g1fr', 'g1tm', 'g1pk', 'bia', 'w1a', 'ud', 'us', 'ax', 'bx', 'scl', 'axt', 'spa', 'stat_a', 'hmask', 'ones', 'csa')
        A.free('xnf')
        lab = self.lab('nw')
        p(f's_or_b32 s52, {sBETA}, {sWAVE}\ns_cmp_lg_u32 s52, 0\ns_cbranch_scc1 {lab}')
        with p.cond(lambda c: c['w'] == 0):
            p('s_mov_b32 s101, 0')
            self.flag_store('s101', WS_FLG)
        p(f'{lab}:')
    def x_epi_loads(self):
        p, V = self.p, self.V
        xd = V.alloc('g2xd', 8, align=2); g2 = V['g2a']
        p(f'''
        s_lshl_b32 s56, {sTG}, 16
        s_lshl_b32 s57, {sROLE}, 15
        s_add_u32 s56, s56, s57
        s_lshl_b32 s57, {sCG}, 7
        s_add_u32 s56, s56, s57
        s_lshl_b32 s57, {sCH}, 6
        s_add_u32 s39, s56, s57
        ''')
        return [self.cap(lambda q=q: p(f'buffer_load_dwordx2 {vr(xd+2*q,2)}, v{g2+7}, {SX}, s39 offen offset:{16*q}')) for q in range(4)]
    def act_store(self, pk, blk, guard=False):
        p = self.p
        lab = None
        if guard:
            lab = self.lab('ast')
            p(f's_cmp_eq_u32 {sNBLK}, 2\ns_cbranch_scc1 {lab}')
        with p.cond((lambda c: c['nblk'] == 3) if guard else (lambda c: True)):
            p(f's_add_u32 s39, s35, {2048*blk}')
            p(f'buffer_store_dwordx4 {vr(pk,4)}, v{self.V["l16"]}, {SWS}, s39 offen sc1', tag='actst')
            p(f'buffer_store_dwordx4 {vr(pk+4,4)}, v{self.V["l16"]}, {SWS}, s39 offen offset:1024 sc1', tag='actst')
        if lab: p(f'{lab}:')
    def conv_epilogue(self, acc):
        p, V, A = self.p, self.V, self.A
        ce = V['ce']; a0, a1 = acc, acc + 16
        self.poll_issue('B', V['g2a'], 16, 1)
        p.wait_tag('w2dma4'); p('s_barrier')
        self.fstamp('ce0')
        ex = V.alloc('cex', 16, align=2); uu = V.alloc('cuu', 8, align=2); t = V.alloc('cvt', 2)
        l0 = self.lab('cr0'); l1 = self.lab('cr1')
        p(f's_cmp_eq_u32 {sROLE}, 0\ns_cbranch_scc0 {l0}')
        with p.cond(lambda c: c['w'] % 2 == 0):
            for q in range(4): p(f'ds_write_b128 v{ce}, {vr(a1+4*q,4)} offset:{1024*q}')
        p(f's_branch {l1}\n{l0}:')
        with p.cond(lambda c: c['w'] % 2 == 1):
            for q in range(4): p(f'ds_write_b128 v{ce}, {vr(a0+4*q,4)} offset:{1024*q}')
            for r in range(0, 16, 2): p(f'v_pk_mul_f32 {vr(a0+r,2)}, {vr(a1+r,2)}, 1.0 op_sel_hi:[1,0]')
        p(f'{l1}:')
        for q in range(4): p(f'ds_read_b64 {vr(uu+2*q,2)}, v{ce+2} offset:{16*q}')
        npre = self.o.get('npre', 2)
        self._rl_done = 2 + npre
        self.poll_check('B', V['g2a'], 16, 1)
        self.stamp('pollB')
        self.act_setup()
        if self.o.get('atouch', 0):
            tv = V['touch']; tt = V.alloc('att')
            p(f'''
            s_mul_i32 s98, {sCG}, {43*128}
            s_add_u32 s98, s98, s43
            v_lshlrev_b32 v{tt}, 7, v1
            s_mov_b32 exec_hi, 0x7ff
            buffer_load_dword v{tv}, v{tt}, {SWS}, s98 offen sc1
            s_mov_b32 exec_hi, -1
            ''')
            V.free('att')
        for sl in range(self.o['alead']): self.act_load(sl)
        p('s_waitcnt lgkmcnt(0)\ns_barrier')
        for q in range(4): p(f'ds_read_b128 {vr(ex+4*q,4)}, v{ce+1} offset:{1024*q}')
        rl = []
        for r in range(2, 2 + npre): rl += self.w2_read_list(r)
        p(f's_mov_b32 s34, {sSIG}')
        with p.capture() as epi:
            for r in range(0, 16, 2): p(f'v_pk_add_f32 {vr(a0+r,2)}, {vr(a0+r,2)}, {vr(ex+r,2)}')
            for r in range(0, 16, 2): p(f'v_pk_mul_f32 {vr(a0+r,2)}, {vr(a0+r,2)}, s[34:35] op_sel_hi:[1,0]')
            for r in range(16):
                p(f'v_fma_mix_f32 v{a0+r}, v{uu+r//2}, {sDV}, v{a0+r} op_sel:[{r&1},0,0] op_sel_hi:[1,0,0]')
            for r in range(8): p(f'v_cvt_pk_bf16_f32 v{ex+r}, v{a0+2*r}, v{a0+2*r+1}')
            for q in range(4):
                p(f'v_xor_b32 v{t}, {16*q}, v{ce+4}')
                p(f'v_add_u32 v{t}, v{t}, v{ce+3}')
                p(f'ds_write_b64 v{t}, {vr(ex+2*q,2)}')
            p(f'ds_read_b128 {vr(ex+8,4)}, v{ce+5}')
            p(f'ds_read_b128 {vr(ex+12,4)}, v{ce+5} offset:1024')
            p(f'''
            s_lshl_b32 s58, {sBETA}, 1
            s_add_u32 s58, s58, {sCH}
            s_lshl_b32 s58, s58, 12
            s_lshl_b32 s59, {sROLE}, 11
            s_add_u32 s58, s58, s59
            s_add_u32 s58, s58, {WS_ST}
            ''')
            p(f'buffer_store_dwordx4 {vr(ex+8,4)}, v{V["l16"]}, {SWS}, s58 offen sc1', tag='stst')
            p(f'buffer_store_dwordx4 {vr(ex+12,4)}, v{V["l16"]}, {SWS}, s58 offen offset:1024 sc1', tag='stst')
        self.fstamp('ce1')
        p.ins.extend(epi)
        self.fstamp('ce2')
        for i in rl: p.ins.append(i)
        V.free('cvt', 'cacc', 'cex', 'cuu', 'ce')
    def gemm2(self):
        p, V, A = self.p, self.V, self.A
        g2 = V['g2a']; lead = self.o['alead']; ring = V['ring']
        acc = V.alloc('g2acc', 32, align=2)
        xd = V['g2xd']; sd = V.alloc('g2sd', 8, align=2)
        rl = []
        for r in range(self._rl_done, 6): rl += self.w2_read_list(r)
        sC1, sC2 = self.o.get('sC1', 34), self.o.get('sC2', 39)
        def extra(sl):
            if sl in (0, 8, 16, 24, 32, 38): self.fstamp(f'g2s{sl}')
            if sl == self.o.get('sF', 9): self.st_flag()
            if sl == sC1: self.poll_issue('C', g2 + 1, 64, 1)
            if sl == sC2:
                self.poll_check('C', g2 + 1, 64, 1)
                p(f'''
                s_lshl_b32 s56, {sCG}, 18
                s_lshl_b32 s57, {sTG}, 7
                s_add_u32 s56, s56, s57
                s_add_u32 s56, s56, {WS_ST}
                s_add_u32 s57, s56, {32*4096}
                buffer_load_dwordx4 {vr(sd,4)}, v{g2+4}, {SWS}, s56 offen sc1
                buffer_load_dwordx4 {vr(sd+4,4)}, v{g2+4}, {SWS}, s57 offen sc1
                ''')
        k = 0; per = 2
        for sl in range(43):
            extra(sl)
            if sl + lead < 43: self.act_load(sl + lead)
            b = ring + 4 * (sl % NRING)
            c0 = '0' if sl == 0 else vr(acc, 16); c1 = '0' if sl == 0 else vr(acc + 16, 16)
            p(f'v_mfma_f32_32x32x16_bf16 {vr(acc,16)}, {self.w2reg(sl,0)[0]}, {vr(b,4)}, {c0}')
            if k < len(rl): p.ins.append(rl[k]); k += 1
            p(f'v_mfma_f32_32x32x16_bf16 {vr(acc+16,16)}, {self.w2reg(sl,1)[0]}, {vr(b,4)}, {c1}')
            for _ in range(1 if self._rl_done >= 4 else self.o.get('jit', 2)):
                if k < len(rl): p.ins.append(rl[k]); k += 1
        assert k == len(rl), (k, len(rl))
        V.free('ring', 'w2v', 'w2a'); A.free('w2f')
        if self.o.get('xor', 0): V.free('actv')
        self.stamp('g2mm')
        self.gemm2_final(acc, xd, sd)
    def gemm2_final(self, acc, xd, sd):
        p, V, A = self.p, self.V, self.A
        g2 = V['g2a']
        ex = V.alloc('g2ex', 16, align=2)
        l0 = self.lab('g20'); l1 = self.lab('g21')
        p('s_barrier')
        p(f's_cmp_eq_u32 {sCH}, 0\ns_cbranch_scc0 {l0}')
        with p.cond(lambda c: c['w'] < 2):
            for q in range(4): p(f'ds_write_b128 v{g2+2}, {vr(acc+16+4*q,4)} offset:{1024*q}')
        p(f's_branch {l1}\n{l0}:')
        with p.cond(lambda c: c['w'] >= 2):
            for q in range(4): p(f'ds_write_b128 v{g2+2}, {vr(acc+4*q,4)} offset:{1024*q}')
            for r in range(0, 16, 2): p(f'v_pk_mul_f32 {vr(acc+r,2)}, {vr(acc+16+r,2)}, 1.0 op_sel_hi:[1,0]')
        p(f'{l1}:')
        p(f'ds_write_b128 v{g2+5}, {vr(sd,4)}')
        p(f'ds_write_b128 v{g2+5}, {vr(sd+4,4)} offset:{32*ST_STR}')
        p('s_waitcnt lgkmcnt(0)\ns_barrier')
        for q in range(4): p(f'ds_read_b128 {vr(ex+4*q,4)}, v{g2+3} offset:{1024*q}')
        for q in range(4): p(f'ds_read_b64_tr_b16 {vr(sd+2*q,2)}, v{g2+6} offset:{8*q*ST_STR}')
        p(f's_mov_b32 s34, {f32(-LOG2E)}')
        for r in range(0, 16, 2): p(f'v_pk_add_f32 {vr(acc+r,2)}, {vr(acc+r,2)}, {vr(ex+r,2)}')
        for r in range(0, 16, 2): p(f'v_pk_mul_f32 {vr(ex+r,2)}, {vr(acc+r,2)}, s[34:35] op_sel_hi:[1,0]')
        for r in range(16): p(f'v_exp_f32 v{ex+r}, v{ex+r}')
        for r in range(0, 16, 2): p(f'v_pk_add_f32 {vr(ex+r,2)}, {vr(ex+r,2)}, 1.0 op_sel_hi:[1,0]')
        for r in range(16): p(f'v_rcp_f32 v{ex+r}, v{ex+r}')
        for r in range(0, 16, 2): p(f'v_pk_mul_f32 {vr(acc+r,2)}, {vr(acc+r,2)}, {vr(ex+r,2)}')
        for r in range(16):
            if r % 2 == 0: p(f'v_lshlrev_b32 v{ex+r}, 16, v{sd+r//2}')
            else: p(f'v_and_b32 v{ex+r}, 0xffff0000, v{sd+r//2}')
        for r in range(0, 16, 2): p(f'v_pk_mul_f32 {vr(acc+r,2)}, {vr(acc+r,2)}, {vr(ex+r,2)}')
        for r in range(16):
            if r % 2 == 0: p(f'v_lshlrev_b32 v{ex+r}, 16, v{xd+r//2}')
            else: p(f'v_and_b32 v{ex+r}, 0xffff0000, v{xd+r//2}')
        for r in range(0, 16, 2): p(f'v_pk_add_f32 {vr(acc+r,2)}, {vr(acc+r,2)}, {vr(ex+r,2)}')
        for r in range(8):
            p(f'v_cvt_pk_bf16_f32 v{xd+r}, v{acc+2*r}, v{acc+2*r+1}')
            if r % 2 == 1:
                q = r // 2
                p(f'buffer_store_dwordx2 {vr(xd+2*q,2)}, v{g2+7}, {SOUT}, s39 offen offset:{16*q}')
        V.free('g2acc', 'g2ex', 'g2sd', 'g2xd', 'g2a')

if __name__ == '__main__':
    kern3.main(Gen7)
```

```python
import sys, math
from regs import vr
import kern2, kern3, kern4, kern5, kern6, kern7
from kern2 import *
from kern3 import *
from kern4 import *

class Gen8(kern7.Gen7):
    def __init__(self, **kw):
        super().__init__(**kw)
        self.o.setdefault('xlead', 10)
    def w1_run(self, blk, swap=False):
        gs = kern4.Gen4.w1_run(self, blk, swap and self.o.get('sib', 1) == 1)
        if swap:
            if blk == 0:
                self._w1b0 = gs
                return gs[:self.o.get('early', 2)]
            self._w1b1 = gs
        return gs
    def gemm1_addr_setup(self):
        kern3.Gen3.gemm1_addr_setup(self)
    def ln_hook(self):
        p, V = self.p, self.V
        lab = self.lab('bl')
        bv = V['biasv']; t = V.alloc('btl', 3)
        p(f's_cmp_lg_u32 {sWAVE}, 1\ns_cbranch_scc1 {lab}')
        with p.cond(lambda c: c['w'] == 1):
            p(f'''
            v_lshlrev_b32 v{t}, 16, v{bv}
            v_lshlrev_b32 v{t+1}, 16, v{bv+1}
            v_lshlrev_b32 v{t+2}, 2, v1
            v_add_u32 v{t+2}, {L_BIAS}, v{t+2}
            ds_write_b32 v{t+2}, v{t}
            s_mov_b32 exec_hi, 0
            ds_write_b32 v{t+2}, v{t+1} offset:256
            s_mov_b32 exec_hi, -1
            ''')
        p(f'{lab}:')
        V.free('btl', 'biasv')
    def bias_init(self, acc, blk): kern3.Gen3.bias_init(self, acc, blk)
    def mish(self, acc, tm, pk, packed): kern2.Gen.mish(self, acc, tm, pk, packed)
    def ln(self):
        p, V = self.p, self.V
        x = [V['x0'], V['x1']]
        d = [V.alloc('d0', 8), V.alloc('d1', 8)]
        s1 = V.alloc('s1', 2); s2 = V.alloc('s2', 2); tp = V.alloc('lnt', 8); ad = V.alloc('lnad', 2)
        l16 = V['l16']; nv = V['nonce']
        p(f'''
        s_lshl_b32 s52, {sWAVE}, 1
        s_mul_i32 s53, s52, {TBF_STR}
        s_add_u32 s53, s53, {L_TBF}
        s_mul_i32 s54, s52, {TH_STR}
        s_add_u32 s54, s54, {L_TH}
        v_add_u32 v{ad}, s53, v{l16}
        v_add_u32 v{ad+1}, s54, v{l16}
        ''')
        for k in range(2):
            for j in range(4):
                p(f'v_lshlrev_b32 v{d[k]+2*j}, 16, v{x[k]+j}')
                p(f'v_and_b32 v{d[k]+2*j+1}, 0xffff0000, v{x[k]+j}')
        p(f'v_readlane_b32 s52, v{d[0]}, 0')
        p(f'v_readlane_b32 s54, v{d[1]}, 0')
        p(f's_mov_b32 s53, s52\ns_mov_b32 s55, s54')
        for k in range(2):
            sp = 's[52:53]' if k == 0 else 's[54:55]'
            for j in range(4):
                p(f'v_pk_add_f32 {vr(d[k]+2*j,2)}, {vr(d[k]+2*j,2)}, {sp} neg_lo:[0,1] neg_hi:[0,1]')
        for k in range(2):
            a = tp + 4 * k
            p(f'v_pk_add_f32 {vr(a,2)}, {vr(d[k],2)}, {vr(d[k]+2,2)}')
            p(f'v_pk_add_f32 {vr(a+2,2)}, {vr(d[k]+4,2)}, {vr(d[k]+6,2)}')
        for k in range(2):
            a = tp + 4 * k
            p(f'v_pk_add_f32 {vr(a,2)}, {vr(a,2)}, {vr(a+2,2)}')
        for k in range(2):
            a = tp + 4 * k
            p(f'v_add_f32 v{s1+k}, v{a}, v{a+1}')
        for k in range(2):
            a = tp + 4 * k
            p(f'v_pk_mul_f32 {vr(a,2)}, {vr(d[k],2)}, {vr(d[k],2)}')
        for j in range(1, 4):
            for k in range(2):
                a = tp + 4 * k
                p(f'v_pk_fma_f32 {vr(a,2)}, {vr(d[k]+2*j,2)}, {vr(d[k]+2*j,2)}, {vr(a,2)}')
        for k in range(2):
            a = tp + 4 * k
            p(f'v_add_f32 v{s2+k}, v{a}, v{a+1}')
        regs = [s1, s1 + 1, s2, s2 + 1]
        for ctl in ('row_shr:1 row_mask:0xf bank_mask:0xf bound_ctrl:1', 'row_shr:2 row_mask:0xf bank_mask:0xf bound_ctrl:1',
                    'row_shr:4 row_mask:0xf bank_mask:0xf bound_ctrl:1', 'row_shr:8 row_mask:0xf bank_mask:0xf bound_ctrl:1',
                    'row_bcast:15 row_mask:0xa bank_mask:0xf', 'row_bcast:31 row_mask:0xc bank_mask:0xf'):
            for r in regs:
                p(f'v_add_f32_dpp v{r}, v{r}, v{r} {ctl}')
        for n, r in enumerate(regs):
            p(f'v_readlane_b32 s{56+n}, v{r}, 63')
        m = [tp, tp + 1]; va = [tp + 2, tp + 3]; t4 = tp + 4; t5 = tp + 5
        p(f's_mov_b32 s60, {f32(1.0 / 512)}')
        for k in range(2):
            p(f'v_mov_b32 v{m[k]}, s{56+k}')
            p(f'v_mov_b32 v{va[k]}, s{58+k}')
        p(f'v_pk_mul_f32 {vr(m[0],2)}, {vr(m[0],2)}, s[60:61] op_sel_hi:[1,0]')
        p(f'v_pk_mul_f32 {vr(va[0],2)}, {vr(va[0],2)}, s[60:61] op_sel_hi:[1,0]')
        p(f'v_pk_fma_f32 {vr(va[0],2)}, {vr(m[0],2)}, {vr(m[0],2)}, {vr(va[0],2)} neg_lo:[1,0,0] neg_hi:[1,0,0]')
        p(f'v_add_f32 v{t4}, s52, v{m[0]}')
        p(f'v_add_f32 v{t5}, s54, v{m[1]}')
        for k in range(2): p(f'v_max_f32 v{va[k]}, 0, v{va[k]}')
        p(f'v_cvt_pk_bf16_f32 v{t4}, v{t4}, v{t5}')
        p(f'v_cvt_pk_bf16_f32 v{t5}, v{va[0]}, v{va[1]}')
        p(f's_mov_b32 s60, {f32(1e-5)}')
        p(f'v_lshlrev_b32 v{va[0]}, 16, v{t5}')
        p(f'v_and_b32 v{va[1]}, 0xffff0000, v{t5}')
        p(f'v_lshlrev_b32 v{m[0]}, 16, v{t4}')
        p(f'v_pk_add_f32 {vr(va[0],2)}, {vr(va[0],2)}, s[60:61] op_sel_hi:[1,0]')
        p(f'v_and_b32 v{m[1]}, 0xffff0000, v{t4}')
        p(f'v_cvt_pk_bf16_f32 v{t5}, v{va[0]}, v{va[1]}')
        p(f'v_sub_f32 v{m[0]}, s52, v{m[0]}')
        p(f'v_lshlrev_b32 v{va[0]}, 16, v{t5}')
        p(f'v_and_b32 v{va[1]}, 0xffff0000, v{t5}')
        for k in range(2): p(f'v_sqrt_f32 v{va[k]}, v{va[k]}')
        p(f'v_sub_f32 v{m[1]}, s54, v{m[1]}')
        p(f'v_cvt_pk_bf16_f32 v{t5}, v{va[0]}, v{va[1]}')
        p(f'v_lshlrev_b32 v{va[0]}, 16, v{t5}')
        p(f'v_and_b32 v{va[1]}, 0xffff0000, v{t5}')
        for k in range(2): p(f'v_rcp_f32 v{va[k]}, v{va[k]}')
        p(f'v_pk_mul_f32 {vr(m[0],2)}, {vr(m[0],2)}, {vr(va[0],2)}')
        for k in range(2):
            for j in range(4):
                p(f'v_pk_fma_f32 {vr(d[k]+2*j,2)}, {vr(d[k]+2*j,2)}, {vr(va[0],2)}, {vr(m[0],2)} '
                  f'op_sel:[0,{k},{k}] op_sel_hi:[1,{k},{k}]')
        for k in range(2):
            for j in range(4):
                p(f'v_cvt_pk_bf16_f32 v{x[k]+j}, v{d[k]+2*j}, v{d[k]+2*j+1}')
            p(f'ds_write_b128 v{ad}, {vr(x[k],4)} offset:{k*TBF_STR}')
        for k in range(2):
            for j in range(4):
                p(f'v_cvt_pk_f16_f32 v{tp+4*k+j}, v{d[k]+2*j}, v{d[k]+2*j+1}')
            p(f'ds_write_b128 v{ad+1}, {vr(tp+4*k,4)} offset:{k*TH_STR}')
        self.ln_hook()
        p('s_waitcnt lgkmcnt(0)\ns_barrier')
        V.free('d0', 'd1', 's1', 's2', 'lnt', 'lnad', 'x0', 'x1')
        self.stamp('ln')
        a = V.alloc('lsa', 4); dt = V.alloc('lsd', 16, align=2)
        l1 = self.lab('ln1'); l2 = self.lab('ln2')
        p(f's_cmp_ge_u32 {sWAVE}, 2\ns_cbranch_scc1 {l1}')
        with p.cond(lambda c: c['w'] < 2):
            p(f'''
            v_and_b32 v{a}, 7, v0
            v_lshrrev_b32 v{a+1}, 3, v0
            v_mul_u32_u24 v{a+2}, {TBF_STR}, v{a}
            v_lshlrev_b32 v{a+3}, 4, v{a+1}
            v_add_u32 v{a+2}, v{a+2}, v{a+3}
            v_add_u32 v{a+2}, {L_TBF}, v{a+2}
            ''')
            for k in range(4):
                p(f'ds_read_b128 {vr(dt+4*k,4)}, v{a+2} offset:{256*k}')
            p(f'''
            v_lshrrev_b32 v{a+3}, 1, v{a+1}
            v_lshlrev_b32 v{a+3}, 10, v{a+3}
            v_and_b32 v{a+1}, 1, v{a+1}
            v_lshlrev_b32 v{a+1}, 9, v{a+1}
            v_add_u32 v{a+3}, v{a+3}, v{a+1}
            v_lshlrev_b32 v{a}, 4, v{a}
            v_add_u32 v{a+3}, v{a+3}, v{a}
            s_lshr_b32 s52, {sBETA}, 2
            s_lshl_b32 s52, s52, 15
            s_and_b32 s53, {sBETA}, 3
            s_lshl_b32 s53, s53, 7
            s_add_u32 s52, s52, s53
            s_add_u32 s52, s52, {WS_XNF}
            ''')
            for k in range(4):
                if k: p(f's_add_u32 s52, s52, 8192')
                p(f'buffer_store_dwordx4 {vr(dt+4*k,4)}, v{a+3}, {SWS}, s52 offen sc1', tag='lnst')
        p(f's_branch {l2}\n{l1}:')
        with p.cond(lambda c: c['w'] >= 2):
            p(f'''
            v_bfe_u32 v{a}, v1, 2, 2
            v_mul_u32_u24 v{a}, {TH_STR}, v{a}
            v_lshrrev_b32 v{a+1}, 4, v1
            v_lshlrev_b32 v{a+1}, 5, v{a+1}
            v_add_u32 v{a}, v{a}, v{a+1}
            v_and_b32 v{a+1}, 3, v1
            v_lshlrev_b32 v{a+1}, 3, v{a+1}
            v_add_u32 v{a}, v{a}, v{a+1}
            s_lshl_b32 s52, {sROLE}, 9
            s_add_u32 s52, s52, {L_TH}
            v_add_u32 v{a}, s52, v{a}
            ''')
            for it in range(4):
                p(f'ds_read_b64_tr_b16 {vr(dt+4*it,2)}, v{a} offset:{128*it}')
                p(f'ds_read_b64_tr_b16 {vr(dt+4*it+2,2)}, v{a} offset:{128*it+4*TH_STR}')
            p(f'''
            s_lshl_b32 s52, {sBETA}, 13
            s_lshl_b32 s53, {sROLE}, 12
            s_add_u32 s52, s52, s53
            s_add_u32 s52, s52, {WS_UBLK}
            ''')
            for it in range(4):
                p(f'buffer_store_dwordx4 {vr(dt+4*it,4)}, v{l16}, {SWS}, s52 offen offset:{1024*it} sc1', tag='lnst')
        p(f'{l2}:')
        V.free('lsa', 'lsd')
        p(f'v_add_u32 v{nv}, 1, v{nv}')
        p(f'v_readfirstlane_b32 {sNONCE}, v{nv}')
        V.free('nonce')
    def ln_flag(self):
        p = self.p
        p.wait_tag('lnst')
        p(f'''
        s_lshl_b32 s101, {sBETA}, 4
        s_lshl_b32 s100, {sROLE}, 3
        s_add_u32 s101, s101, s100
        s_lshl_b32 s100, {sCH}, 12
        s_mul_i32 s100, s100, 5
        s_add_u32 s101, s101, s100
        ''')
        self.flag_store('s101', FL_A)
    def gemm1(self):
        p, V, A = self.p, self.V, self.A
        xf = A['xnf']; wa = V['w1a']; xlead = self.o['xlead']
        acc = V.alloc('g1acc', 48, align=2); fr = V.alloc('g1fr', 32, align=2); tm = V.alloc('g1tm', 16, align=2); pk = V.alloc('g1pk', 16, align=2)
        p(f'''
        s_mov_b32 s34, {f32(LOG2E)}
        s_lshl_b32 s56, {sTT}, 2
        s_add_u32 s56, s56, {sWAVE}
        s_mul_i32 s35, s56, {86*1024}
        s_lshl_b32 s59, {sFB0}, 11
        s_add_u32 s35, s35, s59
        s_add_u32 s35, s35, {WS_ACT}
        ''')
        self.bias_init(acc, 0); self.bias_init(acc + 16, 1); self.bias_init(acc + 32, 2)
        def rd(ks, blk, slot):
            b = fr + 4 * slot; base = wa + (blk >> 1); o = ks * 1024 + W1B * (blk & 1)
            p(f'ds_read_b64_tr_b16 {vr(b,2)}, v{base} offset:{o}')
            p(f'ds_read_b64_tr_b16 {vr(b+2,2)}, v{base} offset:{o+256}')
        w1b2 = self.w1b2
        for ks in range(2): rd(ks, 0, 2 * (ks % 4)); rd(ks, 1, 2 * (ks % 4) + 1)
        for ks in range(32):
            if ks + xlead < 32: self.xn_load(ks + xlead)
            p(f'v_mfma_f32_32x32x16_bf16 {vr(acc,16)}, {vr(fr+8*(ks%4),4)}, {vr(xf+4*ks,4,"a")}, {vr(acc,16)}')
            if ks + 2 < 32: rd(ks + 2, 0, 2 * ((ks + 2) % 4))
            p(f'v_mfma_f32_32x32x16_bf16 {vr(acc+16,16)}, {vr(fr+8*(ks%4)+4,4)}, {vr(xf+4*ks,4,"a")}, {vr(acc+16,16)}')
            if ks + 2 < 32: rd(ks + 2, 1, 2 * ((ks + 2) % 4) + 1)
            if ks >= 22 and ks < 30: p.ins.extend(w1b2[ks - 22])
            if ks == 21: self.poll_issue('A2', V['us'] + 2, 64, 4)
        V.free('w1off')
        self.stamp('g1p1')
        self.poll_check('A2', V['us'] + 2, 64, 4)
        self.fstamp('a2')
        ud = V.alloc('ud', 8, align=2)
        p(f'''
        s_lshl_b32 s56, {sWAVE}, 19
        s_lshl_b32 s57, {sBETA}, 5
        s_add_u32 s56, s56, s57
        s_add_u32 s56, s56, {WS_UBLK}
        buffer_load_dwordx4 {vr(ud,4)}, v{V['us']}, {SWS}, s56 offen sc1
        buffer_load_dwordx4 {vr(ud+4,4)}, v{V['us']}, {SWS}, s56 offen offset:16 sc1
        s_barrier
        ''')
        self.fstamp('bar1')
        self.w2_dma_setup()
        d = [[self.cap(self.w2_dma, r, k) for k in range(8)] for r in range(3)]
        m0_ = self.cap(self.mish, acc, tm, pk, True); p.merge(m0_, d[0][:4]); self.fstamp('m0'); self.act_store(pk, 0); self.fstamp('st0')
        m1_ = self.cap(self.mish, acc + 16, tm, pk + 8, True); p.merge(m1_, d[0][4:]); self.fstamp('m1'); self.act_store(pk + 8, 1)
        self.fstamp('g1m01')
        p.wait_tag('w1dma2')
        p('s_barrier')
        self.fstamp('bar2')
        for ks in range(3): rd(ks, 2, ks % 4)
        us = V['us']
        p(f'ds_write_b128 v{us+1}, {vr(ud,4)}')
        p(f'ds_write_b128 v{us+1}, {vr(ud+4,4)} offset:{U_CH}')
        for ks in range(32):
            p(f'v_mfma_f32_32x32x16_bf16 {vr(acc+32,16)}, {vr(fr+4*(ks%4),4)}, {vr(xf+4*ks,4,"a")}, {vr(acc+32,16)}')
            if ks + 3 < 32: rd(ks + 3, 2, (ks + 3) % 4)
            if ks % 4 == 1: p.ins.extend(d[1][ks // 4])
        self.fstamp('g1p2')
        p('s_barrier')
        m2 = self.cap(self.mish, acc + 32, tm, pk, True); p.merge(m2, d[2]); self.act_store(pk, 2, guard=True)
        self.fstamp('g1mish')
        p.wait_tag('w2dma1')
        p('s_waitcnt lgkmcnt(0)\ns_barrier')
        V.free('g1acc', 'g1fr', 'g1tm', 'g1pk', 'bia', 'w1a', 'ud', 'us')
        A.free('xnf')
        lab = self.lab('nw')
        p(f's_or_b32 s52, {sBETA}, {sWAVE}\ns_cmp_lg_u32 s52, 0\ns_cbranch_scc1 {lab}')
        with p.cond(lambda c: c['w'] == 0):
            p('s_mov_b32 s101, 0')
            self.flag_store('s101', WS_FLG)
        p(f'{lab}:')
    def build(self):
        p, V, A = self.p, self.V, self.A
        self.entry()
        V.free('xv')
        w1rest = self._w1b0[self.o.get('early', 2):]
        self.idle_setup()
        self.gemm1_addr_setup()
        late = self.cap(self.gemm_addr_setup)
        p.ins.extend(late); self.late_setup = []
        p(f'v_add_u32 v{V["us"]+2}, {5*4096}, v{V["us"]+2}')
        self.stamp('idle')
        self.ln()
        self.stamp('lnst')
        ks = self.cap(self.kgen_setup)
        q = w1rest + self._w1b1
        n_ks, n_kv1, n_kv2 = self.o.get('n_ks', 2), self.o.get('n_kv1', 4), self.o.get('n_kv2', 4)
        p.merge(ks, q[:n_ks]); q = q[n_ks:]
        self.w1b2 = self.w1_run(2)
        p('s_barrier')
        self.stamp('ksetup')
        main = self.kgen_values()
        n = len(main); nf = n * self.o.get('kflag', 55) // 100
        p.merge(main[:nf], q[:n_kv1]); q = q[n_kv1:]
        self.ln_flag()
        p.merge(main[nf:], q[:n_kv2]); q = q[n_kv2:]
        V.free('z', 'Z256', 'Cn', 'z2', 'z4', 'w', 'w2', 'w4', 'chains', 'cv', 'fa')
        self.stamp('kvals')
        p('s_waitcnt lgkmcnt(0)\ns_barrier')
        km = self.cap(self.kgen_mfma)
        p.merge(km, q, 2, len(km) - 12)
        self.poll_issue('A1', V['pA1'], 8, 1)
        self.stamp('kmfma')
        p('s_waitcnt lgkmcnt(0)\ns_barrier')
        ex = self.cap(self.expand)
        ncommon = next(k for k, i in enumerate(ex) if i.kind == 'branch')
        h1 = self.o.get('xh1', 40)
        p.ins.extend(ex[:h1])
        self.poll_check('A1', V['pA1'], 8, 1)
        V.free('pA1')
        self.stamp('pollA1')
        self.xn_setup()
        p.merge(ex[h1:ncommon - 1], [self.cap(self.xn_load, k) for k in range(self.o['xlead'])])
        p.ins.extend(ex[ncommon - 1:])
        p('s_waitcnt lgkmcnt(0)\ns_barrier')
        self.stamp('expand')
        self.gemm1()
        self.stamp('gemm1')
        self.conv()
        self.stamp('conv')
        self.gemm2()
        self.stamp('end')
        self.finish()
        return self.finalize()

if __name__ == '__main__':
    kern3.main(Gen8)
```

```python
import sys, math
from regs import vr
import kern2, kern3
from kern2 import *
from kern3 import *
import pads as PADS

WS_STAT = WS_FLG + 0x8000
L_XS = L_W + 2 * W1B
L_SP = L_X
L_BIAS16 = L_MISC + 64

class Gen4(kern3.Gen3):
    def entry(self):
        p, V = self.p, self.V
        for nm, cnt in (('l16', 1), ('n31', 1), ('hh', 1), ('cA', 3), ('cB', 2), ('ce', 6), ('us', 3), ('w2a', 7), ('g2a', 8)): V.prealloc(nm, cnt, align=1)
        x0 = V.alloc('x0', 4); x1 = V.alloc('x1', 4)
        l16 = V.alloc('l16'); t = V.alloc('t0'); t2 = V.alloc('t1')
        if self.stamps: p('s_memrealtime s[98:99]')
        p(f'''
        s_load_dwordx16 s[64:79], s[0:1], 0
        s_load_dwordx8 s[80:87], s[0:1], 64
        s_load_dwordx4 s[88:91], s[0:1], 96
        s_cmp_ge_u32 s2, 256
        s_cbranch_scc1 L_end
        v_and_b32 v1, 63, v0
        v_lshrrev_b32 v2, 6, v0
        s_and_b32 s52, s2, 7
        s_lshr_b32 s53, s2, 3
        v_readfirstlane_b32 {sWAVE}, v2
        s_lshl_b32 {sBETA}, s52, 5
        s_add_u32 {sBETA}, {sBETA}, s53
        v_lshlrev_b32 v{l16}, 4, v1
        s_lshl_b32 s52, {sBETA}, 3
        s_lshl_b32 s53, {sWAVE}, 1
        s_add_u32 s52, s52, s53
        s_lshl_b32 s52, s52, 10
        s_mov_b32 s10, 0x200000
        s_mov_b32 s11, 0x20000
        s_lshr_b32 {sCH}, {sWAVE}, 1
        s_and_b32 {sROLE}, {sWAVE}, 1
        s_lshl_b32 s54, {sBETA}, 1
        s_add_u32 s54, s54, {sCH}
        s_lshl_b32 s54, s54, 8
        v_lshlrev_b32 v{t2}, 2, v1
        v_add_u32 v{t}, s54, v{t2}
        s_lshl_b32 s58, {sBETA}, 2
        s_and_b32 s54, {sBETA}, 15
        s_mul_i32 {sFB0}, s54, 3
        s_lshl_b32 s55, s54, 1
        s_add_u32 s55, s55, 11
        s_cmp_lt_u32 s54, 11
        s_cselect_b32 {sFB0}, {sFB0}, s55
        s_cselect_b32 {sNBLK}, 3, 2
        s_lshr_b32 {sTT}, {sBETA}, 4
        s_waitcnt lgkmcnt(0)
        s_mov_b32 s8, s64
        s_mov_b32 s9, s65
        ''')
        if self.stamps: p('s_mov_b32 s36, s98')
        p(f'buffer_load_dwordx4 {vr(x0,4)}, v{l16}, {SX}, s52 offen')
        p(f'buffer_load_dwordx4 {vr(x1,4)}, v{l16}, {SX}, s52 offen offset:1024')
        pr = V.alloc('par', 4); nv = V.alloc('nonce'); bv = V.alloc('biasv', 2, align=1)
        if self.o.get('xfirst'):
            p('s_memtime s[100:101]\ns_waitcnt vmcnt(0)\ns_memtime s[60:61]\ns_waitcnt lgkmcnt(0)\ns_mov_b32 s101, s60')
        p(f'''
        global_load_dword v{pr}, v{t}, {pLOGA}
        global_load_dword v{pr+1}, v{t}, {pAIM}
        global_load_dword v{pr+2}, v{t}, {pCRE}
        global_load_dword v{pr+3}, v{t}, {pCIM}
        s_load_dword {sLDT}, {pLOGDT}, s58
        s_load_dword {sDSK}, {pDSK}, s58
        s_mov_b32 s20, s90
        s_mov_b32 s21, s91
        s_mov_b32 s22, {WS_BYTES}
        s_mov_b32 s23, 0x20000
        v_mov_b32 v{t}, {WS_FLG}
        buffer_load_dword v{nv}, v{t}, {SWS}, 0 offen sc1
        s_mov_b32 s28, s82
        s_mov_b32 s29, s83
        s_mov_b32 s30, {1376*2}
        s_mov_b32 s31, 0x20000
        ''')
        xv = V.alloc('xv', 4)
        p(f'''
        v_lshrrev_b32 v{t}, 3, v1
        v_lshlrev_b32 v{t}, 10, v{t}
        v_lshrrev_b32 v{xv}, 4, v1
        v_and_b32 v{xv+1}, 7, v1
        v_xor_b32 v{xv}, v{xv}, v{xv+1}
        v_lshlrev_b32 v{xv}, 4, v{xv}
        v_add_u32 v{xv}, v{xv}, v{t}
        v_xor_b32 v{xv+1}, 64, v{xv}
        v_add_u32 v{xv+1}, {8192-1024}, v{xv+1}
        v_add_u32 v{xv+2}, {2*(8192-1024)}, v{xv}
        v_add_u32 v{xv+3}, {2*(8192-1024)}, v{xv+1}
        s_lshl_b32 s40, {sTT}, 2
        s_add_u32 s40, s40, {sWAVE}
        s_lshl_b32 s40, s40, 15
        s_lshl_b32 s41, {sWAVE}, 13
        s_add_u32 s41, s41, {L_XS}
        ''')
        vo = V.alloc('w1off', 4)
        p(f'''
        s_mov_b32 s12, s80
        s_mov_b32 s13, s81
        s_mov_b32 s14, {512*1376*2}
        s_mov_b32 s15, 0x20000
        s_mov_b32 s16, s84
        s_mov_b32 s17, s85
        s_mov_b32 s18, {512*1376*2}
        s_mov_b32 s19, 0x20000
        s_mov_b32 s24, s86
        s_mov_b32 s25, s87
        s_mov_b32 s26, 0x200000
        s_mov_b32 s27, 0x20000
        s_lshr_b32 {sTG}, {sBETA}, 3
        s_and_b32 {sCG}, {sBETA}, 7
        ''')
        tv = V.alloc('touch', 2)
        l1 = self.lab('e1'); l2 = self.lab('e2'); l3 = self.lab('e3'); le = self.lab('ee')
        p(f's_cmp_eq_u32 {sWAVE}, 1\ns_cbranch_scc0 {l1}')
        with p.cond(lambda c: c['w'] == 1):
            p(f's_lshl_b32 s52, {sFB0}, 6\nv_lshlrev_b32 v{t}, 1, v1')
            p(f'buffer_load_ushort v{bv}, v{t}, {SB1}, s52 offen')
            p(f'buffer_load_ushort v{bv+1}, v{t}, {SB1}, s52 offen offset:128')
        p(f's_branch {le}\n{l1}:')
        if True:
            p(f's_cmp_eq_u32 {sWAVE}, 3\ns_cbranch_scc1 {l3}')
            p(f's_mul_i32 s52, s2, 5504\nv_lshlrev_b32 v{t}, 7, v1\ns_mov_b32 exec_hi, 0x7ff')
            p(f's_cmp_eq_u32 {sWAVE}, 0\ns_cbranch_scc0 {l2}')
            with p.cond(lambda c: c['w'] == 0):
                if self.o.get('mtouch', 4) & 1: p(f'buffer_load_dword v{tv}, v{t}, {SW1}, s52 offen')
            p(f's_mov_b32 exec_hi, -1\ns_branch {le}\n{l2}:')
            with p.cond(lambda c: c['w'] == 2):
                if self.o.get('mtouch', 4) & 4: p(f'buffer_load_dword v{tv}, v{t}, {SW2}, s52 offen')
            p(f's_mov_b32 exec_hi, -1\ns_branch {le}\n{l3}:')
            with p.cond(lambda c: c['w'] == 3):
                if self.o.get('mtouch', 4) & 2:
                    p(f'v_lshlrev_b32 v{t}, 21, v1\ns_mov_b64 exec, 0x3f')
                    p(f'buffer_load_dword v{tv}, v{t}, {SWS}, 0 offen')
                    p(f's_mov_b64 exec, 1')
                    p(f'buffer_load_dword v{tv+1}, v{t}, {SOUT}, 0 offen')
                    p(f's_mov_b64 exec, -1')
        p(f'{le}:')
        if self.o.get('l2touch', 0):
            tw = V.alloc('touch1', 2)
            p(f'''
            s_lshr_b32 s52, s2, 3
            s_mul_i32 s52, s52, {344*128}
            s_mul_i32 s53, {sWAVE}, {86*128}
            s_add_u32 s52, s52, s53
            v_lshlrev_b32 v{t}, 7, v1
            buffer_load_dword v{tw}, v{t}, {SW1}, s52 offen
            s_add_u32 s52, s52, 8192
            s_mov_b32 exec_lo, 0x3fffff
            s_mov_b32 exec_hi, 0
            buffer_load_dword v{tw+1}, v{t}, {SW1}, s52 offen
            s_mov_b64 exec, -1
            ''')
        p(f'''
        v_lshrrev_b32 v{t}, 2, v1
        v_mul_u32_u24 v{t}, 2752, v{t}
        v_and_b32 v{vo}, 3, v1
        v_lshlrev_b32 v{vo}, 4, v{vo}
        v_add_u32 v{vo}, v{vo}, v{t}
        v_add_u32 v{vo+1}, {16*2752-1024}, v{vo}
        v_add_u32 v{vo+2}, {2*(16*2752-1024)}, v{vo}
        v_add_u32 v{vo+3}, {3*(16*2752-1024)}, v{vo}
        s_mov_b64 {pDBG}, s[88:89]
        ''')
        self.w1first = self.w1_run(0, swap=True); self.w1second = self.w1_run(1, swap=True)
        for g_ in self.w1first: p.ins.extend(g_)
        V.free('t0', 't1')
        if self.o.get('xfirst') and getattr(self, 'only', None) is not None:
            for nm, r in (('x_issued', 's100'), ('x_arrived', 's101')):
                k = len(self.stamp_names); self.stamp_names.append(nm); self.nstamp += 1
                p(f's_mov_b32 s{64+2*k}, {r}')
        self.stamp('start')
        if self.stamps: p('v_writelane_b32 v255, s36, 62')
        if self.o['pads']:
            p('s_mov_b64 exec, 0\n;WARM\nL_warm_ret:\ns_mov_b64 exec, -1')
        p('s_branch L_main\n.p2align 12\nL_main:')
    def x_dma(self, r):
        p, xv = self.p, self.V['xv']
        for k in range(2):
            c = 2 * r + k
            p(f's_add_u32 m0, s41, {4096*k}')
            p(f's_add_u32 s42, s40, {128*c}')
            for j in range(4):
                p(f'buffer_load_dwordx4 v{xv+j}, {SX}, s42 offen offset:{1024*j} lds', tag=f'xdma{r}')
    def x_dma_groups(self, r):
        ins = self.cap(self.x_dma, r)
        gs = []; cur = []
        for i in ins:
            cur.append(i)
            if i.kind == 'dma': gs.append(cur); cur = []
        return gs
    def x_read(self, r):
        p, V, A = self.p, self.V, self.A
        xf, xr = A['xnf'], V['xr']
        p.wait_tag(f'xdma{r}')
        for k in range(2):
            for j in range(4):
                ks = 8 * r + 4 * k + j
                p(f'ds_read_b128 {vr(xf+4*ks,4,"a")}, v{xr+j} offset:{4096*k}', tag=f'xrd{r}')
    def x_next(self, r):
        self.p.wait_lgkm_tag(f'xrd{r-1}')
        self.x_dma(r)
    def gemm1_addr_setup(self):
        p, V, A = self.p, self.V, self.A
        A.alloc('xnf', 128, align=4, at=0)
        t = V.alloc('g1st', 3); wa = V.alloc('w1a', 2); xr = V.alloc('xr', 4); sa = V.alloc('stat_a'); sp = V.alloc('spa', 2); ba = V.alloc('bia')
        hh, n31 = V['hh'], V['n31']
        p(f'''
        v_lshlrev_b32 v{t}, 3, v{hh}
        v_bfe_u32 v{t+1}, v1, 2, 2
        v_add_u32 v{t}, v{t}, v{t+1}
        v_lshlrev_b32 v{t}, 6, v{t}
        v_bfe_u32 v{t+1}, v1, 4, 1
        v_lshlrev_b32 v{t+1}, 5, v{t+1}
        v_add_u32 v{t}, v{t}, v{t+1}
        v_and_b32 v{t+1}, 3, v1
        v_lshlrev_b32 v{t+1}, 3, v{t+1}
        v_add_u32 v{wa}, v{t}, v{t+1}
        v_add_u32 v{wa}, {L_W}, v{wa}
        v_add_u32 v{wa+1}, {2*W1B}, v{wa}
        v_bfe_u32 v{t}, v1, 1, 3
        v_xor_b32 v{t}, v{t}, v{hh}
        v_lshlrev_b32 v{t+1}, 7, v{n31}
        v_add_u32 v{t+1}, s41, v{t+1}
        ''')
        for j in range(4):
            p(f'v_xor_b32 v{t+2}, {2*j}, v{t}\nv_lshlrev_b32 v{t+2}, 4, v{t+2}\nv_add_u32 v{xr+j}, v{t+1}, v{t+2}')
        p(f'''
        s_lshl_b32 s56, {sTT}, 2
        s_add_u32 s56, s56, {sWAVE}
        s_lshl_b32 s56, s56, 8
        s_add_u32 s56, s56, {WS_STAT}
        v_lshlrev_b32 v{t}, 3, v{n31}
        v_add_u32 v{sa}, s56, v{t}
        v_lshlrev_b32 v{t}, 4, v{n31}
        v_add_u32 v{sp}, {L_SP}, v{t}
        s_lshl_b32 s56, {sWAVE}, 2
        v_add_u32 v{sp+1}, s56, v{sp}
        v_lshlrev_b32 v{t}, 2, v{n31}
        v_add_u32 v{ba}, {L_BIAS16}, v{t}
        ''')
        V.free('g1st')
    def ln_hook(self):
        p, V = self.p, self.V
        lab = self.lab('bl')
        bv = V['biasv']; t = V.alloc('btl', 3)
        p(f's_cmp_lg_u32 {sWAVE}, 1\ns_cbranch_scc1 {lab}')
        with p.cond(lambda c: c['w'] == 1):
            p(f'''
            v_lshlrev_b32 v{t+2}, 2, v1
            v_add_u32 v{t+2}, {L_BIAS16}, v{t+2}
            ds_write_b32 v{t+2}, v{bv}
            s_mov_b32 exec_hi, 0
            ds_write_b32 v{t+2}, v{bv+1} offset:256
            s_mov_b32 exec_hi, -1
            ''')
        p(f'{lab}:')
        V.free('btl', 'biasv')
    def ln(self):
        p, V = self.p, self.V
        x = [V['x0'], V['x1']]
        d = [V.alloc('d0', 8), V.alloc('d1', 8)]
        s1 = V.alloc('s1', 2); s2 = V.alloc('s2', 2); tp = V.alloc('lnt', 8); ad = V.alloc('lnad', 2); sg = V.alloc('lnsg', 4, align=2)
        l16 = V['l16']; nv = V['nonce']
        p(f'''
        s_lshl_b32 s52, {sWAVE}, 1
        s_mul_i32 s54, s52, {TH_STR}
        s_add_u32 s54, s54, {L_TH}
        v_add_u32 v{ad+1}, s54, v{l16}
        s_lshl_b32 s53, {sBETA}, 3
        s_add_u32 s53, s53, s52
        s_lshl_b32 s53, s53, 3
        s_add_u32 s53, s53, {WS_STAT}
        v_lshlrev_b32 v{ad}, 3, v1
        v_add_u32 v{ad}, s53, v{ad}
        v_lshlrev_b32 v{sg+2}, 4, v1
        ''')
        for k in range(2):
            for j in range(4):
                p(f'v_lshlrev_b32 v{d[k]+2*j}, 16, v{x[k]+j}')
                p(f'v_and_b32 v{d[k]+2*j+1}, 0xffff0000, v{x[k]+j}')
        p(f'v_readlane_b32 s52, v{d[0]}, 0')
        p(f'v_readlane_b32 s54, v{d[1]}, 0')
        p(f's_mov_b32 s53, s52\ns_mov_b32 s55, s54')
        for k in range(2):
            sp = 's[52:53]' if k == 0 else 's[54:55]'
            for j in range(4):
                p(f'v_pk_add_f32 {vr(d[k]+2*j,2)}, {vr(d[k]+2*j,2)}, {sp} neg_lo:[0,1] neg_hi:[0,1]')
        for k in range(2):
            a = tp + 4 * k
            p(f'v_pk_add_f32 {vr(a,2)}, {vr(d[k],2)}, {vr(d[k]+2,2)}')
            p(f'v_pk_add_f32 {vr(a+2,2)}, {vr(d[k]+4,2)}, {vr(d[k]+6,2)}')
        for k in range(2):
            a = tp + 4 * k
            p(f'v_pk_add_f32 {vr(a,2)}, {vr(a,2)}, {vr(a+2,2)}')
        for k in range(2):
            a = tp + 4 * k
            p(f'v_add_f32 v{s1+k}, v{a}, v{a+1}')
        for k in range(2):
            a = tp + 4 * k
            p(f'v_pk_mul_f32 {vr(a,2)}, {vr(d[k],2)}, {vr(d[k],2)}')
        for j in range(1, 4):
            for k in range(2):
                a = tp + 4 * k
                p(f'v_pk_fma_f32 {vr(a,2)}, {vr(d[k]+2*j,2)}, {vr(d[k]+2*j,2)}, {vr(a,2)}')
        for k in range(2):
            a = tp + 4 * k
            p(f'v_add_f32 v{s2+k}, v{a}, v{a+1}')
        regs = [s1, s1 + 1, s2, s2 + 1]
        for ctl in ('row_shr:1 row_mask:0xf bank_mask:0xf bound_ctrl:1', 'row_shr:2 row_mask:0xf bank_mask:0xf bound_ctrl:1',
                    'row_shr:4 row_mask:0xf bank_mask:0xf bound_ctrl:1', 'row_shr:8 row_mask:0xf bank_mask:0xf bound_ctrl:1',
                    'row_bcast:15 row_mask:0xa bank_mask:0xf', 'row_bcast:31 row_mask:0xc bank_mask:0xf'):
            for r in regs:
                p(f'v_add_f32_dpp v{r}, v{r}, v{r} {ctl}')
        for n, r in enumerate(regs):
            p(f'v_readlane_b32 s{56+n}, v{r}, 63')
        m = [tp, tp + 1]; va = [tp + 2, tp + 3]; t4 = tp + 4; t5 = tp + 5
        p(f's_mov_b32 s60, {f32(1.0 / 512)}')
        for k in range(2):
            p(f'v_mov_b32 v{m[k]}, s{56+k}')
            p(f'v_mov_b32 v{va[k]}, s{58+k}')
        p(f'v_pk_mul_f32 {vr(m[0],2)}, {vr(m[0],2)}, s[60:61] op_sel_hi:[1,0]')
        p(f'v_pk_mul_f32 {vr(va[0],2)}, {vr(va[0],2)}, s[60:61] op_sel_hi:[1,0]')
        p(f'v_pk_fma_f32 {vr(va[0],2)}, {vr(m[0],2)}, {vr(m[0],2)}, {vr(va[0],2)} neg_lo:[1,0,0] neg_hi:[1,0,0]')
        p(f'v_add_f32 v{t4}, s52, v{m[0]}')
        p(f'v_add_f32 v{t5}, s54, v{m[1]}')
        for k in range(2): p(f'v_max_f32 v{va[k]}, 0, v{va[k]}')
        p(f'v_cvt_pk_bf16_f32 v{t4}, v{t4}, v{t5}')
        p(f'v_cvt_pk_bf16_f32 v{t5}, v{va[0]}, v{va[1]}')
        p(f's_mov_b32 s60, {f32(1e-5)}')
        p(f'v_lshlrev_b32 v{va[0]}, 16, v{t5}')
        p(f'v_and_b32 v{va[1]}, 0xffff0000, v{t5}')
        p(f'v_lshlrev_b32 v{m[0]}, 16, v{t4}')
        p(f'v_pk_add_f32 {vr(va[0],2)}, {vr(va[0],2)}, s[60:61] op_sel_hi:[1,0]')
        p(f'v_and_b32 v{m[1]}, 0xffff0000, v{t4}')
        p(f'v_cvt_pk_bf16_f32 v{t5}, v{va[0]}, v{va[1]}')
        p(f'v_sub_f32 v{m[0]}, s52, v{m[0]}')
        p(f'v_lshlrev_b32 v{va[0]}, 16, v{t5}')
        p(f'v_and_b32 v{va[1]}, 0xffff0000, v{t5}')
        for k in range(2): p(f'v_sqrt_f32 v{va[k]}, v{va[k]}')
        p(f'v_sub_f32 v{m[1]}, s54, v{m[1]}')
        p(f'v_lshrrev_b32 v{sg}, v{sg+2}, v{t4}')
        p(f'v_cvt_pk_bf16_f32 v{t5}, v{va[0]}, v{va[1]}')
        p(f'v_and_b32 v{sg}, 0xffff, v{sg}')
        p(f'v_xor_b32 v{sg}, 0x8000, v{sg}')
        p(f'v_lshrrev_b32 v{sg+3}, v{sg+2}, v{t5}')
        p(f'v_lshlrev_b32 v{va[0]}, 16, v{t5}')
        p(f'v_and_b32 v{va[1]}, 0xffff0000, v{t5}')
        p(f'v_lshl_or_b32 v{sg}, v{sg+3}, 16, v{sg}')
        for k in range(2): p(f'v_rcp_f32 v{va[k]}, v{va[k]}')
        if not self.o.get('defer_stat', 1): self.stat_store(sg, ad, nv)
        p(f'v_pk_mul_f32 {vr(m[0],2)}, {vr(m[0],2)}, {vr(va[0],2)}')
        for k in range(2):
            for j in range(4):
                p(f'v_pk_fma_f32 {vr(d[k]+2*j,2)}, {vr(d[k]+2*j,2)}, {vr(va[0],2)}, {vr(m[0],2)} '
                  f'op_sel:[0,{k},{k}] op_sel_hi:[1,{k},{k}]')
        for k in range(2):
            for j in range(4):
                p(f'v_cvt_pk_f16_f32 v{x[k]+j}, v{d[k]+2*j}, v{d[k]+2*j+1}')
            p(f'ds_write_b128 v{ad+1}, {vr(x[k],4)} offset:{k*TH_STR}')
        self.ln_hook()
        p('s_waitcnt lgkmcnt(0)\ns_barrier')
        V.free('d0', 'd1', 's1', 's2', 'lnt', 'x0', 'x1')
        if not self.o.get('defer_stat', 1): V.free('lnad', 'lnsg', 'nonce')
        self.stamp('ln')
        lab = self.lab('lnst')
        p(f's_cmp_ge_u32 {sWAVE}, 2\ns_cbranch_scc1 {lab}')
        with p.cond(lambda c: c['w'] < 2):
            a = V.alloc('lsa', 2); u = V.alloc('lsu', 16, align=2)
            p(f'''
            v_bfe_u32 v{a}, v1, 2, 2
            v_mul_u32_u24 v{a}, {TH_STR}, v{a}
            v_lshrrev_b32 v{a+1}, 4, v1
            v_lshlrev_b32 v{a+1}, 5, v{a+1}
            v_add_u32 v{a}, v{a}, v{a+1}
            v_and_b32 v{a+1}, 3, v1
            v_lshlrev_b32 v{a+1}, 3, v{a+1}
            v_add_u32 v{a}, v{a}, v{a+1}
            s_lshl_b32 s52, {sWAVE}, 9
            s_add_u32 s52, s52, {L_TH}
            v_add_u32 v{a}, s52, v{a}
            ''')
            for it in range(4):
                p(f'ds_read_b64_tr_b16 {vr(u+4*it,2)}, v{a} offset:{128*it}')
                p(f'ds_read_b64_tr_b16 {vr(u+4*it+2,2)}, v{a} offset:{128*it+4*TH_STR}')
            p(f'''
            s_lshl_b32 s52, {sBETA}, 13
            s_lshl_b32 s53, {sWAVE}, 12
            s_add_u32 s52, s52, s53
            s_add_u32 s52, s52, {WS_UBLK}
            ''')
            for it in range(4):
                p(f'buffer_store_dwordx4 {vr(u+4*it,4)}, v{l16}, {SWS}, s52 offen offset:{1024*it} sc1', tag='lnst')
            V.free('lsa', 'lsu')
        p(f'{lab}:')
    def stat_store(self, sg, ad, nv):
        p = self.p
        p(f'v_add_u32 v{sg+1}, 1, v{nv}')
        p(f's_mov_b64 exec, 3')
        p(f'buffer_store_dwordx2 {vr(sg,2)}, v{ad}, {SWS}, 0 offen sc1')
        p(f's_mov_b64 exec, -1')
        p(f'v_readfirstlane_b32 {sNONCE}, v{sg+1}')
    def stat_store_deferred(self):
        V = self.V
        if self.o.get('defer_stat', 1):
            self.stat_store(V['lnsg'], V['lnad'], V['nonce'])
            V.free('lnad', 'lnsg', 'nonce')
    def w1_run(self, blk, swap=False):
        p, V = self.p, self.V
        vo = V['w1off']; gs = []
        for k in range(8):
            with p.capture() as b:
                if k == 0:
                    p(f'''
                    s_lshl_b32 s98, {sWAVE}, 3
                    s_mul_i32 s96, s98, {16*2752}
                    s_lshl_b32 s97, {sFB0}, 6
                    s_add_u32 s96, s96, s97
                    s_lshl_b32 s97, s98, 10
                    ''')
                    if swap:
                        p(f'''
                        s_and_b32 s98, {sTT}, 1
                        s_xor_b32 s98, s98, {blk}
                        s_lshl_b32 s99, s98, 6
                        s_add_u32 s96, s96, s99
                        s_lshl_b32 s99, s98, 15
                        s_add_u32 s97, s97, s99
                        s_add_u32 s97, s97, {L_W}
                        ''')
                    else:
                        p(f's_add_u32 s96, s96, {64*blk}\ns_add_u32 s97, s97, {L_W + W1B*blk}')
                if k == 4: p(f's_add_u32 s96, s96, {4*16*2752}\ns_add_u32 s97, s97, 4096')
                p('s_mov_b32 m0, s97')
                p(f'buffer_load_dwordx4 v{vo+k%4}, {SW1}, s96 offen offset:{1024*(k%4)} lds', tag=f'w1dma{blk}')
            gs.append(b)
        return gs
    def colsum(self, blk, accS, fr, ones):
        p, V = self.p, self.V
        wa = V['w1a']; cs = V['csa']
        def rd(j):
            b = fr + 4 * (j % 3); base = cs + (blk >> 1); o = j * 1024 + W1B * (blk & 1)
            p(f'ds_read_b64_tr_b16 {vr(b,2)}, v{base} offset:{o}')
            p(f'ds_read_b64_tr_b16 {vr(b+2,2)}, v{base} offset:{o+256}')
        for j in range(2): rd(j)
        for j in range(8):
            if j + 2 < 8: rd(j + 2)
            p(f'v_mfma_f32_32x32x16_bf16 {vr(accS,16)}, {vr(ones,4)}, {vr(fr+4*(j%3),4)}, {"0" if j == 0 else vr(accS,16)}')
    def colsum_write(self, blk, accS):
        p, V = self.p, self.V
        p('s_mov_b32 exec_hi, 0')
        p(f'ds_write_b32 v{V["spa"]+1}, v{accS} offset:{512*blk}')
        p('s_mov_b32 exec_hi, -1')
    def ax_build(self, blk, ax, tq):
        p, V = self.p, self.V
        msk = V['hmask']
        p(f'ds_read_b128 {vr(tq,4)}, v{V["spa"]} offset:{512*blk}')
        p(f'ds_read_b32 v{ax+1}, v{V["bia"]} offset:{128*blk}')
        p(f'''
        v_add_f32 v{tq}, v{tq}, v{tq+1}
        v_add_f32 v{tq+2}, v{tq+2}, v{tq+3}
        v_add_f32 v{tq}, v{tq}, v{tq+2}
        v_cvt_pk_bf16_f32 v{tq+1}, v{tq}, v{tq}
        v_lshlrev_b32 v{tq+1}, 16, v{tq+1}
        v_sub_f32 v{tq+1}, v{tq}, v{tq+1}
        v_cvt_pk_bf16_f32 v{ax}, v{tq}, v{tq+1}
        v_and_b32 v{ax}, v{ax}, v{msk}
        v_and_b32 v{ax+1}, v{ax+1}, v{msk}
        v_mov_b32 v{ax+2}, 0
        v_mov_b32 v{ax+3}, 0
        ''')
    def stat_build(self):
        p, V = self.p, self.V
        st = V['pl_S']; bx = V['bx']; sc = V['scl']; msk = V['hmask']
        p(f'''
        v_and_b32 v{bx}, 0xffff, v{st}
        v_lshrrev_b32 v{bx+1}, 16, v{st}
        v_and_b32 v{sc+4}, 0xffff0000, v{st}
        v_lshl_or_b32 v{bx}, v{bx}, 16, v{bx}
        v_rcp_f32 v{sc+4}, v{sc+4}
        v_and_b32 v{bx+1}, v{bx+1}, v{msk}
        v_and_b32 v{bx}, v{bx}, v{msk}
        v_mov_b32 v{bx+2}, 0
        v_mov_b32 v{bx+3}, 0
        v_mul_f32 v{sc}, {f32(LOG2E)}, v{sc+4}
        v_mul_f32 v{sc+2}, -2.0, v{sc+4}
        ''')
    def mish(self, acc, tm, pk, packed):
        p = self.p
        sc = self.V['scl']; rl, m2r, rr = sc, sc + 2, sc + 4
        if packed:
            for r in range(0, 16, 2): p(f'v_pk_mul_f32 {vr(tm+r,2)}, {vr(acc+r,2)}, {vr(rl,2)} op_sel_hi:[1,0]')
            for r in range(16): p(f'v_exp_f32 v{tm+r}, v{tm+r}')
            for r in range(0, 16, 2):
                p(f'v_pk_add_f32 {vr(pk+(r&2),2)}, {vr(tm+r,2)}, 2.0 op_sel_hi:[1,0]')
                p(f'v_pk_fma_f32 {vr(tm+r,2)}, {vr(tm+r,2)}, {vr(pk+(r&2),2)}, 2.0 op_sel_hi:[1,1,0]')
            for r in range(16): p(f'v_rcp_f32 v{tm+r}, v{tm+r}')
            for r in range(0, 16, 2): p(f'v_pk_fma_f32 {vr(tm+r,2)}, {vr(tm+r,2)}, {vr(m2r,2)}, {vr(rr,2)} op_sel_hi:[1,0,0]')
            for r in range(0, 16, 2): p(f'v_pk_mul_f32 {vr(tm+r,2)}, {vr(tm+r,2)}, {vr(acc+r,2)}')
            for r in range(0, 16, 2): p(f'v_cvt_pk_bf16_f32 v{pk+r//2}, v{tm+r}, v{tm+r+1}')
        else:
            for r0 in range(0, 16, 4):
                R = range(r0, r0 + 4)
                for r in R: p(f'v_mul_f32 v{tm+r}, v{rl}, v{acc+r}')
                for r in R: p(f'v_exp_f32 v{tm+r}, v{tm+r}')
                for r in R: p(f'v_add_f32 v{pk+(r&3)+4}, 2.0, v{tm+r}')
                for r in R: p(f'v_fma_f32 v{tm+r}, v{tm+r}, v{pk+(r&3)+4}, 2.0')
                for r in R: p(f'v_rcp_f32 v{tm+r}, v{tm+r}')
                for r in R: p(f'v_fma_f32 v{tm+r}, v{tm+r}, v{m2r}, v{rr}')
                for r in R: p(f'v_mul_f32 v{tm+r}, v{tm+r}, v{acc+r}')
            for r in range(0, 16, 2): p(f'v_cvt_pk_bf16_f32 v{pk+r//2}, v{tm+r}, v{tm+r+1}')
    def stat_issue(self):
        p, V = self.p, self.V
        t = V.alloc('pl_S', 2)
        p(f'buffer_load_dwordx2 {vr(t,2)}, v{V["stat_a"]}, {SWS}, 0 offen sc1')
    def stat_check(self):
        p, V = self.p, self.V
        t = V['pl_S']
        lp = self.lab('S'); ck = self.lab('Sc'); dn = self.lab('Sd')
        p(f's_mov_b32 s38, 0\n{ck}:')
        p(f'v_cmp_ne_u32 vcc, {sNONCE}, v{t+1}')
        p(f's_cmp_eq_u64 vcc, 0\ns_cbranch_scc1 {dn}')
        with p.cond(lambda c: False):
            p(f's_add_u32 s38, s38, 1\ns_cmp_lt_u32 s38, 0x40000\ns_cbranch_scc0 {lp}')
            p(f'buffer_load_dwordx2 {vr(t,2)}, v{V["stat_a"]}, {SWS}, 0 offen sc1')
            p(f's_waitcnt vmcnt(0)\ns_branch {ck}')
            p(f'{lp}:')
            tz = V.alloc('plz', 2)
            p(f'v_mov_b32 v{tz}, 0\nv_mov_b32 v{tz+1}, 0xdead\nglobal_store_dword v{tz}, v{tz+1}, {pDBG}')
            V.free('plz')
        p(f'{dn}:')
    def gemm1(self):
        p, V, A = self.p, self.V, self.A
        xf = A['xnf']; wa = V['w1a']
        acc = V.alloc('g1acc', 48, align=2); fr = V.alloc('g1fr', 32, align=2); tm = V.alloc('g1tm', 16, align=2); pk = V.alloc('g1pk', 16, align=2)
        ax = V.alloc('ax', 12, align=2); bx = V.alloc('bx', 4, align=2); sc = V.alloc('scl', 6, align=2); tq = V.alloc('axt', 4, align=2)
        p(f'''
        s_lshl_b32 s56, {sTT}, 2
        s_add_u32 s56, s56, {sWAVE}
        s_mul_i32 s35, s56, {86*1024}
        s_lshl_b32 s59, {sFB0}, 11
        s_add_u32 s35, s35, s59
        s_add_u32 s35, s35, {WS_ACT}
        ''')
        self.stat_issue()
        def rd(ks, blk, slot):
            b = fr + 4 * slot; base = wa + (blk >> 1); o = ks * 1024 + W1B * (blk & 1)
            p(f'ds_read_b64_tr_b16 {vr(b,2)}, v{base} offset:{o}')
            p(f'ds_read_b64_tr_b16 {vr(b+2,2)}, v{base} offset:{o+256}')
        w1b2 = self.w1b2
        with p.capture() as main:
            for ks in range(2): rd(ks, 0, 2 * (ks % 4)); rd(ks, 1, 2 * (ks % 4) + 1)
            for ks in range(32):
                if ks + 2 < 32: rd(ks + 2, 0, 2 * ((ks + 2) % 4)); rd(ks + 2, 1, 2 * ((ks + 2) % 4) + 1)
                c0 = '0' if ks == 0 else vr(acc, 16); c1 = '0' if ks == 0 else vr(acc + 16, 16)
                p(f'v_mfma_f32_32x32x16_bf16 {vr(acc,16)}, {vr(fr+8*(ks%4),4)}, {vr(xf+4*ks,4,"a")}, {c0}')
                p(f'v_mfma_f32_32x32x16_bf16 {vr(acc+16,16)}, {vr(fr+8*(ks%4)+4,4)}, {vr(xf+4*ks,4,"a")}, {c1}')
        fill = self.cap(self.ax_build, 0, ax, tq) + self.cap(self.ax_build, 1, ax + 4, tq)
        fill += self.cap(self.gemm_addr_setup)
        fill += self.cap(self.poll_issue, 'A2', V['us'] + 2, 64, 4)
        half = len(main) // 2
        lab = self.lab('b2a')
        p(f's_cmp_eq_u32 {sNBLK}, 2\ns_cbranch_scc1 {lab}')
        for g_ in w1b2[:4]: p.ins.extend(g_)
        p(f'{lab}:')
        nf = len(fill) // 2
        self.weave(main[:half], fill[:nf], start=2)
        lab = self.lab('b2b')
        p(f's_cmp_eq_u32 {sNBLK}, 2\ns_cbranch_scc1 {lab}')
        for g_ in w1b2[4:]: p.ins.extend(g_)
        p(f'{lab}:')
        self.weave(main[half:], fill[nf:])
        V.free('w1off')
        self.stat_check()
        self.stat_build()
        V.free('pl_S')
        p(f'v_mfma_f32_32x32x16_bf16 {vr(acc,16)}, {vr(ax,4)}, {vr(bx,4)}, {vr(acc,16)}')
        p(f'v_mfma_f32_32x32x16_bf16 {vr(acc+16,16)}, {vr(ax+4,4)}, {vr(bx,4)}, {vr(acc+16,16)}')
        self.stamp('g1p1')
        self.poll_check('A2', V['us'] + 2, 64, 4)
        ud = V.alloc('ud', 8, align=2)
        p(f'''
        s_lshl_b32 s56, {sWAVE}, 19
        s_lshl_b32 s57, {sBETA}, 5
        s_add_u32 s56, s56, s57
        s_add_u32 s56, s56, {WS_UBLK}
        buffer_load_dwordx4 {vr(ud,4)}, v{V['us']}, {SWS}, s56 offen sc1
        buffer_load_dwordx4 {vr(ud+4,4)}, v{V['us']}, {SWS}, s56 offen offset:16 sc1
        ''')
        p.wait_tag('w1dma2')
        p('s_barrier')
        self.fstamp('g1bar')
        self.w2_dma_setup()
        l2 = self.lab('g1n2'); l3 = self.lab('g1j')
        p(f's_cmp_eq_u32 {sNBLK}, 2\ns_cbranch_scc1 {l2}')
        with p.cond(lambda c: c['nblk'] == 3):
            accS = V.alloc('accS', 16, align=2); ones = V['ones']
            self.colsum(2, accS, fr + 16, ones)
            with p.capture() as main:
                for ks in range(3): rd(ks, 2, ks % 4)
                for ks in range(32):
                    if ks + 3 < 32: rd(ks + 3, 2, (ks + 3) % 4)
                    if ks % 2 == 0:
                        for i in self.cap(self.w2_dma, ks // 16, (ks // 2) % 8): p.ins.append(i)
                    c0 = '0' if ks == 0 else vr(acc + 32, 16)
                    p(f'v_mfma_f32_32x32x16_bf16 {vr(acc+32,16)}, {vr(fr+4*(ks%4),4)}, {vr(xf+4*ks,4,"a")}, {c0}')
            with p.capture() as fill:
                self.mish(acc, tm, pk, False); self.act_store(pk, 0)
                self.mish(acc + 16, tm, pk + 8, False); self.act_store(pk + 8, 1)
            self.colsum_write(2, accS)
            self.weave(main, fill)
            V.free('accS')
            self.fstamp('g1p2')
            p('s_waitcnt lgkmcnt(0)\ns_barrier')
            self.ax_build(2, ax + 8, tq)
            d2 = [self.cap(self.w2_dma, 2, k) for k in range(8)]
            for g_ in d2[:2]: p.ins.extend(g_)
            p(f'v_mfma_f32_32x32x16_bf16 {vr(acc+32,16)}, {vr(ax+8,4)}, {vr(bx,4)}, {vr(acc+32,16)}')
            m2 = self.cap(self.mish, acc + 32, tm, pk, True)
            p.merge(m2, d2[2:])
            self.act_store(pk, 2)
        p(f's_branch {l3}\n{l2}:')
        with p.cond(lambda c: c['nblk'] == 2):
            m0_ = self.cap(self.mish, acc, tm, pk, True)
            p.merge(m0_, [self.cap(self.w2_dma, 0, k) for k in range(8)])
            self.act_store(pk, 0)
            p('s_barrier')
            m1_ = self.cap(self.mish, acc + 16, tm, pk + 8, True)
            p.merge(m1_, [self.cap(self.w2_dma, 1, k) for k in range(8)])
            self.act_store(pk + 8, 1)
            for k in range(8): self.w2_dma(2, k)
        p(f'{l3}:')
        self.fstamp('g1mish')
        us = V['us']
        p(f'ds_write_b128 v{us+1}, {vr(ud,4)}')
        p(f'ds_write_b128 v{us+1}, {vr(ud+4,4)} offset:{U_CH}')
        p.wait_tag('w2dma1')
        p('s_waitcnt lgkmcnt(0)\ns_barrier')
        V.free('g1acc', 'g1fr', 'g1tm', 'g1pk', 'bia', 'w1a', 'ud', 'us', 'ax', 'bx', 'scl', 'axt', 'spa', 'stat_a', 'hmask', 'ones', 'csa')
        A.free('xnf')
        lab = self.lab('nw')
        p(f's_or_b32 s52, {sBETA}, {sWAVE}\ns_cmp_lg_u32 s52, 0\ns_cbranch_scc1 {lab}')
        with p.cond(lambda c: c['w'] == 0):
            p('s_mov_b32 s101, 0')
            self.flag_store('s101', WS_FLG)
        p(f'{lab}:')
    def w2_dma_setup(self):
        super().w2_dma_setup()
    def build(self):
        p, V, A = self.p, self.V, self.A
        self.entry()
        self.idle_setup()
        self.gemm1_addr_setup()
        hm = V.alloc('hmask'); ones = V.alloc('ones', 4, align=2); cs = V.alloc('csa', 2)
        p(f'v_add_u32 v{hm}, -1, v{V["hh"]}')
        for k in range(4): p(f'v_mov_b32 v{ones+k}, 0x3f803f80')
        p(f's_lshl_b32 s52, {sWAVE}, 13')
        p(f'v_add_u32 v{cs}, s52, v{V["w1a"]}\nv_add_u32 v{cs+1}, s52, v{V["w1a"]+1}')
        self.stamp('idle')
        self.ln()
        self.stamp('lnst')
        ks = self.cap(self.kgen_setup)
        p.merge(ks, self.w1second)
        with p.cond(lambda c: c['nblk'] == 3): self.w1b2 = self.w1_run(2)
        p('s_barrier')
        self.stamp('ksetup')
        main = self.kgen_values()
        n1 = len(main) * self.o.get('kx1', 5) // 10; n2 = len(main) * 8 // 10
        p.merge(main[:n1 // 2], self.x_dma_groups(0))
        p.ins.extend(main[n1 // 2:n1])
        self.x_read(0)
        p.ins.extend(main[n1:n1 + 12])
        p.wait_lgkm_tag('xrd0')
        p.merge(main[n1 + 12:n2], self.x_dma_groups(1))
        self.ln_flag()
        p.ins.extend(main[n2:])
        V.free('z', 'Z256', 'Cn', 'z2', 'z4', 'w', 'w2', 'w4', 'chains', 'cv', 'fa')
        self.x_read(1)
        self.x_next(2)
        self.stamp('kvals')
        p('s_waitcnt lgkmcnt(0)\ns_barrier')
        km = self.cap(self.kgen_mfma)
        p.ins.extend(km)
        self.x_read(2)
        self.x_next(3)
        self.stamp('kmfma')
        p('s_waitcnt lgkmcnt(0)\ns_barrier')
        if 'table' in self.dump: self.dump_lds(L_T, 2 * T_CH, WS_DBG + 0x100000)
        accS = V.alloc('accS', 32, align=2); sfr = V.alloc('sfr', 24, align=2)
        cs0 = self.cap(self.colsum, 0, accS, sfr, ones); cs1 = self.cap(self.colsum, 1, accS + 16, sfr + 12, ones)
        ex = self.cap(self.expand)
        ncommon = next(k for k, i in enumerate(ex) if i.kind == 'branch')
        grp = []
        for a_, b_ in zip(self.split_mfma(cs0), self.split_mfma(cs1)): grp += [a_, b_]
        p.merge(ex[:ncommon - 1], grp)
        p.ins.extend(ex[ncommon - 1:])
        self.colsum_write(0, accS); self.colsum_write(1, accS + 16)
        V.free('accS', 'sfr')
        self.x_read(3)
        V.free('xv', 'xr')
        p('s_waitcnt lgkmcnt(0)\ns_barrier')
        self.stamp('expand')
        if 'kc' in self.dump: self.dump_lds(L_KC, 8 * KC_STR, WS_DBG + 0x400000)
        self.gemm1()
        self.stamp('gemm1')
        self.conv()
        self.stamp('conv')
        self.gemm2()
        self.stamp('end')
        self.finish()
        return self.finalize()
    def split_mfma(self, ins):
        gs = []; cur = []
        for i in ins:
            cur.append(i)
            if i.kind == 'mfma': gs.append(cur); cur = []
        if cur: gs[-1] += cur
        return gs

if __name__ == '__main__':
    kern3.main(Gen4)
```

```python
import sys, math
from regs import vr
import kern2, kern3, kern4, kern5, kern6, kern7
from kern2 import *
from kern3 import *
from kern4 import *

class Gen8(kern7.Gen7):
    def __init__(self, **kw):
        super().__init__(**kw)
        self.o.setdefault('xlead', 10)
    def w1_run(self, blk, swap=False):
        gs = kern4.Gen4.w1_run(self, blk, swap and self.o.get('sib', 1) == 1)
        if swap:
            if blk == 0:
                self._w1b0 = gs
                return gs[:self.o.get('early', 2)]
            self._w1b1 = gs
        return gs
    def gemm1_addr_setup(self):
        kern3.Gen3.gemm1_addr_setup(self)
    def ln_hook(self):
        p, V = self.p, self.V
        lab = self.lab('bl')
        bv = V['biasv']; t = V.alloc('btl', 3)
        p(f's_cmp_lg_u32 {sWAVE}, 1\ns_cbranch_scc1 {lab}')
        with p.cond(lambda c: c['w'] == 1):
            p(f'''
            v_lshlrev_b32 v{t}, 16, v{bv}
            v_lshlrev_b32 v{t+1}, 16, v{bv+1}
            v_lshlrev_b32 v{t+2}, 2, v1
            v_add_u32 v{t+2}, {L_BIAS}, v{t+2}
            ds_write_b32 v{t+2}, v{t}
            s_mov_b32 exec_hi, 0
            ds_write_b32 v{t+2}, v{t+1} offset:256
            s_mov_b32 exec_hi, -1
            ''')
        p(f'{lab}:')
        V.free('btl', 'biasv')
    def bias_init(self, acc, blk): kern3.Gen3.bias_init(self, acc, blk)
    def mish(self, acc, tm, pk, packed): kern2.Gen.mish(self, acc, tm, pk, packed)
    def ln(self):
        p, V = self.p, self.V
        x = [V['x0'], V['x1']]
        d = [V.alloc('d0', 8), V.alloc('d1', 8)]
        s1 = V.alloc('s1', 2); s2 = V.alloc('s2', 2); tp = V.alloc('lnt', 8); ad = V.alloc('lnad', 2)
        l16 = V['l16']; nv = V['nonce']
        p(f'''
        s_lshl_b32 s52, {sWAVE}, 1
        s_mul_i32 s53, s52, {TBF_STR}
        s_add_u32 s53, s53, {L_TBF}
        s_mul_i32 s54, s52, {TH_STR}
        s_add_u32 s54, s54, {L_TH}
        v_add_u32 v{ad}, s53, v{l16}
        v_add_u32 v{ad+1}, s54, v{l16}
        ''')
        for k in range(2):
            for j in range(4):
                p(f'v_lshlrev_b32 v{d[k]+2*j}, 16, v{x[k]+j}')
                p(f'v_and_b32 v{d[k]+2*j+1}, 0xffff0000, v{x[k]+j}')
        self.fstamp('xarr')
        if self.o.get('ptouch', 0): self.page_touch()
        if self.o.get('ltouch', 0): self.late_touch()
        p(f'v_readlane_b32 s52, v{d[0]}, 0')
        p(f'v_readlane_b32 s54, v{d[1]}, 0')
        p(f's_mov_b32 s53, s52\ns_mov_b32 s55, s54')
        for k in range(2):
            sp = 's[52:53]' if k == 0 else 's[54:55]'
            for j in range(4):
                p(f'v_pk_add_f32 {vr(d[k]+2*j,2)}, {vr(d[k]+2*j,2)}, {sp} neg_lo:[0,1] neg_hi:[0,1]')
        for k in range(2):
            a = tp + 4 * k
            p(f'v_pk_add_f32 {vr(a,2)}, {vr(d[k],2)}, {vr(d[k]+2,2)}')
            p(f'v_pk_add_f32 {vr(a+2,2)}, {vr(d[k]+4,2)}, {vr(d[k]+6,2)}')
        for k in range(2):
            a = tp + 4 * k
            p(f'v_pk_add_f32 {vr(a,2)}, {vr(a,2)}, {vr(a+2,2)}')
        for k in range(2):
            a = tp + 4 * k
            p(f'v_add_f32 v{s1+k}, v{a}, v{a+1}')
        for k in range(2):
            a = tp + 4 * k
            p(f'v_pk_mul_f32 {vr(a,2)}, {vr(d[k],2)}, {vr(d[k],2)}')
        for j in range(1, 4):
            for k in range(2):
                a = tp + 4 * k
                p(f'v_pk_fma_f32 {vr(a,2)}, {vr(d[k]+2*j,2)}, {vr(d[k]+2*j,2)}, {vr(a,2)}')
        for k in range(2):
            a = tp + 4 * k
            p(f'v_add_f32 v{s2+k}, v{a}, v{a+1}')
        regs = [s1, s1 + 1, s2, s2 + 1]
        for ctl in ('row_shr:1 row_mask:0xf bank_mask:0xf bound_ctrl:1', 'row_shr:2 row_mask:0xf bank_mask:0xf bound_ctrl:1',
                    'row_shr:4 row_mask:0xf bank_mask:0xf bound_ctrl:1', 'row_shr:8 row_mask:0xf bank_mask:0xf bound_ctrl:1',
                    'row_bcast:15 row_mask:0xa bank_mask:0xf', 'row_bcast:31 row_mask:0xc bank_mask:0xf'):
            for r in regs:
                p(f'v_add_f32_dpp v{r}, v{r}, v{r} {ctl}')
        for n, r in enumerate(regs):
            p(f'v_readlane_b32 s{56+n}, v{r}, 63')
        m = [tp, tp + 1]; va = [tp + 2, tp + 3]; t4 = tp + 4; t5 = tp + 5
        p(f's_mov_b32 s60, {f32(1.0 / 512)}')
        for k in range(2):
            p(f'v_mov_b32 v{m[k]}, s{56+k}')
            p(f'v_mov_b32 v{va[k]}, s{58+k}')
        p(f'v_pk_mul_f32 {vr(m[0],2)}, {vr(m[0],2)}, s[60:61] op_sel_hi:[1,0]')
        p(f'v_pk_mul_f32 {vr(va[0],2)}, {vr(va[0],2)}, s[60:61] op_sel_hi:[1,0]')
        p(f'v_pk_fma_f32 {vr(va[0],2)}, {vr(m[0],2)}, {vr(m[0],2)}, {vr(va[0],2)} neg_lo:[1,0,0] neg_hi:[1,0,0]')
        p(f'v_add_f32 v{t4}, s52, v{m[0]}')
        p(f'v_add_f32 v{t5}, s54, v{m[1]}')
        for k in range(2): p(f'v_max_f32 v{va[k]}, 0, v{va[k]}')
        p(f'v_cvt_pk_bf16_f32 v{t4}, v{t4}, v{t5}')
        p(f'v_cvt_pk_bf16_f32 v{t5}, v{va[0]}, v{va[1]}')
        p(f's_mov_b32 s60, {f32(1e-5)}')
        p(f'v_lshlrev_b32 v{va[0]}, 16, v{t5}')
        p(f'v_and_b32 v{va[1]}, 0xffff0000, v{t5}')
        p(f'v_lshlrev_b32 v{m[0]}, 16, v{t4}')
        p(f'v_pk_add_f32 {vr(va[0],2)}, {vr(va[0],2)}, s[60:61] op_sel_hi:[1,0]')
        p(f'v_and_b32 v{m[1]}, 0xffff0000, v{t4}')
        p(f'v_cvt_pk_bf16_f32 v{t5}, v{va[0]}, v{va[1]}')
        p(f'v_sub_f32 v{m[0]}, s52, v{m[0]}')
        p(f'v_lshlrev_b32 v{va[0]}, 16, v{t5}')
        p(f'v_and_b32 v{va[1]}, 0xffff0000, v{t5}')
        for k in range(2): p(f'v_sqrt_f32 v{va[k]}, v{va[k]}')
        p(f'v_sub_f32 v{m[1]}, s54, v{m[1]}')
        p(f'v_cvt_pk_bf16_f32 v{t5}, v{va[0]}, v{va[1]}')
        p(f'v_lshlrev_b32 v{va[0]}, 16, v{t5}')
        p(f'v_and_b32 v{va[1]}, 0xffff0000, v{t5}')
        for k in range(2): p(f'v_rcp_f32 v{va[k]}, v{va[k]}')
        p(f'v_pk_mul_f32 {vr(m[0],2)}, {vr(m[0],2)}, {vr(va[0],2)}')
        for k in range(2):
            for j in range(4):
                p(f'v_pk_fma_f32 {vr(d[k]+2*j,2)}, {vr(d[k]+2*j,2)}, {vr(va[0],2)}, {vr(m[0],2)} '
                  f'op_sel:[0,{k},{k}] op_sel_hi:[1,{k},{k}]')
        for k in range(2):
            for j in range(4):
                p(f'v_cvt_pk_bf16_f32 v{x[k]+j}, v{d[k]+2*j}, v{d[k]+2*j+1}')
            p(f'ds_write_b128 v{ad}, {vr(x[k],4)} offset:{k*TBF_STR}')
        for k in range(2):
            for j in range(4):
                p(f'v_cvt_pk_f16_f32 v{tp+4*k+j}, v{d[k]+2*j}, v{d[k]+2*j+1}')
            p(f'ds_write_b128 v{ad+1}, {vr(tp+4*k,4)} offset:{k*TH_STR}')
        self.ln_hook()
        p('s_waitcnt lgkmcnt(0)\ns_barrier')
        V.free('d0', 'd1', 's1', 's2', 'lnt', 'lnad', 'x0', 'x1')
        self.stamp('ln')
        a = V.alloc('lsa', 4); dt = V.alloc('lsd', 16, align=2)
        l1 = self.lab('ln1'); l2 = self.lab('ln2')
        p(f's_cmp_ge_u32 {sWAVE}, 2\ns_cbranch_scc1 {l1}')
        with p.cond(lambda c: c['w'] < 2):
            p(f'''
            v_and_b32 v{a}, 7, v0
            v_lshrrev_b32 v{a+1}, 3, v0
            v_mul_u32_u24 v{a+2}, {TBF_STR}, v{a}
            v_lshlrev_b32 v{a+3}, 4, v{a+1}
            v_add_u32 v{a+2}, v{a+2}, v{a+3}
            v_add_u32 v{a+2}, {L_TBF}, v{a+2}
            ''')
            for k in range(4):
                p(f'ds_read_b128 {vr(dt+4*k,4)}, v{a+2} offset:{256*k}')
            p(f'''
            v_lshrrev_b32 v{a+3}, 1, v{a+1}
            v_lshlrev_b32 v{a+3}, 10, v{a+3}
            v_and_b32 v{a+1}, 1, v{a+1}
            v_lshlrev_b32 v{a+1}, 9, v{a+1}
            v_add_u32 v{a+3}, v{a+3}, v{a+1}
            v_lshlrev_b32 v{a}, 4, v{a}
            v_add_u32 v{a+3}, v{a+3}, v{a}
            s_lshr_b32 s52, {sBETA}, 2
            s_lshl_b32 s52, s52, 15
            s_and_b32 s53, {sBETA}, 3
            s_lshl_b32 s53, s53, 7
            s_add_u32 s52, s52, s53
            s_add_u32 s52, s52, {WS_XNF}
            ''')
            for k in range(4):
                if k: p(f's_add_u32 s52, s52, 8192')
                p(f'buffer_store_dwordx4 {vr(dt+4*k,4)}, v{a+3}, {SWS}, s52 offen sc1', tag='lnst')
        p(f's_branch {l2}\n{l1}:')
        with p.cond(lambda c: c['w'] >= 2):
            p(f'''
            v_bfe_u32 v{a}, v1, 2, 2
            v_mul_u32_u24 v{a}, {TH_STR}, v{a}
            v_lshrrev_b32 v{a+1}, 4, v1
            v_lshlrev_b32 v{a+1}, 5, v{a+1}
            v_add_u32 v{a}, v{a}, v{a+1}
            v_and_b32 v{a+1}, 3, v1
            v_lshlrev_b32 v{a+1}, 3, v{a+1}
            v_add_u32 v{a}, v{a}, v{a+1}
            s_lshl_b32 s52, {sROLE}, 9
            s_add_u32 s52, s52, {L_TH}
            v_add_u32 v{a}, s52, v{a}
            ''')
            for it in range(4):
                p(f'ds_read_b64_tr_b16 {vr(dt+4*it,2)}, v{a} offset:{128*it}')
                p(f'ds_read_b64_tr_b16 {vr(dt+4*it+2,2)}, v{a} offset:{128*it+4*TH_STR}')
            p(f'''
            s_lshl_b32 s52, {sBETA}, 13
            s_lshl_b32 s53, {sROLE}, 12
            s_add_u32 s52, s52, s53
            s_add_u32 s52, s52, {WS_UBLK}
            ''')
            for it in range(4):
                p(f'buffer_store_dwordx4 {vr(dt+4*it,4)}, v{l16}, {SWS}, s52 offen offset:{1024*it} sc1', tag='lnst')
        p(f'{l2}:')
        V.free('lsa', 'lsd')
        p(f'v_add_u32 v{nv}, 1, v{nv}')
        p(f'v_readfirstlane_b32 {sNONCE}, v{nv}')
        V.free('nonce')
    def late_touch(self):
        p, V = self.p, self.V
        tv = V['touch']; t = V.alloc('ltt'); m = self.o['ltouch']
        l2 = self.lab('lt2'); le = self.lab('lte')
        p(f's_mul_i32 s60, s2, 5504\nv_lshlrev_b32 v{t}, 7, v1\ns_mov_b32 exec_hi, 0x7ff')
        p(f's_cmp_eq_u32 {sWAVE}, 0\ns_cbranch_scc0 {l2}')
        with p.cond(lambda c: c['w'] == 0):
            if m & 1: p(f'buffer_load_dword v{tv}, v{t}, {SW1}, s60 offen')
        p(f's_branch {le}\n{l2}:')
        p(f's_cmp_eq_u32 {sWAVE}, 2\ns_cbranch_scc0 {le}')
        with p.cond(lambda c: c['w'] == 2):
            if m & 4: p(f'buffer_load_dword v{tv}, v{t}, {SW2}, s60 offen')
        p(f'{le}:\ns_mov_b32 exec_hi, -1')
        V.free('ltt')
    def page_touch(self):
        p, V = self.p, self.V
        pt = V['ptv']; tv = V['touch']
        l1, l2, l3, le = self.lab('pt1'), self.lab('pt2'), self.lab('pt3'), self.lab('pte')
        p(f's_mov_b64 exec, 3')
        p(f's_cmp_eq_u32 {sWAVE}, 2\ns_cbranch_scc1 {l2}\ns_cmp_eq_u32 {sWAVE}, 3\ns_cbranch_scc1 {l3}')
        with p.cond(lambda c: c['w'] < 2): p(f'buffer_load_dword v{tv+1}, v{pt}, {SWS}, 0 offen')
        p(f's_branch {le}\n{l2}:')
        with p.cond(lambda c: c['w'] == 2): p(f'buffer_load_dword v{tv+1}, v{pt}, {SW2}, 0 offen')
        p(f's_branch {le}\n{l3}:')
        with p.cond(lambda c: c['w'] == 3): p(f'buffer_load_dword v{tv+1}, v{pt}, {SOUT}, 0 offen')
        p(f'{le}:\ns_mov_b64 exec, -1')
        V.free('ptv')
    def page_touch_setup(self):
        p, V = self.p, self.V
        pt = V.alloc('ptv')
        p(f'''
        s_lshl_b32 s52, {sTT}, 2
        s_mul_i32 s52, s52, {86*1024}
        s_add_u32 s52, s52, {WS_ACT}
        s_lshl_b32 s53, {sTG}, 1
        s_mul_i32 s53, s53, {86*1024}
        s_add_u32 s53, s53, {WS_ACT}
        s_lshl_b32 s54, {sBETA}, 13
        s_add_u32 s54, s54, {WS_ST}
        s_lshl_b32 s55, {sCG}, 18
        s_add_u32 s55, s55, {WS_ST}
        s_lshl_b32 s56, {sCG}, 7
        s_add_u32 s57, s56, {43*16*1024}
        s_lshl_b32 s58, {sTG}, 16
        s_cmp_eq_u32 {sWAVE}, 1
        s_cselect_b32 s52, s54, s52
        s_cselect_b32 s53, s55, s53
        s_cmp_eq_u32 {sWAVE}, 2
        s_cselect_b32 s52, s56, s52
        s_cselect_b32 s53, s57, s53
        s_cmp_eq_u32 {sWAVE}, 3
        s_cselect_b32 s52, s58, s52
        s_cselect_b32 s53, s58, s53
        s_sub_u32 s53, s53, s52
        v_mul_lo_u32 v{pt}, v1, s53
        v_add_u32 v{pt}, s52, v{pt}
        ''')
    def ln_flag(self):
        p = self.p
        p.wait_tag('lnst')
        p(f'''
        s_lshl_b32 s101, {sBETA}, 4
        s_lshl_b32 s100, {sROLE}, 3
        s_add_u32 s101, s101, s100
        s_lshl_b32 s100, {sCH}, 12
        s_mul_i32 s100, s100, 5
        s_add_u32 s101, s101, s100
        ''')
        self.flag_store('s101', FL_A)
    def gemm1(self):
        p, V, A = self.p, self.V, self.A
        xf = A['xnf']; wa = V['w1a']; xlead = self.o['xlead']
        acc = V.alloc('g1acc', 48, align=2); fr = V.alloc('g1fr', 32, align=2); tm = V.alloc('g1tm', 16, align=2); pk = V.alloc('g1pk', 16, align=2)
        p(f'''
        s_mov_b32 s34, {f32(LOG2E)}
        s_lshl_b32 s56, {sTT}, 2
        s_add_u32 s56, s56, {sWAVE}
        s_mul_i32 s35, s56, {86*1024}
        s_lshl_b32 s59, {sFB0}, 11
        s_add_u32 s35, s35, s59
        s_add_u32 s35, s35, {WS_ACT}
        ''')
        self.bias_init(acc, 0); self.bias_init(acc + 16, 1); self.bias_init(acc + 32, 2)
        def rd(ks, blk, slot):
            b = fr + 4 * slot; base = wa + (blk >> 1); o = ks * 1024 + W1B * (blk & 1)
            p(f'ds_read_b64_tr_b16 {vr(b,2)}, v{base} offset:{o}')
            p(f'ds_read_b64_tr_b16 {vr(b+2,2)}, v{base} offset:{o+256}')
        w1b2 = self.w1b2
        for ks in range(2): rd(ks, 0, 2 * (ks % 4)); rd(ks, 1, 2 * (ks % 4) + 1)
        for ks in range(32):
            if ks + xlead < 32: self.xn_load(ks + xlead)
            p(f'v_mfma_f32_32x32x16_bf16 {vr(acc,16)}, {vr(fr+8*(ks%4),4)}, {vr(xf+4*ks,4,"a")}, {vr(acc,16)}')
            if ks + 2 < 32: rd(ks + 2, 0, 2 * ((ks + 2) % 4))
            p(f'v_mfma_f32_32x32x16_bf16 {vr(acc+16,16)}, {vr(fr+8*(ks%4)+4,4)}, {vr(xf+4*ks,4,"a")}, {vr(acc+16,16)}')
            if ks + 2 < 32: rd(ks + 2, 1, 2 * ((ks + 2) % 4) + 1)
            if ks >= 22 and ks < 30: p.ins.extend(w1b2[ks - 22])
            if ks == 21: self.poll_issue('A2', V['us'] + 2, 64, 4)
        V.free('w1off')
        self.stamp('g1p1')
        self.poll_check('A2', V['us'] + 2, 64, 4)
        self.fstamp('a2')
        ud = V.alloc('ud', 8, align=2)
        p(f'''
        s_lshl_b32 s56, {sWAVE}, 19
        s_lshl_b32 s57, {sBETA}, 5
        s_add_u32 s56, s56, s57
        s_add_u32 s56, s56, {WS_UBLK}
        buffer_load_dwordx4 {vr(ud,4)}, v{V['us']}, {SWS}, s56 offen sc1
        buffer_load_dwordx4 {vr(ud+4,4)}, v{V['us']}, {SWS}, s56 offen offset:16 sc1
        s_barrier
        ''')
        self.fstamp('bar1')
        self.w2_dma_setup()
        d = [[self.cap(self.w2_dma, r, k) for k in range(8)] for r in range(3)]
        m0_ = self.cap(self.mish, acc, tm, pk, True); p.merge(m0_, d[0][:4]); self.fstamp('m0'); self.act_store(pk, 0); self.fstamp('st0')
        m1_ = self.cap(self.mish, acc + 16, tm, pk + 8, True); p.merge(m1_, d[0][4:]); self.fstamp('m1'); self.act_store(pk + 8, 1)
        self.fstamp('g1m01')
        p.wait_tag('w1dma2')
        p('s_barrier')
        self.fstamp('bar2')
        for ks in range(3): rd(ks, 2, ks % 4)
        us = V['us']
        p(f'ds_write_b128 v{us+1}, {vr(ud,4)}')
        p(f'ds_write_b128 v{us+1}, {vr(ud+4,4)} offset:{U_CH}')
        for ks in range(32):
            p(f'v_mfma_f32_32x32x16_bf16 {vr(acc+32,16)}, {vr(fr+4*(ks%4),4)}, {vr(xf+4*ks,4,"a")}, {vr(acc+32,16)}')
            if ks + 3 < 32: rd(ks + 3, 2, (ks + 3) % 4)
            if ks % 4 == 1: p.ins.extend(d[1][ks // 4])
        self.fstamp('g1p2')
        p('s_barrier')
        m2 = self.cap(self.mish, acc + 32, tm, pk, True); p.merge(m2, d[2]); self.act_store(pk, 2, guard=True)
        self.fstamp('g1mish')
        p.wait_tag('w2dma1')
        p('s_waitcnt lgkmcnt(0)\ns_barrier')
        V.free('g1acc', 'g1fr', 'g1tm', 'g1pk', 'bia', 'w1a', 'ud', 'us')
        A.free('xnf')
        lab = self.lab('nw')
        p(f's_or_b32 s52, {sBETA}, {sWAVE}\ns_cmp_lg_u32 s52, 0\ns_cbranch_scc1 {lab}')
        with p.cond(lambda c: c['w'] == 0):
            p('s_mov_b32 s101, 0')
            self.flag_store('s101', WS_FLG)
        p(f'{lab}:')
    def build(self):
        p, V, A = self.p, self.V, self.A
        self.entry()
        V.free('xv')
        w1rest = self._w1b0[self.o.get('early', 2):]
        self.idle_setup()
        self.gemm1_addr_setup()
        late = self.cap(self.gemm_addr_setup)
        p.ins.extend(late); self.late_setup = []
        p(f'v_add_u32 v{V["us"]+2}, {5*4096}, v{V["us"]+2}')
        if self.o.get('ptouch', 0): self.page_touch_setup()
        self.stamp('idle')
        self.ln()
        self.stamp('lnst')
        ks = self.cap(self.kgen_setup)
        q = w1rest + self._w1b1
        n_ks, n_kv1, n_kv2 = self.o.get('n_ks', 2), self.o.get('n_kv1', 4), self.o.get('n_kv2', 4)
        p.merge(ks, q[:n_ks]); q = q[n_ks:]
        self.w1b2 = self.w1_run(2)
        p('s_barrier')
        self.stamp('ksetup')
        main = self.kgen_values()
        n = len(main); nf = n * self.o.get('kflag', 55) // 100
        p.merge(main[:nf], q[:n_kv1]); q = q[n_kv1:]
        self.ln_flag()
        p.merge(main[nf:], q[:n_kv2]); q = q[n_kv2:]
        V.free('z', 'Z256', 'Cn', 'z2', 'z4', 'w', 'w2', 'w4', 'chains', 'cv', 'fa')
        self.stamp('kvals')
        p('s_waitcnt lgkmcnt(0)\ns_barrier')
        km = self.cap(self.kgen_mfma)
        p.merge(km, q, 2, len(km) - 12)
        self.poll_issue('A1', V['pA1'], 8, 1)
        self.stamp('kmfma')
        p('s_waitcnt lgkmcnt(0)\ns_barrier')
        ex = self.cap(self.expand)
        ncommon = next(k for k, i in enumerate(ex) if i.kind == 'branch')
        h1 = self.o.get('xh1', 40)
        p.ins.extend(ex[:h1])
        self.poll_check('A1', V['pA1'], 8, 1)
        V.free('pA1')
        self.stamp('pollA1')
        self.xn_setup()
        p.merge(ex[h1:ncommon - 1], [self.cap(self.xn_load, k) for k in range(self.o['xlead'])])
        p.ins.extend(ex[ncommon - 1:])
        p('s_waitcnt lgkmcnt(0)\ns_barrier')
        self.stamp('expand')
        self.gemm1()
        self.stamp('gemm1')
        self.conv()
        self.stamp('conv')
        self.gemm2()
        self.stamp('end')
        self.finish()
        return self.finalize()

if __name__ == '__main__':
    kern3.main(Gen8)
```

```python
import sys, math
from regs import vr
import kern2, kern3, kern4, kern5, kern6, kern7, kern8
from kern2 import *
from kern3 import *
from kern4 import *

class Gen9(kern8.Gen8):
    def w1_run(self, blk, swap=False):
        p, V = self.p, self.V
        if blk != 0: return []
        vo = V['w1off']; t = V.alloc('w1t', 2)
        for k in range(3):
            p(f'''
            v_add_u32 v{t}, {64*k}, v1
            v_mul_u32_u24 v{t+1}, 171, v{t}
            v_lshrrev_b32 v{t+1}, 11, v{t+1}
            v_mul_u32_u24 v{vo+k}, 12, v{t+1}
            v_sub_u32 v{vo+k}, v{t}, v{vo+k}
            v_lshlrev_b32 v{vo+k}, 4, v{vo+k}
            v_mul_u32_u24 v{t+1}, 2752, v{t+1}
            v_add_u32 v{vo+k}, v{vo+k}, v{t+1}
            ''')
            if k: p(f'v_subrev_u32 v{vo+k}, {1024*k}, v{vo+k}')
        V.free('w1t')
        p(f'''
        s_mul_i32 s96, {sWAVE}, {128*2752}
        s_lshl_b32 s97, {sFB0}, 6
        s_add_u32 s96, s96, s97
        s_mul_i32 s97, {sWAVE}, {24*1024}
        s_add_u32 s97, s97, {L_W}
        ''')
        gs = []
        for g in range(8):
            for k in range(3):
                with p.capture() as b:
                    if k == 0: p('s_mov_b32 m0, s97')
                    p(f'buffer_load_dwordx4 v{vo+k}, {SW1}, s96 offen offset:{1024*k} lds', tag='w1dma')
                    if k == 2: p(f's_add_u32 s96, s96, {16*2752}\ns_add_u32 s97, s97, 3072')
                gs.append(b)
        self._w1all = gs
        e = self.o.get('early', 3)
        return gs[:e]
    def gemm1_addr_setup(self):
        p, V = self.p, self.V
        t = V.alloc('g1st', 2); wa = V.alloc('w1a', 2); pa = V.alloc('pA1'); bi = V.alloc('bia')
        hh = V['hh']
        p(f'''
        v_lshlrev_b32 v{t}, 3, v{hh}
        v_bfe_u32 v{t+1}, v1, 2, 2
        v_add_u32 v{t}, v{t}, v{t+1}
        v_mul_u32_u24 v{t}, 192, v{t}
        v_bfe_u32 v{t+1}, v1, 4, 1
        v_lshlrev_b32 v{t+1}, 5, v{t+1}
        v_add_u32 v{t}, v{t}, v{t+1}
        v_and_b32 v{t+1}, 3, v1
        v_lshlrev_b32 v{t+1}, 3, v{t+1}
        v_add_u32 v{wa}, v{t}, v{t+1}
        v_add_u32 v{wa}, {L_W}, v{wa}
        v_add_u32 v{wa+1}, {16*3072}, v{wa}
        s_lshl_b32 s56, {sTT}, 2
        s_add_u32 s56, s56, {sWAVE}
        s_lshl_b32 s57, s56, 6
        s_add_u32 s57, s57, {FL_A}
        v_lshlrev_b32 v{t}, 3, v1
        v_add_u32 v{pa}, s57, v{t}
        v_lshlrev_b32 v{bi}, 4, v{hh}
        v_add_u32 v{bi}, {L_BIAS}, v{bi}
        ''')
        V.free('g1st')
    def gemm1(self):
        p, V, A = self.p, self.V, self.A
        xf = A['xnf']; wa = V['w1a']; xlead = self.o['xlead']
        acc = V.alloc('g1acc', 48, align=2); fr = V.alloc('g1fr', 36, align=2); tm = V.alloc('g1tm', 16, align=2); pk = V.alloc('g1pk', 16, align=2)
        p(f'''
        s_mov_b32 s34, {f32(LOG2E)}
        s_lshl_b32 s56, {sTT}, 2
        s_add_u32 s56, s56, {sWAVE}
        s_mul_i32 s35, s56, {86*1024}
        s_lshl_b32 s59, {sFB0}, 11
        s_add_u32 s35, s35, s59
        s_add_u32 s35, s35, {WS_ACT}
        ''')
        for b_ in range(3): self.bias_init(acc + 16 * b_, b_)
        def rd(ks, blk):
            b = fr + 12 * (ks % 3) + 4 * blk; base = wa + (ks >> 4); o = (ks & 15) * 3072 + 64 * blk
            p(f'ds_read_b64_tr_b16 {vr(b,2)}, v{base} offset:{o}')
            p(f'ds_read_b64_tr_b16 {vr(b+2,2)}, v{base} offset:{o+768}')
        for ks in range(2):
            for blk in range(3): rd(ks, blk)
        ud = V.alloc('ud', 8, align=2)
        for ks in range(32):
            if ks + xlead < 32: self.xn_load(ks + xlead)
            for blk in range(3):
                p(f'v_mfma_f32_32x32x16_bf16 {vr(acc+16*blk,16)}, {vr(fr+12*(ks%3)+4*blk,4)}, {vr(xf+4*ks,4,"a")}, {vr(acc+16*blk,16)}')
                if ks + 2 < 32: rd(ks + 2, blk)
            if ks == 22: self.poll_issue('A2', V['us'] + 2, 64, 4)
            if ks == 26:
                self.poll_check('A2', V['us'] + 2, 64, 4)
                p(f'''
                s_lshl_b32 s56, {sWAVE}, 19
                s_lshl_b32 s57, {sBETA}, 5
                s_add_u32 s56, s56, s57
                s_add_u32 s56, s56, {WS_UBLK}
                buffer_load_dwordx4 {vr(ud,4)}, v{V['us']}, {SWS}, s56 offen sc1
                buffer_load_dwordx4 {vr(ud+4,4)}, v{V['us']}, {SWS}, s56 offen offset:16 sc1
                ''')
        self.stamp('g1p1')
        p('s_barrier')
        self.fstamp('bar1')
        self.w2_dma_setup()
        d = [[self.cap(self.w2_dma, r, k) for k in range(8)] for r in range(3)]
        us = V['us']
        for blk in range(3):
            m = self.cap(self.mish, acc + 16 * blk, tm, pk + 8 * (blk & 1), True)
            p.merge(m, d[blk])
            self.act_store(pk + 8 * (blk & 1), blk, guard=(blk == 2))
            self.fstamp(f'm{blk}')
            if blk == 0:
                p(f'ds_write_b128 v{us+1}, {vr(ud,4)}')
                p(f'ds_write_b128 v{us+1}, {vr(ud+4,4)} offset:{U_CH}')
        p.wait_tag('w2dma1')
        p('s_waitcnt lgkmcnt(0)\ns_barrier')
        V.free('g1acc', 'g1fr', 'g1tm', 'g1pk', 'bia', 'w1a', 'ud', 'us')
        A.free('xnf')
        lab = self.lab('nw')
        p(f's_or_b32 s52, {sBETA}, {sWAVE}\ns_cmp_lg_u32 s52, 0\ns_cbranch_scc1 {lab}')
        with p.cond(lambda c: c['w'] == 0):
            p('s_mov_b32 s101, 0')
            self.flag_store('s101', WS_FLG)
        p(f'{lab}:')
    def build(self):
        p, V, A = self.p, self.V, self.A
        self.entry()
        V.free('xv')
        q = self._w1all[self.o.get('early', 3):]
        self.idle_setup()
        self.gemm1_addr_setup()
        late = self.cap(self.gemm_addr_setup)
        p.ins.extend(late); self.late_setup = []
        p(f'v_add_u32 v{V["us"]+2}, {5*4096}, v{V["us"]+2}')
        if self.o.get('ptouch', 0): self.page_touch_setup()
        self.stamp('idle')
        self.ln()
        self.stamp('lnst')
        ks = self.cap(self.kgen_setup)
        n_ks, n_kv1, n_kv2 = self.o.get('n_ks', 3), self.o.get('n_kv1', 6), self.o.get('n_kv2', 6)
        p.merge(ks, q[:n_ks]); q = q[n_ks:]
        p('s_barrier')
        self.stamp('ksetup')
        main = self.kgen_values()
        n = len(main); nf = n * self.o.get('kflag', 55) // 100
        p.merge(main[:nf], q[:n_kv1]); q = q[n_kv1:]
        self.ln_flag()
        p.merge(main[nf:], q[:n_kv2]); q = q[n_kv2:]
        V.free('z', 'Z256', 'Cn', 'z2', 'z4', 'w', 'w2', 'w4', 'chains', 'cv', 'fa')
        self.stamp('kvals')
        p('s_waitcnt lgkmcnt(0)\ns_barrier')
        km = self.cap(self.kgen_mfma)
        p.merge(km, q, 2, len(km) - 12)
        V.free('w1off')
        self.poll_issue('A1', V['pA1'], 8, 1)
        self.stamp('kmfma')
        p('s_waitcnt lgkmcnt(0)\ns_barrier')
        ex = self.cap(self.expand)
        ncommon = next(k for k, i in enumerate(ex) if i.kind == 'branch')
        h1 = self.o.get('xh1', 40)
        p.ins.extend(ex[:h1])
        self.poll_check('A1', V['pA1'], 8, 1)
        V.free('pA1')
        self.stamp('pollA1')
        self.xn_setup()
        p.merge(ex[h1:ncommon - 1], [self.cap(self.xn_load, k) for k in range(self.o['xlead'])])
        p.ins.extend(ex[ncommon - 1:])
        p('s_waitcnt lgkmcnt(0)\ns_barrier')
        self.stamp('expand')
        self.gemm1()
        self.stamp('gemm1')
        self.conv()
        self.stamp('conv')
        self.gemm2()
        self.stamp('end')
        self.finish()
        return self.finalize()

if __name__ == '__main__':
    kern3.main(Gen9)
```

```python
import sys, math
from regs import vr
import kern2, kern3, kern4, kern5, kern6, kern7, kern8, kern9
from kern2 import *
from kern3 import *
from kern4 import *

class Gen10(kern9.Gen9):
    def __init__(self, **kw):
        super().__init__(**kw)
        if 'pads' not in (kw.get('opts') or {}): self.o['pads'] = 0
    def entry(self):
        p, V = self.p, self.V
        for nm, cnt in (('l16', 1), ('n31', 1), ('hh', 1), ('cA', 3), ('cB', 2), ('ce', 6), ('us', 3), ('w2a', 7), ('g2a', 8)): V.prealloc(nm, cnt, align=1)
        x0 = V.alloc('x0', 4); x1 = V.alloc('x1', 4)
        l16 = V.alloc('l16')
        if self.stamps: p('s_memrealtime s[98:99]')
        p(f'''
        s_load_dwordx16 s[64:79], s[0:1], 0
        s_load_dwordx8 s[80:87], s[0:1], 64
        s_load_dwordx4 s[88:91], s[0:1], 96
        s_cmp_ge_u32 s2, 256
        s_cbranch_scc1 L_end
        v_and_b32 v1, 63, v0
        ''')
        if self.o.get('ctouch', 1):
            ct = V.alloc('ctv', 4, align=2)
            n = self.o.get('ctn', 8)
            p(f'''
            s_getpc_b64 s[52:53]
            L_pc0:
            s_lshr_b32 s54, s2, 3
            s_mul_i32 s54, s54, {n}
            v_add_u32 v{ct+2}, s54, v0
            s_add_u32 s52, s52, L_main-L_pc0
            s_addc_u32 s53, s53, 0
            v_lshlrev_b32 v{ct}, 7, v{ct+2}
            v_mov_b32 v{ct+1}, s53
            v_add_co_u32 v{ct}, vcc, s52, v{ct}
            v_addc_co_u32 v{ct+1}, vcc, 0, v{ct+1}, vcc
            v_cmp_gt_u32 s[58:59], {n}, v0
            v_cmp_gt_u32 vcc, (L_end-L_main)/128, v{ct+2}
            s_and_b64 vcc, vcc, s[58:59]
            s_and_saveexec_b64 s[56:57], vcc
            s_cbranch_execz L_noct
            global_load_dword v{ct+2}, v[{ct}:{ct+1}], off
            L_noct:
            s_mov_b64 exec, s[56:57]
            ''')
        p(f'''
        v_lshrrev_b32 v2, 6, v0
        s_and_b32 s52, s2, 7
        s_lshr_b32 s53, s2, 3
        v_readfirstlane_b32 {sWAVE}, v2
        s_lshl_b32 {sBETA}, s52, 5
        s_add_u32 {sBETA}, {sBETA}, s53
        v_lshlrev_b32 v{l16}, 4, v1
        s_lshl_b32 s52, {sBETA}, 3
        s_lshl_b32 s53, {sWAVE}, 1
        s_add_u32 s52, s52, s53
        s_lshl_b32 s52, s52, 10
        s_mov_b32 s10, 0x200000
        s_mov_b32 s11, 0x20000
        s_lshr_b32 {sCH}, {sWAVE}, 1
        s_and_b32 {sROLE}, {sWAVE}, 1
        s_and_b32 s54, {sBETA}, 15
        s_mul_i32 {sFB0}, s54, 3
        s_lshl_b32 s55, s54, 1
        s_add_u32 s55, s55, 11
        s_cmp_lt_u32 s54, 11
        s_cselect_b32 {sFB0}, {sFB0}, s55
        s_cselect_b32 {sNBLK}, 3, 2
        s_lshr_b32 {sTT}, {sBETA}, 4
        s_lshr_b32 {sTG}, {sBETA}, 3
        s_and_b32 {sCG}, {sBETA}, 7
        s_waitcnt lgkmcnt(0)
        s_mov_b32 s8, s64
        s_mov_b32 s9, s65
        ''')
        if self.stamps: p('s_mov_b32 s36, s98')
        p(f'buffer_load_dwordx4 {vr(x0,4)}, v{l16}, {SX}, s52 offen')
        p(f'buffer_load_dwordx4 {vr(x1,4)}, v{l16}, {SX}, s52 offen offset:1024')
        V.alloc('par', 4); V.alloc('nonce'); V.alloc('biasv', 2, align=1); V.alloc('touch', 2); V.alloc('w1off', 4); V.alloc('olt', 2)
        p(f'''
        s_mov_b32 s20, s90
        s_mov_b32 s21, s91
        s_mov_b32 s22, {WS_BYTES}
        s_mov_b32 s23, 0x20000
        s_mov_b32 s28, s82
        s_mov_b32 s29, s83
        s_mov_b32 s30, {1376*2}
        s_mov_b32 s31, 0x20000
        s_mov_b32 s12, s80
        s_mov_b32 s13, s81
        s_mov_b32 s14, {512*1376*2}
        s_mov_b32 s15, 0x20000
        s_mov_b32 s16, s84
        s_mov_b32 s17, s85
        s_mov_b32 s18, {512*1376*2}
        s_mov_b32 s19, 0x20000
        s_mov_b32 s24, s86
        s_mov_b32 s25, s87
        s_mov_b32 s26, 0x200000
        s_mov_b32 s27, 0x20000
        s_mov_b64 {pDBG}, s[88:89]
        ''')
        if self.o.get('ppos', 0) == 0: self.other_loads()
        self.stamp('start')
        if self.stamps: p('v_writelane_b32 v255, s36, 62')
        if self.o['pads']:
            p('s_mov_b64 exec, 0\n;WARM\nL_warm_ret:\ns_mov_b64 exec, -1')
            p('s_branch L_main\n.p2align 12\nL_main:')
        elif self.o.get('align', 0):
            p('s_branch L_main\n.p2align 12\nL_main:')
        else:
            p('L_main:')
    def other_loads(self):
        p, V = self.p, self.V
        pr, nv, bv, tv = V['par'], V['nonce'], V['biasv'], V['touch']
        t = V['olt']
        p(f'''
        s_lshl_b32 s54, {sBETA}, 1
        s_add_u32 s54, s54, {sCH}
        s_lshl_b32 s54, s54, 8
        v_lshlrev_b32 v{t+1}, 2, v1
        v_add_u32 v{t}, s54, v{t+1}
        s_lshl_b32 s58, {sBETA}, 2
        global_load_dword v{pr}, v{t}, {pLOGA}
        global_load_dword v{pr+1}, v{t}, {pAIM}
        global_load_dword v{pr+2}, v{t}, {pCRE}
        global_load_dword v{pr+3}, v{t}, {pCIM}
        s_load_dword {sLDT}, {pLOGDT}, s58
        s_load_dword {sDSK}, {pDSK}, s58
        v_mov_b32 v{t}, {WS_FLG}
        buffer_load_dword v{nv}, v{t}, {SWS}, 0 offen sc1
        ''')
        l1 = self.lab('e1'); l2 = self.lab('e2'); le = self.lab('ee')
        p(f's_cmp_eq_u32 {sWAVE}, 1\ns_cbranch_scc0 {l1}')
        with p.cond(lambda c: c['w'] == 1):
            p(f's_lshl_b32 s52, {sFB0}, 6\nv_lshlrev_b32 v{t}, 1, v1')
            p(f'buffer_load_ushort v{bv}, v{t}, {SB1}, s52 offen')
            p(f'buffer_load_ushort v{bv+1}, v{t}, {SB1}, s52 offen offset:128')
        p(f's_branch {le}\n{l1}:')
        mt = self.o.get('mtouch', 5)
        p(f's_mul_i32 s52, s2, 5504\nv_lshlrev_b32 v{t}, 7, v1\ns_mov_b32 exec_hi, 0x7ff')
        p(f's_cmp_eq_u32 {sWAVE}, 0\ns_cbranch_scc0 {l2}')
        with p.cond(lambda c: c['w'] == 0):
            if mt & 1: p(f'buffer_load_dword v{tv}, v{t}, {SW1}, s52 offen')
        p(f's_branch {le}\n{l2}:')
        p(f's_cmp_eq_u32 {sWAVE}, 2\ns_cbranch_scc0 {le}')
        with p.cond(lambda c: c['w'] == 2):
            if mt & 4: p(f'buffer_load_dword v{tv}, v{t}, {SW2}, s52 offen')
        p(f'{le}:\ns_mov_b32 exec_hi, -1')
    def build(self):
        p, V, A = self.p, self.V, self.A
        self.entry()
        ppos = self.o.get('ppos', 0)
        early = self.w1_run(0, swap=True)
        a = self.cap(self.idle_setup) + self.cap(self.gemm1_addr_setup)
        late = self.cap(self.gemm_addr_setup)
        setup = a + late + self.cap(lambda: p(f'v_add_u32 v{V["us"]+2}, {5*4096}, v{V["us"]+2}'))
        cut = {1: len(setup) * self.o.get('pcut', 40) // 100, 2: len(setup), 0: 0}[ppos]
        marks = [k for k, i in enumerate(setup) if i.text.startswith('s_mov_b32 s34, 128') or i.text in ('; MARK_W2', '; MARK_G2')]
        if ppos == 1: cut = min(marks, key=lambda m: abs(m - cut))
        p.ins.extend(setup[:cut])
        if ppos >= 1: self.other_loads()
        for g_ in early: p.ins.extend(g_)
        p.ins.extend(setup[cut:])
        self.late_setup = []
        q = self._w1all[self.o.get('early', 3):]
        self.stamp('idle')
        self.ln()
        self.stamp('lnst')
        ks = self.cap(self.kgen_setup)
        n_ks, n_kv1, n_kv2 = self.o.get('n_ks', 3), self.o.get('n_kv1', 6), self.o.get('n_kv2', 6)
        p.merge(ks, q[:n_ks]); q = q[n_ks:]
        p('s_barrier')
        self.stamp('ksetup')
        main = self.kgen_values()
        n = len(main); nf = n * self.o.get('kflag', 45) // 100
        p.merge(main[:nf], q[:n_kv1]); q = q[n_kv1:]
        self.ln_flag()
        p.merge(main[nf:], q[:n_kv2]); q = q[n_kv2:]
        V.free('z', 'Z256', 'Cn', 'z2', 'z4', 'w', 'w2', 'w4', 'chains', 'cv', 'fa')
        self.stamp('kvals')
        p('s_waitcnt lgkmcnt(0)\ns_barrier')
        km = self.cap(self.kgen_mfma)
        p.merge(km, q, 2, len(km) - 12)
        V.free('w1off')
        self.poll_issue('A1', V['pA1'], 8, 1)
        self.stamp('kmfma')
        p('s_waitcnt lgkmcnt(0)\ns_barrier')
        ex = self.cap(self.expand)
        ncommon = next(k for k, i in enumerate(ex) if i.kind == 'branch')
        h1 = self.o.get('xh1', 40)
        p.ins.extend(ex[:h1])
        self.poll_check('A1', V['pA1'], 8, 1)
        V.free('pA1')
        self.stamp('pollA1')
        self.xn_setup()
        p.merge(ex[h1:ncommon - 1], [self.cap(self.xn_load, k) for k in range(self.o['xlead'])])
        p.ins.extend(ex[ncommon - 1:])
        p('s_waitcnt lgkmcnt(0)\ns_barrier')
        self.stamp('expand')
        self.gemm1()
        self.stamp('gemm1')
        self.conv()
        self.stamp('conv')
        self.gemm2()
        self.stamp('end')
        self.finish()
        return self.finalize()

if __name__ == '__main__':
    kern3.main(Gen10)
```

```python
import sys, math
from regs import vr
import kern2
from kern2 import *
import pads as PADS

L_BIAS = L_MISC + 64
L_X = L_F + 50688
W1B = 32768
ROUNDS = [(0, 8), (8, 16), (16, 24), (24, 32), (32, 40), (40, 43)]
RREG = [L_W, L_W + W1B, L_W + 2 * W1B, L_W, L_W + W1B, L_X]
NRING = 12
ST3_L = L_U

class Gen3(kern2.Gen):
    def __init__(self, **kw):
        super().__init__(**kw)
        self.o.setdefault('xlead', 10); self.o.setdefault('alead', 10)
    def fstamp(self, name):
        if self.o.get('fine') or getattr(self, 'only', None) is not None: self.stamp(name)
    def entry(self):
        p, V = self.p, self.V
        x0 = V.alloc('x0', 4); x1 = V.alloc('x1', 4)
        l16 = V.alloc('l16'); t = V.alloc('t0'); t2 = V.alloc('t1')
        if self.stamps: p('s_memrealtime s[98:99]')
        p(f'''
        s_load_dwordx16 s[64:79], s[0:1], 0
        s_load_dwordx8 s[80:87], s[0:1], 64
        s_load_dwordx4 s[88:91], s[0:1], 96
        s_cmp_ge_u32 s2, 256
        s_cbranch_scc1 L_end
        v_and_b32 v1, 63, v0
        v_lshrrev_b32 v2, 6, v0
        s_and_b32 s52, s2, 7
        s_lshr_b32 s53, s2, 3
        v_readfirstlane_b32 {sWAVE}, v2
        s_lshl_b32 {sBETA}, s52, 5
        s_add_u32 {sBETA}, {sBETA}, s53
        v_lshlrev_b32 v{l16}, 4, v1
        s_lshl_b32 s52, {sBETA}, 3
        s_lshl_b32 s53, {sWAVE}, 1
        s_add_u32 s52, s52, s53
        s_lshl_b32 s52, s52, 10
        s_mov_b32 s10, 0x200000
        s_mov_b32 s11, 0x20000
        s_lshr_b32 {sCH}, {sWAVE}, 1
        s_and_b32 {sROLE}, {sWAVE}, 1
        s_lshl_b32 s54, {sBETA}, 1
        s_add_u32 s54, s54, {sCH}
        s_lshl_b32 s54, s54, 8
        v_lshlrev_b32 v{t2}, 2, v1
        v_add_u32 v{t}, s54, v{t2}
        s_lshl_b32 s58, {sBETA}, 2
        s_and_b32 s54, {sBETA}, 15
        s_mul_i32 {sFB0}, s54, 3
        s_lshl_b32 s55, s54, 1
        s_add_u32 s55, s55, 11
        s_cmp_lt_u32 s54, 11
        s_cselect_b32 {sFB0}, {sFB0}, s55
        s_cselect_b32 {sNBLK}, 3, 2
        s_waitcnt lgkmcnt(0)
        s_mov_b32 s8, s64
        s_mov_b32 s9, s65
        ''')
        if self.stamps: p('s_mov_b32 s36, s98')
        p(f'buffer_load_dwordx4 {vr(x0,4)}, v{l16}, {SX}, s52 offen')
        p(f'buffer_load_dwordx4 {vr(x1,4)}, v{l16}, {SX}, s52 offen offset:1024')
        pr = V.alloc('par', 4)
        p(f'''
        global_load_dword v{pr}, v{t}, {pLOGA}
        global_load_dword v{pr+1}, v{t}, {pAIM}
        global_load_dword v{pr+2}, v{t}, {pCRE}
        global_load_dword v{pr+3}, v{t}, {pCIM}
        s_load_dword {sLDT}, {pLOGDT}, s58
        s_load_dword {sDSK}, {pDSK}, s58
        s_mov_b32 s20, s90
        s_mov_b32 s21, s91
        s_mov_b32 s22, {WS_BYTES}
        s_mov_b32 s23, 0x20000
        s_mov_b32 s12, s80
        s_mov_b32 s13, s81
        s_mov_b32 s14, {512*1376*2}
        s_mov_b32 s15, 0x20000
        s_mov_b32 s28, s82
        s_mov_b32 s29, s83
        s_mov_b32 s30, {1376*2}
        s_mov_b32 s31, 0x20000
        ''')
        nv = V.alloc('nonce'); vo = V.alloc('w1off', 4)
        p(f'''
        v_lshrrev_b32 v{t}, 2, v1
        v_mul_u32_u24 v{t}, 2752, v{t}
        v_and_b32 v{vo}, 3, v1
        v_lshlrev_b32 v{vo}, 4, v{vo}
        v_add_u32 v{vo}, v{vo}, v{t}
        v_add_u32 v{vo+1}, {16*2752-1024}, v{vo}
        v_add_u32 v{vo+2}, {2*(16*2752-1024)}, v{vo}
        v_add_u32 v{vo+3}, {3*(16*2752-1024)}, v{vo}
        ''')
        l0 = self.lab('e0'); l1 = self.lab('e1'); l2 = self.lab('e2')
        p(f's_cmp_ge_u32 {sWAVE}, 2\ns_cbranch_scc1 {l1}')
        p(f's_cmp_eq_u32 {sWAVE}, 0\ns_cbranch_scc0 {l0}')
        with p.cond(lambda c: c['w'] == 0):
            p(f'v_mov_b32 v{t}, {WS_FLG}')
            p(f'buffer_load_dword v{nv}, v{t}, {SWS}, 0 offen sc1')
        p(f's_branch {l2}\n{l0}:')
        with p.cond(lambda c: c['w'] == 1):
            p(f's_lshl_b32 s52, {sFB0}, 6')
            p(f'buffer_load_dword v{nv}, v{t2}, {SB1}, s52 offen')
        p(f's_branch {l2}\n{l1}:')
        with p.cond(lambda c: c['w'] >= 2):
            p(f'''
            s_sub_u32 s52, {sWAVE}, 2
            s_mul_i32 s53, s52, {12*16*2752}
            s_lshl_b32 s54, {sFB0}, 6
            s_add_u32 s96, s53, s54
            s_mul_i32 s53, s52, {12*1024}
            s_add_u32 m0, s53, {L_W}
            ''')
            for g in range(3):
                for k in range(4):
                    p(f'buffer_load_dwordx4 v{vo+k}, {SW1}, s96 offen offset:{1024*k} lds', tag='w1dma')
                if g < 2: p(f's_add_u32 s96, s96, {4*16*2752}\ns_add_u32 m0, m0, 4096')
        p(f'{l2}:')
        p(f'''
        s_mov_b32 s16, s84
        s_mov_b32 s17, s85
        s_mov_b32 s18, {512*1376*2}
        s_mov_b32 s19, 0x20000
        s_mov_b32 s24, s86
        s_mov_b32 s25, s87
        s_mov_b32 s26, 0x200000
        s_mov_b32 s27, 0x20000
        s_mov_b64 {pDBG}, s[88:89]
        s_lshr_b32 {sTT}, {sBETA}, 4
        s_lshr_b32 {sTG}, {sBETA}, 3
        s_and_b32 {sCG}, {sBETA}, 7
        ''')
        V.free('t0', 't1')
        self.stamp('start')
        if self.stamps:
            p('v_writelane_b32 v255, s36, 62')
        if self.o['pads']:
            p('s_mov_b64 exec, 0\n;WARM\nL_warm_ret:\ns_mov_b64 exec, -1')
        p('s_branch L_main\n.p2align 12\nL_main:')
    def idle_setup(self):
        p, V = self.p, self.V
        t = V.alloc('ist', 8, align=2)
        n31 = V.alloc('n31'); hh = V.alloc('hh')
        p(f'v_and_b32 v{n31}, 31, v1\nv_lshrrev_b32 v{hh}, 5, v1')
        z = t + 4
        for k in range(4): p(f'v_mov_b32 v{z+k}, 0')
        p(f'v_lshlrev_b32 v{t}, 4, v0\nv_add_u32 v{t}, {L_T}, v{t}')
        p(f'ds_write_b128 v{t}, {vr(z,4)}')
        p(f'''
        v_cmp_gt_u32 vcc, {(2*T_CH-4096)//16}, v0
        s_and_saveexec_b64 s[62:63], vcc
        ds_write_b128 v{t}, {vr(z,4)} offset:4096
        s_mov_b64 exec, s[62:63]
        ''')
        fa = V.alloc('fa', 14); kr = V.alloc('kr', 2); kt = V.alloc('ktb', 3)
        p(f'''
        s_mul_i32 s52, {sWAVE}, {F_WAVE}
        s_add_u32 s52, s52, {L_F}
        v_lshlrev_b32 v{fa}, 2, v1
        v_add_u32 v{fa}, s52, v{fa}
        ''')
        for k in range(1, 6): p(f'v_add_u32 v{fa+k}, {4*272*k}, v{fa}')
        for k in range(8): p(f'v_add_u32 v{fa+6+k}, {(21+4*k)*272}, v{fa}')
        p(f'''
        v_and_b32 v{t}, 15, v1
        v_lshrrev_b32 v{t+1}, 4, v1
        v_lshlrev_b32 v{kr}, 4, v{t+1}
        v_mul_u32_u24 v{t+2}, 272, v{t}
        v_add_u32 v{kr}, v{kr}, v{t+2}
        s_mul_i32 s52, {sCH}, {2*F_WAVE}
        s_add_u32 s52, s52, {L_F}
        v_add_u32 v{kr}, s52, v{kr}
        s_mul_i32 s53, {sROLE}, {16*272}
        s_add_u32 s53, s53, {21*272}
        v_add_u32 v{kr+1}, s53, v{kr}
        s_lshl_b32 s53, {sROLE}, 4
        v_add_u32 v{t}, s53, v{t}
        s_mul_i32 s52, {sCH}, {T_CH}
        s_add_u32 s52, s52, {L_T}
        v_lshlrev_b32 v{kt}, 5, v{t}
        v_lshlrev_b32 v{t+2}, 4, v{t+1}
        v_add_u32 v{kt}, v{kt}, v{t+2}
        v_lshlrev_b32 v{t+2}, 4, v{t}
        v_add_u32 v{t+2}, 1024, v{t+2}
        v_cmp_eq_u32 s[54:55], 2, v{t+1}
        v_cndmask_b32 v{kt}, v{kt}, v{t+2}, s[54:55]
        v_lshlrev_b32 v{t+2}, 3, v{t}
        v_add_u32 v{t+2}, 1536, v{t+2}
        v_cmp_eq_u32 s[54:55], 3, v{t+1}
        v_cndmask_b32 v{kt}, v{kt}, v{t+2}, s[54:55]
        v_mov_b32 v{kt+1}, 8
        v_mov_b32 v{t+2}, 256
        v_cndmask_b32 v{kt+1}, v{kt+1}, v{t+2}, s[54:55]
        v_add_u32 v{kt}, s52, v{kt}
        v_add_u32 v{kt+1}, v{kt+1}, v{kt}
        v_min_u32 v{kt+2}, 1, v{t+1}
        v_lshlrev_b32 v{kt+2}, 9, v{kt+2}
        v_lshlrev_b32 v{t+2}, 2, v{t}
        v_add_u32 v{kt+2}, v{kt+2}, v{t+2}
        v_add_u32 v{kt+2}, s52, v{kt+2}
        v_add_u32 v{kt+2}, 2048, v{kt+2}
        ''')
        ea = V.alloc('expad', 11)
        p(f'v_lshlrev_b32 v{t}, 3, v0\nv_sub_u32 v{t}, 2033, v{t}')
        p(f'v_mov_b32 v{t+3}, {T_ZERO//4}')
        p('s_mov_b32 s34, 128')
        for d in range(11):
            J = t + 1; fJ = t + 2; c = ea + d
            p(f'''
            v_add_u32 v{J}, {d}, v{t}
            v_cvt_f32_i32 v{fJ}, v{J}
            v_cmp_gt_i32 s[56:57], 0, v{J}
            v_cvt_pk_bf16_f32 v{fJ}, v{fJ}, v{fJ}
            v_cmp_gt_i32 s[58:59], s34, v{J}
            v_and_b32 v{fJ}, 0xffff, v{fJ}
            v_subrev_u32 v{c}, 17024, v{fJ}
            v_cndmask_b32 v{c}, v{c}, v{J}, s[58:59]
            v_cndmask_b32 v{c}, v{c}, v{t+3}, s[56:57]
            v_lshlrev_b32 v{c}, 2, v{c}
            v_add_u32 v{c}, {L_T}, v{c}
            ''')
        V.free('ist')
    def gemm1_addr_setup(self):
        p, V = self.p, self.V
        t = V.alloc('g1st', 2); wa = V.alloc('w1a', 2); pa = V.alloc('pA1'); bi = V.alloc('bia')
        hh = V['hh']
        p(f'''
        v_lshlrev_b32 v{t}, 3, v{hh}
        v_bfe_u32 v{t+1}, v1, 2, 2
        v_add_u32 v{t}, v{t}, v{t+1}
        v_lshlrev_b32 v{t}, 6, v{t}
        v_bfe_u32 v{t+1}, v1, 4, 1
        v_lshlrev_b32 v{t+1}, 5, v{t+1}
        v_add_u32 v{t}, v{t}, v{t+1}
        v_and_b32 v{t+1}, 3, v1
        v_lshlrev_b32 v{t+1}, 3, v{t+1}
        v_add_u32 v{wa}, v{t}, v{t+1}
        v_add_u32 v{wa}, {L_W}, v{wa}
        v_add_u32 v{wa+1}, {2*W1B}, v{wa}
        s_lshl_b32 s56, {sTT}, 2
        s_add_u32 s56, s56, {sWAVE}
        s_lshl_b32 s57, s56, 6
        s_add_u32 s57, s57, {FL_A}
        v_lshlrev_b32 v{t}, 3, v1
        v_add_u32 v{pa}, s57, v{t}
        v_lshlrev_b32 v{bi}, 4, v{hh}
        v_add_u32 v{bi}, {L_BIAS}, v{bi}
        ''')
        V.free('g1st')
    def bias_to_lds(self):
        p, V = self.p, self.V
        nv = V['nonce']; t = V.alloc('btl', 4, align=2)
        p(f'''
        v_lshlrev_b32 v{t}, 16, v{nv}
        v_and_b32 v{t+1}, 0xffff0000, v{nv}
        v_lshlrev_b32 v{t+2}, 3, v1
        v_add_u32 v{t+2}, {L_BIAS}, v{t+2}
        s_mov_b32 exec_lo, -1
        s_mov_b32 exec_hi, 0xffff
        ds_write_b64 v{t+2}, {vr(t,2)}
        s_mov_b64 exec, -1
        ''')
        V.free('btl')
    def bias_init(self, acc, blk):
        p = self.p
        for q in range(4): p(f'ds_read_b128 {vr(acc+4*q,4)}, v{self.V["bia"]} offset:{128*blk+32*q}')
    def w1_late_groups(self):
        p, V = self.p, self.V
        vo = V['w1off']
        def run(blk, rg0_expr, n):
            gs = []
            with p.capture() as b:
                p(rg0_expr)
                p(f'''
                s_mul_i32 s96, s98, {16*2752}
                s_lshl_b32 s97, {sFB0}, 6
                s_add_u32 s96, s96, s97
                s_add_u32 s96, s96, {64*blk}
                s_lshl_b32 s97, s98, 10
                s_add_u32 m0, s97, {L_W + W1B*blk}
                ''')
                p(f'buffer_load_dwordx4 v{vo}, {SW1}, s96 offen lds', tag='w1dma')
            gs.append(b)
            for k in range(1, n):
                with p.capture() as b:
                    if k % 4 == 0: p(f's_add_u32 s96, s96, {4*16*2752}\ns_add_u32 m0, m0, 4096')
                    p(f'buffer_load_dwordx4 v{vo+k%4}, {SW1}, s96 offen offset:{1024*(k%4)} lds', tag='w1dma')
                gs.append(b)
            return gs
        a = run(0, f's_lshl_b32 s98, {sWAVE}, 1\ns_add_u32 s98, s98, 24', 2)
        a += run(1, f's_lshl_b32 s98, {sWAVE}, 3', 8)
        with p.cond(lambda c: c['nblk'] == 3):
            b = run(2, f's_lshl_b32 s98, {sWAVE}, 3', 8)
        return a, b
    def kgen_setup(self):
        p, V = self.p, self.V
        pr = V['par']
        t = V.alloc('kt', 8, align=2)
        z = V.alloc('z', 2); Z = V.alloc('Z256', 2); C = V.alloc('Cn', 2)
        p(f'''
        s_lshl_b32 s53, {sLDT}, 16
        s_and_b32 s54, {sLDT}, 0xffff0000
        s_lshl_b32 s56, {sDSK}, 16
        s_and_b32 s55, {sDSK}, 0xffff0000
        s_cmp_eq_u32 {sCH}, 0
        s_cselect_b32 s53, s53, s54
        s_cselect_b32 {sDV}, s56, s55
        s_cmp_eq_u32 {sROLE}, 0
        s_cselect_b32 s57, 16, 0
        v_mov_b32 v{t}, s53
        v_mul_f32 v{t}, {f32(LOG2E)}, v{t}
        v_lshlrev_b32 v{t+1}, s57, v{pr}
        v_and_b32 v{t+1}, 0xffff0000, v{t+1}
        v_mul_f32 v{t+1}, {f32(LOG2E)}, v{t+1}
        v_exp_f32 v{t}, v{t}
        v_exp_f32 v{t+1}, v{t+1}
        v_and_b32 v{t+2}, 0x7fff7fff, v{pr+2}
        v_and_b32 v{t+3}, 0x7fff7fff, v{pr+3}
        v_pk_max_u16 v{t+2}, v{t+2}, v{t+3}
        v_cvt_pk_bf16_f32 v{t}, v{t}, v{t+1}
        v_lshrrev_b32 v{t+3}, 16, v{t+2}
        v_and_b32 v{t+2}, 0xffff, v{t+2}
        v_max_u32 v{t+2}, v{t+2}, v{t+3}
        v_and_b32 v{t+1}, 0xffff0000, v{t}
        v_lshlrev_b32 v{t}, 16, v{t}
        v_lshlrev_b32 v{pr+1}, s57, v{pr+1}
        v_lshlrev_b32 v{pr+2}, s57, v{pr+2}
        v_lshlrev_b32 v{pr+3}, s57, v{pr+3}
        ''')
        ctl = ['row_shr:1 row_mask:0xf bank_mask:0xf bound_ctrl:1', 'row_shr:2 row_mask:0xf bank_mask:0xf bound_ctrl:1',
               'row_shr:4 row_mask:0xf bank_mask:0xf bound_ctrl:1', 'row_shr:8 row_mask:0xf bank_mask:0xf bound_ctrl:1',
               'row_bcast:15 row_mask:0xa bank_mask:0xf', 'row_bcast:31 row_mask:0xc bank_mask:0xf']
        fill = [[f'v_mul_f32 v{t+3}, v{t+1}, v{t}', f'v_and_b32 v{t+4}, 0xffff0000, v{pr+1}'],
                [f'v_mul_f32 v{t+4}, v{t+4}, v{t}', f'v_mul_f32 v{t+3}, {f32(-LOG2E)}, v{t+3}'],
                [f'v_mul_f32 v{t+4}, {f32(1/(2*math.pi))}, v{t+4}', f'v_mul_f32 v{t+5}, {f32(256.0)}, v{t+3}'],
                [f'v_mul_f32 v{t+6}, {f32(256.0)}, v{t+4}', f'v_fract_f32 v{t+7}, v{t+4}'],
                [f'v_fract_f32 v{t+6}, v{t+6}', f'v_exp_f32 v{t+3}, v{t+3}'],
                [f'v_exp_f32 v{t+5}, v{t+5}', f'v_cos_f32 v{z}, v{t+7}']]
        for c, f in zip(ctl, fill):
            p(f'v_max_u32_dpp v{t+2}, v{t+2}, v{t+2} {c}')
            for x in f: p(x)
        p(f'''
        v_sin_f32 v{z+1}, v{t+7}
        v_readlane_b32 s52, v{t+2}, 63
        v_cos_f32 v{Z}, v{t+6}
        v_sin_f32 v{Z+1}, v{t+6}
        s_and_b32 s52, s52, 0x7f80
        s_lshl_b32 s52, s52, 16
        s_sub_u32 s53, 0x7f000000, s52
        v_and_b32 v{C}, 0xffff0000, v{pr+2}
        v_and_b32 v{C+1}, 0xffff0000, v{pr+3}
        v_mul_f32 v{t}, s52, v{t}
        v_mul_f32 v{C}, s53, v{C}
        v_mul_f32 v{C+1}, s53, v{C+1}
        v_add_f32 v{t}, v{t}, v{t}
        v_mul_f32 v{z}, v{z}, v{t+3}
        v_mul_f32 v{z+1}, v{z+1}, v{t+3}
        v_readfirstlane_b32 {sSIG}, v{t}
        v_mul_f32 v{Z}, v{Z}, v{t+5}
        v_mul_f32 v{Z+1}, v{Z+1}, v{t+5}
        ''')
        V.free('kt', 'par')
    def kgen_values(self):
        p, V = self.p, self.V
        z, Z, C, fa = V['z'], V['Z256'], V['Cn'], V['fa']
        cv = V.alloc('cv', 24)
        valu = []; stores = []; have = {}
        self._cvi = 0
        def emit(s):
            with p.capture() as b: p(s)
            valu.extend(b)
        def win(row):
            if row < 21: return fa + row // 4, (row % 4) * 68
            return fa + 6 + (row - 21) // 4, ((row - 21) % 4) * 68
        def partner(row):
            if row == 20: return None
            if row < 21: return row ^ 1
            return 21 + ((row - 21) ^ 1)
        def done(row, c):
            have[row] = c
            q = partner(row)
            if q is None:
                b_, o = win(row)
                with p.capture() as b: p(f'ds_write_b32 v{b_}, v{c} offset:{4*o}')
                stores.append((len(valu), b[0]))
            elif q in have:
                lo, hi = min(row, q), max(row, q)
                b_, o0 = win(lo); _, o1 = win(hi)
                with p.capture() as b: p(f'ds_write2_b32 v{b_}, v{have[lo]}, v{have[hi]} offset0:{o0} offset1:{o1}')
                stores.append((len(valu), b[0]))
        def put(row, r, neg=False):
            c = cv + (self._cvi % 24); self._cvi += 1
            emit(f'v_cvt_pk_f16_f32 v{c}, v{r}, {"-" if neg else ""}v{r+1}')
            done(row, c)
        def cm(items):
            for d, a, b in items: emit(f'v_pk_mul_f32 {vr(d,2)}, {vr(a,2)}, {vr(b,2)} op_sel:[0,0] op_sel_hi:[0,1]')
            for d, a, b in items: emit(f'v_pk_fma_f32 {vr(d,2)}, {vr(a,2)}, {vr(b,2)}, {vr(d,2)} op_sel:[1,1,0] op_sel_hi:[1,0,1] neg_lo:[1,0,0]')
        z2 = V.alloc('z2', 2); z4 = V.alloc('z4', 2); w = V.alloc('w', 2); w2 = V.alloc('w2', 2); w4 = V.alloc('w4', 2)
        ch = V.alloc('chains', 16, align=2)
        put(0, C)
        cm([(z2, z, z)])
        La, Lb, Ma, Mb = ch, ch + 2, ch + 4, ch + 6
        cm([(La, C, z), (Ma, C, Z), (z4, z2, z2)])
        put(1, La); put(8, Ma)
        cm([(Lb, La, z), (Mb, Ma, Z), (w, z4, z4), (ch + 8, Ma, z2)])
        put(2, Lb); put(12, Mb); put(9, ch + 8)
        cm([(La, Lb, z), (Ma, Mb, Z), (w2, w, w), (ch + 10, ch + 8, z2), (ch + 12, Mb, z4)])
        put(3, La); put(14, Ma); put(10, ch + 10); put(13, ch + 12)
        cm([(Lb, La, z), (Mb, Ma, Z), (w4, w2, w2), (ch + 8, ch + 10, z2), (ch + 12, Ma, z4), (ch + 14, w2, w)])
        put(4, Lb); put(16, Mb); put(11, ch + 8); put(15, ch + 12)
        c = cv + (self._cvi % 24); self._cvi += 1
        emit(f'v_mov_b32 v{c}, 0x3c00'); done(21, c)
        put(22, w, True); put(23, w2, True); put(24, ch + 14, True)
        cm([(La, Lb, z), (Ma, Mb, Z)]); put(5, La); put(17, Ma)
        cm([(Lb, La, z), (Mb, Ma, Z)]); put(6, Lb); put(18, Mb)
        cm([(La, Lb, z), (Ma, Mb, Z)]); put(7, La); put(19, Ma)
        cm([(Mb, Ma, Z)]); put(20, Mb)
        A_ = [ch, ch + 2, ch + 4, ch + 6]; B_ = [ch + 8, ch + 10, ch + 12, z]
        r3 = ch + 14
        cm([(A_[1], w, w4), (A_[2], w2, w4), (A_[3], r3, w4)])
        put(25, w4, True); put(26, A_[1], True); put(27, A_[2], True); put(28, A_[3], True)
        cur = [w4, A_[1], A_[2], A_[3]]; nxt = [B_, A_]
        for step in range(2, 8):
            nx = nxt[step & 1]
            cm([(nx[k], cur[k], w4) for k in range(4)])
            for k in range(4): put(21 + 4 * step + k, nx[k], True)
            cur = nx
        out = []; si = 0; last = -10
        gap = self.o.get('kgap', 5)
        for idx, ins in enumerate(valu):
            pend = [k for k in range(si, len(stores)) if stores[k][0] <= idx and (stores[k][1].uses & ins.defs)]
            if pend:
                while si <= pend[-1]: out.append(stores[si][1]); si += 1
                last = idx
            elif si < len(stores) and stores[si][0] <= idx and idx - last >= gap:
                out.append(stores[si][1]); si += 1; last = idx
            out.append(ins)
        while si < len(stores): out.append(stores[si][1]); si += 1
        return out
    def act_store(self, pk, blk):
        p = self.p
        p(f's_add_u32 s39, s35, {2048*blk}')
        p(f'buffer_store_dwordx4 {vr(pk,4)}, v{self.V["l16"]}, {SWS}, s39 offen sc1', tag='actst')
        p(f'buffer_store_dwordx4 {vr(pk+4,4)}, v{self.V["l16"]}, {SWS}, s39 offen offset:1024 sc1', tag='actst')
        if self.o.get('dbl'):
            p(f'buffer_store_dwordx4 {vr(pk,4)}, v{self.V["l16"]}, {SWS}, s39 offen', tag='actst2')
            p(f'buffer_store_dwordx4 {vr(pk+4,4)}, v{self.V["l16"]}, {SWS}, s39 offen offset:1024', tag='actst2')
    def xn_setup(self):
        p, A = self.p, self.A
        A.alloc('xnf', 128, align=4, at=0)
        p(f'''
        s_lshl_b32 s40, {sTT}, 2
        s_add_u32 s40, s40, {sWAVE}
        s_lshl_b32 s40, s40, 15
        s_add_u32 s40, s40, {WS_XNF}
        ''')
    def xn_load(self, ks):
        p = self.p
        xf = self.A['xnf']
        if ks % 4 == 0 and ks: p('s_add_u32 s40, s40, 4096')
        p(f'buffer_load_dwordx4 {vr(xf+4*ks,4,"a")}, v{self.V["l16"]}, {SWS}, s40 offen offset:{1024*(ks%4)} sc1')
    def gemm1(self):
        p, V, A = self.p, self.V, self.A
        xf = A['xnf']; wa = V['w1a']; xlead = self.o['xlead']
        acc = V.alloc('g1acc', 48, align=2); fr = V.alloc('g1fr', 32, align=2); tm = V.alloc('g1tm', 16, align=2); pk = V.alloc('g1pk', 16, align=2)
        p(f'''
        s_mov_b32 s34, {f32(LOG2E)}
        s_lshl_b32 s56, {sTT}, 2
        s_add_u32 s56, s56, {sWAVE}
        s_mul_i32 s35, s56, {86*1024}
        s_lshl_b32 s59, {sFB0}, 11
        s_add_u32 s35, s35, s59
        s_add_u32 s35, s35, {WS_ACT}
        ''')
        self.bias_init(acc, 0); self.bias_init(acc + 16, 1); self.bias_init(acc + 32, 2)
        def rd(ks, blk, slot):
            b = fr + 4 * slot; base = wa + (blk >> 1); o = ks * 1024 + W1B * (blk & 1)
            p(f'ds_read_b64_tr_b16 {vr(b,2)}, v{base} offset:{o}')
            p(f'ds_read_b64_tr_b16 {vr(b+2,2)}, v{base} offset:{o+256}')
        with p.capture() as main:
            for ks in range(2): rd(ks, 0, 2 * (ks % 4)); rd(ks, 1, 2 * (ks % 4) + 1)
            for ks in range(32):
                if ks + 2 < 32: rd(ks + 2, 0, 2 * ((ks + 2) % 4)); rd(ks + 2, 1, 2 * ((ks + 2) % 4) + 1)
                if ks + xlead < 32: self.xn_load(ks + xlead)
                p(f'v_mfma_f32_32x32x16_bf16 {vr(acc,16)}, {vr(fr+8*(ks%4),4)}, {vr(xf+4*ks,4,"a")}, {vr(acc,16)}')
                p(f'v_mfma_f32_32x32x16_bf16 {vr(acc+16,16)}, {vr(fr+8*(ks%4)+4,4)}, {vr(xf+4*ks,4,"a")}, {vr(acc+16,16)}')
        fill = self.cap(self.gemm_addr_setup)
        fill += self.cap(self.poll_issue, 'A2', V['us'] + 2, 64, 4)
        self.weave(main, fill, start=2)
        self.stamp('g1p1')
        self.poll_check('A2', V['us'] + 2, 64, 4)
        ud = V.alloc('ud', 8, align=2)
        p(f'''
        s_lshl_b32 s56, {sWAVE}, 19
        s_lshl_b32 s57, {sBETA}, 5
        s_add_u32 s56, s56, s57
        s_add_u32 s56, s56, {WS_UBLK}
        buffer_load_dwordx4 {vr(ud,4)}, v{V['us']}, {SWS}, s56 offen sc1
        buffer_load_dwordx4 {vr(ud+4,4)}, v{V['us']}, {SWS}, s56 offen offset:16 sc1
        s_barrier
        ''')
        self.fstamp('g1bar')
        self.w2_dma_setup()
        l2 = self.lab('g1n2'); l3 = self.lab('g1j')
        p(f's_cmp_eq_u32 {sNBLK}, 2\ns_cbranch_scc1 {l2}')
        import copy
        with p.cond(lambda c: c['nblk'] == 3):
            with p.capture() as main:
                for ks in range(3): rd(ks, 2, ks % 4)
                for ks in range(32):
                    if ks + 3 < 32: rd(ks + 3, 2, (ks + 3) % 4)
                    if ks % 2 == 0:
                        for i in self.cap(self.w2_dma, ks // 16, (ks // 2) % 8): p.ins.append(i)
                    p(f'v_mfma_f32_32x32x16_bf16 {vr(acc+32,16)}, {vr(fr+4*(ks%4),4)}, {vr(xf+4*ks,4,"a")}, {vr(acc+32,16)}')
            with p.capture() as fill:
                self.mish(acc, tm, pk, False); self.act_store(pk, 0)
                self.mish(acc + 16, tm, pk + 8, False); self.act_store(pk + 8, 1)
            self.weave(main, fill)
            self.fstamp('g1p2')
            p('s_barrier')
            m2 = self.cap(self.mish, acc + 32, tm, pk, True)
            p.merge(m2, [self.cap(self.w2_dma, 2, k) for k in range(8)])
            self.act_store(pk, 2)
        p(f's_branch {l3}\n{l2}:')
        with p.cond(lambda c: c['nblk'] == 2):
            m0_ = self.cap(self.mish, acc, tm, pk, True)
            p.merge(m0_, [self.cap(self.w2_dma, 0, k) for k in range(8)])
            self.act_store(pk, 0)
            p('s_barrier')
            m1_ = self.cap(self.mish, acc + 16, tm, pk + 8, True)
            p.merge(m1_, [self.cap(self.w2_dma, 1, k) for k in range(8)])
            self.act_store(pk + 8, 1)
            for k in range(8): self.w2_dma(2, k)
        p(f'{l3}:')
        self.fstamp('g1mish')
        us = V['us']
        p(f'ds_write_b128 v{us+1}, {vr(ud,4)}')
        p(f'ds_write_b128 v{us+1}, {vr(ud+4,4)} offset:{U_CH}')
        p.wait_tag('w2dma1')
        p('s_waitcnt lgkmcnt(0)\ns_barrier')
        V.free('g1acc', 'g1fr', 'g1tm', 'g1pk', 'bia', 'w1a', 'ud', 'us')
        A.free('xnf')
        lab = self.lab('nw')
        p(f's_or_b32 s52, {sBETA}, {sWAVE}\ns_cmp_lg_u32 s52, 0\ns_cbranch_scc1 {lab}')
        with p.cond(lambda c: c['w'] == 0):
            p('s_mov_b32 s101, 0')
            self.flag_store('s101', WS_FLG)
        p(f'{lab}:')
    def w2_dma_setup(self):
        p = self.p
        p(f'''
        s_mul_i32 s41, {sCH}, {43*16*1024}
        s_lshl_b32 s98, {sROLE}, 13
        s_add_u32 s41, s41, s98
        s_lshl_b32 s98, {sCG}, 7
        s_add_u32 s41, s41, s98
        s_lshl_b32 s42, {sCH}, 11
        s_lshl_b32 s98, {sROLE}, 10
        s_add_u32 s42, s42, s98
        ''')
    def w2_dma(self, r, k):
        p = self.p
        lo, hi = ROUNDS[r]
        sl = lo + k
        if sl >= hi: return
        p(f's_add_u32 m0, s42, {RREG[r] + 4096*k}')
        p(f's_add_u32 s97, s41, {sl*16*1024}')
        p(f'buffer_load_dwordx4 v{self.V["w2a"]}, {SW2}, s97 offen lds', tag=f'w2dma{r}')
    def w2reg(self, sl, c):
        if sl < 32: return vr(8 * sl + 4 * c, 4, 'a'), 8 * sl + 4 * c, 'a'
        b = self.V['w2v'] + 8 * (sl - 32) + 4 * c
        return vr(b, 4), b, 'v'
    def w2_read_list(self, r):
        p, V = self.p, self.V
        lo, hi = ROUNDS[r]
        out = []
        for sl in range(lo, hi):
            for c in range(2):
                _, b, k = self.w2reg(sl, c)
                base = V['w2a'] + 1 + c + (2 if RREG[r] >= 65536 else 0)
                o = RREG[r] - (65536 if RREG[r] >= 65536 else 0) + 4096 * (sl - lo)
                if RREG[r] == L_X: base = V['w2a'] + 5 + c; o = 4096 * (sl - lo)
                with p.capture() as bb:
                    p(f'ds_read_b64_tr_b16 {vr(b,2,k)}, v{base} offset:{o}')
                    p(f'ds_read_b64_tr_b16 {vr(b+2,2,k)}, v{base} offset:{o+1024}')
                out += bb
        return out
    def gemm_addr_setup(self):
        p, V = self.p, self.V
        n31, hh, l16 = V['n31'], V['hh'], V['l16']
        t = V.alloc('gst', 4, align=2)
        aA = V.alloc('cA', 3); aB = V.alloc('cB', 2)
        p(f'''
        v_and_b32 v{t}, 3, v1
        v_mul_u32_u24 v{t}, {KC_STR}, v{t}
        v_bfe_u32 v{t+1}, v1, 2, 3
        v_lshlrev_b32 v{t+1}, 3, v{t+1}
        v_sub_u32 v{t}, v{t}, v{t+1}
        v_lshlrev_b32 v{t+3}, 4, v{hh}
        v_add_u32 v{t}, v{t}, v{t+3}
        s_mul_i32 s58, {sCH}, {4*KC_STR}
        s_add_u32 s58, s58, {L_KC + 2*X0}
        s_lshl_b32 s59, {sROLE}, 10
        s_sub_u32 s59, s58, s59
        s_sub_u32 s59, s59, 1024
        v_add_u32 v{aA}, s59, v{t}
        v_subrev_u32 v{aA+1}, 2048, v{aA}
        s_lshl_b32 s59, {sROLE}, 5
        s_sub_u32 s59, s58, s59
        s_add_u32 s59, s59, 32
        v_add_u32 v{aA+2}, s59, v{t}
        v_mul_u32_u24 v{t}, 80, v{n31}
        v_add_u32 v{t+1}, v{t}, v{t+3}
        s_mul_i32 s58, {sCH}, {U_CH}
        s_add_u32 s58, s58, {L_U}
        s_mul_i32 s59, {sROLE}, {80*16}
        s_sub_u32 s59, s58, s59
        s_add_u32 s59, s59, {80*16}
        v_add_u32 v{aB}, s59, v{t+1}
        s_lshl_b32 s59, {sROLE}, 5
        s_sub_u32 s59, s58, s59
        s_add_u32 s59, s59, {80*32+32}
        v_add_u32 v{aB+1}, s59, v{t+1}
        ''')
        ce = V.alloc('ce', 6)
        p(f'''
        s_lshl_b32 s59, {sWAVE}, 12
        s_add_u32 s59, s59, {L_KC}
        v_add_u32 v{ce}, s59, v{l16}
        s_xor_b32 s59, {sWAVE}, 1
        s_lshl_b32 s59, s59, 12
        s_add_u32 s59, s59, {L_KC}
        v_add_u32 v{ce+1}, s59, v{l16}
        v_lshlrev_b32 v{t+3}, 3, v{hh}
        v_add_u32 v{t}, v{t}, v{t+3}
        s_mul_i32 s59, {sROLE}, 2560
        s_add_u32 s59, s59, s58
        s_add_u32 s59, s59, 2560
        v_add_u32 v{ce+2}, s59, v{t}
        v_lshlrev_b32 v{t}, 6, v{n31}
        v_add_u32 v{t}, v{t}, v{t+3}
        s_lshl_b32 s59, {sWAVE}, 11
        s_add_u32 s59, s59, {L_KC + 16384}
        v_add_u32 v{ce+3}, s59, v{t}
        v_bfe_u32 v{ce+4}, v1, 1, 2
        v_lshlrev_b32 v{ce+4}, 4, v{ce+4}
        v_lshrrev_b32 v{t}, 2, v1
        v_bfe_u32 v{t+1}, v1, 3, 2
        v_and_b32 v{t+3}, 3, v1
        v_xor_b32 v{t+1}, v{t+1}, v{t+3}
        v_lshlrev_b32 v{t+1}, 4, v{t+1}
        v_lshlrev_b32 v{t}, 6, v{t}
        v_add_u32 v{t}, v{t}, v{t+1}
        v_add_u32 v{ce+5}, s59, v{t}
        ''')
        us = V.alloc('us', 3)
        p(f'''
        v_lshlrev_b32 v{us}, 13, v1
        s_lshl_b32 s59, {sWAVE}, 6
        s_add_u32 s59, s59, 128
        v_add_u32 v{t}, s59, v1
        v_lshrrev_b32 v{t+1}, 2, v{t}
        v_mul_u32_u24 v{t+1}, 80, v{t+1}
        v_and_b32 v{t}, 3, v{t}
        v_lshlrev_b32 v{t}, 4, v{t}
        v_add_u32 v{t}, v{t}, v{t+1}
        v_add_u32 v{us+1}, {L_U}, v{t}
        s_lshl_b32 s59, {sWAVE}, 10
        s_add_u32 s59, s59, {FL_A}
        v_add_u32 v{us+2}, s59, v{l16}
        ''')
        w2 = V.alloc('w2a', 7)
        p('; MARK_W2')
        p(f'''
        v_lshrrev_b32 v{t}, 3, v1
        v_bfe_u32 v{t+1}, v1, 4, 1
        v_lshlrev_b32 v{t+1}, 2, v{t+1}
        v_and_b32 v{t+2}, 7, v1
        v_xor_b32 v{t+1}, v{t+1}, v{t+2}
        v_lshlrev_b32 v{t+1}, 4, v{t+1}
        v_lshlrev_b32 v{t}, 10, v{t}
        v_add_u32 v{w2}, v{t}, v{t+1}
        v_lshlrev_b32 v{t}, 2, v{hh}
        v_bfe_u32 v{t+1}, v1, 2, 2
        v_add_u32 v{t}, v{t}, v{t+1}
        v_lshlrev_b32 v{t}, 7, v{t}
        v_bfe_u32 v{t+1}, v1, 4, 1
        v_lshlrev_b32 v{t+1}, 5, v{t+1}
        v_add_u32 v{t}, v{t}, v{t+1}
        v_and_b32 v{t+1}, 3, v1
        v_lshlrev_b32 v{t+1}, 3, v{t+1}
        v_add_u32 v{t}, v{t}, v{t+1}
        s_lshl_b32 s59, {sCH}, 11
        v_add_u32 v{t}, s59, v{t}
        v_bfe_u32 v{t+1}, v1, 3, 1
        v_lshlrev_b32 v{t+1}, 6, v{t+1}
        v_add_u32 v{w2+1}, v{t}, v{t+1}
        v_xor_b32 v{t+1}, 64, v{t+1}
        v_add_u32 v{w2+2}, v{t}, v{t+1}
        v_add_u32 v{w2+3}, 0x10000, v{w2+1}
        v_add_u32 v{w2+4}, 0x10000, v{w2+2}
        v_add_u32 v{w2+5}, {L_X}, v{w2+1}
        v_add_u32 v{w2+6}, {L_X}, v{w2+2}
        ''')
        g2 = V.alloc('g2a', 8)
        p('; MARK_G2')
        p(f'''
        s_lshr_b32 s58, {sTG}, 1
        s_lshl_b32 s58, s58, 2
        s_and_b32 s59, {sTG}, 1
        s_lshl_b32 s59, s59, 1
        s_add_u32 s58, s58, s59
        s_add_u32 s58, s58, {sROLE}
        s_lshl_b32 s58, s58, 7
        s_add_u32 s58, s58, {FL_B}
        v_lshlrev_b32 v{t}, 3, v1
        v_add_u32 v{g2}, s58, v{t}
        s_lshr_b32 s58, {sTG}, 4
        s_lshl_b32 s58, s58, 9
        s_lshl_b32 s59, {sCG}, 6
        s_add_u32 s58, s58, s59
        s_lshl_b32 s58, s58, 3
        s_add_u32 s58, s58, {FL_C}
        v_add_u32 v{g2+1}, s58, v{t}
        s_lshl_b32 s58, {sWAVE}, 12
        v_add_u32 v{g2+2}, s58, v{l16}
        s_xor_b32 s58, {sWAVE}, 2
        s_lshl_b32 s58, s58, 12
        v_add_u32 v{g2+3}, s58, v{l16}
        v_lshrrev_b32 v{t}, 3, v0
        v_and_b32 v{t+1}, 7, v0
        v_lshlrev_b32 v{t+1}, 4, v{t+1}
        v_lshlrev_b32 v{g2+4}, 12, v{t}
        v_add_u32 v{g2+4}, v{g2+4}, v{t+1}
        v_mul_u32_u24 v{g2+5}, {ST_STR}, v{t}
        v_add_u32 v{g2+5}, v{g2+5}, v{t+1}
        v_add_u32 v{g2+5}, {ST3_L}, v{g2+5}
        v_lshlrev_b32 v{t}, 2, v{hh}
        v_bfe_u32 v{t+1}, v1, 2, 2
        v_add_u32 v{t}, v{t}, v{t+1}
        s_lshl_b32 s58, {sCH}, 5
        v_add_u32 v{t}, s58, v{t}
        v_mul_u32_u24 v{t}, {ST_STR}, v{t}
        v_bfe_u32 v{t+1}, v1, 4, 1
        v_lshlrev_b32 v{t+1}, 5, v{t+1}
        v_add_u32 v{t}, v{t}, v{t+1}
        v_and_b32 v{t+1}, 3, v1
        v_lshlrev_b32 v{t+1}, 3, v{t+1}
        v_add_u32 v{t}, v{t}, v{t+1}
        s_lshl_b32 s58, {sROLE}, 6
        s_add_u32 s58, s58, {ST3_L}
        v_add_u32 v{g2+6}, s58, v{t}
        v_lshlrev_b32 v{t}, 10, v{n31}
        v_lshlrev_b32 v{t+1}, 3, v{hh}
        v_add_u32 v{g2+7}, v{t}, v{t+1}
        ''')
        V.free('gst')
    def conv(self):
        p, V, A = self.p, self.V, self.A
        A.alloc('w2f', 256, align=4, at=0)
        V.alloc('w2v', 88, align=2)
        aA, aB, ce = V['cA'], V['cB'], V['ce']
        acc = V.alloc('cacc', 32, align=2); fr = V.alloc('cfr', 32, align=2)
        a0, a1 = acc, acc + 16
        def rd(i):
            b = fr + 16 * (i & 1)
            oa = 32 * (31 - i); ob = 80 * (15 - i // 2) + (32 if i % 2 == 0 else 0)
            p(f'ds_read_b64 {vr(b,2)}, v{aA} offset:{oa}')
            p(f'ds_read_b64 {vr(b+2,2)}, v{aA} offset:{oa+8}')
            p(f'ds_read_b128 {vr(b+8,4)}, v{aB} offset:{ob}')
            p(f'ds_read_b128 {vr(b+12,4)}, v{aB} offset:{ob+2560}')
            p(f'ds_read_b64 {vr(b+4,2)}, v{aA+1} offset:{oa}')
            p(f'ds_read_b64 {vr(b+6,2)}, v{aA+1} offset:{oa+8}')
        def group(i, dma=None):
            if i + 1 < 32: rd(i + 1)
            if dma: self.w2_dma(*dma)
            b = fr + 16 * (i & 1)
            p(f'v_mfma_f32_32x32x16_f16 {vr(a0,16)}, {vr(b,4)}, {vr(b+8,4)}, {vr(a0,16)}')
            p(f'v_mfma_f32_32x32x16_f16 {vr(a1,16)}, {vr(b,4)}, {vr(b+12,4)}, {vr(a1,16)}')
            p(f'v_mfma_f32_32x32x16_f16 {vr(a1,16)}, {vr(b+4,4)}, {vr(b+8,4)}, {vr(a1,16)}')
        b = fr + 16
        p(f'ds_read_b64 {vr(b,2)}, v{aA+2}')
        p(f'ds_read_b64 {vr(b+2,2)}, v{aA+2} offset:8')
        p(f'ds_read_b128 {vr(b+8,4)}, v{aB+1}')
        p(f'ds_read_b128 {vr(b+12,4)}, v{aB+1} offset:2560')
        rd(0)
        p(f'v_mfma_f32_32x32x16_f16 {vr(a0,16)}, {vr(b,4)}, {vr(b+8,4)}, 0')
        p(f'v_mfma_f32_32x32x16_f16 {vr(a1,16)}, {vr(b,4)}, {vr(b+12,4)}, 0')
        G1, G2 = self.o.get('G1', 10), 14
        rl = self.w2_read_list(0) + self.w2_read_list(1)
        main = self.cap(lambda: [group(i, (5, i) if i < 3 else None) for i in range(G1)])
        n1 = len(rl) * G1 // G2
        self.weave(main, rl[:n1])
        self.fstamp('cG1')
        self.act_flag()
        self.fstamp('cflag')
        main = self.cap(lambda: [group(i) for i in range(G1, G2)])
        self.weave(main, rl[n1:])
        p('s_waitcnt lgkmcnt(0)\ns_barrier')
        self.fstamp('cG2')
        dq = [(3, k) for k in range(8)] + [(4, k) for k in range(8)]
        for i in range(G2, 32): group(i, dq[i - G2] if i - G2 < len(dq) else None)
        V.free('cfr', 'cA', 'cB')
        self.stamp('convmm')
        self.poll_issue('B', V['g2a'], 16, 1)
        p.wait_tag('w2dma4'); p('s_barrier')
        ex = V.alloc('cex', 16, align=2); uu = V.alloc('cuu', 8, align=2); t = V.alloc('cvt', 2)
        l0 = self.lab('cr0'); l1 = self.lab('cr1')
        p(f's_cmp_eq_u32 {sROLE}, 0\ns_cbranch_scc0 {l0}')
        with p.cond(lambda c: c['w'] % 2 == 0):
            for q in range(4): p(f'ds_write_b128 v{ce}, {vr(a1+4*q,4)} offset:{1024*q}')
        p(f's_branch {l1}\n{l0}:')
        with p.cond(lambda c: c['w'] % 2 == 1):
            for q in range(4):
                p(f'ds_write_b128 v{ce}, {vr(a0+4*q,4)} offset:{1024*q}')
                if q:
                    for r in range(4 * (q - 1), 4 * q): p(f'v_mov_b32 v{a0+r}, v{a1+r}')
            for r in range(12, 16): p(f'v_mov_b32 v{a0+r}, v{a1+r}')
        p(f'{l1}:')
        for q in range(4): p(f'ds_read_b64 {vr(uu+2*q,2)}, v{ce+2} offset:{16*q}')
        self.poll_check('B', V['g2a'], 16, 1)
        self.stamp('pollB')
        self.act_setup()
        for sl in range(4): self.act_load(sl)
        p('s_waitcnt lgkmcnt(0)\ns_barrier')
        for q in range(4): p(f'ds_read_b128 {vr(ex+4*q,4)}, v{ce+1} offset:{1024*q}')
        al = [self.cap(self.act_load, sl) for sl in range(4, self.o['alead'])]
        with p.capture() as epi:
            for r in range(16): p(f'v_add_f32 v{a0+r}, v{a0+r}, v{ex+r}')
            for r in range(16): p(f'v_mul_f32 v{a0+r}, {sSIG}, v{a0+r}')
            for r in range(16):
                p(f'v_fma_mix_f32 v{a0+r}, v{uu+r//2}, {sDV}, v{a0+r} op_sel:[{r&1},0,0] op_sel_hi:[1,0,0]')
            for r in range(8): p(f'v_cvt_pk_bf16_f32 v{ex+r}, v{a0+2*r}, v{a0+2*r+1}')
            for q in range(4):
                p(f'v_xor_b32 v{t}, {16*q}, v{ce+4}')
                p(f'v_add_u32 v{t}, v{t}, v{ce+3}')
                p(f'ds_write_b64 v{t}, {vr(ex+2*q,2)}')
            p(f'ds_read_b128 {vr(ex+8,4)}, v{ce+5}')
            p(f'ds_read_b128 {vr(ex+12,4)}, v{ce+5} offset:1024')
            p(f'''
            s_lshl_b32 s58, {sBETA}, 1
            s_add_u32 s58, s58, {sCH}
            s_lshl_b32 s58, s58, 12
            s_lshl_b32 s59, {sROLE}, 11
            s_add_u32 s58, s58, s59
            s_add_u32 s58, s58, {WS_ST}
            ''')
            p(f'buffer_store_dwordx4 {vr(ex+8,4)}, v{V["l16"]}, {SWS}, s58 offen sc1', tag='stst')
            p(f'buffer_store_dwordx4 {vr(ex+12,4)}, v{V["l16"]}, {SWS}, s58 offen offset:1024 sc1', tag='stst')
        p.merge(epi, al, 0, len(epi) - 12)
        V.free('cvt', 'cacc', 'cex', 'cuu', 'ce')
    def act_setup(self):
        p, V = self.p, self.V
        V.alloc('ring', 4 * NRING, align=2)
        p(f'''
        s_lshl_b32 s43, {sTG}, 1
        s_add_u32 s43, s43, {sROLE}
        s_mul_i32 s43, s43, {86*1024}
        s_mul_i32 s98, {sCH}, {43*1024}
        s_add_u32 s43, s43, s98
        s_add_u32 s43, s43, {WS_ACT}
        ''')
    def act_load(self, sl):
        p, V = self.p, self.V
        if sl % 4 == 0 and sl: p('s_add_u32 s43, s43, 4096')
        b = V['ring'] + 4 * (sl % NRING)
        p(f'buffer_load_dwordx4 {vr(b,4)}, v{V["l16"]}, {SWS}, s43 offen offset:{1024*(sl%4)} sc1')
    def gemm2(self):
        p, V, A = self.p, self.V, self.A
        g2 = V['g2a']; lead = self.o['alead']; ring = V['ring']
        acc = V.alloc('g2acc', 32, align=2)
        xd = V.alloc('g2xd', 8, align=2); sd = V.alloc('g2sd', 8, align=2)
        rl = []
        for r in (2, 3, 4, 5): rl += self.w2_read_list(r)
        def extra(sl):
            if sl in (8, 16, 24, 32, 38): self.fstamp(f'g2s{sl}')
            if sl == 8: self.st_flag()
            if sl == 12:
                p(f'''
                s_lshl_b32 s56, {sTG}, 16
                s_lshl_b32 s57, {sROLE}, 15
                s_add_u32 s56, s56, s57
                s_lshl_b32 s57, {sCG}, 7
                s_add_u32 s56, s56, s57
                s_lshl_b32 s57, {sCH}, 6
                s_add_u32 s39, s56, s57
                ''')
                for q in range(4): p(f'buffer_load_dwordx2 {vr(xd+2*q,2)}, v{g2+7}, {SX}, s39 offen offset:{16*q}')
            if sl == 33: self.poll_issue('C', g2 + 1, 64, 1)
            if sl == 38:
                self.poll_check('C', g2 + 1, 64, 1)
                p(f'''
                s_lshl_b32 s56, {sCG}, 18
                s_lshl_b32 s57, {sTG}, 7
                s_add_u32 s56, s56, s57
                s_add_u32 s56, s56, {WS_ST}
                s_add_u32 s57, s56, {32*4096}
                buffer_load_dwordx4 {vr(sd,4)}, v{g2+4}, {SWS}, s56 offen sc1
                buffer_load_dwordx4 {vr(sd+4,4)}, v{g2+4}, {SWS}, s57 offen sc1
                ''')
        k = 0
        per = 6
        for sl in range(43):
            extra(sl)
            if sl + lead < 43: self.act_load(sl + lead)
            b = ring + 4 * (sl % NRING)
            c0 = '0' if sl == 0 else vr(acc, 16); c1 = '0' if sl == 0 else vr(acc + 16, 16)
            p(f'v_mfma_f32_32x32x16_bf16 {vr(acc,16)}, {self.w2reg(sl,0)[0]}, {vr(b,4)}, {c0}')
            for _ in range(per // 2):
                if k < len(rl): p.ins.append(rl[k]); k += 1
            p(f'v_mfma_f32_32x32x16_bf16 {vr(acc+16,16)}, {self.w2reg(sl,1)[0]}, {vr(b,4)}, {c1}')
            for _ in range(per // 2):
                if k < len(rl): p.ins.append(rl[k]); k += 1
        assert k == len(rl)
        V.free('ring', 'w2v', 'w2a'); A.free('w2f')
        self.stamp('g2mm')
        p(f'ds_write_b128 v{g2+5}, {vr(sd,4)}')
        p(f'ds_write_b128 v{g2+5}, {vr(sd+4,4)} offset:{32*ST_STR}')
        ex = V.alloc('g2ex', 16, align=2)
        l0 = self.lab('g20'); l1 = self.lab('g21')
        p('s_barrier')
        p(f's_cmp_eq_u32 {sCH}, 0\ns_cbranch_scc0 {l0}')
        with p.cond(lambda c: c['w'] < 2):
            for q in range(4): p(f'ds_write_b128 v{g2+2}, {vr(acc+16+4*q,4)} offset:{1024*q}')
        p(f's_branch {l1}\n{l0}:')
        with p.cond(lambda c: c['w'] >= 2):
            for q in range(4):
                p(f'ds_write_b128 v{g2+2}, {vr(acc+4*q,4)} offset:{1024*q}')
                if q:
                    for r in range(4 * (q - 1), 4 * q): p(f'v_mov_b32 v{acc+r}, v{acc+16+r}')
            for r in range(12, 16): p(f'v_mov_b32 v{acc+r}, v{acc+16+r}')
        p(f'{l1}:')
        p('s_waitcnt lgkmcnt(0)\ns_barrier')
        for q in range(4): p(f'ds_read_b128 {vr(ex+4*q,4)}, v{g2+3} offset:{1024*q}')
        for q in range(4): p(f'ds_read_b64_tr_b16 {vr(sd+2*q,2)}, v{g2+6} offset:{8*q*ST_STR}')
        p(f's_mov_b32 s34, {f32(-LOG2E)}')
        for r in range(0, 16, 2): p(f'v_pk_add_f32 {vr(acc+r,2)}, {vr(acc+r,2)}, {vr(ex+r,2)}')
        for r in range(0, 16, 2): p(f'v_pk_mul_f32 {vr(ex+r,2)}, {vr(acc+r,2)}, s[34:35] op_sel_hi:[1,0]')
        for r in range(16): p(f'v_exp_f32 v{ex+r}, v{ex+r}')
        for r in range(0, 16, 2): p(f'v_pk_add_f32 {vr(ex+r,2)}, {vr(ex+r,2)}, 1.0 op_sel_hi:[1,0]')
        for r in range(16): p(f'v_rcp_f32 v{ex+r}, v{ex+r}')
        for r in range(0, 16, 2): p(f'v_pk_mul_f32 {vr(acc+r,2)}, {vr(acc+r,2)}, {vr(ex+r,2)}')
        for r in range(16):
            if r % 2 == 0: p(f'v_lshlrev_b32 v{ex+r}, 16, v{sd+r//2}')
            else: p(f'v_and_b32 v{ex+r}, 0xffff0000, v{sd+r//2}')
        for r in range(0, 16, 2): p(f'v_pk_mul_f32 {vr(acc+r,2)}, {vr(acc+r,2)}, {vr(ex+r,2)}')
        for r in range(8): p(f'v_cvt_pk_bf16_f32 v{sd+r}, v{acc+2*r}, v{acc+2*r+1}')
        for r in range(8):
            p(f'v_lshlrev_b32 v{ex}, 16, v{sd+r}')
            p(f'v_and_b32 v{ex+1}, 0xffff0000, v{sd+r}')
            p(f'v_lshlrev_b32 v{ex+2}, 16, v{xd+r}')
            p(f'v_and_b32 v{ex+3}, 0xffff0000, v{xd+r}')
            p(f'v_pk_add_f32 {vr(ex,2)}, {vr(ex,2)}, {vr(ex+2,2)}')
            p(f'v_cvt_pk_bf16_f32 v{xd+r}, v{ex}, v{ex+1}')
            if r % 2 == 1:
                q = r // 2
                p(f'buffer_store_dwordx2 {vr(xd+2*q,2)}, v{g2+7}, {SOUT}, s39 offen offset:{16*q}')
        V.free('g2acc', 'g2ex', 'g2sd', 'g2xd', 'g2a')
    def ln_hook(self):
        p = self.p
        lab = self.lab('bl')
        p(f's_cmp_lg_u32 {sWAVE}, 1\ns_cbranch_scc1 {lab}')
        with p.cond(lambda c: c['w'] == 1): self.bias_to_lds()
        p(f'{lab}:')
    def build(self):
        p, V = self.p, self.V
        self.entry()
        self.idle_setup()
        self.gemm1_addr_setup()
        self.stamp('idle')
        self.ln()
        self.stamp('lnst')
        ga, gb = self.w1_late_groups()
        ks = self.cap(self.kgen_setup)
        p.merge(ks, ga[:3])
        p('s_barrier')
        self.stamp('ksetup')
        main = self.kgen_values()
        n1 = len(main) // 2
        p.merge(main[:n1], ga[3:7])
        self.ln_flag()
        p.merge(main[n1:], ga[7:])
        V.free('z', 'Z256', 'Cn', 'z2', 'z4', 'w', 'w2', 'w4', 'chains', 'cv', 'fa')
        self.stamp('kvals')
        lab = self.lab('w1b2')
        self.poll_issue('A1', V['pA1'], 8, 1)
        p('s_waitcnt lgkmcnt(0)\ns_barrier')
        km = self.cap(self.kgen_mfma)
        p.ins.extend(km)
        self.poll_check('A1', V['pA1'], 8, 1)
        V.free('pA1')
        self.stamp('pollA1')
        self.xn_setup()
        p(f's_cmp_eq_u32 {sNBLK}, 2\ns_cbranch_scc1 {lab}')
        for g_ in gb[:4]: p.ins.extend(g_)
        p(f'{lab}:')
        p('s_waitcnt lgkmcnt(0)\ns_barrier')
        if 'table' in self.dump: self.dump_lds(L_T, 2 * T_CH, WS_DBG + 0x100000)
        ex = self.cap(self.expand)
        grp = [self.cap(self.xn_load, k) for k in range(self.o['xlead'])]
        ncommon = next(k for k, i in enumerate(ex) if i.kind == 'branch')
        p.merge(ex[:ncommon - 1], grp)
        p.ins.extend(ex[ncommon - 1:])
        lab = self.lab('w1b2b')
        p(f's_cmp_eq_u32 {sNBLK}, 2\ns_cbranch_scc1 {lab}')
        for g_ in gb[4:]: p.ins.extend(g_)
        p(f'{lab}:')
        V.free('w1off')
        p('s_waitcnt lgkmcnt(0)\ns_barrier')
        self.stamp('expand')
        if 'kc' in self.dump: self.dump_lds(L_KC, 8 * KC_STR, WS_DBG + 0x400000)
        self.gemm1()
        self.stamp('gemm1')
        self.conv()
        self.stamp('conv')
        self.gemm2()
        self.stamp('end')
        self.finish()
        return self.finalize()
    def finalize(self):
        p = self.p
        drop = self.o.get('drop', 0)
        if drop:
            def keep(i):
                t = i.tag or ''
                if i.kind == 'dma' and ((drop & 1 and t.startswith('w1dma')) or (drop & 2 and t.startswith('xdma')) or (drop & 4 and t.startswith('w2dma'))): return False
                return True
            p.ins = [i for i in p.ins if keep(i)]
        body = p.render().rstrip('\n').split('\n')
        if self.o['pads'] == 2:
            wi = [l.strip() for l in body].index(';WARM')
            warm = []
            for w in range(4): warm += [f'    s_cmp_eq_u32 {sWAVE}, {w}', f'    s_cbranch_scc1 @PAD{w}@']
            tmp = body[:wi] + [l.replace(f'@PAD{k//2}@', 'L_warm_ret') if '@PAD' in l else l for k, l in enumerate(warm)] + body[wi + 1:]
            tmp, padl = PADS.add_page_pads(tmp, None, 'L_warm_ret', base=0x300)
            di = tmp.index('L_warm_ret:')
            first = [k for k, nm in enumerate(padl) if tmp.index(nm + ':') > di]
            use = [padl[k] for k in first]
            out = []; cnt = 0
            for l in tmp:
                out.append(l)
            wj = di - 8
            for w in range(4):
                tgt = use[w] if w < len(use) else 'L_warm_ret'
                out[wj + 2 * w + 1] = f'    s_cbranch_scc1 {tgt}'
            for idx, nm in enumerate(use):
                pos = out.index(nm + ':') + 1
                nxt = use[idx + 4] if idx + 4 < len(use) else 'L_warm_ret'
                out[pos] = f'    s_cbranch_execz {nxt}'
            body = out
            self.npads = len(use)
        elif self.o['pads']:
            wi = [l.strip() for l in body].index(';WARM')
            tmp = body[:wi] + body[wi + 1:]
            tmp, padl = PADS.add_page_pads(tmp, 'L_main', 'L_warm_ret')
            wi = tmp.index('L_warm_ret:')
            warm = []
            for w in range(min(4, len(padl))):
                warm += [f'    s_cmp_eq_u32 {sWAVE}, {w}', f'    s_cbranch_scc1 {padl[w]}']
            body = tmp[:wi] + warm + tmp[wi:]
            self.npads = len(padl)
        names = ''.join(f'; stamp {n}\n' for n in self.stamp_names)
        hdr = f'''; S4D conv + mish MLP gated block, single persistent launch (generated by gen/kern3.py)
; @launch grid=(256,1,1) block=(256,1,1) lds={LDS_BYTES}
{names}.amdgcn_target "amdgcn-amd-amdhsa--gfx950"
.text
.globl {NAME}
{'.p2align 12' if self.o['pads'] == 2 else ''}
.p2align 8
.type {NAME},@function
{NAME}:
'''
        tail = f'''
.section .rodata,"a"
.p2align 6
.amdhsa_kernel {NAME}
  .amdhsa_next_free_vgpr 512
  .amdhsa_next_free_sgpr 102
  .amdhsa_accum_offset 256
  .amdhsa_group_segment_fixed_size 0
  .amdhsa_kernarg_size 112
  .amdhsa_user_sgpr_count 2
  .amdhsa_user_sgpr_kernarg_segment_ptr 1
  .amdhsa_system_sgpr_workgroup_id_x 1
  .amdhsa_ieee_mode 0
  .amdhsa_dx10_clamp 0
.end_amdhsa_kernel
'''
        return hdr + '\n'.join(body) + '\n' + tail


def main(cls=Gen3):
    import argparse
    ap = argparse.ArgumentParser()
    ap.add_argument('-o', default='k.s')
    ap.add_argument('--stamps', action='store_true')
    ap.add_argument('--dump', default=None)
    ap.add_argument('--dbg', default=None)
    ap.add_argument('--opt', default='')
    ap.add_argument('--only', default=None)
    a = ap.parse_args()
    opts = {}
    for kv in a.opt.split(','):
        if kv:
            k, v = kv.split('='); opts[k] = int(v)
    g = cls(stamps=a.stamps, dump=set(a.dump.split(',')) if a.dump else None, dbgstamps=a.dbg.split(',') if a.dbg else None, opts=opts)
    if a.only: g.only = a.only.split(',')
    s = g.build()
    open(a.o, 'w').write(s)
    print('vgpr hi', g.V.hi, 'agpr hi', g.A.hi, 'lines', s.count('\n'), 'pads', getattr(g, 'npads', 0))
if __name__ == '__main__':
    main()
```

```python
import sys, math
from regs import vr
import kern2, kern3, kern4, kern5, kern6, kern7, kern8, kern9
from kern2 import *
from kern3 import *
from kern4 import *

class Gen10(kern9.Gen9):
    def __init__(self, **kw):
        super().__init__(**kw)
        if 'pads' not in (kw.get('opts') or {}): self.o['pads'] = 0
    def entry(self):
        p, V = self.p, self.V
        for nm, cnt in (('l16', 1), ('n31', 1), ('hh', 1), ('cA', 3), ('cB', 2), ('ce', 6), ('us', 3), ('w2a', 7), ('g2a', 8)): V.prealloc(nm, cnt, align=1)
        x0 = V.alloc('x0', 4); x1 = V.alloc('x1', 4)
        l16 = V.alloc('l16')
        if self.stamps: p('s_memrealtime s[98:99]')
        p(f'''
        s_load_dwordx16 s[64:79], s[0:1], 0
        s_load_dwordx8 s[80:87], s[0:1], 64
        s_load_dwordx4 s[88:91], s[0:1], 96
        s_cmp_ge_u32 s2, 256
        s_cbranch_scc1 L_end
        v_and_b32 v1, 63, v0
        ''')
        if self.o.get('ctouch', 1):
            ct = V.alloc('ctv', 4, align=2)
            n = self.o.get('ctn', 8)
            p(f'''
            s_getpc_b64 s[52:53]
            L_pc0:
            s_lshr_b32 s54, s2, 3
            s_mul_i32 s54, s54, {n}
            v_add_u32 v{ct+2}, s54, v0
            s_add_u32 s52, s52, L_main-L_pc0
            s_addc_u32 s53, s53, 0
            v_lshlrev_b32 v{ct}, 7, v{ct+2}
            v_mov_b32 v{ct+1}, s53
            v_add_co_u32 v{ct}, vcc, s52, v{ct}
            v_addc_co_u32 v{ct+1}, vcc, 0, v{ct+1}, vcc
            v_cmp_gt_u32 s[58:59], {n}, v0
            v_cmp_gt_u32 vcc, (L_end-L_main)/128, v{ct+2}
            s_and_b64 vcc, vcc, s[58:59]
            s_and_saveexec_b64 s[56:57], vcc
            s_cbranch_execz L_noct
            global_load_dword v{ct+2}, v[{ct}:{ct+1}], off
            L_noct:
            s_mov_b64 exec, s[56:57]
            ''')
        p(f'''
        v_lshrrev_b32 v2, 6, v0
        s_and_b32 s52, s2, 7
        s_lshr_b32 s53, s2, 3
        v_readfirstlane_b32 {sWAVE}, v2
        s_lshl_b32 {sBETA}, s52, 5
        s_add_u32 {sBETA}, {sBETA}, s53
        v_lshlrev_b32 v{l16}, 4, v1
        s_lshl_b32 s52, {sBETA}, 3
        s_lshl_b32 s53, {sWAVE}, 1
        s_add_u32 s52, s52, s53
        s_lshl_b32 s52, s52, 10
        s_mov_b32 s10, 0x200000
        s_mov_b32 s11, 0x20000
        s_lshr_b32 {sCH}, {sWAVE}, 1
        s_and_b32 {sROLE}, {sWAVE}, 1
        s_and_b32 s54, {sBETA}, 15
        s_mul_i32 {sFB0}, s54, 3
        s_lshl_b32 s55, s54, 1
        s_add_u32 s55, s55, 11
        s_cmp_lt_u32 s54, 11
        s_cselect_b32 {sFB0}, {sFB0}, s55
        s_cselect_b32 {sNBLK}, 3, 2
        s_lshr_b32 {sTT}, {sBETA}, 4
        s_lshr_b32 {sTG}, {sBETA}, 3
        s_and_b32 {sCG}, {sBETA}, 7
        s_waitcnt lgkmcnt(0)
        s_mov_b32 s8, s64
        s_mov_b32 s9, s65
        ''')
        if self.stamps: p('s_mov_b32 s36, s98')
        p(f'buffer_load_dwordx4 {vr(x0,4)}, v{l16}, {SX}, s52 offen')
        p(f'buffer_load_dwordx4 {vr(x1,4)}, v{l16}, {SX}, s52 offen offset:1024')
        V.alloc('par', 4); V.alloc('nonce'); V.alloc('biasv', 2, align=1); V.alloc('touch', 2); V.alloc('w1off', 4); V.alloc('olt', 2)
        p(f'''
        s_mov_b32 s20, s90
        s_mov_b32 s21, s91
        s_mov_b32 s22, {WS_BYTES}
        s_mov_b32 s23, 0x20000
        s_mov_b32 s28, s82
        s_mov_b32 s29, s83
        s_mov_b32 s30, {1376*2}
        s_mov_b32 s31, 0x20000
        s_mov_b32 s12, s80
        s_mov_b32 s13, s81
        s_mov_b32 s14, {512*1376*2}
        s_mov_b32 s15, 0x20000
        s_mov_b32 s16, s84
        s_mov_b32 s17, s85
        s_mov_b32 s18, {512*1376*2}
        s_mov_b32 s19, 0x20000
        s_mov_b32 s24, s86
        s_mov_b32 s25, s87
        s_mov_b32 s26, 0x200000
        s_mov_b32 s27, 0x20000
        s_mov_b64 {pDBG}, s[88:89]
        ''')
        if self.o.get('ppos', 0) == 0: self.other_loads()
        self.stamp('start')
        if self.stamps: p('v_writelane_b32 v255, s36, 62')
        if self.o['pads'] == 2:
            p('L_main:')
        elif self.o['pads']:
            p('s_mov_b64 exec, 0\n;WARM\nL_warm_ret:\ns_mov_b64 exec, -1')
            p('s_branch L_main\n.p2align 12\nL_main:')
        elif self.o.get('align', 0):
            p('s_branch L_main\n.p2align 12\nL_main:')
        else:
            p('L_main:')
    def other_loads(self):
        p, V = self.p, self.V
        pr, nv, bv, tv = V['par'], V['nonce'], V['biasv'], V['touch']
        t = V['olt']
        p(f'''
        s_lshl_b32 s54, {sBETA}, 1
        s_add_u32 s54, s54, {sCH}
        s_lshl_b32 s54, s54, 8
        v_lshlrev_b32 v{t+1}, 2, v1
        v_add_u32 v{t}, s54, v{t+1}
        s_lshl_b32 s58, {sBETA}, 2
        global_load_dword v{pr}, v{t}, {pLOGA}
        global_load_dword v{pr+1}, v{t}, {pAIM}
        global_load_dword v{pr+2}, v{t}, {pCRE}
        global_load_dword v{pr+3}, v{t}, {pCIM}
        s_load_dword {sLDT}, {pLOGDT}, s58
        s_load_dword {sDSK}, {pDSK}, s58
        v_mov_b32 v{t}, {WS_FLG}
        buffer_load_dword v{nv}, v{t}, {SWS}, 0 offen sc1
        ''')
        l1 = self.lab('e1'); l2 = self.lab('e2'); le = self.lab('ee')
        p(f's_cmp_eq_u32 {sWAVE}, 1\ns_cbranch_scc0 {l1}')
        with p.cond(lambda c: c['w'] == 1):
            p(f's_lshl_b32 s52, {sFB0}, 6\nv_lshlrev_b32 v{t}, 1, v1')
            p(f'buffer_load_ushort v{bv}, v{t}, {SB1}, s52 offen')
            p(f'buffer_load_ushort v{bv+1}, v{t}, {SB1}, s52 offen offset:128')
        p(f's_branch {le}\n{l1}:')
        mt = self.o.get('mtouch', 5)
        p(f's_mul_i32 s52, s2, 5504\nv_lshlrev_b32 v{t}, 7, v1\ns_mov_b32 exec_hi, 0x7ff')
        p(f's_cmp_eq_u32 {sWAVE}, 0\ns_cbranch_scc0 {l2}')
        with p.cond(lambda c: c['w'] == 0):
            if mt & 1: p(f'buffer_load_dword v{tv}, v{t}, {SW1}, s52 offen')
        p(f's_branch {le}\n{l2}:')
        p(f's_cmp_eq_u32 {sWAVE}, 2\ns_cbranch_scc0 {le}')
        with p.cond(lambda c: c['w'] == 2):
            if mt & 4: p(f'buffer_load_dword v{tv}, v{t}, {SW2}, s52 offen')
        p(f'{le}:\ns_mov_b32 exec_hi, -1')
    def build(self):
        p, V, A = self.p, self.V, self.A
        self.entry()
        ppos = self.o.get('ppos', 0)
        early = self.w1_run(0, swap=True)
        a = self.cap(self.idle_setup) + self.cap(self.gemm1_addr_setup)
        late = self.cap(self.gemm_addr_setup)
        setup = a + late + self.cap(lambda: p(f'v_add_u32 v{V["us"]+2}, {5*4096}, v{V["us"]+2}'))
        cut = {1: len(setup) * self.o.get('pcut', 40) // 100, 2: len(setup), 0: 0}[ppos]
        marks = [k for k, i in enumerate(setup) if i.text.startswith('s_mov_b32 s34, 128') or i.text in ('; MARK_W2', '; MARK_G2')]
        if ppos == 1: cut = min(marks, key=lambda m: abs(m - cut))
        p.ins.extend(setup[:cut])
        if ppos >= 1: self.other_loads()
        for g_ in early: p.ins.extend(g_)
        p.ins.extend(setup[cut:])
        self.late_setup = []
        q = self._w1all[self.o.get('early', 3):]
        if self.o['pads'] == 2:
            p('s_mov_b64 exec, 0\n;WARM\nL_warm_ret:\ns_mov_b64 exec, -1')
        self.stamp('idle')
        self.ln()
        self.stamp('lnst')
        ks = self.cap(self.kgen_setup)
        n_ks, n_kv1, n_kv2 = self.o.get('n_ks', 3), self.o.get('n_kv1', 6), self.o.get('n_kv2', 6)
        p.merge(ks, q[:n_ks]); q = q[n_ks:]
        p('s_barrier')
        self.stamp('ksetup')
        main = self.kgen_values()
        n = len(main); nf = n * self.o.get('kflag', 45) // 100
        p.merge(main[:nf], q[:n_kv1]); q = q[n_kv1:]
        self.ln_flag()
        p.merge(main[nf:], q[:n_kv2]); q = q[n_kv2:]
        V.free('z', 'Z256', 'Cn', 'z2', 'z4', 'w', 'w2', 'w4', 'chains', 'cv', 'fa')
        self.stamp('kvals')
        p('s_waitcnt lgkmcnt(0)\ns_barrier')
        km = self.cap(self.kgen_mfma)
        p.merge(km, q, 2, len(km) - 12)
        V.free('w1off')
        self.poll_issue('A1', V['pA1'], 8, 1)
        self.stamp('kmfma')
        p('s_waitcnt lgkmcnt(0)\ns_barrier')
        ex = self.cap(self.expand)
        ncommon = next(k for k, i in enumerate(ex) if i.kind == 'branch')
        h1 = self.o.get('xh1', 40)
        p.ins.extend(ex[:h1])
        self.poll_check('A1', V['pA1'], 8, 1)
        V.free('pA1')
        self.stamp('pollA1')
        self.xn_setup()
        p.merge(ex[h1:ncommon - 1], [self.cap(self.xn_load, k) for k in range(self.o['xlead'])])
        p.ins.extend(ex[ncommon - 1:])
        p('s_waitcnt lgkmcnt(0)\ns_barrier')
        self.stamp('expand')
        self.gemm1()
        self.stamp('gemm1')
        self.conv()
        self.stamp('conv')
        self.gemm2()
        self.stamp('end')
        self.finish()
        return self.finalize()

if __name__ == '__main__':
    kern3.main(Gen10)
```

```python
import sys, math
from regs import vr
import kern2, kern3, kern4, kern5, kern6, kern7, kern8, kern9, kern10
from kern2 import *
from kern3 import *
from kern4 import *

class Gen13(kern10.Gen10):
    def __init__(self, **kw):
        super().__init__(**kw)
        for k, v in dict(early=6, n_ks=3, n_kv1=5, n_kv2=5, npre=0, jit=2, sF=6, xr=1).items(): self.o.setdefault(k, v)
    def xn_setup(self):
        super().xn_setup()
        if not self.o['xr']: return
        p, V = self.p, self.V
        xv = V.alloc('xnv', 8)
        p(f's_and_b32 s51, {sBETA}, 7')
        for q in range(8):
            p(f's_xor_b32 s52, s51, {q}\ns_lshl_b32 s52, s52, 10\nv_add_u32 v{xv+q}, s52, v{V["l16"]}')
    def xn_load(self, ks):
        if not self.o['xr']: return super().xn_load(ks)
        p, V = self.p, self.V
        xf = self.A['xnf']
        if ks % 8 == 0 and ks: p('s_add_u32 s40, s40, 8192')
        p(f'buffer_load_dwordx4 {vr(xf+4*ks,4,"a")}, v{V["xnv"]+(ks&7)}, {SWS}, s40 offen sc1')
    def gemm1(self):
        if not self.o['xr']: return super().gemm1()
        p, V, A = self.p, self.V, self.A
        xf = A['xnf']; wa = V['w1a']; xlead = self.o['xlead']
        acc = V.alloc('g1acc', 48, align=2); fr = V.alloc('g1fr', 36, align=2)
        tm = fr; pk = fr + 16
        wb = V.alloc('w1b', 8)
        p(f'''
        s_mov_b32 s34, {f32(LOG2E)}
        s_lshl_b32 s56, {sTT}, 2
        s_add_u32 s56, s56, {sWAVE}
        s_mul_i32 s35, s56, {86*1024}
        s_lshl_b32 s59, {sFB0}, 11
        s_add_u32 s35, s35, s59
        s_add_u32 s35, s35, {WS_ACT}
        ''')
        for q in range(8):
            p(f's_xor_b32 s52, s51, {q}\ns_mul_i32 s52, s52, 3072\nv_add_u32 v{wb+q}, s52, v{wa}')
        for b_ in range(3): self.bias_init(acc + 16 * b_, b_)
        def rd(j, blk):
            b = fr + 12 * (j % 3) + 4 * blk; o = ((j >> 3) & 1) * 24576 + 64 * blk
            p(f'ds_read_b64_tr_b16 {vr(b,2)}, v{wb+(j&7)} offset:{o}')
            p(f'ds_read_b64_tr_b16 {vr(b+2,2)}, v{wb+(j&7)} offset:{o+768}')
        for j in range(2):
            for blk in range(3): rd(j, blk)
        ud = V.alloc('ud', 8, align=2)
        for j in range(32):
            if j + xlead < 32: self.xn_load(j + xlead)
            for blk in range(3):
                p(f'v_mfma_f32_32x32x16_bf16 {vr(acc+16*blk,16)}, {vr(fr+12*(j%3)+4*blk,4)}, {vr(xf+4*j,4,"a")}, {vr(acc+16*blk,16)}')
                if j + 2 < 32:
                    q = (j + 2) & 7
                    if blk == 0 and 16 <= j + 2 < 24: p(f'v_add_u32 v{wb+q}, {16*3072}, v{wb+q}')
                    rd(j + 2, blk)
            if j == 22: self.poll_issue('A2', V['us'] + 2, 64, 4)
            if j == 26:
                self.poll_check('A2', V['us'] + 2, 64, 4)
                p(f'''
                s_lshl_b32 s56, {sWAVE}, 19
                s_lshl_b32 s57, {sBETA}, 5
                s_add_u32 s56, s56, s57
                s_add_u32 s56, s56, {WS_UBLK}
                buffer_load_dwordx4 {vr(ud,4)}, v{V['us']}, {SWS}, s56 offen sc1
                buffer_load_dwordx4 {vr(ud+4,4)}, v{V['us']}, {SWS}, s56 offen offset:16 sc1
                ''')
        V.free('xnv', 'w1b')
        self.stamp('g1p1')
        p('s_barrier')
        self.w2_dma_setup()
        d = [[self.cap(self.w2_dma, r, k) for k in range(8)] for r in range(3)]
        us = V['us']
        for blk in range(3):
            m = self.cap(self.mish, acc + 16 * blk, tm, pk + 8 * (blk & 1), True)
            p.merge(m, d[blk])
            self.act_store(pk + 8 * (blk & 1), blk, guard=(blk == 2))
            self.fstamp(f'm{blk}')
            if blk == 0:
                p(f'ds_write_b128 v{us+1}, {vr(ud,4)}')
                p(f'ds_write_b128 v{us+1}, {vr(ud+4,4)} offset:{U_CH}')
        p.wait_tag('w2dma1')
        p('s_waitcnt lgkmcnt(0)\ns_barrier')
        V.free('g1acc', 'g1fr', 'bia', 'w1a', 'ud', 'us')
        A.free('xnf')
        lab = self.lab('nw')
        p(f's_or_b32 s52, {sBETA}, {sWAVE}\ns_cmp_lg_u32 s52, 0\ns_cbranch_scc1 {lab}')
        with p.cond(lambda c: c['w'] == 0):
            p('s_mov_b32 s101, 0')
            self.flag_store('s101', WS_FLG)
        p(f'{lab}:')

if __name__ == '__main__':
    kern3.main(Gen13)
```

```python
import sys, math
from regs import vr
import kern2, kern3, kern4, kern5, kern6, kern7, kern8, kern9
from kern2 import *
from kern3 import *
from kern4 import *

class Gen10(kern9.Gen9):
    def __init__(self, **kw):
        super().__init__(**kw)
        if 'pads' not in (kw.get('opts') or {}): self.o['pads'] = 0
    def entry(self):
        p, V = self.p, self.V
        for nm, cnt in (('l16', 1), ('n31', 1), ('hh', 1), ('cA', 3), ('cB', 2), ('ce', 6), ('us', 3), ('w2a', 7), ('g2a', 8)): V.prealloc(nm, cnt, align=1)
        x0 = V.alloc('x0', 4); x1 = V.alloc('x1', 4)
        l16 = V.alloc('l16')
        if self.stamps: p('s_memrealtime s[98:99]')
        t0 = self.stamps and getattr(self, 'only', None) is not None and 't0' in self.only
        if t0: p('s_memtime s[100:101]')
        p(f'''
        s_load_dwordx16 s[64:79], s[0:1], 0
        s_load_dwordx8 s[80:87], s[0:1], 64
        s_load_dwordx4 s[88:91], s[0:1], 96
        s_cmp_ge_u32 s2, 256
        s_cbranch_scc1 L_end
        v_and_b32 v1, 63, v0
        ''')
        if self.o.get('ctouch', 1):
            ct = V.alloc('ctv', 4, align=2)
            n = self.o.get('ctn', 8)
            p(f'''
            s_getpc_b64 s[52:53]
            L_pc0:
            s_lshr_b32 s54, s2, 3
            s_mul_i32 s54, s54, {n}
            v_add_u32 v{ct+2}, s54, v0
            s_add_u32 s52, s52, L_main-L_pc0
            s_addc_u32 s53, s53, 0
            v_lshlrev_b32 v{ct}, 7, v{ct+2}
            v_mov_b32 v{ct+1}, s53
            v_add_co_u32 v{ct}, vcc, s52, v{ct}
            v_addc_co_u32 v{ct+1}, vcc, 0, v{ct+1}, vcc
            v_cmp_gt_u32 s[58:59], {n}, v0
            v_cmp_gt_u32 vcc, (L_end-L_main)/128, v{ct+2}
            s_and_b64 vcc, vcc, s[58:59]
            s_and_saveexec_b64 s[56:57], vcc
            s_cbranch_execz L_noct
            global_load_dword v{ct+2}, v[{ct}:{ct+1}], off
            L_noct:
            s_mov_b64 exec, s[56:57]
            ''')
        p(f'''
        v_lshrrev_b32 v2, 6, v0
        s_and_b32 s52, s2, 7
        s_lshr_b32 s53, s2, 3
        v_readfirstlane_b32 {sWAVE}, v2
        s_lshl_b32 {sBETA}, s52, 5
        s_add_u32 {sBETA}, {sBETA}, s53
        v_lshlrev_b32 v{l16}, 4, v1
        s_lshl_b32 s52, {sBETA}, 3
        s_lshl_b32 s53, {sWAVE}, 1
        s_add_u32 s52, s52, s53
        s_lshl_b32 s52, s52, 10
        s_mov_b32 s10, 0x200000
        s_mov_b32 s11, 0x20000
        s_lshr_b32 {sCH}, {sWAVE}, 1
        s_and_b32 {sROLE}, {sWAVE}, 1
        s_and_b32 s54, {sBETA}, 15
        s_mul_i32 {sFB0}, s54, 3
        s_lshl_b32 s55, s54, 1
        s_add_u32 s55, s55, 11
        s_cmp_lt_u32 s54, 11
        s_cselect_b32 {sFB0}, {sFB0}, s55
        s_cselect_b32 {sNBLK}, 3, 2
        s_lshr_b32 {sTT}, {sBETA}, 4
        s_lshr_b32 {sTG}, {sBETA}, 3
        s_and_b32 {sCG}, {sBETA}, 7
        s_waitcnt lgkmcnt(0)
        s_mov_b32 s8, s64
        s_mov_b32 s9, s65
        ''')
        if self.stamps: p('s_mov_b32 s36, s98')
        if t0: p('s_memtime s[60:61]\ns_waitcnt lgkmcnt(0)\ns_mov_b32 s101, s60')
        p(f'buffer_load_dwordx4 {vr(x0,4)}, v{l16}, {SX}, s52 offen')
        p(f'buffer_load_dwordx4 {vr(x1,4)}, v{l16}, {SX}, s52 offen offset:1024')
        V.alloc('par', 4); V.alloc('nonce'); V.alloc('biasv', 2, align=1); V.alloc('touch', 2); V.alloc('w1off', 4); V.alloc('olt', 2)
        p(f'''
        s_mov_b32 s20, s90
        s_mov_b32 s21, s91
        s_mov_b32 s22, {WS_BYTES}
        s_mov_b32 s23, 0x20000
        s_mov_b32 s28, s82
        s_mov_b32 s29, s83
        s_mov_b32 s30, {1376*2}
        s_mov_b32 s31, 0x20000
        s_mov_b32 s12, s80
        s_mov_b32 s13, s81
        s_mov_b32 s14, {512*1376*2}
        s_mov_b32 s15, 0x20000
        s_mov_b32 s16, s84
        s_mov_b32 s17, s85
        s_mov_b32 s18, {512*1376*2}
        s_mov_b32 s19, 0x20000
        s_mov_b32 s24, s86
        s_mov_b32 s25, s87
        s_mov_b32 s26, 0x200000
        s_mov_b32 s27, 0x20000
        s_mov_b64 {pDBG}, s[88:89]
        ''')
        if self.o.get('ppos', 0) == 0: self.other_loads()
        if t0:
            for nm, r in (('t0', 's100'), ('kaw', 's101')):
                k = len(self.stamp_names); self.stamp_names.append(nm); self.nstamp += 1
                p(f's_mov_b32 s{64+2*k}, {r}')
        self.stamp('start')
        if self.stamps: p('v_writelane_b32 v255, s36, 62')
        if self.o['pads'] == 2:
            p('L_main:')
        elif self.o['pads']:
            p('s_mov_b64 exec, 0\n;WARM\nL_warm_ret:\ns_mov_b64 exec, -1')
            p('s_branch L_main\n.p2align 12\nL_main:')
        elif self.o.get('align', 0):
            p('s_branch L_main\n.p2align 12\nL_main:')
        else:
            p('L_main:')
    def other_loads(self):
        p, V = self.p, self.V
        pr, nv, bv, tv = V['par'], V['nonce'], V['biasv'], V['touch']
        t = V['olt']
        p(f'''
        s_lshl_b32 s54, {sBETA}, 1
        s_add_u32 s54, s54, {sCH}
        s_lshl_b32 s54, s54, 8
        v_lshlrev_b32 v{t+1}, 2, v1
        v_add_u32 v{t}, s54, v{t+1}
        s_lshl_b32 s58, {sBETA}, 2
        global_load_dword v{pr}, v{t}, {pLOGA}
        global_load_dword v{pr+1}, v{t}, {pAIM}
        global_load_dword v{pr+2}, v{t}, {pCRE}
        global_load_dword v{pr+3}, v{t}, {pCIM}
        s_load_dword {sLDT}, {pLOGDT}, s58
        s_load_dword {sDSK}, {pDSK}, s58
        v_mov_b32 v{t}, {WS_FLG}
        buffer_load_dword v{nv}, v{t}, {SWS}, 0 offen sc1
        ''')
        l1 = self.lab('e1'); l2 = self.lab('e2'); le = self.lab('ee')
        p(f's_cmp_eq_u32 {sWAVE}, 1\ns_cbranch_scc0 {l1}')
        with p.cond(lambda c: c['w'] == 1):
            p(f's_lshl_b32 s52, {sFB0}, 6\nv_lshlrev_b32 v{t}, 1, v1')
            p(f'buffer_load_ushort v{bv}, v{t}, {SB1}, s52 offen')
            p(f'buffer_load_ushort v{bv+1}, v{t}, {SB1}, s52 offen offset:128')
        p(f's_branch {le}\n{l1}:')
        mt = self.o.get('mtouch', 5)
        p(f's_mul_i32 s52, s2, 5504\nv_lshlrev_b32 v{t}, 7, v1\ns_mov_b32 exec_hi, 0x7ff')
        p(f's_cmp_eq_u32 {sWAVE}, 0\ns_cbranch_scc0 {l2}')
        with p.cond(lambda c: c['w'] == 0):
            if mt & 1: p(f'buffer_load_dword v{tv}, v{t}, {SW1}, s52 offen')
        p(f's_branch {le}\n{l2}:')
        p(f's_cmp_eq_u32 {sWAVE}, 2\ns_cbranch_scc0 {le}')
        with p.cond(lambda c: c['w'] == 2):
            if mt & 4: p(f'buffer_load_dword v{tv}, v{t}, {SW2}, s52 offen')
        p(f'{le}:\ns_mov_b32 exec_hi, -1')
    def build(self):
        p, V, A = self.p, self.V, self.A
        self.entry()
        ppos = self.o.get('ppos', 0)
        early = self.w1_run(0, swap=True)
        a = self.cap(self.idle_setup) + self.cap(self.gemm1_addr_setup)
        late = self.cap(self.gemm_addr_setup)
        setup = a + late + self.cap(lambda: p(f'v_add_u32 v{V["us"]+2}, {5*4096}, v{V["us"]+2}'))
        cut = {1: len(setup) * self.o.get('pcut', 40) // 100, 2: len(setup), 0: 0}[ppos]
        marks = [k for k, i in enumerate(setup) if i.text.startswith('s_mov_b32 s34, 128') or i.text in ('; MARK_W2', '; MARK_G2')]
        if ppos == 1: cut = min(marks, key=lambda m: abs(m - cut))
        p.ins.extend(setup[:cut])
        if ppos >= 1: self.other_loads()
        for g_ in early: p.ins.extend(g_)
        p.ins.extend(setup[cut:])
        self.late_setup = []
        q = self._w1all[self.o.get('early', 3):]
        if self.o['pads'] == 2:
            p('s_mov_b64 exec, 0\n;WARM\nL_warm_ret:\ns_mov_b64 exec, -1')
        self.stamp('idle')
        self.ln()
        self.stamp('lnst')
        ks = self.cap(self.kgen_setup)
        n_ks, n_kv1, n_kv2 = self.o.get('n_ks', 3), self.o.get('n_kv1', 6), self.o.get('n_kv2', 6)
        p.merge(ks, q[:n_ks]); q = q[n_ks:]
        p('s_barrier')
        self.stamp('ksetup')
        main = self.kgen_values()
        n = len(main); nf = n * self.o.get('kflag', 45) // 100
        p.merge(main[:nf], q[:n_kv1]); q = q[n_kv1:]
        self.ln_flag()
        p.merge(main[nf:], q[:n_kv2]); q = q[n_kv2:]
        V.free('z', 'Z256', 'Cn', 'z2', 'z4', 'w', 'w2', 'w4', 'chains', 'cv', 'fa')
        if self.o.get('late_bias', 1): self.ln_hook()
        self.stamp('kvals')
        p('s_waitcnt lgkmcnt(0)\ns_barrier')
        km = self.cap(self.kgen_mfma)
        p.merge(km, q, 2, len(km) - 12)
        V.free('w1off')
        self.poll_issue('A1', V['pA1'], 8, 1)
        self.stamp('kmfma')
        p('s_waitcnt lgkmcnt(0)\ns_barrier')
        ex = self.cap(self.expand)
        ncommon = next(k for k, i in enumerate(ex) if i.kind == 'branch')
        h1 = self.o.get('xh1', 40)
        p.ins.extend(ex[:h1])
        self.poll_check('A1', V['pA1'], 8, 1)
        V.free('pA1')
        self.stamp('pollA1')
        self.xn_setup()
        p.merge(ex[h1:ncommon - 1], [self.cap(self.xn_load, k) for k in range(self.o['xlead'])])
        p.ins.extend(ex[ncommon - 1:])
        p('s_waitcnt lgkmcnt(0)\ns_barrier')
        self.stamp('expand')
        self.gemm1()
        self.stamp('gemm1')
        self.conv()
        self.stamp('conv')
        self.gemm2()
        self.stamp('end')
        self.finish()
        return self.finalize()

if __name__ == '__main__':
    kern3.main(Gen10)
```

```python
import sys, math
from regs import vr
import kern2, kern3, kern4, kern5, kern6, kern7
from kern2 import *
from kern3 import *
from kern4 import *

class Gen8(kern7.Gen7):
    def __init__(self, **kw):
        super().__init__(**kw)
        self.o.setdefault('xlead', 10)
    def w1_run(self, blk, swap=False):
        gs = kern4.Gen4.w1_run(self, blk, swap and self.o.get('sib', 1) == 1)
        if swap:
            if blk == 0:
                self._w1b0 = gs
                return gs[:self.o.get('early', 2)]
            self._w1b1 = gs
        return gs
    def gemm1_addr_setup(self):
        kern3.Gen3.gemm1_addr_setup(self)
    def ln_hook(self):
        p, V = self.p, self.V
        lab = self.lab('bl')
        bv = V['biasv']; t = V.alloc('btl', 3)
        p(f's_cmp_lg_u32 {sWAVE}, 1\ns_cbranch_scc1 {lab}')
        with p.cond(lambda c: c['w'] == 1):
            p(f'''
            v_lshlrev_b32 v{t}, 16, v{bv}
            v_lshlrev_b32 v{t+1}, 16, v{bv+1}
            v_lshlrev_b32 v{t+2}, 2, v1
            v_add_u32 v{t+2}, {L_BIAS}, v{t+2}
            ds_write_b32 v{t+2}, v{t}
            s_mov_b32 exec_hi, 0
            ds_write_b32 v{t+2}, v{t+1} offset:256
            s_mov_b32 exec_hi, -1
            ''')
        p(f'{lab}:')
        V.free('btl', 'biasv')
    def bias_init(self, acc, blk): kern3.Gen3.bias_init(self, acc, blk)
    def mish(self, acc, tm, pk, packed): kern2.Gen.mish(self, acc, tm, pk, packed)
    def ln(self):
        p, V = self.p, self.V
        x = [V['x0'], V['x1']]
        d = [V.alloc('d0', 8), V.alloc('d1', 8)]
        s1 = V.alloc('s1', 2); s2 = V.alloc('s2', 2); tp = V.alloc('lnt', 8); ad = V.alloc('lnad', 2)
        l16 = V['l16']; nv = V['nonce']
        p(f'''
        s_lshl_b32 s52, {sWAVE}, 1
        s_mul_i32 s53, s52, {TBF_STR}
        s_add_u32 s53, s53, {L_TBF}
        s_mul_i32 s54, s52, {TH_STR}
        s_add_u32 s54, s54, {L_TH}
        v_add_u32 v{ad}, s53, v{l16}
        v_add_u32 v{ad+1}, s54, v{l16}
        ''')
        for k in range(2):
            for j in range(4):
                p(f'v_lshlrev_b32 v{d[k]+2*j}, 16, v{x[k]+j}')
                p(f'v_and_b32 v{d[k]+2*j+1}, 0xffff0000, v{x[k]+j}')
        self.fstamp('xarr')
        if self.o.get('ptouch', 0): self.page_touch()
        if self.o.get('ltouch', 0): self.late_touch()
        p(f'v_readlane_b32 s52, v{d[0]}, 0')
        p(f'v_readlane_b32 s54, v{d[1]}, 0')
        p(f's_mov_b32 s53, s52\ns_mov_b32 s55, s54')
        for k in range(2):
            sp = 's[52:53]' if k == 0 else 's[54:55]'
            for j in range(4):
                p(f'v_pk_add_f32 {vr(d[k]+2*j,2)}, {vr(d[k]+2*j,2)}, {sp} neg_lo:[0,1] neg_hi:[0,1]')
        for k in range(2):
            a = tp + 4 * k
            p(f'v_pk_add_f32 {vr(a,2)}, {vr(d[k],2)}, {vr(d[k]+2,2)}')
            p(f'v_pk_add_f32 {vr(a+2,2)}, {vr(d[k]+4,2)}, {vr(d[k]+6,2)}')
        for k in range(2):
            a = tp + 4 * k
            p(f'v_pk_add_f32 {vr(a,2)}, {vr(a,2)}, {vr(a+2,2)}')
        for k in range(2):
            a = tp + 4 * k
            p(f'v_add_f32 v{s1+k}, v{a}, v{a+1}')
        for k in range(2):
            a = tp + 4 * k
            p(f'v_pk_mul_f32 {vr(a,2)}, {vr(d[k],2)}, {vr(d[k],2)}')
        for j in range(1, 4):
            for k in range(2):
                a = tp + 4 * k
                p(f'v_pk_fma_f32 {vr(a,2)}, {vr(d[k]+2*j,2)}, {vr(d[k]+2*j,2)}, {vr(a,2)}')
        for k in range(2):
            a = tp + 4 * k
            p(f'v_add_f32 v{s2+k}, v{a}, v{a+1}')
        self.fstamp('lnA')
        regs = [s1, s1 + 1, s2, s2 + 1]
        for ctl in ('row_shr:1 row_mask:0xf bank_mask:0xf bound_ctrl:1', 'row_shr:2 row_mask:0xf bank_mask:0xf bound_ctrl:1',
                    'row_shr:4 row_mask:0xf bank_mask:0xf bound_ctrl:1', 'row_shr:8 row_mask:0xf bank_mask:0xf bound_ctrl:1',
                    'row_bcast:15 row_mask:0xa bank_mask:0xf', 'row_bcast:31 row_mask:0xc bank_mask:0xf'):
            for r in regs:
                p(f'v_add_f32_dpp v{r}, v{r}, v{r} {ctl}')
        for n, r in enumerate(regs):
            p(f'v_readlane_b32 s{56+n}, v{r}, 63')
        self.fstamp('lnB')
        m = [tp, tp + 1]; va = [tp + 2, tp + 3]; t4 = tp + 4; t5 = tp + 5
        p(f's_mov_b32 s60, {f32(1.0 / 512)}')
        for k in range(2):
            p(f'v_mov_b32 v{m[k]}, s{56+k}')
            p(f'v_mov_b32 v{va[k]}, s{58+k}')
        p(f'v_pk_mul_f32 {vr(m[0],2)}, {vr(m[0],2)}, s[60:61] op_sel_hi:[1,0]')
        p(f'v_pk_mul_f32 {vr(va[0],2)}, {vr(va[0],2)}, s[60:61] op_sel_hi:[1,0]')
        p(f'v_pk_fma_f32 {vr(va[0],2)}, {vr(m[0],2)}, {vr(m[0],2)}, {vr(va[0],2)} neg_lo:[1,0,0] neg_hi:[1,0,0]')
        p(f'v_add_f32 v{t4}, s52, v{m[0]}')
        p(f'v_add_f32 v{t5}, s54, v{m[1]}')
        for k in range(2): p(f'v_max_f32 v{va[k]}, 0, v{va[k]}')
        p(f'v_cvt_pk_bf16_f32 v{t4}, v{t4}, v{t5}')
        p(f'v_cvt_pk_bf16_f32 v{t5}, v{va[0]}, v{va[1]}')
        p(f's_mov_b32 s60, {f32(1e-5)}')
        p(f'v_lshlrev_b32 v{va[0]}, 16, v{t5}')
        p(f'v_and_b32 v{va[1]}, 0xffff0000, v{t5}')
        p(f'v_lshlrev_b32 v{m[0]}, 16, v{t4}')
        p(f'v_pk_add_f32 {vr(va[0],2)}, {vr(va[0],2)}, s[60:61] op_sel_hi:[1,0]')
        p(f'v_and_b32 v{m[1]}, 0xffff0000, v{t4}')
        p(f'v_cvt_pk_bf16_f32 v{t5}, v{va[0]}, v{va[1]}')
        p(f'v_sub_f32 v{m[0]}, s52, v{m[0]}')
        p(f'v_lshlrev_b32 v{va[0]}, 16, v{t5}')
        p(f'v_and_b32 v{va[1]}, 0xffff0000, v{t5}')
        for k in range(2): p(f'v_sqrt_f32 v{va[k]}, v{va[k]}')
        p(f'v_sub_f32 v{m[1]}, s54, v{m[1]}')
        p(f'v_cvt_pk_bf16_f32 v{t5}, v{va[0]}, v{va[1]}')
        p(f'v_lshlrev_b32 v{va[0]}, 16, v{t5}')
        p(f'v_and_b32 v{va[1]}, 0xffff0000, v{t5}')
        for k in range(2): p(f'v_rcp_f32 v{va[k]}, v{va[k]}')
        self.fstamp('lnC')
        p(f'v_pk_mul_f32 {vr(m[0],2)}, {vr(m[0],2)}, {vr(va[0],2)}')
        for k in range(2):
            for j in range(4):
                p(f'v_pk_fma_f32 {vr(d[k]+2*j,2)}, {vr(d[k]+2*j,2)}, {vr(va[0],2)}, {vr(m[0],2)} '
                  f'op_sel:[0,{k},{k}] op_sel_hi:[1,{k},{k}]')
        for k in range(2):
            for j in range(4):
                p(f'v_cvt_pk_bf16_f32 v{x[k]+j}, v{d[k]+2*j}, v{d[k]+2*j+1}')
            p(f'ds_write_b128 v{ad}, {vr(x[k],4)} offset:{k*TBF_STR}')
        for k in range(2):
            for j in range(4):
                p(f'v_cvt_pk_f16_f32 v{tp+4*k+j}, v{d[k]+2*j}, v{d[k]+2*j+1}')
            p(f'ds_write_b128 v{ad+1}, {vr(tp+4*k,4)} offset:{k*TH_STR}')
        self.fstamp('lnD')
        if not self.o.get('late_bias', 1): self.ln_hook()
        p('s_waitcnt lgkmcnt(0)\ns_barrier')
        V.free('d0', 'd1', 's1', 's2', 'lnt', 'lnad', 'x0', 'x1')
        self.stamp('ln')
        a = V.alloc('lsa', 4); dt = V.alloc('lsd', 16, align=2)
        l1 = self.lab('ln1'); l2 = self.lab('ln2')
        p(f's_cmp_ge_u32 {sWAVE}, 2\ns_cbranch_scc1 {l1}')
        with p.cond(lambda c: c['w'] < 2):
            p(f'''
            v_and_b32 v{a}, 7, v0
            v_lshrrev_b32 v{a+1}, 3, v0
            v_mul_u32_u24 v{a+2}, {TBF_STR}, v{a}
            v_lshlrev_b32 v{a+3}, 4, v{a+1}
            v_add_u32 v{a+2}, v{a+2}, v{a+3}
            v_add_u32 v{a+2}, {L_TBF}, v{a+2}
            ''')
            for k in range(4):
                p(f'ds_read_b128 {vr(dt+4*k,4)}, v{a+2} offset:{256*k}')
            p(f'''
            v_lshrrev_b32 v{a+3}, 1, v{a+1}
            v_lshlrev_b32 v{a+3}, 10, v{a+3}
            v_and_b32 v{a+1}, 1, v{a+1}
            v_lshlrev_b32 v{a+1}, 9, v{a+1}
            v_add_u32 v{a+3}, v{a+3}, v{a+1}
            v_lshlrev_b32 v{a}, 4, v{a}
            v_add_u32 v{a+3}, v{a+3}, v{a}
            s_lshr_b32 s52, {sBETA}, 2
            s_lshl_b32 s52, s52, 15
            s_and_b32 s53, {sBETA}, 3
            s_lshl_b32 s53, s53, 7
            s_add_u32 s52, s52, s53
            s_add_u32 s52, s52, {WS_XNF}
            ''')
            for k in range(4):
                if k: p(f's_add_u32 s52, s52, 8192')
                p(f'buffer_store_dwordx4 {vr(dt+4*k,4)}, v{a+3}, {SWS}, s52 offen sc1', tag='lnst')
        p(f's_branch {l2}\n{l1}:')
        with p.cond(lambda c: c['w'] >= 2):
            p(f'''
            v_bfe_u32 v{a}, v1, 2, 2
            v_mul_u32_u24 v{a}, {TH_STR}, v{a}
            v_lshrrev_b32 v{a+1}, 4, v1
            v_lshlrev_b32 v{a+1}, 5, v{a+1}
            v_add_u32 v{a}, v{a}, v{a+1}
            v_and_b32 v{a+1}, 3, v1
            v_lshlrev_b32 v{a+1}, 3, v{a+1}
            v_add_u32 v{a}, v{a}, v{a+1}
            s_lshl_b32 s52, {sROLE}, 9
            s_add_u32 s52, s52, {L_TH}
            v_add_u32 v{a}, s52, v{a}
            ''')
            for it in range(4):
                p(f'ds_read_b64_tr_b16 {vr(dt+4*it,2)}, v{a} offset:{128*it}')
                p(f'ds_read_b64_tr_b16 {vr(dt+4*it+2,2)}, v{a} offset:{128*it+4*TH_STR}')
            p(f'''
            s_lshl_b32 s52, {sBETA}, 13
            s_lshl_b32 s53, {sROLE}, 12
            s_add_u32 s52, s52, s53
            s_add_u32 s52, s52, {WS_UBLK}
            ''')
            for it in range(4):
                p(f'buffer_store_dwordx4 {vr(dt+4*it,4)}, v{l16}, {SWS}, s52 offen offset:{1024*it} sc1', tag='lnst')
        p(f'{l2}:')
        V.free('lsa', 'lsd')
        p(f'v_add_u32 v{nv}, 1, v{nv}')
        p(f'v_readfirstlane_b32 {sNONCE}, v{nv}')
        V.free('nonce')
    def late_touch(self):
        p, V = self.p, self.V
        tv = V['touch']; t = V.alloc('ltt'); m = self.o['ltouch']
        l2 = self.lab('lt2'); le = self.lab('lte')
        p(f's_mul_i32 s60, s2, 5504\nv_lshlrev_b32 v{t}, 7, v1\ns_mov_b32 exec_hi, 0x7ff')
        p(f's_cmp_eq_u32 {sWAVE}, 0\ns_cbranch_scc0 {l2}')
        with p.cond(lambda c: c['w'] == 0):
            if m & 1: p(f'buffer_load_dword v{tv}, v{t}, {SW1}, s60 offen')
        p(f's_branch {le}\n{l2}:')
        p(f's_cmp_eq_u32 {sWAVE}, 2\ns_cbranch_scc0 {le}')
        with p.cond(lambda c: c['w'] == 2):
            if m & 4: p(f'buffer_load_dword v{tv}, v{t}, {SW2}, s60 offen')
        p(f'{le}:\ns_mov_b32 exec_hi, -1')
        V.free('ltt')
    def page_touch(self):
        p, V = self.p, self.V
        pt = V['ptv']; tv = V['touch']
        l1, l2, l3, le = self.lab('pt1'), self.lab('pt2'), self.lab('pt3'), self.lab('pte')
        p(f's_mov_b64 exec, 3')
        p(f's_cmp_eq_u32 {sWAVE}, 2\ns_cbranch_scc1 {l2}\ns_cmp_eq_u32 {sWAVE}, 3\ns_cbranch_scc1 {l3}')
        with p.cond(lambda c: c['w'] < 2): p(f'buffer_load_dword v{tv+1}, v{pt}, {SWS}, 0 offen')
        p(f's_branch {le}\n{l2}:')
        with p.cond(lambda c: c['w'] == 2): p(f'buffer_load_dword v{tv+1}, v{pt}, {SW2}, 0 offen')
        p(f's_branch {le}\n{l3}:')
        with p.cond(lambda c: c['w'] == 3): p(f'buffer_load_dword v{tv+1}, v{pt}, {SOUT}, 0 offen')
        p(f'{le}:\ns_mov_b64 exec, -1')
        V.free('ptv')
    def page_touch_setup(self):
        p, V = self.p, self.V
        pt = V.alloc('ptv')
        p(f'''
        s_lshl_b32 s52, {sTT}, 2
        s_mul_i32 s52, s52, {86*1024}
        s_add_u32 s52, s52, {WS_ACT}
        s_lshl_b32 s53, {sTG}, 1
        s_mul_i32 s53, s53, {86*1024}
        s_add_u32 s53, s53, {WS_ACT}
        s_lshl_b32 s54, {sBETA}, 13
        s_add_u32 s54, s54, {WS_ST}
        s_lshl_b32 s55, {sCG}, 18
        s_add_u32 s55, s55, {WS_ST}
        s_lshl_b32 s56, {sCG}, 7
        s_add_u32 s57, s56, {43*16*1024}
        s_lshl_b32 s58, {sTG}, 16
        s_cmp_eq_u32 {sWAVE}, 1
        s_cselect_b32 s52, s54, s52
        s_cselect_b32 s53, s55, s53
        s_cmp_eq_u32 {sWAVE}, 2
        s_cselect_b32 s52, s56, s52
        s_cselect_b32 s53, s57, s53
        s_cmp_eq_u32 {sWAVE}, 3
        s_cselect_b32 s52, s58, s52
        s_cselect_b32 s53, s58, s53
        s_sub_u32 s53, s53, s52
        v_mul_lo_u32 v{pt}, v1, s53
        v_add_u32 v{pt}, s52, v{pt}
        ''')
    def ln_flag(self):
        p = self.p
        p.wait_tag('lnst')
        p(f'''
        s_lshl_b32 s101, {sBETA}, 4
        s_lshl_b32 s100, {sROLE}, 3
        s_add_u32 s101, s101, s100
        s_lshl_b32 s100, {sCH}, 12
        s_mul_i32 s100, s100, 5
        s_add_u32 s101, s101, s100
        ''')
        self.flag_store('s101', FL_A)
    def gemm1(self):
        p, V, A = self.p, self.V, self.A
        xf = A['xnf']; wa = V['w1a']; xlead = self.o['xlead']
        acc = V.alloc('g1acc', 48, align=2); fr = V.alloc('g1fr', 32, align=2); tm = V.alloc('g1tm', 16, align=2); pk = V.alloc('g1pk', 16, align=2)
        p(f'''
        s_mov_b32 s34, {f32(LOG2E)}
        s_lshl_b32 s56, {sTT}, 2
        s_add_u32 s56, s56, {sWAVE}
        s_mul_i32 s35, s56, {86*1024}
        s_lshl_b32 s59, {sFB0}, 11
        s_add_u32 s35, s35, s59
        s_add_u32 s35, s35, {WS_ACT}
        ''')
        self.bias_init(acc, 0); self.bias_init(acc + 16, 1); self.bias_init(acc + 32, 2)
        def rd(ks, blk, slot):
            b = fr + 4 * slot; base = wa + (blk >> 1); o = ks * 1024 + W1B * (blk & 1)
            p(f'ds_read_b64_tr_b16 {vr(b,2)}, v{base} offset:{o}')
            p(f'ds_read_b64_tr_b16 {vr(b+2,2)}, v{base} offset:{o+256}')
        w1b2 = self.w1b2
        for ks in range(2): rd(ks, 0, 2 * (ks % 4)); rd(ks, 1, 2 * (ks % 4) + 1)
        for ks in range(32):
            if ks + xlead < 32: self.xn_load(ks + xlead)
            p(f'v_mfma_f32_32x32x16_bf16 {vr(acc,16)}, {vr(fr+8*(ks%4),4)}, {vr(xf+4*ks,4,"a")}, {vr(acc,16)}')
            if ks + 2 < 32: rd(ks + 2, 0, 2 * ((ks + 2) % 4))
            p(f'v_mfma_f32_32x32x16_bf16 {vr(acc+16,16)}, {vr(fr+8*(ks%4)+4,4)}, {vr(xf+4*ks,4,"a")}, {vr(acc+16,16)}')
            if ks + 2 < 32: rd(ks + 2, 1, 2 * ((ks + 2) % 4) + 1)
            if ks >= 22 and ks < 30: p.ins.extend(w1b2[ks - 22])
            if ks == 21: self.poll_issue('A2', V['us'] + 2, 64, 4)
        V.free('w1off')
        self.stamp('g1p1')
        self.poll_check('A2', V['us'] + 2, 64, 4)
        self.fstamp('a2')
        ud = V.alloc('ud', 8, align=2)
        p(f'''
        s_lshl_b32 s56, {sWAVE}, 19
        s_lshl_b32 s57, {sBETA}, 5
        s_add_u32 s56, s56, s57
        s_add_u32 s56, s56, {WS_UBLK}
        buffer_load_dwordx4 {vr(ud,4)}, v{V['us']}, {SWS}, s56 offen sc1
        buffer_load_dwordx4 {vr(ud+4,4)}, v{V['us']}, {SWS}, s56 offen offset:16 sc1
        s_barrier
        ''')
        self.fstamp('bar1')
        self.w2_dma_setup()
        d = [[self.cap(self.w2_dma, r, k) for k in range(8)] for r in range(3)]
        m0_ = self.cap(self.mish, acc, tm, pk, True); p.merge(m0_, d[0][:4]); self.fstamp('m0'); self.act_store(pk, 0); self.fstamp('st0')
        m1_ = self.cap(self.mish, acc + 16, tm, pk + 8, True); p.merge(m1_, d[0][4:]); self.fstamp('m1'); self.act_store(pk + 8, 1)
        self.fstamp('g1m01')
        p.wait_tag('w1dma2')
        p('s_barrier')
        self.fstamp('bar2')
        for ks in range(3): rd(ks, 2, ks % 4)
        us = V['us']
        p(f'ds_write_b128 v{us+1}, {vr(ud,4)}')
        p(f'ds_write_b128 v{us+1}, {vr(ud+4,4)} offset:{U_CH}')
        for ks in range(32):
            p(f'v_mfma_f32_32x32x16_bf16 {vr(acc+32,16)}, {vr(fr+4*(ks%4),4)}, {vr(xf+4*ks,4,"a")}, {vr(acc+32,16)}')
            if ks + 3 < 32: rd(ks + 3, 2, (ks + 3) % 4)
            if ks % 4 == 1: p.ins.extend(d[1][ks // 4])
        self.fstamp('g1p2')
        p('s_barrier')
        m2 = self.cap(self.mish, acc + 32, tm, pk, True); p.merge(m2, d[2]); self.act_store(pk, 2, guard=True)
        self.fstamp('g1mish')
        p.wait_tag('w2dma1')
        p('s_waitcnt lgkmcnt(0)\ns_barrier')
        V.free('g1acc', 'g1fr', 'g1tm', 'g1pk', 'bia', 'w1a', 'ud', 'us')
        A.free('xnf')
        lab = self.lab('nw')
        p(f's_or_b32 s52, {sBETA}, {sWAVE}\ns_cmp_lg_u32 s52, 0\ns_cbranch_scc1 {lab}')
        with p.cond(lambda c: c['w'] == 0):
            p('s_mov_b32 s101, 0')
            self.flag_store('s101', WS_FLG)
        p(f'{lab}:')
    def build(self):
        p, V, A = self.p, self.V, self.A
        self.entry()
        V.free('xv')
        w1rest = self._w1b0[self.o.get('early', 2):]
        self.idle_setup()
        self.gemm1_addr_setup()
        late = self.cap(self.gemm_addr_setup)
        p.ins.extend(late); self.late_setup = []
        p(f'v_add_u32 v{V["us"]+2}, {5*4096}, v{V["us"]+2}')
        if self.o.get('ptouch', 0): self.page_touch_setup()
        self.stamp('idle')
        self.ln()
        self.stamp('lnst')
        ks = self.cap(self.kgen_setup)
        q = w1rest + self._w1b1
        n_ks, n_kv1, n_kv2 = self.o.get('n_ks', 2), self.o.get('n_kv1', 4), self.o.get('n_kv2', 4)
        p.merge(ks, q[:n_ks]); q = q[n_ks:]
        self.w1b2 = self.w1_run(2)
        p('s_barrier')
        self.stamp('ksetup')
        main = self.kgen_values()
        n = len(main); nf = n * self.o.get('kflag', 55) // 100
        p.merge(main[:nf], q[:n_kv1]); q = q[n_kv1:]
        self.ln_flag()
        p.merge(main[nf:], q[:n_kv2]); q = q[n_kv2:]
        V.free('z', 'Z256', 'Cn', 'z2', 'z4', 'w', 'w2', 'w4', 'chains', 'cv', 'fa')
        self.stamp('kvals')
        p('s_waitcnt lgkmcnt(0)\ns_barrier')
        km = self.cap(self.kgen_mfma)
        p.merge(km, q, 2, len(km) - 12)
        self.poll_issue('A1', V['pA1'], 8, 1)
        self.stamp('kmfma')
        p('s_waitcnt lgkmcnt(0)\ns_barrier')
        ex = self.cap(self.expand)
        ncommon = next(k for k, i in enumerate(ex) if i.kind == 'branch')
        h1 = self.o.get('xh1', 40)
        p.ins.extend(ex[:h1])
        self.poll_check('A1', V['pA1'], 8, 1)
        V.free('pA1')
        self.stamp('pollA1')
        self.xn_setup()
        p.merge(ex[h1:ncommon - 1], [self.cap(self.xn_load, k) for k in range(self.o['xlead'])])
        p.ins.extend(ex[ncommon - 1:])
        p('s_waitcnt lgkmcnt(0)\ns_barrier')
        self.stamp('expand')
        self.gemm1()
        self.stamp('gemm1')
        self.conv()
        self.stamp('conv')
        self.gemm2()
        self.stamp('end')
        self.finish()
        return self.finalize()

if __name__ == '__main__':
    kern3.main(Gen8)
```
